```python
import torch

def _softmax(x, axis=-1):
    return torch.softmax(x, dim=axis)
def _gelu(x):
    return torch.nn.functional.gelu(x, approximate="tanh")
def _silu(x):
    return torch.nn.functional.silu(x)
def _sigmoid(x):
    return torch.sigmoid(x)
def _layernorm(x, axis=-1, eps=1e-5):
    m = x.mean(dim=axis, keepdim=True)
    v = x.var(dim=axis, keepdim=True, unbiased=False)
    return (x - m) / torch.sqrt(v + eps)
def _scatter_add(tgt, idx, src, axis=0):
    return tgt.clone().index_add_(axis, idx, src)
def _segment_sum(src, seg, n):
    out = torch.zeros((n,) + src.shape[1:], dtype=src.dtype)
    return out.index_add_(0, seg, src)
def _pad(x, pw):
    flat = tuple(v for pair in reversed(pw) for v in pair)
    return torch.nn.functional.pad(x, flat)

kernel_name = 'concat_heads__ssm_conv_s4__linear_kernel_hedgehog__prompt'

def setup_inputs():

    _w = (lambda a: (lambda t: t.to(torch.bfloat16) if t.is_floating_point() else t)(torch.as_tensor(a)))
    def _A_setup():
        B, L, D, N = 1, 2048, 512, 128
        A_re = -(lambda _x: torch.exp(torch.as_tensor(_x)))((lambda *s: torch.randn(*s, dtype=torch.bfloat16) * 3.2)(D, N))
        A_im = torch.pi * (lambda *s: torch.randn(*s, dtype=torch.bfloat16) * 0.2)(D, N)
        B_re = (lambda *s: torch.randn(*s, dtype=torch.bfloat16) * 0.4)(D, N)
        B_im = (lambda *s: torch.randn(*s, dtype=torch.bfloat16) * 0.4)(D, N)
        C_re = (lambda *s: torch.randn(*s, dtype=torch.bfloat16) * 0.4)(D, N)
        C_im = (lambda *s: torch.randn(*s, dtype=torch.bfloat16) * 0.4)(D, N)
        log_dt = (lambda *s: torch.randn(*s, dtype=torch.bfloat16) * 0.2)(D) * 0.5 - 4.0
        Dskip = (lambda *s: torch.randn(*s, dtype=torch.bfloat16) * 0.4)(D)
        return {
            "u": _w((lambda *s: torch.randn(*s, dtype=torch.bfloat16) * 0.05)(B, L, D)),
            "A_re": _w(A_re),
            "A_im": _w(A_im),
            "B_re": _w(B_re),
            "B_im": _w(B_im),
            "C_re": _w(C_re),
            "C_im": _w(C_im),
            "log_dt": _w(log_dt),
            "Dskip": _w(Dskip),
        }
    _A_in = _A_setup()

    def _B_setup():
        B, S, D, H = 1, 2048, 512, 32
        Dh = D // H
        return {
            "x": _w((lambda *s: torch.randn(*s, dtype=torch.bfloat16) * 0.4)(B, S, D)),
            "wqkv": _w((lambda *s: torch.randn(*s, dtype=torch.bfloat16) * 0.4)(D, 3 * D)),
            "w_phi": _w((lambda *s: torch.randn(*s, dtype=torch.bfloat16) * 0.4)(H, Dh, Dh) * (Dh ** -0.5)),
            "wo": _w((lambda *s: torch.randn(*s, dtype=torch.bfloat16) * 0.05)(D, D)),
        }
    _B_in = _B_setup()

    return {
        "A_u": _A_in["u"],
        "A_A_re": _A_in["A_re"],
        "A_A_im": _A_in["A_im"],
        "A_B_re": _A_in["B_re"],
        "A_B_im": _A_in["B_im"],
        "A_C_re": _A_in["C_re"],
        "A_C_im": _A_in["C_im"],
        "A_log_dt": _A_in["log_dt"],
        "A_Dskip": _A_in["Dskip"],
        "B_x": _B_in["x"],
        "B_wqkv": _B_in["wqkv"],
        "B_w_phi": _B_in["w_phi"],
        "B_wo": _B_in["wo"],
    }

def reference(A_u, A_A_re, A_A_im, A_B_re, A_B_im, A_C_re, A_C_im, A_log_dt, A_Dskip, B_x, B_wqkv, B_w_phi, B_wo):
    def _A_ref(u, A_re, A_im, B_re, B_im, C_re, C_im, log_dt, Dskip):
        Bsz, L, D = u.shape
        dt = torch.exp(log_dt)[:, None]
        A = A_re + 1j * A_im
        Bc = B_re + 1j * B_im
        Cc = C_re + 1j * C_im
        logdA = dt * A
        dB = dt * Bc
        l = (lambda x, dt: x.to(dt))(torch.arange(L), A_re.dtype)
        P = torch.exp(logdA[:, :, None] * l[None, None, :])
        K = torch.einsum("dn,dnl,dn->dl", Cc, P, dB).real
        L2 = 2 * L
        Kp = _pad(K, ((0, 0), (0, L)))
        up = (lambda x, *d: x.permute(*d))(u, 0, 2, 1)
        up = _pad(up, ((0, 0), (0, 0), (0, L)))
        Kf = (lambda x, axes=(-2,-1): torch.fft.rfft2(x.float(), dim=axes))(Kp[:, None, :], axes=(-2, -1))
        Uf = (lambda x, axes=(-2,-1): torch.fft.rfft2(x.float(), dim=axes))(up[:, :, None, :], axes=(-2, -1))
        Yf = Uf * Kf[None, :, :, :]
        y = (lambda x, s, axes=(-2,-1): torch.fft.irfft2(x, s=s, dim=axes).to(torch.bfloat16))(Yf, (1, L2), axes=(-2, -1))[:, :, 0, :L]
        y = (lambda x, *d: x.permute(*d))(y, 0, 2, 1) + u * Dskip[None, None, :]
        return y

    def _B_ref(x, wqkv, w_phi, wo):
        B, S, D = x.shape
        H = 32; Dh = D // H
        qkv = (lambda x, *d: x.permute(*d))((x @ wqkv).reshape(B, S, 3, H, Dh), 2, 0, 3, 1, 4)
        q, k, v = qkv[0], qkv[1], qkv[2]
        pq = torch.einsum("bhsd,hdf->bhsf", q, w_phi)
        pk = torch.einsum("bhsd,hdf->bhsf", k, w_phi)
        phi_q = torch.concatenate([_softmax(pq, axis=-1), _softmax(-pq, axis=-1)], axis=-1)
        phi_k = torch.concatenate([_softmax(pk, axis=-1), _softmax(-pk, axis=-1)], axis=-1)
        kv = torch.einsum("bhsf,bhsd->bhfd", phi_k, v)
        z  = torch.einsum("bhsf->bhf", phi_k)
        num = torch.einsum("bhqf,bhfd->bhqd", phi_q, kv)
        den = torch.einsum("bhqf,bhf->bhq", phi_q, z)[..., None] + 1e-6
        o = num / den
        return (lambda x, *d: x.permute(*d))(o, 0, 2, 1, 3).reshape(B, S, D) @ wo

    a = _A_ref(A_u, A_A_re, A_A_im, A_B_re, A_B_im, A_C_re, A_C_im, A_log_dt, A_Dskip)
    b = _B_ref(B_x, B_wqkv, B_w_phi, B_wo)
    return torch.concatenate([a, b], axis=-1)
```

```python
import re
WAR_MFMAS = 0

REG_RE = re.compile(r'(?<![\w.])([vsa])\[(\d+):(\d+)\]|(?<![\w.])([vsa])(\d+)(?![\w\[])|(?<![\w.])(vcc_lo|vcc_hi|vcc|exec_lo|exec_hi|exec|m0|scc)(?![\w])')

def regs_of(tok):
    out = []
    for m in REG_RE.finditer(tok):
        if m.group(1):
            out += [(m.group(1), i) for i in range(int(m.group(2)), int(m.group(3)) + 1)]
        elif m.group(4):
            out.append((m.group(4), int(m.group(5))))
        else:
            n = m.group(6)
            if n.startswith('vcc'): out.append(('x', 'vcc'))
            elif n.startswith('exec'): out.append(('x', 'exec'))
            else: out.append(('x', n))
    return out

TRANS = ('v_exp_f32', 'v_log_f32', 'v_rcp_f32', 'v_rsq_f32', 'v_sqrt_f32', 'v_sin_f32', 'v_cos_f32', 'v_rcp_iflag_f32')

class Ins:
    __slots__ = ('text', 'op', 'dst', 'src', 'kind', 'passes', 'srcC', 'tok', 'dma', 'wide_store', 'data')
    def __init__(self, text):
        self.text = text
        t = text.split(';')[0].strip()
        self.tok = None; self.dma = False; self.passes = 0; self.srcC = []; self.wide_store = False; self.data = []
        if t.endswith(':') or t == '' or t.startswith('.'):
            self.op = 'label' if t.endswith(':') else 'nop_dir'; self.dst = []; self.src = []; self.kind = self.op; return
        parts = t.split(None, 1)
        op = parts[0]; self.op = op
        rest = parts[1] if len(parts) > 1 else ''
        ops = [o.strip() for o in rest.split(',')]
        R = [regs_of(o) for o in ops]
        flat = lambda L: [r for x in L for r in x]
        base = re.sub(r'_(e32|e64|dpp|sdwa)$', '', op)
        if op.startswith('v_mfma'):
            self.kind = 'mfma'; self.dst = R[0]; self.src = flat(R[1:]); self.srcC = R[3] if len(R) > 3 else []
            self.passes = 8 if '32x32' in op else 4
        elif op.startswith('buffer_load') or op.startswith('global_load'):
            self.kind = 'vmem'
            if re.search(r'\blds\b', rest):
                self.dma = True; self.dst = []; self.src = flat(R) + [('x', 'm0')]
            else:
                self.dst = R[0]; self.src = flat(R[1:])
                if 'd16' in op: self.src += R[0]
        elif op.startswith('buffer_store') or op.startswith('global_store') or op.startswith('buffer_atomic') or op.startswith('global_atomic'):
            self.kind = 'vmem'; self.dst = []; self.src = flat(R)
            if op.endswith('x4') or op.endswith('x3'):
                self.wide_store = True; self.data = R[0] if op.startswith('buffer') else R[1]
        elif op.startswith('ds_read'):
            self.kind = 'ds'; self.dst = R[0]; self.src = flat(R[1:])
        elif op.startswith('ds_write'):
            self.kind = 'ds'; self.dst = []; self.src = flat(R)
        elif op.startswith('s_load') or op.startswith('s_memtime') or op.startswith('s_memrealtime'):
            self.kind = 'smem'; self.dst = R[0]; self.src = flat(R[1:])
        elif op.startswith('v_'):
            self.kind = 'valu'
            if base.startswith('v_cmpx'):
                self.dst = R[0] + [('x', 'exec')]; self.src = flat(R[1:])
            elif base.startswith('v_permlane') and 'swap' in base:
                self.dst = R[0] + R[1]; self.src = R[0] + R[1]
            elif base in ('v_fmac_f32', 'v_dot2c_f32_bf16', 'v_writelane_b32') or op.endswith('_dpp') or op.endswith('_sdwa'):
                self.dst = R[0]; self.src = flat(R)
            elif base in ('v_add_co_u32', 'v_sub_co_u32', 'v_addc_co_u32'):
                self.dst = R[0] + R[1]; self.src = flat(R[2:])
            elif base == 'v_nop':
                self.dst = []; self.src = []
            else:
                self.dst = R[0]; self.src = flat(R[1:])
        elif op.startswith('s_'):
            self.kind = 'salu'
            if op in ('s_waitcnt', 's_barrier', 's_nop', 's_endpgm', 's_sleep', 's_setprio', 's_branch') or op.startswith('s_cbranch'):
                self.dst = []; self.src = []
                if 'vcc' in op: self.src = [('x', 'vcc')]
                if 'exec' in op: self.src = [('x', 'exec')]
                if op != 's_nop' and op != 's_setprio' and op != 's_sleep': self.kind = 'ctrl'
            elif op.startswith('s_cmp') or op.startswith('s_bitcmp'):
                self.dst = []; self.src = flat(R)
            elif 'saveexec' in op:
                self.dst = R[0] + [('x', 'exec')]; self.src = flat(R[1:]) + [('x', 'exec')]
            elif op in ('s_setpc_b64',):
                self.dst = []; self.src = flat(R); self.kind = 'ctrl'
            else:
                self.dst = R[0]; self.src = flat(R[1:])
                if op in ('s_addk_i32', 's_mulk_i32'): self.src += R[0]
        else:
            raise ValueError('unknown op: ' + text)

class Prog:
    def __init__(self):
        self.items = []
        self.ntok = 0
    def __call__(self, text, tok=None):
        for line in text.split('\n'):
            line = line.strip()
            if not line: continue
            i = Ins(line); i.tok = tok; self.items.append(i)
    def ext(self, lst):
        for x in lst:
            if isinstance(x, str): self(x)
            else: self.items.append(x)
    def wait_tok(self, tok):
        self.items.append(('waittok', tok))
    def assume_clean(self):
        self.items.append(('clean', None))

    def finalize(self, verbose=True):
        out = []
        vq = []; lq = []
        def emit(t): out.append(Ins(t))
        def need(q, regs):
            idx = -1
            for n, e in enumerate(q):
                if e[0] & regs: idx = n
            return idx
        nw = 0
        for it in self.items:
            if isinstance(it, tuple):
                if it[0] == 'waittok':
                    idx = -1
                    for n, e in enumerate(vq):
                        if e[1] == it[1]: idx = n
                    if idx >= 0:
                        N = len(vq) - 1 - idx
                        emit(f's_waitcnt vmcnt({min(N,62)})'); vq = vq[idx + 1:]
                elif it[0] == 'clean':
                    vq = []; lq = []
                continue
            i = it
            if i.op == 's_waitcnt':
                m = re.search(r'vmcnt\((\d+)\)', i.text)
                if m:
                    N = int(m.group(1)); vq = vq[max(0, len(vq) - N):] if N < len(vq) else vq
                m = re.search(r'lgkmcnt\((\d+)\)', i.text)
                if m:
                    N = int(m.group(1))
                    if N == 0: lq = []
                    elif not any(e[2] for e in lq): lq = lq[max(0, len(lq) - N):] if N < len(lq) else lq
                out.append(i); continue
            regs = set(i.src) | set(i.dst)
            w = []
            idx = need(vq, regs)
            if idx >= 0:
                N = len(vq) - 1 - idx
                w.append(f'vmcnt({min(N,62)})'); vq = vq[idx + 1:]
            idx = need(lq, regs)
            if idx >= 0:
                if any(e[2] for e in lq):
                    w.append('lgkmcnt(0)'); lq = []
                else:
                    N = len(lq) - 1 - idx
                    w.append(f'lgkmcnt({min(N,14)})'); lq = lq[idx + 1:]
            if w: emit('s_waitcnt ' + ' '.join(w)); nw += 1
            out.append(i)
            if i.kind == 'vmem' and i.tok == 'nocount': pass
            elif i.kind == 'vmem':
                vq.append((set(i.dst), i.tok, False))
                assert len(vq) <= 63, 'vmcnt overflow at ' + i.text
            elif i.kind == 'ds': lq.append((set(i.dst), i.tok, False))
            elif i.kind == 'smem': lq.append((set(i.dst), i.tok, True))
        res = []; nnop = 0
        def states(x):
            if x.kind in ('label', 'nop_dir'): return 0
            if x.op == 's_nop': return int(x.text.split()[1], 0) + 1
            return 1
        for i in out:
            if i.kind in ('label', 'nop_dir'):
                res.append(i); continue
            req = 0; dist = 0
            S = set(i.src); D = set(i.dst)
            isvalu = i.kind == 'valu'
            base = re.sub(r'_(e32|e64|dpp|sdwa)$', '', i.op)
            for p in reversed(res):
                if dist >= 20: break
                if p.kind in ('label', 'nop_dir'): continue
                PD = set(p.dst); need_ = 0
                if p.kind == 'mfma':
                    big = {4: 8, 8: 12}[p.passes]
                    if i.kind == 'mfma':
                        AB = S - set(i.srcC) if i.srcC else S
                        ab = set(regs_of(i.text.split(',')[1])) | set(regs_of(i.text.split(',')[2]))
                        if ab & PD: need_ = max(need_, big)
                        if set(i.srcC) & PD:
                            if not (list(i.srcC) == list(p.dst) and i.passes == p.passes): need_ = max(need_, {4: 6, 8: 10}[p.passes])
                        elif D & PD: need_ = max(need_, big)
                    elif i.kind in ('valu', 'vmem', 'ds'):
                        if (S | D) & PD: need_ = max(need_, big)
                        if isvalu and D & set(p.srcC): need_ = max(need_, {4: 3, 8: 7}[p.passes])
                elif p.kind == 'valu':
                    pv = {r for r in PD if r[0] == 'v'}; ps = {r for r in PD if r[0] == 's' or r == ('x', 'vcc')}
                    if i.kind == 'mfma' and S & pv: need_ = max(need_, 2)
                    if i.kind == 'mfma' and ('x', 'exec') in PD: need_ = max(need_, 4)
                    if isvalu:
                        if (i.op.endswith('_dpp') or base.startswith('v_permlane')) and S & pv: need_ = max(need_, 2)
                        if (i.op.endswith('_dpp')) and ('x', 'exec') in PD: need_ = max(need_, 5)
                        if base in ('v_readfirstlane_b32', 'v_readlane_b32') and S & pv: need_ = max(need_, 1)
                        if base in ('v_readfirstlane_b32', 'v_readlane_b32', 'v_writelane_b32') and ('x', 'exec') in PD: need_ = max(need_, 4)
                        if S & ps: need_ = max(need_, 4 if base in ('v_readlane_b32', 'v_writelane_b32') else 2)
                        pb = re.sub(r'_(e32|e64|dpp|sdwa)$', '', p.op)
                        if pb in TRANS and S & pv: need_ = max(need_, 1)
                        if (p.op.endswith('_sdwa') or 'op_sel' in p.text and not p.op.startswith('v_pk')) and (S | D) & pv: need_ = max(need_, 1)
                    if i.kind == 'vmem' and S & ps: need_ = max(need_, 5)
                    if i.kind in ('salu', 'ctrl') and S & ps: need_ = max(need_, 1)
                elif p.kind == 'salu':
                    if ('x', 'm0') in PD and i.dma: need_ = max(need_, 1)
                elif p.kind == 'vmem':
                    if p.wide_store and D & set(p.data): need_ = max(need_, 2 if isvalu else 1)
                req = max(req, need_ - dist)
                dist += states(p)
            if req > 0:
                res.append(Ins(f's_nop {req - 1}')); nnop += req
            res.append(i)
        recent = []
        for k, i in enumerate(res):
            if i.kind == 'mfma':
                ops = i.text.split(',')
                recent.append((k, set(regs_of(ops[1])) | set(regs_of(ops[2]))))
            elif i.kind == 'ds' and i.dst:
                for back, (kk, ab) in enumerate(reversed((recent[-WAR_MFMAS:] if WAR_MFMAS else []))):
                    if ab & set(i.dst) and k - kk < 40: print('[asmdsl] WAR warning (%d mfma between): %s  <- %s' % (back, i.text, res[kk].text))
        if verbose: print(f'[asmdsl] {len(res)} lines, {nw} auto waits, {nnop} hazard nop states')
        return '\n'.join(('' if x.kind == 'label' else '    ') + x.text for x in res)

def interleave(main, fill, start=0, per=None):
    n = len(main) - start
    out = list(main[:start]); fi = 0
    for k, m in enumerate(main[start:]):
        out.append(m)
        tgt = (k + 1) * len(fill) // n
        while fi < tgt:
            out.append(fill[fi]); fi += 1
    out += fill[fi:]
    return out


def cost(x):
    if isinstance(x, tuple): return 3.0 if x[0] == 'dma' else 0.0
    op = x.split()[0]
    if op in TRANS: return 2.0
    if op.startswith('s_'): return 0.5
    if op.startswith('buffer_') : return 2.0
    return 1.0

def slotted(slots, fills):
    extra = [[] for _ in slots]
    for items, a, b in fills:
        b = min(b, len(slots) - 1)
        tot = sum(cost(x) for x in items); acc = 0.0; n = b - a + 1
        for x in items:
            k = a + min(n - 1, int((acc + 0.5 * cost(x)) * n / tot)) if tot > 0 else a
            extra[k].append(x); acc += cost(x)
    out = []
    for sl, ex in zip(slots, extra): out += sl + ex
    return out
```

```python
import os
WS_BASE = int(os.environ.get('WS_BASE','0'),0)
WS_EB   = 0x0
WS_EA   = 0x100
WS_FLAG = 0x1000
WS_STAMP= 0xD00000
WS_UT   = 0x100000
WS_YT   = 0x400000
WS_KVP  = 0x900000
WS_OX   = 0xA00000
WS_DBG  = 0x1000000
KVP_SZ = 2560
LOG2E = 0x3fb8aa3b
SPIN_MAX = 200000
WS_YF = 0x60000
WS_FLAG2 = 0x80000
```

```python
from asmdsl import Prog, interleave, slotted
from common import *

def vr(a, n): return f'v[{a}:{a+n-1}]'

PITCH = 544
KTCH = 57 * PITCH
T1 = 2 * KTCH
T2 = T1 + 8192
CT = T1; CTS = 3328
KR0, KR1, G4B, G8B, F1K = 0, 1216, 2368, 2880, 3200
UT0 = T2; UTS = 4640; UPAD = 528
XCH = 0
A3S = 16384

def genA(p, opt):
    stamp_n = [0]
    def stamp():
        if opt.get('stamps'):
            k = stamp_n[0]; stamp_n[0] += 1
            if k < 10: p(f's_memtime s[{80+2*k}:{81+2*k}]')
    PK = opt.get('pkA', 0)
    sU, sPar, sOUT, sWS = 8, 12, 36, 40
    s_g, s_m, s_w, s_ch, s_nh = 44, 45, 46, 47, 48
    s_tmp, s_tmp2, s_tmp3 = 49, 50, 51
    s_ldt, s_dsk = 52, 54
    s_ldv, s_dsv = 56, 57
    s_E1, s_tag = 58, 59
    s_msk = 60
    s_sp = 68
    s_so = 62
    s_ctb, s_utb = 66, 67
    vEp, vLane = 1, 2
    BAND = 224
    FIXM = 248
    p('A_ROLE:')
    p(f's_load_dwordx2 s[{sU}:{sU+1}], s[0:1], 0')
    for i in range(6): p(f's_load_dwordx2 s[{sPar+4*i}:{sPar+4*i+1}], s[0:1], {8+8*i}')
    p(f's_load_dwordx4 s[{s_ldt}:{s_ldt+3}], s[0:1], 56')
    p(f's_load_dwordx2 s[{sOUT}:{sOUT+1}], s[0:1], 104')
    p(f's_load_dwordx2 s[{sWS}:{sWS+1}], s[0:1], 120')
    if opt.get('stamps'): p('s_memrealtime s[78:79]')
    stamp()
    t0, t1, t2, t3, t4, t5 = 3, 4, 5, 6, 7, 8
    p(f'v_lshrrev_b32 v{t0}, 6, v0\nv_and_b32 v{vLane}, 63, v0\nv_readfirstlane_b32 s{s_w}, v{t0}')
    p(f's_and_b32 s{s_g}, s2, 7\ns_bfe_u32 s{s_m}, s2, 0x50003')
    p(f's_lshr_b32 s{s_ch}, s{s_w}, 1\ns_and_b32 s{s_nh}, s{s_w}, 1')
    vUg = 9
    p(f'v_bfe_u32 v{t1}, v0, 4, 1\nv_lshlrev_b32 v{t1}, 2, v{t1}\nv_and_b32 v{t2}, 7, v0\nv_xor_b32 v{t1}, v{t1}, v{t2}\nv_lshlrev_b32 v{t1}, 4, v{t1}')
    p(f'v_lshrrev_b32 v{t2}, 3, v0\nv_lshl_add_u32 v{vUg}, v{t2}, 10, v{t1}')
    p(f's_lshl_b32 s{s_tmp}, s{s_m}, 16\ns_lshl_b32 s{s_tmp2}, s{s_g}, 7\ns_add_u32 s{s_so}, s{s_tmp}, s{s_tmp2}\ns_add_u32 s{s_so+1}, s{s_so}, 32768')
    vPg = 10
    p(f's_lshl_b32 s{s_tmp}, s{s_g}, 5\ns_add_u32 s{s_tmp}, s{s_tmp}, s{s_m}')
    p(f's_lshl_b32 s{s_tmp3}, s{s_tmp}, 2')
    p(f's_add_u32 s{s_tmp2}, s{s_tmp3}, s{s_w}\ns_lshl_b32 s{s_so+2}, s{s_tmp2}, 7')
    p(f'v_lshlrev_b32 v{vPg}, 1, v{vLane}')
    p(f'v_mov_b32 v{vEp}, 0')
    p(f's_lshl_b32 s{s_so+3}, s{s_g}, 8')
    p(f's_mov_b32 s{sU+2}, 0x200000\ns_mov_b32 s{sU+3}, 0x20000')
    for i in range(6): p(f's_mov_b32 s{sPar+4*i+2}, 0x20000\ns_mov_b32 s{sPar+4*i+3}, 0x20000')
    p(f's_mov_b32 s{sOUT+2}, 0x400000\ns_mov_b32 s{sOUT+3}, 0x20000\ns_mov_b32 s{sWS+2}, 0x10000000\ns_mov_b32 s{sWS+3}, 0x20000')
    p(f's_lshl_b32 s{s_tmp2}, s{s_w}, 10')
    p(f's_add_u32 m0, s{s_tmp2}, {T1}')
    p('s_waitcnt lgkmcnt(0)')
    if WS_BASE: p(f's_add_u32 s{sWS}, s{sWS}, {hex(WS_BASE)}\ns_addc_u32 s{sWS+1}, s{sWS+1}, 0\ns_mov_b32 s{sWS+2}, {hex(0x10000000-WS_BASE)}')
    LD = opt.get('ldflagA', '')
    PAR = 12
    for i in range(6): p(f'buffer_load_ushort v{PAR+i}, v{vPg}, s[{sPar+4*i}:{sPar+4*i+3}], s{s_so+2} offen {LD}')
    p(f's_load_dword s{s_ldv}, s[{s_ldt}:{s_ldt+1}], s{s_tmp3}')
    p(f's_load_dword s{s_dsv}, s[{s_dsk}:{s_dsk+1}], s{s_tmp3}')
    p(f'buffer_load_dwordx4 v{vUg}, s[{sU}:{sU+3}], s{s_so} offen {LD} lds')
    p(f's_add_u32 m0, s{s_tmp2}, {T1+4096}')
    p(f'buffer_load_dwordx4 v{vUg}, s[{sU}:{sU+3}], s{s_so+1} offen {LD} lds', tok='utile')
    p(f'buffer_load_dword v{vEp}, v{vEp}, s[{sWS}:{sWS+3}], s{s_so+3} offen offset:{WS_EA} sc1')
    vD = 20
    p(f'v_bfe_u32 v{t0}, v0, 4, 2\nv_and_b32 v{t1}, 15, v0\nv_lshlrev_b32 v{t0}, 3, v{t0}\nv_sub_u32 v{vD}, v{t0}, v{t1}\nv_add_u32 v{vD}, 16, v{vD}')
    bands = [(11, 13), (6, 10), (3, 5), (6, 10), (5, 11), (4, 12), (4, 10)]
    p(f's_mov_b32 s{s_tmp}, 0x10001')
    for n, (lo, hi) in enumerate(bands):
        if n == 3: continue
        bits = ((1 << (hi-lo+1)) - 1) << (lo+16)
        dst = BAND + 4*n
        mul = 0x3f80 if n < 6 else 0xffff
        p(f's_mov_b32 s{s_msk}, {hex(bits)}\ns_mov_b32 s{s_msk+1}, 0')
        p(f'v_lshrrev_b64 v[{t1}:{t2}], v{vD}, s[{s_msk}:{s_msk+1}]')
        p(f'v_and_b32 v{t3}, 0xaa, v{t1}\nv_and_b32 v{t1}, 0x55, v{t1}\nv_lshl_or_b32 v{t1}, v{t3}, 15, v{t1}')
        for j in range(4):
            if j: p(f'v_lshrrev_b32 v{t3}, {2*j}, v{t1}\nv_and_b32 v{t3}, s{s_tmp}, v{t3}')
            else: p(f'v_and_b32 v{t3}, s{s_tmp}, v{t1}')
            p(f'v_mul_u32_u24 v{dst+j}, {hex(mul)}, v{t3}')
    BC = [BAND, BAND+4, BAND+8, BAND+4]; B7, B9 = BAND+16, BAND+20
    trA, wT2, rT2, gUT = 21, 22, 24, 25
    p(f'v_bfe_u32 v{t0}, v0, 2, 2\nv_bfe_u32 v{t1}, v0, 5, 1\nv_lshrrev_b32 v{t2}, 1, v{t0}\nv_xor_b32 v{t1}, v{t1}, v{t2}')
    p(f'v_lshlrev_b32 v{t0}, 7, v{t0}\nv_lshl_add_u32 v{t0}, v{t1}, 6, v{t0}')
    p(f'v_bfe_u32 v{t1}, v0, 4, 1\nv_lshl_add_u32 v{t0}, v{t1}, 5, v{t0}\nv_and_b32 v{t1}, 3, v0\nv_lshl_add_u32 v{t0}, v{t1}, 3, v{t0}')
    p(f's_lshl_b32 s{s_tmp}, s{s_w}, 11\ns_add_u32 s{s_tmp}, s{s_tmp}, {T1}')
    p(f'v_add_u32 v{trA}, s{s_tmp}, v{t0}')
    p(f's_lshl_b32 s{s_tmp}, s{s_w}, 1')
    p(f'v_and_b32 v{t0}, 7, v0\nv_xor_b32 v{t0}, s{s_tmp}, v{t0}\nv_lshlrev_b32 v{t0}, 4, v{t0}\nv_lshl_add_u32 v{t0}, v{vLane}, 7, v{t0}')
    p(f'v_add_u32 v{wT2}, {T2}, v{t0}\nv_xor_b32 v{t0}, 16, v{t0}\nv_add_u32 v{wT2+1}, {T2}, v{t0}')
    p(f'v_lshlrev_b32 v{rT2}, 4, v0\nv_add_u32 v{rT2}, {T1}, v{rT2}')
    vL16 = 27
    p(f'v_lshlrev_b32 v{vL16}, 4, v{vLane}')
    p(f'v_bfe_u32 v{t0}, v0, 3, 3\nv_and_b32 v{t1}, 7, v0\nv_xor_b32 v{t0}, v{t0}, v{t1}\nv_lshlrev_b32 v{t0}, 4, v{t0}')
    p(f'v_lshrrev_b32 v{t1}, 3, v0\nv_lshl_add_u32 v{gUT}, v{t1}, 12, v{t0}')
    p(f's_lshl_b32 s{s_tmp}, s{s_g}, 18\ns_lshl_b32 s{s_tmp2}, s{s_m}, 7\ns_add_u32 s{s_tmp}, s{s_tmp}, s{s_tmp2}\ns_add_u32 s{s_so}, s{s_tmp}, {WS_UT}\ns_add_u32 s{s_so+1}, s{s_so}, {32*4096}')
    p(f's_mul_i32 s{s_ctb}, s{s_ch}, {CTS}\ns_add_u32 s{s_ctb}, s{s_ctb}, {CT}\ns_mul_i32 s{s_utb}, s{s_ch}, {UTS}\ns_add_u32 s{s_utb}, s{s_utb}, {UT0}')
    p.wait_tok('utile')
    p('s_barrier')
    stamp()
    UB = 28
    for rd in range(4): p(f'ds_read_b64_tr_b16 {vr(UB+2*rd,2)}, v{trA} offset:{512*rd}')
    p('s_waitcnt lgkmcnt(0)')
    p(f'ds_write_b128 v{wT2}, {vr(UB,4)}\nds_write_b128 v{wT2+1}, {vr(UB+4,4)}')
    p(f's_cmp_eq_u32 s{s_ch}, 0')
    p(f's_cselect_b32 s{s_tmp}, 16, 0')
    p(f's_lshl_b32 s{s_ldv}, s{s_ldv}, s{s_tmp}\ns_and_b32 s{s_ldv}, s{s_ldv}, 0xffff0000\ns_lshl_b32 s{s_dsv}, s{s_dsv}, s{s_tmp}\ns_and_b32 s{s_dsv}, s{s_dsv}, 0xffff0000')
    DT = 36
    p(f'v_mov_b32 v{t0}, s{s_ldv}\nv_mov_b32 v{t4}, {hex(LOG2E)}\nv_mul_f32 v{t1}, v{t4}, v{t0}')
    p(f'v_fma_f32 v{t2}, v{t0}, v{t4}, -v{t1}\nv_fmac_f32 v{t2}, 0x32a57060, v{t0}')
    p(f'v_exp_f32 v{t1}, v{t1}\nv_mul_f32 v{t2}, 0x3f317218, v{t2}\nv_fmac_f32 v{t1}, v{t1}, v{t2}')
    p(f'v_cvt_pk_bf16_f32 v{t1}, v{t1}, v{t1}\nv_and_b32 v{DT}, 0xffff0000, v{t1}')
    for i in range(6): p(f'v_lshlrev_b32 v{PAR+i}, 16, v{PAR+i}')
    for i in range(4): p(f'v_mul_f32 v{PAR+i}, v{PAR+i}, v{DT}')
    Xr = 40
    S = [40+2*i for i in range(8)]
    P1, P8, P128, Y, Y2, P16, TMP = 56, 58, 60, 62, 64, 66, 68
    p(f'v_mul_f32 v{S[0]}, v{PAR+4}, v{PAR+2}\nv_mul_f32 v{S[0]+1}, v{PAR+4}, v{PAR+3}')
    p(f'v_fma_f32 v{S[0]}, -v{PAR+5}, v{PAR+3}, v{S[0]}\nv_fmac_f32 v{S[0]+1}, v{PAR+5}, v{PAR+2}')
    p(f'v_mul_f32 v{PAR}, {hex(LOG2E)}, v{PAR}\nv_mul_f32 v{PAR+1}, 0.15915494, v{PAR+1}')
    for dst, L in ((P1, 1), (P8, 8), (P128, 128)):
        if L == 1: p(f'v_exp_f32 v{t0}, v{PAR}\nv_fract_f32 v{t1}, v{PAR+1}')
        else:
            import struct
            lf = hex(struct.unpack('<I', struct.pack('<f', float(L)))[0])
            p(f'v_mul_f32 v{t0}, {lf}, v{PAR}\nv_mul_f32 v{t1}, {lf}, v{PAR+1}\nv_exp_f32 v{t0}, v{t0}\nv_fract_f32 v{t1}, v{t1}')
        p(f'v_cos_f32 v{t2}, v{t1}\nv_sin_f32 v{t3}, v{t1}\nv_mul_f32 v{dst}, v{t0}, v{t2}\nv_mul_f32 v{dst+1}, v{t0}, v{t3}')
    vW = 26
    p(f's_mul_i32 s{s_tmp}, s{s_ch}, {KTCH}\ns_lshl_b32 s{s_tmp2}, s{s_nh}, 8\ns_add_u32 s{s_tmp}, s{s_tmp}, s{s_tmp2}')
    p(f'v_lshl_add_u32 v{vW}, v{vLane}, 2, s{s_tmp}')
    p('s_waitcnt lgkmcnt(0)\ns_barrier')
    p(f'ds_read_b128 {vr(UB,4)}, v{rT2} offset:{T2-T1}\nds_read_b128 {vr(UB+4,4)}, v{rT2} offset:{T2-T1+4096}')
    ZR = 92
    for j in range(4): p(f'v_mov_b32 v{ZR+j}, 0')
    p(f'ds_write_b128 v{rT2}, {vr(ZR,4)}\nds_write_b128 v{rT2}, {vr(ZR,4)} offset:4096')
    p(f'buffer_store_dwordx4 {vr(UB,4)}, v{gUT}, s[{sWS}:{sWS+3}], s{s_so} offen sc1')
    p(f'buffer_store_dwordx4 {vr(UB+4,4)}, v{gUT}, s[{sWS}:{sWS+3}], s{s_so+1} offen sc1')
    stamp()
    cv = [76, 77, 78, 79]; cvn = [0]
    def cmul(dst, a, b, conj=False):
        if PK:
            if dst == a:
                L = [f'v_pk_mul_f32 {vr(TMP,2)}, {vr(a,2)}, {vr(b,2)} op_sel:[0,0] op_sel_hi:[1,0]']; acc = TMP
            else:
                L = [f'v_pk_mul_f32 {vr(dst,2)}, {vr(a,2)}, {vr(b,2)} op_sel:[0,0] op_sel_hi:[1,0]']; acc = dst
            neg = 'neg_hi:[0,1,0]' if conj else 'neg_lo:[0,1,0]'
            L.append(f'v_pk_fma_f32 {vr(dst,2)}, {vr(a,2)}, {vr(b,2)}, {vr(acc,2)} op_sel:[1,1,0] op_sel_hi:[0,1,1] {neg}')
            return L
        T = TMP + 2*(cvn[0] & 1)
        s1, s2 = ('', '-') if conj else ('-', '')
        return [f'v_mul_f32 v{T}, v{a+1}, v{b+1}', f'v_mul_f32 v{T+1}, v{a}, v{b+1}',
                f'v_fma_f32 v{dst}, v{a}, v{b}, {s1}v{T}', f'v_fma_f32 v{dst+1}, v{a+1}, v{b}, {s2}v{T+1}']
    def put(reg, e):
        c = cv[cvn[0] & 3]; cvn[0] += 1
        return [f'v_cvt_pk_bf16_f32 v{c}, v{reg}, v{reg+1}', f'ds_write_b32 v{vW}, v{c} offset:{e*PITCH}']
    xs = []
    xs.append(put(S[0], 0))
    for o in range(1, 8): xs.append(cmul(S[o], S[o-1], P1) + put(S[o], o))
    for o in range(8): xs.append(cmul(S[o], S[o], P128) + put(S[o], 8+o))
    for k, o in enumerate((0, 2, 4, 6)): xs.append(cmul(S[o], S[o], P128) + put(S[o], 16+k))
    for k, o in enumerate((0, 2, 4, 6)): xs.append(cmul(S[o], S[o], P128) + put(S[o], 20+k))
    xs.append(cmul(S[0], S[0], P128) + put(S[0], 40))
    xs.append(cmul(S[4], S[4], P128) + put(S[4], 24))
    xs.append(cmul(S[0], S[0], P8) + put(S[0], 25))
    for i in range(1, 4):
        xs.append(cmul(S[4], S[4], P128) + put(S[4], 24+2*i))
        xs.append(cmul(S[0], S[0], P128) + put(S[0], 25+2*i))
    for i in range(8): xs.append(cmul(S[0], S[0], P128) + put(S[0], 32+i))
    ys = []
    ys.append([f'v_mov_b32 v{cv[0]}, 0x3f80', f'ds_write_b32 v{vW}, v{cv[0]} offset:{41*PITCH}'])
    ys.append([f'v_mov_b32 v{Y}, v{P8}', f'v_xor_b32 v{Y+1}, 0x80000000, v{P8+1}'] + put(Y, 42))
    for j in range(2, 16): ys.append(cmul(Y, Y, P8, conj=True) + put(Y, 41+j))
    def zipops(a, b):
        out = []
        for i in range(max(len(a), len(b))):
            if i < len(a): out.append(a[i])
            if i < len(b): out.append(b[i])
        return out
    yi = 0
    if not PK:
        def retmp(L, new): return [x.replace(f'v{TMP+3}', f'v{new+1}').replace(f'v{TMP+2}', f'v{new}').replace(f'v{TMP+1}', f'v{new+1}').replace(f'v{TMP}', f'v{new}') for x in L]
        ys = [retmp(y, 80) for y in ys]
    else:
        ys = [[x.replace(vr(TMP, 2), vr(80, 2)) for x in y] for y in ys]
    ys = [[x.replace(f'v{cv[0]}', 'v84').replace(f'v{cv[1]}', 'v85').replace(f'v{cv[2]}', 'v84').replace(f'v{cv[3]}', 'v85') for x in y] for y in ys]
    for n, gx in enumerate(xs):
        if n < 8 or n >= len(xs) - 8:
            p.ext(zipops(gx, ys[yi])); yi += 1
        else: p.ext(gx)
    assert yi == 16
    vR = 3
    p(f'v_and_b32 v{t1}, 15, v0\nv_mul_u32_u24 v{vR}, {PITCH}, v{t1}\nv_bfe_u32 v{t2}, v0, 4, 2\nv_lshl_add_u32 v{vR}, v{t2}, 4, v{vR}')
    p(f's_mul_i32 s{s_tmp}, s{s_ch}, {KTCH}\nv_add_u32 v{vR}, s{s_tmp}, v{vR}')
    p(f'v_readfirstlane_b32 s{s_E1}, v{vEp}')
    p('s_waitcnt vmcnt(0) lgkmcnt(0)\ns_barrier')
    stamp()
    p(f's_add_u32 s{s_E1}, s{s_E1}, 1\ns_and_b32 s{s_tag}, s{s_E1}, 0xff')
    p(f's_cmp_lg_u32 s{s_w}, 0\ns_cbranch_scc1 A_NOFLAG')
    for j in range(4): p(f'v_mov_b32 v{40+j}, s{s_E1}')
    p(f's_lshl_b32 s{s_tmp}, s{s_g}, 5\ns_add_u32 s{s_tmp}, s{s_tmp}, s{s_m}\ns_lshl_b32 s{s_tmp}, s{s_tmp}, 7\ns_add_u32 s{s_tmp}, s{s_tmp}, {WS_FLAG}')
    p('s_mov_b64 exec, 0xff')
    p(f'buffer_store_dwordx4 v[40:43], v{vL16}, s[{sWS}:{sWS+3}], s{s_tmp} offen sc1')
    p('s_mov_b64 exec, -1')
    p('A_NOFLAG:')
    FR = 44
    D0, D1 = 28, 32
    j_, q_ = t1, t2
    p(f's_cmp_lg_u32 s{s_nh}, 0\ns_cbranch_scc1 A_KG1')
    def rdk(dst, e0, ks): return f'ds_read_b128 {vr(dst,4)}, v{vR} offset:{e0*PITCH+64*ks}'
    for ks in range(4):
        p(rdk(FR+12*ks, 41, ks)); p(rdk(FR+12*ks+4, 16, ks)); p(rdk(FR+12*ks+8, 0, ks))
    aW0, aW1, aG4, vDs = 6, 7, 8, 9
    p(f'v_lshrrev_b32 v{aW0}, 1, v{q_}\nv_lshlrev_b32 v{aW0}, 5, v{aW0}\nv_and_b32 v{aW1}, 1, v{q_}\nv_add_u32 v{aW0}, v{aW0}, v{aW1}')
    p(f'v_lshl_add_u32 v{aW0}, v{j_}, 1, v{aW0}\nv_lshlrev_b32 v{aW0}, 3, v{aW0}')
    p(f's_add_u32 s{s_tmp}, s{s_ctb}, {KR0+1064}\nv_sub_u32 v{aW0}, s{s_tmp}, v{aW0}')
    p(f'v_lshlrev_b32 v{aW1}, 4, v{q_}\nv_add_u32 v{aW1}, v{aW1}, v{j_}\nv_lshlrev_b32 v{aW1}, 4, v{aW1}')
    p(f's_add_u32 s{s_tmp}, s{s_ctb}, {KR0+1056-512}\nv_sub_u32 v{aW1}, s{s_tmp}, v{aW1}')
    p(f'v_lshlrev_b32 v{aG4}, 5, v{q_}\nv_add_u32 v{aG4}, v{aG4}, v{j_}\nv_lshlrev_b32 v{aG4}, 2, v{aG4}')
    p(f's_add_u32 s{s_tmp}, s{s_ctb}, {G4B+128-256}\nv_add_u32 v{aG4}, s{s_tmp}, v{aG4}')
    p(f'v_mov_b32 v{vDs}, 0\nv_mov_b32 v10, s{s_dsv}\ns_mov_b64 s[{s_msk}:{s_msk+1}], 1\nv_cndmask_b32 v{vDs}, v{vDs}, v10, s[{s_msk}:{s_msk+1}]')
    for ks in range(8):
        b = FR + 12*(ks & 3)
        p(f'v_mfma_f32_16x16x32_bf16 {vr(D1,4)}, {vr(b+4,4)}, {vr(b,4)}, {"0" if ks==0 else vr(D1,4)}')
        p(f'v_mfma_f32_16x16x32_bf16 {vr(D0,4)}, {vr(b+8,4)}, {vr(b,4)}, {"0" if ks==0 else vr(D0,4)}')
        if ks < 4:
            p(rdk(b, 41, ks+4)); p(rdk(b+4, 16, ks+4)); p(rdk(b+8, 0, ks+4))
    cA, cB, cC, cD, cE, cF = 12, 13, 14, 15, 16, 17
    p(f'v_cvt_pk_bf16_f32 v{cA}, v{D1+2}, v{D1+2}')
    p(f'v_cvt_pk_bf16_f32 v{cB}, v{D1+1}, v{D1}')
    p(f'v_cvt_pk_bf16_f32 v{cC}, v{D1+2}, v{D1+1}')
    p(f'v_cvt_pk_bf16_f32 v{cD}, v{D1}, v{D1}')
    p(f'v_cvt_pk_bf16_f32 v{cE}, v{D1+3}, v{D1+2}')
    p(f'v_cvt_pk_bf16_f32 v{cF}, v{D1+3}, v{D1+3}')
    p('s_mov_b32 exec_hi, 0')
    p(f'ds_write_b16 v{aW1}, v{cE} offset:2\nds_write_b32 v{aW1}, v{cA} offset:4\nds_write_b64 v{aW1}, {vr(cC,2)} offset:8\nds_write_b16 v{aW1}, v{cD} offset:16')
    p(f'ds_write_b32 v{aW1}, v{cE} offset:{KR1+4}\nds_write_b64 v{aW1}, {vr(cA,2)} offset:{KR1+8}\nds_write_b32 v{aW1}, v{cD} offset:{KR1+16}')
    p('s_mov_b32 exec_lo, 0\ns_mov_b32 exec_hi, 0x80000000')
    p(f'v_mov_b32 v18, s{s_ctb}\nds_write_b32 v18, v{cF} offset:{F1K}\nv_mov_b32 v{D1+3}, 0')
    p('s_mov_b32 exec_hi, -1')
    p(f'v_cvt_pk_bf16_f32 v{cA}, v{D1}, v{D1+1}\nv_cvt_pk_bf16_f32 v{cB}, v{D1+2}, v{D1+3}')
    p(f'ds_write_b32 v{aG4}, v{cA}\nds_write_b32 v{aG4}, v{cB} offset:64')
    p('s_mov_b32 exec_lo, -1')
    p(f'v_add_f32 v{D0}, v{D0}, v{vDs}')
    p(f'v_cvt_pk_bf16_f32 v{cC}, v{D0+3}, v{D0+2}\nv_cvt_pk_bf16_f32 v{cD}, v{D0+1}, v{D0}\nv_cvt_pk_bf16_f32 v{cE}, v{D0+2}, v{D0+1}')
    p(f'ds_write_b64 v{aW0}, {vr(cC,2)}')
    p(f'ds_write_b16 v{aW0}, v{cC} offset:{KR1+2}\nds_write_b32 v{aW0}, v{cE} offset:{KR1+4}\nds_write_b16_d16_hi v{aW0}, v{cD} offset:{KR1+8}')
    p('s_branch A_KG2')
    p.assume_clean()
    p('A_KG1:')
    for ks in range(8):
        if ks < 6: p(rdk(FR+8*ks, 41, ks)); p(rdk(FR+8*ks+4, 32, ks))
    p(f'v_lshlrev_b32 v6, 4, v{vLane}\nv_mov_b32 v7, {UPAD+4096}\ns_mov_b32 s{s_msk}, 0\ns_mov_b32 s{s_msk+1}, 2')
    p(f'v_cndmask_b32 v6, v6, v7, s[{s_msk}:{s_msk+1}]\nv_add_u32 v6, s{s_utb}, v6')
    p('s_mov_b32 exec_hi, 3')
    p(f'ds_write_b128 v6, {vr(ZR,4)}')
    p('s_mov_b32 exec_hi, -1')
    p(f'v_lshlrev_b32 v8, 2, v{j_}\nv_add_u32 v8, v8, v{q_}\nv_lshlrev_b32 v8, 3, v8\ns_add_u32 s{s_tmp}, s{s_ctb}, {G8B+64}\nv_add_u32 v8, s{s_tmp}, v8')
    for ks in range(8):
        b = FR + 8*(ks % 6)
        p(f'v_mfma_f32_16x16x32_bf16 {vr(D0,4)}, {vr(b,4)}, {vr(b+4,4)}, {"0" if ks==0 else vr(D0,4)}')
        if ks < 2: p(rdk(b, 41, ks+6)); p(rdk(b+4, 32, ks+6))
    p(f'v_mov_b32 v18, s{s_ctb}')
    p(f'v_cvt_pk_bf16_f32 v{cA}, v{D0}, v{D0+1}\nv_cvt_pk_bf16_f32 v{cB}, v{D0+2}, v{D0+3}\nv_cvt_pk_bf16_f32 v{cC}, v{D0}, v{D0}\nv_cvt_pk_bf16_f32 v{cD}, v{D0}, v{D0}')
    p('s_mov_b32 exec_lo, 0x00ff00ff\ns_mov_b32 exec_hi, 0x00ff00ff')
    p(f'ds_write_b64 v8, {vr(cA,2)}')
    p('s_mov_b64 exec, 0x100')
    p(f'ds_write_b16 v18, v{cC} offset:{KR0+42}\nds_write_b32 v18, v{cC} offset:{KR0+44}\nds_write_b16 v18, v{cC} offset:{KR0+48}')
    p(f'ds_write_b32 v18, v{cC} offset:{KR1+44}\nds_write_b32 v18, v{cC} offset:{KR1+48}')
    p('s_mov_b64 exec, -1')
    p('A_KG2:')
    p('s_waitcnt lgkmcnt(0)')
    p.assume_clean()
    stamp()
    p(f'v_and_b32 v6, 31, v0\nv_lshlrev_b32 v6, 7, v6')
    p(f's_lshl_b32 s{s_tmp}, s{s_g}, 12\ns_add_u32 s{s_tmp}, s{s_tmp}, {WS_FLAG}\ns_mov_b32 s{s_sp}, 0')
    p(f's_lshl_b32 s{s_tmp2}, s{s_g}, 5\ns_add_u32 s{s_tmp2}, s{s_tmp2}, s{s_m}\ns_lshl_b32 s{s_tmp2}, s{s_tmp2}, 2\ns_add_u32 s{s_tmp2}, s{s_tmp2}, s{s_w}\ns_lshl_b32 s{s_tmp2}, s{s_tmp2}, 11\ns_add_u32 s{s_tmp2}, s{s_tmp2}, {WS_UT}')
    p(f's_lshl_b32 s{s_tmp3}, s{s_nh}, 11\ns_add_u32 s{s_tmp3}, s{s_tmp3}, s{s_utb}\ns_add_u32 m0, s{s_tmp3}, {UPAD}')
    p('A_F_POLL:')
    p(f'buffer_load_dword v7, v6, s[{sWS}:{sWS+3}], s{s_tmp} offen sc1')
    p(f's_add_u32 s{s_sp}, s{s_sp}, 1\ns_cmp_gt_u32 s{s_sp}, {SPIN_MAX}\ns_cbranch_scc1 A_F_GO')
    p(f'v_cmp_ne_u32 vcc, s{s_E1}, v7')
    p('s_cbranch_vccnz A_F_POLL')
    p('A_F_GO:')
    p(f'buffer_load_dwordx4 v{vL16}, s[{sWS}:{sWS+3}], s{s_tmp2} offen sc1 lds')
    p(f'buffer_load_dwordx4 v{vL16}, s[{sWS}:{sWS+3}], s{s_tmp2} offen offset:1024 sc1 lds')
    vU, vK0, vK1, vG4, vG8 = 3, 6, 7, 8, 9
    p(f'v_lshlrev_b32 v{vU}, 1, v{j_}\nv_add_u32 v{vU}, v{vU}, v{q_}\nv_lshlrev_b32 v{vU}, 4, v{vU}\nv_add_u32 v{vU}, s{s_utb}, v{vU}')
    p(f'v_lshlrev_b32 v10, 3, v{q_}\nv_sub_u32 v10, v10, v{j_}\nv_lshlrev_b32 v10, 1, v10')
    p(f'v_and_b32 v11, 1, v0\nv_mul_u32_u24 v11, {KR1+2}, v11\nv_sub_u32 v10, v10, v11')
    p(f's_add_u32 s{s_tmp}, s{s_ctb}, {KR1+1056-512}\nv_add_u32 v{vK0}, s{s_tmp}, v10\nv_subrev_u32 v{vK1}, 512, v{vK0}')
    p(f'v_lshlrev_b32 v10, 2, v{q_}\nv_sub_u32 v10, v{j_}, v10')
    p(f's_add_u32 s{s_tmp}, s{s_ctb}, {G4B+8}\nv_lshl_add_u32 v{vG4}, v10, 3, s{s_tmp}\nv_add_u32 v{vG4}, 96, v{vG4}')
    p(f's_add_u32 s{s_tmp}, s{s_ctb}, {G8B+4}\nv_lshl_add_u32 v{vG8}, v10, 2, s{s_tmp}\nv_add_u32 v{vG8}, 48, v{vG8}')
    vY = 26
    p(f'v_lshrrev_b32 v10, 2, v{j_}\nv_lshlrev_b32 v10, 2, v10\nv_add_u32 v10, v10, v{q_}\nv_lshlrev_b32 v10, 2, v10\nv_and_b32 v11, 3, v0\nv_add_u32 v10, v10, v11\nv_lshlrev_b32 v{vY}, 4, v10')
    p(f's_lshl_b32 s{s_tmp2}, s{s_g}, 5\ns_add_u32 s{s_tmp2}, s{s_tmp2}, s{s_m}\ns_lshl_b32 s{s_tmp2}, s{s_tmp2}, 1\ns_add_u32 s{s_tmp2}, s{s_tmp2}, s{s_ch}\ns_lshl_b32 s{s_tmp2}, s{s_tmp2}, 13\ns_add_u32 s{s_so}, s{s_tmp2}, {WS_YT}\ns_add_u32 s{s_so+1}, s{s_so}, 4096')
    vTm = 25
    p(f'v_mov_b32 v{vTm}, 0xffffff00')
    xw, xr = 23, 24
    p(f's_mul_i32 s{s_tmp}, s{s_w}, 3072\ns_xor_b32 s{s_tmp2}, s{s_w}, 1\ns_mul_i32 s{s_tmp2}, s{s_tmp2}, 3072')
    p(f'v_add_u32 v{xw}, s{s_tmp}, v{vL16}\nv_add_u32 v{xr}, s{s_tmp2}, v{vL16}')
    p('s_waitcnt vmcnt(0)\ns_barrier')
    stamp()
    ACC = 28
    KF = 60
    UF = 128
    def acc(t): return vr(ACC+4*t, 4)
    def rdK(s):
        a, o = (vK0, 16*(8-s)) if s <= 8 else (vK1, 16*(16-s))
        return [f'ds_read2_b32 {vr(KF+4*s,2)}, v{a} offset0:{o} offset1:{o+1}', f'ds_read2_b32 {vr(KF+4*s+2,2)}, v{a} offset0:{o+2} offset1:{o+3}']
    def rdU(n, slot): return f'ds_read_b128 {vr(UF+4*slot,4)}, v{vU} offset:{64*n+512}'
    started = set()
    def mf(t, A, B):
        c = acc(t) if t in started else '0'
        started.add(t)
        return f'v_mfma_f32_16x16x32_bf16 {acc(t)}, {vr(A,4)}, {vr(B,4)}, {c}'
    def ytag_store(t):
        L = [f'v_and_or_b32 v{ACC+4*t+j}, v{ACC+4*t+j}, v{vTm}, s{s_tag}' for j in range(4)]
        L.append(f'buffer_store_dwordx4 {acc(t)}, v{vY}, s[{sWS}:{sWS+3}], s{s_so+(t>>2)} offen offset:{1024*(t&3)} sc1')
        return L
    p(f's_cmp_lg_u32 s{s_nh}, 0\ns_cbranch_scc1 A_CONV_P')
    PREU = 5
    FX = 160
    p(f'v_mov_b32 v18, s{s_ctb}\nds_read_b32 v{FX+4}, v18 offset:{F1K}')
    order = [-8] + list(range(0, 57))
    korder = list(range(16, -1, -1))
    pro = []
    kq = list(korder)
    p(rdU(order[0], 0))
    p.ext(rdK(kq.pop(0)))
    for i in range(1, PREU):
        p(rdU(order[i], i)); p.ext(rdK(kq.pop(0)))
    for j in range(4): p(f'v_and_b32 v{FX+j}, v{FIXM+j}, v{FX+4}')
    for i, n in enumerate(order):
        sl = UF + 4*(i % 8)
        ms = []
        if n >= 0:
            for t in range(2, 8):
                s = 8*t - n
                if 0 <= s <= 16: ms.append(mf(t, KF+4*s, sl))
        if n % 8 == 0 and -8 <= n <= 24: ms.append(mf((n+32)//8, FX, sl))
        nxt = []
        if i + PREU < len(order): nxt.append(rdU(order[i+PREU], (i+PREU) % 8))
        if kq: nxt += rdK(kq.pop(0))
        p(ms[0]); p.ext(nxt); p.ext(ms[1:])
    for k, t in enumerate((2, 3, 4)): p(f'ds_write_b128 v{xw}, {acc(t)} offset:{XCH+1024*k}')
    p('s_waitcnt lgkmcnt(0)\ns_barrier')
    for k in range(3): p(f'ds_read_b128 {vr(UF+4*k,4)}, v{xr} offset:{XCH+1024*k}')
    for k, t in enumerate((5, 6, 7)):
        for j in range(4): p(f'v_add_f32 v{ACC+4*t+j}, v{ACC+4*t+j}, v{UF+4*k+j}')
        p.ext(ytag_store(t))
    p('s_branch A_CONV_END')
    p.assume_clean()
    started.clear()
    p('A_CONV_P:')
    G4F = 160
    G8F = 184
    WD = 200
    WFR = 252
    order = list(range(-8, 9))
    kneed = []
    for n in order:
        for s in ([8-n] + ([-n] if n <= 0 else [])):
            if s not in kneed: kneed.append(s)
    kq = list(kneed)
    extra = []
    for d in range(3):
        for i in range(4): extra.append(f'ds_read_b64 {vr(G4F+8*d+2*i,2)}, v{vG4} offset:{128*d+8*(3-i)}')
    for d in range(4):
        extra.append(f'ds_read2_b32 {vr(G8F+4*d,2)}, v{vG8} offset0:{16*d+3} offset1:{16*d+2}')
        extra.append(f'ds_read2_b32 {vr(G8F+4*d+2,2)}, v{vG8} offset0:{16*d+1} offset1:{16*d}')
    PP = 3
    for i in range(PP):
        p(rdU(order[i], i)); p.ext(rdK(kq.pop(0))); p.ext(rdK(kq.pop(0)))
    for i, n in enumerate(order):
        sl = UF + 4*(i % 8)
        ms = [mf(1, KF+4*(8-n), sl)]
        if n <= 0: ms.append(mf(0, KF+4*(-n), sl))
        nxt = []
        if i + PP < len(order): nxt.append(rdU(order[i+PP], (i+PP) % 8))
        for _ in range(2):
            if kq: nxt += rdK(kq.pop(0))
        if not kq:
            for _ in range(3):
                if extra: nxt.append(extra.pop(0))
        p(ms[0]); p.ext(nxt); p.ext(ms[1:])
    p.ext(extra)
    FA = [UF, UF+8, UF+16]; FB = [UF+4, UF+12, UF+20]
    def rdF(be): return [f'ds_read_b128 {vr(FA[be%3],4)}, v{vU} offset:{512*be+496}', f'ds_read_b128 {vr(FB[be%3],4)}, v{vU} offset:{512*be+480}']
    def win(be):
        fa, fb = FA[be % 3], FB[be % 3]
        L = [f'v_mfma_f32_16x16x32_bf16 {vr(WD+4*c,4)}, {vr(fa if c<3 else fb,4)}, {vr(BC[c],4)}, 0' for c in range(4)]
        if be < 4:
            L += [f'v_mfma_f32_16x16x32_bf16 {vr(WD+16,4)}, {vr(fa,4)}, {vr(B7,4)}, 0', f'v_mfma_f32_16x16x32_bf16 {vr(WD+20,4)}, {vr(fb,4)}, {vr(B9,4)}, 0']
        return L
    def wfr(be): return KF + 12*(be & 1)
    def cvts(be):
        w = wfr(be); L = []
        for i in range(4):
            L.append(f'v_cvt_pk_bf16_f32 v{w+2*i}, v{WD+i}, v{WD+4+i}')
            L.append(f'v_cvt_pk_bf16_f32 v{w+2*i+1}, v{WD+8+i}, v{WD+12+i}')
        if be < 4:
            for i in range(4): L.append(f'v_cvt_pk_bf16_f32 v{w+8+i}, v{WD+16+i}, v{WD+20+i}')
        return L
    def cons(be):
        w = wfr(be); L = []
        for d in range(3):
            if be + d <= 5:
                L.append(mf(2+be+d, w, G4F+8*d)); L.append(mf(2+be+d, w+4, G4F+8*d+4))
        if be < 4:
            for d in range(4):
                if be + d <= 3: L.append(mf(4+be+d, w+8, G8F+4*d))
        return L
    p.ext(rdF(0)); p.ext(rdF(1))
    p.ext(win(0)); p.ext(rdF(2))
    p.ext(ytag_store(0))
    p.ext(cvts(0))
    for be in range(6):
        if be < 5:
            p.ext(win(be+1))
            if be + 3 <= 5: p.ext(rdF(be+3))
            c = cons(be); cv_ = cvts(be+1)
            k = min(3, len(c))
            p.ext(c[:k])
            if be == 0: p.ext(ytag_store(1))
            p.ext(interleave(c[k:], cv_) if len(c) > k else cv_)
        else: p.ext(cons(be))
    for k, t in enumerate((5, 6, 7)): p(f'ds_write_b128 v{xw}, {acc(t)} offset:{XCH+1024*k}')
    p('s_waitcnt lgkmcnt(0)\ns_barrier')
    for k in range(3): p(f'ds_read_b128 {vr(UF+4*k,4)}, v{xr} offset:{XCH+1024*k}')
    for k, t in enumerate((2, 3, 4)):
        for j in range(4): p(f'v_add_f32 v{ACC+4*t+j}, v{ACC+4*t+j}, v{UF+4*k+j}')
        p.ext(ytag_store(t))
    p('A_CONV_END:')
    p.assume_clean()
    stamp()
    yl = 3
    p(f'v_lshrrev_b32 v10, 4, v0\nv_lshlrev_b32 v10, 15, v10\nv_and_b32 v11, 15, v0\nv_lshl_add_u32 v{yl}, v11, 4, v10')
    for c in range(1, 4): p(f'v_add_u32 v{yl+c}, {8192*c}, v{yl}')
    p(f's_lshl_b32 s{s_tmp}, s{s_g}, 19\ns_lshl_b32 s{s_tmp2}, s{s_m}, 8\ns_add_u32 s{s_tmp}, s{s_tmp}, s{s_tmp2}\ns_add_u32 s{s_so}, s{s_tmp}, {WS_YT}')
    aw = 7
    p(f'v_and_b32 v10, 3, v0\nv_bfe_u32 v11, v0, 2, 2\nv_lshl_add_u32 v10, v10, 2, v11')
    p(f'v_lshlrev_b32 v{aw}, 9, v10\nv_and_b32 v10, 7, v10\nv_lshrrev_b32 v11, 5, v0\nv_xor_b32 v10, v10, v11\nv_lshl_add_u32 v{aw}, v10, 4, v{aw}')
    p(f'v_bfe_u32 v10, v0, 4, 1\nv_lshl_add_u32 v{aw}, v10, 3, v{aw}')
    ao = 8
    p(f'v_and_b32 v10, 7, v0\nv_xor_b32 v10, v10, v11\nv_lshlrev_b32 v10, 4, v10\nv_lshrrev_b32 v11, 3, v0\nv_lshl_add_u32 v{ao}, v11, 11, v10')
    p(f's_lshl_b32 s{s_tmp}, s{s_m}, 17\ns_lshl_b32 s{s_tmp2}, s{s_g}, 7\ns_add_u32 s{s_so+2}, s{s_tmp}, s{s_tmp2}\ns_add_u32 s{s_so+3}, s{s_so+2}, 65536')
    p(f'v_lshlrev_b32 v9, 4, v0')
    p(f's_mov_b32 s{s_sp}, 0')
    YL = 28; chk = 12
    p('A_Y_LOAD:')
    for c in range(4): p(f'buffer_load_dwordx4 {vr(YL+4*c,4)}, v{yl+c}, s[{sWS}:{sWS+3}], s{s_so} offen sc1')
    p(f'v_mov_b32 v{chk}, 0')
    for k in range(16): p(f'v_bitop3_b32 v{chk}, v{chk}, v{YL+k}, s{s_tag} bitop3:0xf6')
    p(f'v_and_b32 v{chk}, 0xff, v{chk}\nv_cmp_ne_u32 vcc, 0, v{chk}')
    p('s_cbranch_vccnz A_Y_RETRY')
    p('A_Y_OK:')
    stamp()
    for i in range(4):
        p(f'v_cvt_pk_bf16_f32 v{44+2*i}, v{YL+i}, v{YL+4+i}\nv_cvt_pk_bf16_f32 v{45+2*i}, v{YL+8+i}, v{YL+12+i}')
        p(f'ds_write_b64 v{aw}, {vr(44+2*i,2)} offset:{A3S+128*i}')
    p('s_waitcnt lgkmcnt(0)\ns_barrier')
    p(f'ds_read_b128 v[52:55], v9 offset:{A3S}\nds_read_b128 v[56:59], v9 offset:{A3S+4096}')
    STF = opt.get('outflagA', '')
    p(f'buffer_store_dwordx4 v[52:55], v{ao}, s[{sOUT}:{sOUT+3}], s{s_so+2} offen {STF}')
    p(f'buffer_store_dwordx4 v[56:59], v{ao}, s[{sOUT}:{sOUT+3}], s{s_so+3} offen {STF}')
    p(f's_or_b32 s{s_tmp}, s{s_m}, s{s_w}\ns_cmp_lg_u32 s{s_tmp}, 0\ns_cbranch_scc1 A_END')
    p(f'v_mov_b32 v10, s{s_E1}\nv_mov_b32 v11, 0\ns_lshl_b32 s{s_tmp}, s{s_g}, 8\ns_mov_b64 exec, 1')
    p(f'buffer_store_dword v10, v11, s[{sWS}:{sWS+3}], s{s_tmp} offen offset:{WS_EA} sc1')
    p('A_END:')
    if opt.get('stamps'):
        p('s_mov_b64 exec, -1')
        p('s_waitcnt vmcnt(0)')
        p('s_memtime s[100:101]\ns_memrealtime s[76:77]\ns_waitcnt lgkmcnt(0)')
        for k in range(11): p(f'v_mov_b32 v{16+k}, s{80+2*k}')
        p('v_mov_b32 v27, s78\nv_mov_b32 v28, s76\n' + f'v_mov_b32 v29, s{s_sp}')
        p(f's_lshl_b32 s{s_tmp}, s2, 8\ns_lshl_b32 s{s_tmp2}, s{s_w}, 6\ns_add_u32 s{s_tmp}, s{s_tmp}, s{s_tmp2}\ns_add_u32 s{s_tmp}, s{s_tmp}, {WS_STAMP}')
        p('v_mov_b32 v0, 0\ns_mov_b64 exec, 1')
        for k in range(4): p(f'buffer_store_dwordx4 v[{16+4*k}:{19+4*k}], v0, s[{sWS}:{sWS+3}], s{s_tmp} offen offset:{16*k}')
    p('s_endpgm')
    p.assume_clean()
    p('A_Y_RETRY:')
    p(f's_add_u32 s{s_sp}, s{s_sp}, 1\ns_cmp_gt_u32 s{s_sp}, {SPIN_MAX}\ns_cbranch_scc1 A_Y_OK')
    p('s_sleep 8\ns_branch A_Y_LOAD')
```

```python
from asmdsl import Prog, interleave, slotted
from common import *

RA, RB, ST = 0, 32768, 65536
KT = ST
ZERO = ST + 3200

def vr(a, n): return f'v[{a}:{a+n-1}]'

def genB(p, opt):
    stamp_n = [0]
    def stamp():
        if opt.get('stamps'):
            k = stamp_n[0]; stamp_n[0] += 1
            p(f's_memtime s[{80+2*k}:{81+2*k}]') if k < 10 else None
    sX, sW, sP, sO, sOUT, sWS = 8, 12, 16, 20, 24, 28
    s_rb, s_hp, s_w, s_loc, s_xcd = 32, 33, 34, 35, 36
    s_xo = 40
    s_wo = 48
    s_m0b = 37
    s_t = 56
    s_E1 = 60
    s_tmp, s_tmp2, s_tmp3 = 61, 62, 63
    s_c = 64
    s_msk = 66
    s_sp = 68
    s_so = 70
    s_st = 38
    ACC0, ACC1, P, WF, E, X = 16, 32, 48, 64, 96, 128
    vA1, vA2 = 8, 12
    vTR, vTRv, vWg, vLane, vEp = 1, 2, 3, 4, 5
    vT0, vT1 = 6, 7
    vXg = E
    vSW = E + 4
    vSR = E + 6
    t0, t1, t2, t3 = E + 10, E + 11, E + 12, E + 13

    p('B_ROLE:')
    p(f's_load_dwordx2 s[{sX}:{sX+1}], s[0:1], 72')
    p(f's_load_dwordx2 s[{sW}:{sW+1}], s[0:1], 80')
    p(f's_load_dwordx2 s[{sP}:{sP+1}], s[0:1], 88')
    p(f's_load_dwordx2 s[{sO}:{sO+1}], s[0:1], 96')
    p(f's_load_dwordx2 s[{sOUT}:{sOUT+1}], s[0:1], 104')
    p(f's_load_dwordx2 s[{sWS}:{sWS+1}], s[0:1], 120')
    if opt.get('stamps'): p('s_memrealtime s[78:79]')
    stamp()
    if opt.get('prioB'): p(f's_setprio {opt["prioB"]}')
    p(f'v_lshrrev_b32 v{t0}, 6, v0')
    p(f'v_and_b32 v{vLane}, 63, v0')
    p(f'v_readfirstlane_b32 s{s_w}, v{t0}')
    p(f's_and_b32 s{s_xcd}, s2, 7')
    p(f's_lshr_b32 s{s_loc}, s2, 3')
    p(f's_and_b32 s{s_tmp}, s{s_xcd}, 1\ns_lshl_b32 s{s_tmp}, s{s_tmp}, 3\ns_and_b32 s{s_tmp2}, s{s_loc}, 7\ns_add_u32 s{s_rb}, s{s_tmp}, s{s_tmp2}')
    p(f's_lshr_b32 s{s_tmp}, s{s_xcd}, 1\ns_lshl_b32 s{s_tmp}, s{s_tmp}, 2\ns_lshr_b32 s{s_tmp3}, s{s_loc}, 3\ns_add_u32 s{s_hp}, s{s_tmp}, s{s_tmp3}')
    p(f's_lshl_b32 s{s_tmp3}, s{s_tmp3}, 1\ns_add_u32 s{s_tmp}, s{s_tmp2}, s{s_tmp3}\ns_and_b32 s{s_tmp}, s{s_tmp}, 7')
    if opt.get('norot'): p(f's_mov_b32 s{s_tmp}, 0')
    p(f's_lshl_b32 s{s_xo}, s{s_tmp}, 7')
    p(f's_mul_i32 s{s_wo}, s{s_xo}, 1536')
    for c in range(1, 8):
        p(f's_add_u32 s{s_xo+c}, s{s_xo+c-1}, 128\ns_and_b32 s{s_xo+c}, s{s_xo+c}, 1023\ns_mul_i32 s{s_wo+c}, s{s_xo+c}, 1536')
    p(f's_lshl_b32 s{s_m0b}, s{s_w}, 10\ns_lshl_b32 s{s_st}, s{s_w}, 12')
    p(f'v_bfe_u32 v{t1}, v0, 3, 3')
    p(f'v_lshl_add_u32 v{t1}, v{t0}, 5, v{t1}')
    p(f'v_and_b32 v{t2}, 7, v0')
    p(f'v_lshlrev_b32 v{t2}, 4, v{t2}')
    p(f'v_lshl_add_u32 v{t1}, v{t1}, 10, v{t2}')
    p(f's_lshl_b32 s{s_tmp}, s{s_rb}, 17')
    p(f'v_add_u32 v{vXg}, s{s_tmp}, v{t1}')
    for i in range(1, 4): p(f'v_add_u32 v{vXg+i}, {8192*i}, v{vXg}')
    p(f'v_lshrrev_b32 v{t1}, 2, v0\nv_mul_u32_u24 v{t1}, 3072, v{t1}\nv_and_b32 v{t2}, 3, v0\nv_lshl_add_u32 v{t1}, v{t2}, 4, v{t1}')
    p(f's_lshl_b32 s{s_tmp}, s{s_hp}, 6\ns_add_u32 s{s_tmp}, s{s_tmp}, 1024')
    p(f'v_add_u32 v{vWg}, s{s_tmp}, v{t1}')
    p(f'v_lshlrev_b32 v{t3}, 4, v{vLane}')
    p(f's_lshl_b32 s{s_tmp2}, s{s_hp}, 10')
    p(f'v_mov_b32 v{vEp}, 0')
    for s, n in ((sX, 0x200000), (sW, 0x180000), (sP, 0x4000), (sO, 0x80000), (sOUT, 0x400000), (sWS, 0x10000000)):
        p(f's_mov_b32 s{s+2}, {hex(n)}\ns_mov_b32 s{s+3}, 0x20000')
    p(f's_add_u32 m0, s{s_st}, {ST}')
    p('s_waitcnt lgkmcnt(0)')
    LD = opt.get('ldflag', '')
    p(f'buffer_load_dwordx4 v{t3}, s[{sP}:{sP+3}], s{s_tmp2} offen lds', tok='wphi')
    def issue_k(c):
        for i in range(4):
            p(f'buffer_load_dwordx4 {vr(X+16*c+4*i,4)}, v{vXg+i}, s[{sX}:{sX+3}], s{s_xo+c} offen {LD}')
        p(f's_add_u32 m0, s{s_m0b}, {RA+4096*c}')
        p(f'buffer_load_dwordx4 v{vWg}, s[{sW}:{sW+3}], s{s_wo+c} offen {LD} lds', tok=f'wk{c}')
    def issue_v(c):
        p(f's_add_u32 m0, s{s_m0b}, {RB+4096*c-1024}')
        p(f'buffer_load_dwordx4 v{vWg}, s[{sW}:{sW+3}], s{s_wo+c} offen offset:1024 {LD} lds', tok=f'wv{c}')
    DEP = opt.get('depth', 2)
    for c in range(DEP): issue_k(c)
    p(f'buffer_load_dword v{vEp}, v{vEp}, s[{sWS}:{sWS+3}], 0 offen offset:{WS_EB} sc1')
    R_, CQ, NH, H_ = P, P+1, P+2, P+3
    p(f'v_bfe_u32 v{R_}, v0, 2, 2\nv_and_b32 v{CQ}, 3, v0\nv_bfe_u32 v{NH}, v0, 4, 1\nv_bfe_u32 v{H_}, v0, 5, 1')
    p(f'v_lshl_add_u32 v{t0}, v{H_}, 3, v{R_}\nv_lshlrev_b32 v{t0}, 6, v{t0}')
    p(f'v_lshl_add_u32 v{t1}, v{NH}, 2, v{CQ}\nv_lshl_add_u32 v{vTR}, v{t1}, 3, v{t0}')
    p(f'v_and_b32 v{t1}, 1, v{CQ}\nv_lshl_add_u32 v{t2}, v{t1}, 1, v{NH}')
    p(f'v_lshrrev_b32 v{t3}, 1, v{CQ}\nv_lshl_add_u32 v{t2}, v{t2}, 1, v{t3}')
    p(f'v_lshl_add_u32 v{vTRv}, v{t2}, 3, v{t0}')
    p(f'v_lshl_add_u32 v{t2}, v{NH}, 1, v{t3}\nv_lshlrev_b32 v{t2}, 3, v{t2}')
    p(f'v_lshl_add_u32 v{t2}, v{t1}, 9, v{t2}')
    p(f'v_lshl_add_u32 v{t0}, v{H_}, 2, v{R_}\nv_lshl_add_u32 v{t2}, v{t0}, 5, v{t2}')
    p(f's_add_u32 s{s_tmp}, s{s_st}, {ST}')
    p(f'v_add_u32 v{t2}, s{s_tmp}, v{t2}')
    p(f'v_lshrrev_b32 v{t0}, 4, v{vLane}\nv_and_b32 v{t1}, 7, v0\nv_xor_b32 v{t0}, v{t0}, v{t1}\nv_lshlrev_b32 v{t0}, 4, v{t0}')
    p(f'v_lshrrev_b32 v{t1}, 3, v{vLane}\nv_lshl_add_u32 v{t0}, v{t1}, 7, v{t0}')
    p(f'v_add_u32 v{vSW}, s{s_tmp}, v{t0}\nv_xor_b32 v{vSW+1}, 64, v{vSW}')
    p(f'v_bfe_u32 v{t0}, v0, 1, 3\nv_xor_b32 v{t0}, v{t0}, v{H_}\nv_lshlrev_b32 v{t0}, 4, v{t0}')
    p(f'v_and_b32 v{t1}, 31, v0\nv_lshl_add_u32 v{t0}, v{t1}, 7, v{t0}')
    p(f'v_add_u32 v{vSR}, s{s_tmp}, v{t0}')
    for j in range(1, 4): p(f'v_xor_b32 v{vSR+j}, {32*j}, v{vSR}')
    p(f's_mov_b32 s{s_msk}, 0x0f0f0f0f\ns_mov_b32 s{s_msk+1}, 0x0f0f0f0f')
    p(f's_mov_b32 s{s_c}, {hex(LOG2E)}\ns_mov_b32 s{s_c+1}, {hex(LOG2E)}')
    p.wait_tok('wphi')
    p(f'ds_read_b64_tr_b16 {vr(vA1,2)}, v{t2}')
    p(f'ds_read_b64_tr_b16 {vr(vA1+2,2)}, v{t2} offset:256')
    for j in range(4): p(f'v_cndmask_b32 v{vA2+j}, v{vA1+j}, 0, s[{s_msk}:{s_msk+1}]')
    for j in range(4): p(f'v_cndmask_b32 v{vA1+j}, 0, v{vA1+j}, s[{s_msk}:{s_msk+1}]')
    stamp()
    def trpair(dst, addr, off):
        return [f'ds_read_b64_tr_b16 {vr(dst,2)}, v{addr} offset:{off}', f'ds_read_b64_tr_b16 {vr(dst+2,2)}, v{addr} offset:{off+256}']
    def kmf(c):
        return [f'v_mfma_f32_32x32x16_bf16 {vr(ACC0,16)}, {vr(WF+16*(c&1)+4*j,4)}, {vr(X+16*c+4*j,4)}, {"0" if (c==0 and j==0) else vr(ACC0,16)}' for j in range(4)]
    vleft = list(range(8))
    for c in range(8):
        p.wait_tok(f'wk{c}')
        def iss():
            if c + DEP < 8: issue_k(c + DEP)
            else:
                n = (len(vleft) + (7 - c)) // (8 - c)
                for _ in range(n): issue_v(vleft.pop(0))
        if opt.get('issue_first', 1): iss()
        for i in range(4): p(f'ds_write_b128 v{vSW+(i&1)}, {vr(X+16*c+4*i,4)} offset:{1024*i}')
        for j in range(4): p(f'ds_read_b128 {vr(X+16*c+4*j,4)}, v{vSR+j}')
        p('s_barrier')
        trs = []
        for j in range(4): trs += trpair(WF+16*(c&1)+4*j, vTR, RA+4096*c+1024*j)
        if c > 0:
            m = kmf(c-1)
            p.ext([trs[0], trs[1], m[0], trs[2], trs[3], m[1], trs[4], trs[5], m[2], trs[6], trs[7], m[3]])
        else: p.ext(trs)
        if not opt.get('issue_first', 1): iss()
    p.ext(kmf(7))
    stamp()
    def phi_head(acc):
        L = [f'v_cvt_pk_bf16_f32 v{E+j}, v{acc+2*j}, v{acc+2*j+1}' for j in range(8)]
        L.append(f'v_mfma_f32_32x32x16_bf16 {vr(P,16)}, {vr(vA1,4)}, {vr(E,4)}, 0')
        L.append(f'v_mfma_f32_32x32x16_bf16 {vr(P,16)}, {vr(vA2,4)}, {vr(E+4,4)}, {vr(P,16)}')
        return L
    def phi_body(dst, normalize):
        mx, mn = vT0, vT1
        L = [f'v_max3_f32 v{mx}, v{P}, v{P+1}, v{P+2}', f'v_min3_f32 v{mn}, v{P}, v{P+1}, v{P+2}']
        for j in range(3, 15, 2):
            L += [f'v_max3_f32 v{mx}, v{mx}, v{P+j}, v{P+j+1}', f'v_min3_f32 v{mn}, v{mn}, v{P+j}, v{P+j+1}']
        L += [f'v_max_f32 v{mx}, v{mx}, v{P+15}', f'v_min_f32 v{mn}, v{mn}, v{P+15}']
        L += [f'v_mul_f32 v{mx}, 0xbfb8aa3b, v{mx}', f'v_mul_f32 v{mn}, {hex(LOG2E)}, v{mn}']
        for j in range(16): L.append(f'v_fma_f32 v{E+j}, v{P+j}, s{s_c}, v{mx}')
        for j in range(16): L.append(f'v_fma_f32 v{E+16+j}, v{P+j}, -s{s_c}, v{mn}')
        for j in range(32): L.append(f'v_exp_f32 v{E+j}, v{E+j}')
        if normalize:
            for b in range(2):
                for j in range(4): L.append(f'v_add_f32 v{P+4*b+j}, v{E+16*b+j}, v{E+16*b+4+j}')
            for k in (8, 12):
                for b in range(2):
                    for j in range(4): L.append(f'v_add_f32 v{P+4*b+j}, v{P+4*b+j}, v{E+16*b+k+j}')
            for b in range(2):
                for j in range(2): L.append(f'v_add_f32 v{P+4*b+j}, v{P+4*b+j}, v{P+4*b+2+j}')
            for b in range(2): L.append(f'v_add_f32 v{P+4*b}, v{P+4*b}, v{P+4*b+1}')
            L += [f'v_rcp_f32 v{mx}, v{P}', f'v_rcp_f32 v{mn}, v{P+4}']
            for j in range(16): L.append(f'v_mul_f32 v{E+j}, v{E+j}, v{mx}')
            for j in range(16): L.append(f'v_mul_f32 v{E+16+j}, v{E+16+j}, v{mn}')
        for j in range(16): L.append(f'v_cvt_pk_bf16_f32 v{dst+j}, v{E+2*j}, v{E+2*j+1}')
        return L
    p.ext(phi_head(ACC0))
    body = phi_body(ACC0, True)
    PRE = opt.get('pre', 4)
    def gemm_slots(acc, addr, base, events={}):
        def rd(n):
            c, j = n >> 2, n & 3
            L = list(events.get(c, [])) if j == 0 else []
            return L + trpair(WF+4*(n % 8), addr, base+4096*c+1024*j)
        pro = []
        for n in range(PRE): pro += rd(n)
        slots = []
        for n in range(32):
            c, j = n >> 2, n & 3
            sl = [f'v_mfma_f32_32x32x16_bf16 {vr(acc,16)}, {vr(WF+4*(n%8),4)}, {vr(X+16*c+4*j,4)}, {"0" if n==0 else vr(acc,16)}']
            if n+PRE < 32: sl += rd(n+PRE)
            slots.append(sl)
        return pro, slots
    def ext2(L):
        for x in L:
            if isinstance(x, tuple) and x[0] == 'dma':
                p(x[1]); p(x[2], tok=x[3])
            else: p.ext([x])
    nhead = opt.get('phik_head', 34)
    p.ext(body[:nhead]); rest = body[nhead:]
    vg = opt.get('vgrp', 2)
    ev = {c: [('waittok', f'wv{c+vg-1}'), 's_barrier'] for c in range(0, 8, vg)}
    ev[0] = [('waittok', f'wv{vg-1}'), 's_waitcnt lgkmcnt(0)', 's_barrier', f'v_subrev_u32 v{vWg}, 1024, v{vWg}']
    pro, slots = gemm_slots(ACC1, vTRv, RB, ev)
    wq = [('dma', f's_add_u32 m0, s{s_m0b}, {RA+4096*c}', f'buffer_load_dwordx4 v{vWg}, s[{sW}:{sW+3}], s{s_wo+c} offen {LD} lds', f'wq{c}') for c in range(8)]
    npro = opt.get('npro', 8)
    ext2(interleave(pro, rest[:npro], start=4)); rest = rest[npro:]
    ext2(slotted(slots, [(rest, 0, opt.get('phik_last', 29)), (wq, opt.get('wq_at', 14), 31)]))
    stamp()
    p(f'v_readfirstlane_b32 s{s_E1}, v{vEp}')
    a0, a1, a2, a3, b0, b1 = E, E+1, E+2, E+3, E+4, E+5
    p(f'v_bfe_u32 v{a1}, v0, 1, 2')
    p(f'v_and_b32 v{a2}, 31, v0\nv_bfe_u32 v{a3}, v0, 5, 1')
    p(f'v_lshlrev_b32 v{a0}, 4, v{a1}\nv_lshl_add_u32 v{a0}, v{a2}, 6, v{a0}\nv_lshl_add_u32 v{a0}, v{a3}, 11, v{a0}')
    p(f's_add_u32 s{s_tmp}, s{s_st}, {ST}')
    p(f'v_bfe_u32 v{b1}, v0, 2, 1\nv_lshlrev_b32 v{b0}, 4, v{b1}\nv_lshl_add_u32 v{b0}, v{a2}, 5, v{b0}\nv_lshl_add_u32 v{b0}, v{a3}, 10, v{b0}')
    p(f'v_add_u32 v{a0}, s{s_tmp}, v{a0}')
    p(f's_lshl_b32 s{s_tmp}, s{s_w}, 11\ns_add_u32 s{s_tmp}, s{s_tmp}, {RB}')
    p(f'v_add_u32 v{b0}, s{s_tmp}, v{b0}')
    for j in range(1, 4): p(f'v_xor_b32 v{a0+j}, {16*j}, v{a0}')
    p(f'v_xor_b32 v{b1}, 16, v{b0}')
    for j in range(4): p(f'ds_write_b128 v{a0+j}, {vr(ACC0+4*j,4)}')
    p(f's_add_u32 s{s_E1}, s{s_E1}, 1')
    for j in range(4):
        p(f's_lshr_b32 s{s_tmp}, s{s_E1}, {2*j}\ns_and_b32 s{s_tmp2}, s{s_tmp}, 1\ns_and_b32 s{s_tmp}, s{s_tmp}, 2\ns_lshl_b32 s{s_tmp}, s{s_tmp}, 15\ns_or_b32 s{s_t+j}, s{s_tmp}, s{s_tmp2}')
    VB = E + 8
    for j in range(8): p(f'v_cvt_pk_bf16_f32 v{VB+j}, v{ACC1+2*j}, v{ACC1+2*j+1}')
    p(f'ds_write_b128 v{b0}, {vr(VB,4)}\nds_write_b128 v{b1}, {vr(VB+4,4)}')
    q_, r_, cq_ = P, P+1, P+2
    pa, va = P+4, P+5
    p(f'v_bfe_u32 v{q_}, v0, 4, 2\nv_bfe_u32 v{r_}, v0, 2, 2\nv_and_b32 v{cq_}, 3, v0')
    p(f's_and_b32 s{s_tmp2}, s{s_w}, 1\ns_lshl_b32 s{s_tmp2}, s{s_tmp2}, 1')
    p(f'v_lshrrev_b32 v{P+6}, 1, v{cq_}')
    p(f'v_and_b32 v{P+7}, 1, v{q_}')
    p(f'v_lshrrev_b32 v{P+8}, 1, v{r_}\nv_lshl_add_u32 v{P+8}, v{P+7}, 1, v{P+8}')
    p(f'v_or_b32 v{P+9}, s{s_tmp2}, v{P+6}\nv_xor_b32 v{P+9}, v{P+9}, v{P+8}')
    p(f'v_lshl_add_u32 v{P+10}, v{q_}, 2, v{r_}')
    p(f'v_and_b32 v{P+11}, 1, v{cq_}\nv_lshlrev_b32 v{P+11}, 3, v{P+11}')
    p(f'v_lshl_add_u32 v{pa}, v{P+9}, 4, v{P+11}\nv_lshl_add_u32 v{pa}, v{P+10}, 6, v{pa}')
    p(f's_lshr_b32 s{s_tmp3}, s{s_w}, 1\ns_lshl_b32 s{s_tmp}, s{s_tmp3}, 11\ns_add_u32 s{s_tmp}, s{s_tmp}, {ST}')
    p(f'v_add_u32 v{pa}, s{s_tmp}, v{pa}')
    p(f'v_xor_b32 v{P+9}, v{P+6}, v{P+7}\nv_lshl_add_u32 v{va}, v{P+9}, 4, v{P+11}\nv_lshl_add_u32 v{va}, v{P+10}, 5, v{va}')
    p(f's_lshl_b32 s{s_tmp}, s{s_tmp3}, 10\ns_add_u32 s{s_tmp}, s{s_tmp}, {RB}')
    p(f'v_add_u32 v{va}, s{s_tmp}, v{va}')
    ONES = ACC1
    for j in range(4): p(f'v_mov_b32 v{ONES+j}, 0x3f803f80')
    sa = P+12
    p(f'v_lshlrev_b32 v{sa}, 4, v{vLane}')
    p(f'v_and_b32 v{P+13}, 3, v0\nv_lshlrev_b32 v{P+13}, 5, v{P+13}\nv_bfe_u32 v{P+14}, v0, 4, 1\nv_lshl_add_u32 v{P+13}, v{P+14}, 4, v{P+13}\nv_add_u32 v{P+13}, 512, v{P+13}')
    p(f's_mov_b32 s{s_msk}, 0\ns_mov_b32 s{s_msk+1}, -1')
    p(f'v_cndmask_b32 v{sa}, v{sa}, v{P+13}, s[{s_msk}:{s_msk+1}]')
    p(f's_lshl_b32 s{s_tmp}, s{s_hp}, 4\ns_add_u32 s{s_tmp}, s{s_tmp}, s{s_rb}\ns_mul_i32 s{s_tmp}, s{s_tmp}, {KVP_SZ}\ns_mul_i32 s{s_tmp2}, s{s_w}, 640\ns_add_u32 s{s_tmp}, s{s_tmp}, s{s_tmp2}\ns_add_u32 s{s_so}, s{s_tmp}, {WS_KVP}')
    vMask = vT0
    p(f'v_mov_b32 v{vMask}, 0xfffefffe')
    p('s_waitcnt lgkmcnt(0)\ns_barrier')
    KV, Z = ACC1+4, ACC1+8
    for ks in range(4):
        p(f'ds_read_b64_tr_b16 {vr(WF+8*ks,2)}, v{pa} offset:{4096*ks}\nds_read_b64_tr_b16 {vr(WF+8*ks+2,2)}, v{pa} offset:{4096*ks+1024}')
        p(f'ds_read_b64_tr_b16 {vr(WF+8*ks+4,2)}, v{va} offset:{2048*ks}\nds_read_b64_tr_b16 {vr(WF+8*ks+6,2)}, v{va} offset:{2048*ks+512}')
    for ks in range(4):
        p(f'v_mfma_f32_16x16x32_bf16 {vr(Z,4)}, {vr(WF+8*ks,4)}, {vr(ONES,4)}, {"0" if ks==0 else vr(Z,4)}')
        p(f'v_mfma_f32_16x16x32_bf16 {vr(KV,4)}, {vr(WF+8*ks,4)}, {vr(WF+8*ks+4,4)}, {"0" if ks==0 else vr(KV,4)}')
    R0 = ACC1+12
    p(f'v_cvt_pk_bf16_f32 v{R0+2}, v{Z}, v{Z+1}\nv_cvt_pk_bf16_f32 v{R0+3}, v{Z+2}, v{Z+3}')
    p(f'v_cvt_pk_bf16_f32 v{R0}, v{KV}, v{KV+1}\nv_cvt_pk_bf16_f32 v{R0+1}, v{KV+2}, v{KV+3}')
    p(f'v_permlane32_swap_b32 v{R0}, v{R0+2}\nv_permlane32_swap_b32 v{R0+1}, v{R0+3}')
    for j in range(4): p(f'v_and_or_b32 v{R0+j}, v{R0+j}, v{vMask}, s{s_t+j}')
    p(f's_mov_b32 exec_hi, 0x000f000f')
    p(f'buffer_store_dwordx4 {vr(R0,4)}, v{sa}, s[{sWS}:{sWS+3}], s{s_so} offen sc1')
    p(f's_mov_b32 exec_hi, -1')
    stamp()
    p.wait_tok('wq7')
    p('s_barrier')
    s_rt, s_ct = 74, 75
    p(f's_and_b32 s{s_tmp}, s{s_loc}, 3\ns_lshl_b32 s{s_rt}, s{s_xcd}, 2\ns_add_u32 s{s_rt}, s{s_rt}, s{s_tmp}\ns_lshr_b32 s{s_ct}, s{s_loc}, 2')
    vOg = vWg
    p(f'v_bfe_u32 v{E}, v0, 4, 1\nv_lshlrev_b32 v{E}, 2, v{E}\nv_and_b32 v{E+1}, 7, v0\nv_xor_b32 v{E}, v{E}, v{E+1}\nv_lshlrev_b32 v{E}, 4, v{E}')
    p(f'v_lshrrev_b32 v{E+1}, 3, v0\nv_lshl_add_u32 v{E}, v{E+1}, 10, v{E}')
    p(f's_lshl_b32 s{s_tmp}, s{s_ct}, 7')
    p(f'v_add_u32 v{vOg}, s{s_tmp}, v{E}')
    s_r8 = 40
    for n in range(8):
        p(f's_add_u32 s{s_r8+n}, s{s_ct}, {n}\ns_and_b32 s{s_r8+n}, s{s_r8+n}, 7')
        if opt.get('norot2'): p(f's_mov_b32 s{s_r8+n}, {n}')
    def wo_dma(half):
        L = []
        for n in range(8):
            L.append(('dma', f's_lshl_b32 s{s_tmp3}, s{s_r8+n}, 15\n' + (f's_add_u32 s{s_tmp3}, s{s_tmp3}, 0x40000\n' if half else '') + f's_add_u32 m0, s{s_m0b}, {(RB if half==0 else RA)+4096*n}',
                      f'buffer_load_dwordx4 v{vOg}, s[{sO}:{sO+3}], s{s_tmp3} offen lds', f'wo{half}_{n}'))
        return L
    fill = []
    cA, cD = E+2, E+4
    fill += [f's_and_b32 s{s_tmp2}, s{s_w}, 1', f's_lshr_b32 s{s_tmp}, s{s_w}, 1', f's_mul_i32 s{s_tmp}, s{s_tmp}, 1600',
             f's_mul_i32 s{s_so+1}, s{s_tmp2}, 80', f's_add_u32 s{s_tmp}, s{s_tmp}, s{s_so+1}', f's_add_u32 s{s_tmp}, s{s_tmp}, {KT+16*80}',
             f'v_lshrrev_b32 v{cA}, 2, v{vLane}', f'v_mul_u32_u24 v{cA}, 160, v{cA}', f'v_add_u32 v{cA}, s{s_tmp}, v{cA}',
             f's_mov_b32 s{s_msk}, 0xf00', f's_mov_b32 s{s_msk+1}, 0', f'v_mov_b32 v{cD}, {ZERO}',
             f'v_cndmask_b32 v{cA}, v{cA}, v{cD}, s[{s_msk}:{s_msk+1}]',
             f'v_and_b32 v{cD}, 3, v0', f'v_lshl_add_u32 v{cA}, v{cD}, 4, v{cA}',
             f's_lshl_b32 s{s_tmp2}, s{s_tmp2}, 1', f's_lshl_b32 s{s_msk}, 3, s{s_tmp2}',
             f'v_mov_b32 v{cD+1}, 0x3f803f80',
             f'v_cndmask_b32 v{cD}, 0, v{cD+1}, s[{s_msk}:{s_msk+1}]',
             f'v_mov_b32 v{cD+1}, v{cD}', f'v_mov_b32 v{cD+2}, v{cD}', f'v_mov_b32 v{cD+3}, v{cD}',
             's_mov_b64 exec, 0xfff', f'ds_write_b128 v{cA}, {vr(cD,4)}', 's_mov_b64 exec, -1']
    p.ext(fill)
    SEL = ACC1
    fill = [f'v_and_b32 v{E}, 1, v0', f'v_lshlrev_b32 v{E}, 4, v{E}', f'v_mov_b32 v{E+1}, 0x3f80', f'v_lshlrev_b32 v{E}, v{E}, v{E+1}', f'v_bfe_u32 v{E+1}, v0, 1, 3']
    for j in range(8):
        fill += [f'v_cmp_eq_u32 s[{s_msk}:{s_msk+1}], {j}, v{E+1}', f'v_cndmask_b32 v{SEL+j}, 0, v{E}, s[{s_msk}:{s_msk+1}]']
    hA, hZ = ACC1+8, ACC1+9
    fill += [f'v_bfe_u32 v{E+2}, v0, 4, 2', f'v_mul_u32_u24 v{hA}, {KVP_SZ}, v{E+2}', f'v_and_b32 v{E+3}, 15, v0', f'v_lshl_add_u32 v{hA}, v{E+3}, 4, v{hA}',
             f'v_bfe_u32 v{E+3}, v0, 1, 2', f'v_lshl_add_u32 v{E+3}, v{E+3}, 2, v{E+2}', f'v_mul_u32_u24 v{hZ}, {KVP_SZ}, v{E+3}',
             f'v_and_b32 v{E+3}, 1, v0', f'v_lshl_add_u32 v{hZ}, v{E+3}, 4, v{hZ}', f'v_add_u32 v{hZ}, 512, v{hZ}',
             f's_mul_i32 s{s_tmp}, s{s_hp}, {16*KVP_SZ}', f's_mul_i32 s{s_tmp2}, s{s_w}, 640', f's_add_u32 s{s_tmp}, s{s_tmp}, s{s_tmp2}',
             f's_add_u32 s{s_so}, s{s_tmp}, {WS_KVP}']
    for m in range(1, 4): fill.append(f's_add_u32 s{s_so+m}, s{s_so}, {4*KVP_SZ*m}')
    HZ, HK = X, X+4
    def hop1_list():
        L = [f'buffer_load_dwordx4 {vr(HZ,4)}, v{hZ}, s[{sWS}:{sWS+3}], s{s_so} offen sc1']
        for m in range(4):
            for st in range(2):
                L.append(f'buffer_load_dwordx4 {vr(HK+8*m+4*st,4)}, v{hA}, s[{sWS}:{sWS+3}], s{s_so+m} offen offset:{256*st} sc1')
        return L
    def hop1_loads(): p.ext(hop1_list())
    pro, slots = gemm_slots(ACC0, vTR, RA)
    h1 = opt.get('h1_at', 20)
    ext2(pro)
    ext2(slotted(slots, [(fill, 0, h1-2), (wo_dma(0), 0, h1-2), (hop1_list(), h1, 31)]))
    stamp()
    EQ = X + 48
    p.ext(phi_head(ACC0))
    p.ext(phi_body(EQ, False))
    tK, tZ, aN, aX = E, E+1, E+2, E+3
    p(f'v_bfe_u32 v{E+4}, v0, 4, 1\nv_bfe_u32 v{E+5}, v0, 5, 1\nv_lshl_add_u32 v{E+4}, v{E+4}, 1, v{E+5}')
    p(f'v_and_b32 v{E+5}, 15, v0\nv_mul_u32_u24 v{tK}, 80, v{E+5}\nv_lshl_add_u32 v{tK}, v{E+4}, 3, v{tK}')
    p(f's_and_b32 s{s_tmp2}, s{s_w}, 1\ns_lshr_b32 s{s_tmp}, s{s_w}, 1\ns_mul_i32 s{s_tmp}, s{s_tmp}, 1600\ns_lshl_b32 s{s_tmp3}, s{s_tmp2}, 5\ns_add_u32 s{s_tmp}, s{s_tmp}, s{s_tmp3}\ns_add_u32 s{s_tmp}, s{s_tmp}, {KT}')
    p(f'v_add_u32 v{tK}, s{s_tmp}, v{tK}')
    p(f's_mul_i32 s{s_tmp2}, s{s_tmp2}, 80\ns_add_u32 s{s_tmp}, s{s_tmp}, s{s_tmp2}\ns_add_u32 s{s_tmp}, s{s_tmp}, {18*80}')
    p(f'v_bfe_u32 v{E+4}, v0, 4, 1\nv_and_b32 v{E+5}, 1, v0\nv_lshl_add_u32 v{E+4}, v{E+4}, 1, v{E+5}\nv_lshlrev_b32 v{tZ}, 3, v{E+4}\nv_add_u32 v{tZ}, s{s_tmp}, v{tZ}')
    p(f'v_bfe_u32 v{E+4}, v0, 3, 2\nv_and_b32 v{E+5}, 3, v0\nv_lshl_add_u32 v{E+4}, v{E+4}, 2, v{E+5}\nv_mul_u32_u24 v{aN}, 80, v{E+4}')
    p(f'v_bfe_u32 v{E+6}, v0, 5, 1\nv_mul_u32_u24 v{E+6}, 1600, v{E+6}\nv_add_u32 v{E+6}, {KT}, v{E+6}\nv_add_u32 v{aN}, v{aN}, v{E+6}')
    p(f'v_mul_u32_u24 v{aX}, 80, v{E+5}\nv_add_u32 v{aX}, v{aX}, v{E+6}\nv_add_u32 v{aX}, {16*80}, v{aX}')
    p(f'v_mov_b32 v{E+4}, {ZERO}')
    p(f's_mov_b32 s{s_msk}, 0x0f0f0f0f\ns_mov_b32 s{s_msk+1}, 0xf0f0f0f0')
    p(f'v_cndmask_b32 v{aN}, v{E+4}, v{aN}, s[{s_msk}:{s_msk+1}]')
    p(f's_mov_b32 s{s_msk}, 0x0000000f\ns_mov_b32 s{s_msk+1}, 0x000000f0')
    p(f'v_cndmask_b32 v{aX}, v{E+4}, v{aX}, s[{s_msk}:{s_msk+1}]')
    p(f's_mov_b32 s{s_sp}, 0')
    stamp()
    chk = E+8
    DZ, DK = P, P+4
    p('B_H1_CHK:')
    p(f'v_mov_b32 v{chk}, 0')
    for j in range(4): p(f'v_bitop3_b32 v{chk}, v{chk}, v{HZ+j}, s{s_t+j} bitop3:0xf6')
    p(f'v_mfma_f32_16x16x32_bf16 {vr(DZ,4)}, {vr(SEL,4)}, {vr(HZ,4)}, 0')
    for n in range(8):
        for j in range(4): p(f'v_bitop3_b32 v{chk}, v{chk}, v{HK+4*n+j}, s{s_t+j} bitop3:0xf6')
        p(f'v_mfma_f32_16x16x32_bf16 {vr(DK,4)}, {vr(SEL+4*(n&1),4)}, {vr(HK+4*n,4)}, {"0" if n==0 else vr(DK,4)}')
        if n == 2:
            for j in range(4): p(f'v_add_f32_dpp v{DZ+j}, v{DZ+j}, v{DZ+j} row_ror:2 row_mask:0xf bank_mask:0xf')
        if n == 3:
            for j in range(4): p(f'v_add_f32_dpp v{DZ+j}, v{DZ+j}, v{DZ+j} row_ror:4 row_mask:0xf bank_mask:0xf')
        if n == 4:
            p(f'v_cvt_pk_bf16_f32 v{DZ}, v{DZ}, v{DZ+1}\nv_cvt_pk_bf16_f32 v{DZ+1}, v{DZ+2}, v{DZ+3}')
    p(f'v_and_b32 v{chk}, 0x00010001, v{chk}')
    p(f'v_cmp_ne_u32 vcc, 0, v{chk}')
    p('s_cbranch_vccnz B_H1_RETRY')
    p('B_H1_OK:')
    p('s_mov_b64 exec, 0x00030003')
    p(f'ds_write_b64 v{tZ}, {vr(DZ,2)}')
    p('s_mov_b64 exec, -1')
    p(f'v_cvt_pk_bf16_f32 v{DK}, v{DK}, v{DK+1}\nv_cvt_pk_bf16_f32 v{DK+1}, v{DK+2}, v{DK+3}')
    p(f'ds_write_b64 v{tK}, {vr(DK,2)}')
    p('s_waitcnt lgkmcnt(0)\ns_barrier')
    stamp()
    for j in range(4): p(f'ds_read_b128 {vr(WF+4*j,4)}, v{aX} offset:{16*j}')
    for j in range(4): p(f'ds_read_b128 {vr(WF+16+4*j,4)}, v{aN} offset:{16*j}')
    ext2(wo_dma(1))
    AUX, NP, NM = P, ACC0, ACC1
    for j in range(4): p(f'v_mfma_f32_32x32x16_bf16 {vr(AUX,16)}, {vr(WF+4*j,4)}, {vr(EQ+4*j,4)}, {"0" if j==0 else vr(AUX,16)}')
    for j in range(2): p(f'v_mfma_f32_32x32x16_bf16 {vr(NP,16)}, {vr(WF+16+4*j,4)}, {vr(EQ+4*j,4)}, {"0" if j==0 else vr(NP,16)}')
    for j in range(2, 4): p(f'v_mfma_f32_32x32x16_bf16 {vr(NM,16)}, {vr(WF+16+4*j,4)}, {vr(EQ+4*j,4)}, {"0" if j==2 else vr(NM,16)}')
    vL16 = vEp
    p(f'v_lshlrev_b32 v{vL16}, 4, v{vLane}')
    p(f's_lshl_b32 s{s_tmp}, s{s_rb}, 2\ns_add_u32 s{s_tmp}, s{s_tmp}, s{s_w}\ns_lshl_b32 s{s_tmp}, s{s_tmp}, 4\ns_add_u32 s{s_tmp}, s{s_tmp}, s{s_hp}\ns_lshl_b32 s{s_tmp}, s{s_tmp}, 11\ns_add_u32 s{s_tmp2}, s{s_tmp}, {WS_OX}')
    c0 = E+10
    p(f'v_rcp_f32 v{c0}, v{AUX}\nv_rcp_f32 v{c0+1}, v{AUX+1}')
    p(f'v_mov_b32 v{vMask}, 0xfffefffe')
    p(f'v_mul_f32 v{c0+2}, v{AUX+2}, v{c0}\nv_fma_f32 v{c0+2}, v{AUX+3}, v{c0+1}, v{c0+2}\nv_add_f32 v{c0+2}, 0x358637bd, v{c0+2}')
    p(f'v_rcp_f32 v{c0+2}, v{c0+2}')
    p(f'v_mul_f32 v{c0}, v{c0}, v{c0+2}\nv_mul_f32 v{c0+1}, v{c0+1}, v{c0+2}')
    for j in range(16): p(f'v_mul_f32 v{NP+j}, v{NP+j}, v{c0}')
    OB = E+16
    for j in range(16): p(f'v_fmac_f32 v{NP+j}, v{NM+j}, v{c0+1}')
    for j in range(8):
        p(f'v_cvt_pk_bf16_f32 v{OB+j}, v{NP+2*j}, v{NP+2*j+1}')
        p(f'v_and_or_b32 v{OB+j}, v{OB+j}, v{vMask}, s{s_t+(j&3)}')
        if j == 3: p(f'buffer_store_dwordx4 {vr(OB,4)}, v{vL16}, s[{sWS}:{sWS+3}], s{s_tmp2} offen sc1')
    p(f'buffer_store_dwordx4 {vr(OB+4,4)}, v{vL16}, s[{sWS}:{sWS+3}], s{s_tmp2} offen offset:1024 sc1')
    stamp()
    p(f's_lshl_b32 s{s_tmp}, s{s_rt}, 2\ns_add_u32 s{s_tmp}, s{s_tmp}, s{s_w}\ns_lshl_b32 s{s_tmp}, s{s_tmp}, 14\ns_add_u32 s{s_so}, s{s_tmp}, {WS_OX}')
    for n in range(8): p(f's_lshl_b32 s{s_r8+n}, s{s_r8+n}, 11\ns_add_u32 s{s_r8+n}, s{s_r8+n}, s{s_so}')
    wa, wb, pl = E, E+1, E+2
    p(f'v_bfe_u32 v{E+4}, v0, 2, 2\nv_bfe_u32 v{E+5}, v0, 5, 1\nv_lshl_add_u32 v{E+5}, v{E+5}, 4, v{E+4}\nv_lshlrev_b32 v{wa}, 7, v{E+5}')
    p(f's_and_b32 s{s_tmp2}, s{s_w}, 1')
    p(f'v_lshrrev_b32 v{E+4}, 1, v{E+4}\nv_xor_b32 v{E+4}, s{s_tmp2}, v{E+4}\nv_lshl_add_u32 v{wa}, v{E+4}, 6, v{wa}')
    p(f'v_and_b32 v{E+4}, 63, v{vTRv}\nv_add_u32 v{wa}, v{wa}, v{E+4}')
    p(f's_xor_b32 s{s_tmp3}, s{s_tmp2}, 1\ns_lshl_b32 s{s_tmp3}, s{s_tmp3}, 15')
    p(f'v_add_u32 v{wa}, s{s_tmp3}, v{wa}\nv_xor_b32 v{wb}, 64, v{wa}')
    p(f'v_and_b32 v{pl}, 15, v0\nv_lshlrev_b32 v{pl}, 10, v{pl}\nv_add_u32 v{pl}, 1008, v{pl}')
    oa = E+3
    p(f'v_and_b32 v{E+4}, 31, v0\nv_bfe_u32 v{E+5}, v0, 5, 1\nv_lshlrev_b32 v{E+5}, 5, v{E+5}\nv_lshl_add_u32 v{oa}, v{E+4}, 11, v{E+5}')
    s_oo = 76
    p(f's_lshr_b32 s{s_tmp}, s{s_w}, 1\ns_lshl_b32 s{s_tmp3}, s{s_rt}, 1\ns_add_u32 s{s_tmp}, s{s_tmp}, s{s_tmp3}\ns_lshl_b32 s{s_tmp}, s{s_tmp}, 16')
    p(f's_lshl_b32 s{s_tmp3}, s{s_ct}, 1\ns_add_u32 s{s_tmp3}, s{s_tmp3}, s{s_tmp2}\ns_lshl_b32 s{s_tmp3}, s{s_tmp3}, 6\ns_add_u32 s{s_oo}, s{s_tmp}, s{s_tmp3}\ns_add_u32 s{s_oo}, s{s_oo}, 1024')
    xw, xr = E+6, E+7
    p(f's_add_u32 s{s_tmp}, s{s_st}, {ST}\ns_xor_b32 s{s_tmp3}, s{s_st}, 4096\ns_add_u32 s{s_tmp3}, s{s_tmp3}, {ST}')
    p(f'v_add_u32 v{xw}, s{s_tmp}, v{vL16}\nv_add_u32 v{xr}, s{s_tmp3}, v{vL16}')
    p.wait_tok('wo1_7')
    p('s_barrier')
    p(f's_mov_b32 s{s_sp}, 0')
    OF = X
    if not opt.get('nopoll2'):
        p('B_H2_POLL:')
        p(f'buffer_load_dwordx4 {vr(OF,4)}, v{pl}, s[{sWS}:{sWS+3}], s{s_so} offen sc1')
        p(f'v_mov_b32 v{chk}, 0')
        for j in range(4): p(f'v_bitop3_b32 v{chk}, v{chk}, v{OF+j}, s{s_t+j} bitop3:0xf6')
        p(f'v_and_b32 v{chk}, 0x00010001, v{chk}')
        p(f'v_cmp_ne_u32 vcc, 0, v{chk}')
        p(f's_add_u32 s{s_sp}, s{s_sp}, 1\ns_cmp_gt_u32 s{s_sp}, {SPIN_MAX}\ns_cbranch_scc1 B_H2_LOAD')
        p('s_cbranch_vccnz B_H2_POLL')
    p('B_H2_LOAD:')
    stamp()
    for n in range(16):
        p(f'buffer_load_dwordx4 {vr(OF+4*n,4)}, v{vL16}, s[{sWS}:{sWS+3}], s{s_r8+(n>>1)} offen offset:{1024*(n&1)} sc1')
    AK, AS = ACC0, P
    p(f'v_mov_b32 v{chk}, 0')
    def wofr(n, slot):
        off = 128*(32*(n >> 1) + 8*(n & 1))
        return [f'ds_read_b64_tr_b16 {vr(WF+8*slot,2)}, v{wa} offset:{off}', f'ds_read_b64_tr_b16 {vr(WF+8*slot+2,2)}, v{wa} offset:{off+512}',
                f'ds_read_b64_tr_b16 {vr(WF+8*slot+4,2)}, v{wb} offset:{off}', f'ds_read_b64_tr_b16 {vr(WF+8*slot+6,2)}, v{wb} offset:{off+512}']
    for n in range(3): p.ext(wofr(n, n))
    for n in range(16):
        p(f'v_mfma_f32_32x32x16_bf16 {vr(AS,16)}, {vr(WF+8*(n%4)+4,4)}, {vr(OF+4*n,4)}, {"0" if n==0 else vr(AS,16)}')
        if n+3 < 16: p.ext(wofr(n+3, (n+3) % 4)[:2])
        for j in range(2): p(f'v_bitop3_b32 v{chk}, v{chk}, v{OF+4*n+j}, s{s_t+j} bitop3:0xf6')
        p(f'v_mfma_f32_32x32x16_bf16 {vr(AK,16)}, {vr(WF+8*(n%4),4)}, {vr(OF+4*n,4)}, {"0" if n==0 else vr(AK,16)}')
        if n+3 < 16: p.ext(wofr(n+3, (n+3) % 4)[2:])
        for j in range(2, 4): p(f'v_bitop3_b32 v{chk}, v{chk}, v{OF+4*n+j}, s{s_t+j} bitop3:0xf6')
    p(f'v_and_b32 v{chk}, 0x00010001, v{chk}')
    p(f'v_cmp_ne_u32 vcc, 0, v{chk}')
    p('s_cbranch_vccnz B_H2_RETRY')
    p('B_H2_OK:')
    for j in range(4): p(f'ds_write_b128 v{xw}, {vr(AS+4*j,4)} offset:{1024*j}')
    p('s_waitcnt lgkmcnt(0)\ns_barrier')
    for j in range(4): p(f'ds_read_b128 {vr(AS+4*j,4)}, v{xr} offset:{1024*j}')
    STF = opt.get('outflag', '')
    for hh in range(2):
        for j in range(8): p(f'v_add_f32 v{AK+8*hh+j}, v{AK+8*hh+j}, v{AS+8*hh+j}')
        for j in range(4): p(f'v_cvt_pk_bf16_f32 v{OB+4*hh+j}, v{AK+8*hh+2*j}, v{AK+8*hh+2*j+1}')
        p(f'buffer_store_dwordx4 {vr(OB+4*hh,4)}, v{oa}, s[{sOUT}:{sOUT+3}], s{s_oo} offen offset:{16*hh} {STF}')
    p(f's_or_b32 s{s_tmp}, s2, s{s_w}\ns_cmp_lg_u32 s{s_tmp}, 0\ns_cbranch_scc1 B_END')
    p(f'v_mov_b32 v{E}, s{s_E1}\nv_mov_b32 v{E+1}, 0\ns_mov_b64 exec, 1')
    p(f'buffer_store_dword v{E}, v{E+1}, s[{sWS}:{sWS+3}], 0 offen offset:{WS_EB} sc1')
    p('B_END:')
    if opt.get('stamps'):
        p('s_mov_b64 exec, -1')
        p('s_waitcnt vmcnt(0)')
        p('s_memtime s[100:101]\ns_memrealtime s[76:77]\ns_waitcnt lgkmcnt(0)')
        for k in range(11): p(f'v_mov_b32 v{16+k}, s{80+2*k}')
        p('v_mov_b32 v27, s78\nv_mov_b32 v28, s76\n' + f'v_mov_b32 v29, s{s_sp}')
        p(f's_lshl_b32 s{s_tmp}, s2, 8\ns_lshl_b32 s{s_tmp2}, s{s_w}, 6\ns_add_u32 s{s_tmp}, s{s_tmp}, s{s_tmp2}\ns_add_u32 s{s_tmp}, s{s_tmp}, {WS_STAMP}')
        p('v_mov_b32 v0, 0\ns_mov_b64 exec, 1')
        for k in range(4): p(f'buffer_store_dwordx4 v[{16+4*k}:{19+4*k}], v0, s[{sWS}:{sWS+3}], s{s_tmp} offen offset:{16*k}')
    p('s_endpgm')
    p.assume_clean()
    p('B_H1_RETRY:')
    p(f's_add_u32 s{s_sp}, s{s_sp}, 1\ns_cmp_gt_u32 s{s_sp}, {SPIN_MAX}\ns_cbranch_scc1 B_H1_OK')
    p('s_sleep 4')
    hop1_loads()
    p('s_waitcnt vmcnt(0)\ns_branch B_H1_CHK')
    p('B_H2_RETRY:')
    p(f's_add_u32 s{s_sp}, s{s_sp}, 1\ns_cmp_gt_u32 s{s_sp}, {SPIN_MAX}\ns_cbranch_scc1 B_H2_OK')
    p('s_nop 15\ns_sleep 4\ns_branch B_H2_LOAD')
```

```python
import sys, json
from asmdsl import Prog
from common import *
import genB
NAME = 'concat_heads__ssm_conv_s4__linear_kernel_hedgehog__prompt'
def build(opt):
    hdr = open(f'cdna_kernels/{NAME}.s.ref').read().split('\n')
    head = [l for l in hdr if l.startswith(';') and '@launch' not in l and 'Override' not in l and 'grid=ceil' not in l]
    head = head[:17]
    p = Prog()
    p('s_cmp_ge_u32 s2, 512\ns_cbranch_scc1 K_EXIT')
    p('s_cmp_ge_u32 s2, 256\ns_cbranch_scc1 A_ROLE')
    genB.genB(p, opt)
    p.assume_clean()
    if opt.get('noA'):
        p('A_ROLE:\ns_endpgm')
    else:
        import genA
        genA.genA(p, opt)
    p('K_EXIT:\ns_endpgm')
    body = p.finalize()
    txt = '\n'.join(head) + f"""
; Generated by gen/gen.py (hand-written generator). One launch, 512 workgroups: ids <256 attention part, ids 256..511 SSM part.
; @launch grid=(512,1,1) block=(256,1,1) lds=81920
.amdgcn_target "amdgcn-amd-amdhsa--gfx950"
.text
.globl {NAME}_kernel
.p2align 8
.type {NAME}_kernel,@function
{NAME}_kernel:
{body}
.section .rodata,"a"
.p2align 6
.amdhsa_kernel {NAME}_kernel
  .amdhsa_next_free_vgpr 256
  .amdhsa_next_free_sgpr 102
  .amdhsa_accum_offset 256
  .amdhsa_group_segment_fixed_size 0
  .amdhsa_kernarg_size 128
  .amdhsa_user_sgpr_count 2
  .amdhsa_user_sgpr_kernarg_segment_ptr 1
  .amdhsa_system_sgpr_workgroup_id_x 1
.end_amdhsa_kernel
"""
    return txt
if __name__ == '__main__':
    out = sys.argv[1]
    opt = {}
    for a in sys.argv[2:]:
        k, _, v = a.partition('=')
        try: v = int(v)
        except ValueError: v = v if v else 1
        opt[k] = v
    open(out, 'w').write(build(opt))
```

```python
from asmdsl import Prog, interleave, slotted
from common import *

RA, RB, ST = 0, 32768, 65536
KT = ST
ZERO = ST + 3200

def vr(a, n): return f'v[{a}:{a+n-1}]'

def genB(p, opt):
    stamp_n = [0]
    def stamp():
        if opt.get('amp') and stamp_n[0] == opt.get('amp_at', -1): p('s_memrealtime s[76:77]\ns_waitcnt lgkmcnt(0)\ns_mov_b32 s99, s76')
        if opt.get('amp'): stamp_n[0] += 1
        if opt.get('stamps'):
            k = stamp_n[0]; stamp_n[0] += 1
            p(f's_memtime s[{80+2*k}:{81+2*k}]') if k < 10 else None
    sX, sW, sP, sO, sOUT, sWS = 8, 12, 16, 20, 24, 28
    s_rb, s_hp, s_w, s_loc, s_xcd = 32, 33, 34, 35, 36
    s_xo = 40
    s_wo = 48
    s_m0b = 37
    s_t = 56
    s_E1 = 60
    s_tmp, s_tmp2, s_tmp3 = 61, 62, 63
    s_c = 64
    s_msk = 66
    s_sp = 68
    s_so = 70
    s_st = 38
    ACC0, ACC1, P, WF, E, X = 16, 32, 48, 64, 96, 128
    vA1, vA2 = 8, 12
    vTR, vTRv, vWg, vLane, vEp = 1, 2, 3, 4, 5
    vT0, vT1 = 6, 7
    vXg = E
    vSW = E + 4
    vSR = E + 6
    t0, t1, t2, t3 = E + 10, E + 11, E + 12, E + 13

    p('B_ROLE:')
    p(f's_load_dwordx2 s[{sX}:{sX+1}], s[0:1], 72')
    p(f's_load_dwordx2 s[{sW}:{sW+1}], s[0:1], 80')
    p(f's_load_dwordx2 s[{sP}:{sP+1}], s[0:1], 88')
    p(f's_load_dwordx2 s[{sO}:{sO+1}], s[0:1], 96')
    p(f's_load_dwordx2 s[{sOUT}:{sOUT+1}], s[0:1], 104')
    p(f's_load_dwordx2 s[{sWS}:{sWS+1}], s[0:1], 120')
    if opt.get('stamps') or opt.get('amp'): p('s_memrealtime s[78:79]')
    stamp()
    if opt.get('prioB'): p(f's_setprio {opt["prioB"]}')
    p(f'v_lshrrev_b32 v{t0}, 6, v0')
    p(f'v_and_b32 v{vLane}, 63, v0')
    p(f'v_readfirstlane_b32 s{s_w}, v{t0}')
    p(f's_and_b32 s{s_xcd}, s2, 7')
    p(f's_lshr_b32 s{s_loc}, s2, 3')
    p(f's_and_b32 s{s_tmp}, s{s_xcd}, 1\ns_lshl_b32 s{s_tmp}, s{s_tmp}, 3\ns_and_b32 s{s_tmp2}, s{s_loc}, 7\ns_add_u32 s{s_rb}, s{s_tmp}, s{s_tmp2}')
    p(f's_lshr_b32 s{s_tmp}, s{s_xcd}, 1\ns_lshl_b32 s{s_tmp}, s{s_tmp}, 2\ns_lshr_b32 s{s_tmp3}, s{s_loc}, 3\ns_add_u32 s{s_hp}, s{s_tmp}, s{s_tmp3}')
    p(f's_lshl_b32 s{s_tmp3}, s{s_tmp3}, 1\ns_add_u32 s{s_tmp}, s{s_tmp2}, s{s_tmp3}\ns_and_b32 s{s_tmp}, s{s_tmp}, 7')
    if opt.get('norot'): p(f's_mov_b32 s{s_tmp}, 0')
    p(f's_lshl_b32 s{s_xo}, s{s_tmp}, 7')
    p(f's_mul_i32 s{s_wo}, s{s_xo}, 1536')
    for c in range(1, 8):
        p(f's_add_u32 s{s_xo+c}, s{s_xo+c-1}, 128\ns_and_b32 s{s_xo+c}, s{s_xo+c}, 1023\ns_mul_i32 s{s_wo+c}, s{s_xo+c}, 1536')
    p(f's_lshl_b32 s{s_m0b}, s{s_w}, 10\ns_lshl_b32 s{s_st}, s{s_w}, 12')
    p(f'v_bfe_u32 v{t1}, v0, 3, 3')
    p(f'v_lshl_add_u32 v{t1}, v{t0}, 5, v{t1}')
    p(f'v_and_b32 v{t2}, 7, v0')
    p(f'v_lshlrev_b32 v{t2}, 4, v{t2}')
    p(f'v_lshl_add_u32 v{t1}, v{t1}, 10, v{t2}')
    p(f's_lshl_b32 s{s_tmp}, s{s_rb}, 17')
    p(f'v_add_u32 v{vXg}, s{s_tmp}, v{t1}')
    for i in range(1, 4): p(f'v_add_u32 v{vXg+i}, {8192*i}, v{vXg}')
    p(f'v_lshrrev_b32 v{t1}, 2, v0\nv_mul_u32_u24 v{t1}, 3072, v{t1}\nv_and_b32 v{t2}, 3, v0\nv_lshl_add_u32 v{t1}, v{t2}, 4, v{t1}')
    p(f's_lshl_b32 s{s_tmp}, s{s_hp}, 6\ns_add_u32 s{s_tmp}, s{s_tmp}, 1024')
    p(f'v_add_u32 v{vWg}, s{s_tmp}, v{t1}')
    p(f'v_lshlrev_b32 v{t3}, 4, v{vLane}')
    p(f's_lshl_b32 s{s_tmp2}, s{s_hp}, 10')
    p(f'v_mov_b32 v{vEp}, 0')
    for s, n in ((sX, 0x200000), (sW, 0x180000), (sP, 0x4000), (sO, 0x80000), (sOUT, 0x400000), (sWS, 0x10000000)):
        p(f's_mov_b32 s{s+2}, {hex(n)}\ns_mov_b32 s{s+3}, 0x20000')
    p(f's_add_u32 m0, s{s_st}, {ST}')
    p('s_waitcnt lgkmcnt(0)')
    if WS_BASE: p(f's_add_u32 s{sWS}, s{sWS}, {hex(WS_BASE)}\ns_addc_u32 s{sWS+1}, s{sWS+1}, 0\ns_mov_b32 s{sWS+2}, {hex(0x10000000-WS_BASE)}')
    LD = opt.get('ldflag', '')
    p(f'buffer_load_dwordx4 v{t3}, s[{sP}:{sP+3}], s{s_tmp2} offen lds', tok='wphi')
    def issue_k(c):
        for i in range(4):
            p(f'buffer_load_dwordx4 {vr(X+16*c+4*i,4)}, v{vXg+i}, s[{sX}:{sX+3}], s{s_xo+c} offen {LD}')
        p(f's_add_u32 m0, s{s_m0b}, {RA+4096*c}')
        p(f'buffer_load_dwordx4 v{vWg}, s[{sW}:{sW+3}], s{s_wo+c} offen {LD} lds', tok=f'wk{c}')
    def issue_v(c):
        p(f's_add_u32 m0, s{s_m0b}, {RB+4096*c-1024}')
        p(f'buffer_load_dwordx4 v{vWg}, s[{sW}:{sW+3}], s{s_wo+c} offen offset:1024 {LD} lds', tok=f'wv{c}')
    DEP = opt.get('depth', 2)
    for c in range(DEP): issue_k(c)
    p(f'buffer_load_dword v{vEp}, v{vEp}, s[{sWS}:{sWS+3}], 0 offen offset:{WS_EB} sc1')
    R_, CQ, NH, H_ = P, P+1, P+2, P+3
    p(f'v_bfe_u32 v{R_}, v0, 2, 2\nv_and_b32 v{CQ}, 3, v0\nv_bfe_u32 v{NH}, v0, 4, 1\nv_bfe_u32 v{H_}, v0, 5, 1')
    p(f'v_lshl_add_u32 v{t0}, v{H_}, 3, v{R_}\nv_lshlrev_b32 v{t0}, 6, v{t0}')
    p(f'v_lshl_add_u32 v{t1}, v{NH}, 2, v{CQ}\nv_lshl_add_u32 v{vTR}, v{t1}, 3, v{t0}')
    p(f'v_and_b32 v{t1}, 1, v{CQ}\nv_lshl_add_u32 v{t2}, v{t1}, 1, v{NH}')
    p(f'v_lshrrev_b32 v{t3}, 1, v{CQ}\nv_lshl_add_u32 v{t2}, v{t2}, 1, v{t3}')
    p(f'v_lshl_add_u32 v{vTRv}, v{t2}, 3, v{t0}')
    p(f'v_lshl_add_u32 v{t2}, v{NH}, 1, v{t3}\nv_lshlrev_b32 v{t2}, 3, v{t2}')
    p(f'v_lshl_add_u32 v{t2}, v{t1}, 9, v{t2}')
    p(f'v_lshl_add_u32 v{t0}, v{H_}, 2, v{R_}\nv_lshl_add_u32 v{t2}, v{t0}, 5, v{t2}')
    p(f's_add_u32 s{s_tmp}, s{s_st}, {ST}')
    p(f'v_add_u32 v{t2}, s{s_tmp}, v{t2}')
    p(f'v_lshrrev_b32 v{t0}, 4, v{vLane}\nv_and_b32 v{t1}, 7, v0\nv_xor_b32 v{t0}, v{t0}, v{t1}\nv_lshlrev_b32 v{t0}, 4, v{t0}')
    p(f'v_lshrrev_b32 v{t1}, 3, v{vLane}\nv_lshl_add_u32 v{t0}, v{t1}, 7, v{t0}')
    p(f'v_add_u32 v{vSW}, s{s_tmp}, v{t0}\nv_xor_b32 v{vSW+1}, 64, v{vSW}')
    p(f'v_bfe_u32 v{t0}, v0, 1, 3\nv_xor_b32 v{t0}, v{t0}, v{H_}\nv_lshlrev_b32 v{t0}, 4, v{t0}')
    p(f'v_and_b32 v{t1}, 31, v0\nv_lshl_add_u32 v{t0}, v{t1}, 7, v{t0}')
    p(f'v_add_u32 v{vSR}, s{s_tmp}, v{t0}')
    for j in range(1, 4): p(f'v_xor_b32 v{vSR+j}, {32*j}, v{vSR}')
    p(f's_mov_b32 s{s_msk}, 0x0f0f0f0f\ns_mov_b32 s{s_msk+1}, 0x0f0f0f0f')
    p(f's_mov_b32 s{s_c}, {hex(LOG2E)}\ns_mov_b32 s{s_c+1}, {hex(LOG2E)}')
    p.wait_tok('wphi')
    p(f'ds_read_b64_tr_b16 {vr(vA1,2)}, v{t2}')
    p(f'ds_read_b64_tr_b16 {vr(vA1+2,2)}, v{t2} offset:256')
    for j in range(4): p(f'v_cndmask_b32 v{vA2+j}, v{vA1+j}, 0, s[{s_msk}:{s_msk+1}]')
    for j in range(4): p(f'v_cndmask_b32 v{vA1+j}, 0, v{vA1+j}, s[{s_msk}:{s_msk+1}]')
    stamp()
    def trpair(dst, addr, off):
        return [f'ds_read_b64_tr_b16 {vr(dst,2)}, v{addr} offset:{off}', f'ds_read_b64_tr_b16 {vr(dst+2,2)}, v{addr} offset:{off+256}']
    def kmf(c):
        return [f'v_mfma_f32_32x32x16_bf16 {vr(ACC0,16)}, {vr(WF+16*(c&1)+4*j,4)}, {vr(X+16*c+4*j,4)}, {"0" if (c==0 and j==0) else vr(ACC0,16)}' for j in range(4)]
    vleft = list(range(8))
    for c in range(8):
        p.wait_tok(f'wk{c}')
        def iss():
            if c + DEP < 8: issue_k(c + DEP)
            else:
                n = (len(vleft) + (7 - c)) // (8 - c)
                for _ in range(n): issue_v(vleft.pop(0))
        if opt.get('issue_first', 1): iss()
        for i in range(4): p(f'ds_write_b128 v{vSW+(i&1)}, {vr(X+16*c+4*i,4)} offset:{1024*i}')
        for j in range(4): p(f'ds_read_b128 {vr(X+16*c+4*j,4)}, v{vSR+j}')
        p('s_barrier')
        trs = []
        for j in range(4): trs += trpair(WF+16*(c&1)+4*j, vTR, RA+4096*c+1024*j)
        if c > 0:
            m = kmf(c-1)
            p.ext([trs[0], trs[1], m[0], trs[2], trs[3], m[1], trs[4], trs[5], m[2], trs[6], trs[7], m[3]])
        else: p.ext(trs)
        if not opt.get('issue_first', 1): iss()
    p.ext(kmf(7))
    stamp()
    def phi_head(acc):
        L = [f'v_cvt_pk_bf16_f32 v{E+j}, v{acc+2*j}, v{acc+2*j+1}' for j in range(8)]
        L.append(f'v_mfma_f32_32x32x16_bf16 {vr(P,16)}, {vr(vA1,4)}, {vr(E,4)}, 0')
        L.append(f'v_mfma_f32_32x32x16_bf16 {vr(P,16)}, {vr(vA2,4)}, {vr(E+4,4)}, {vr(P,16)}')
        return L
    def phi_body(dst, normalize):
        mx, mn = vT0, vT1
        L = [f'v_max3_f32 v{mx}, v{P}, v{P+1}, v{P+2}', f'v_min3_f32 v{mn}, v{P}, v{P+1}, v{P+2}']
        for j in range(3, 15, 2):
            L += [f'v_max3_f32 v{mx}, v{mx}, v{P+j}, v{P+j+1}', f'v_min3_f32 v{mn}, v{mn}, v{P+j}, v{P+j+1}']
        L += [f'v_max_f32 v{mx}, v{mx}, v{P+15}', f'v_min_f32 v{mn}, v{mn}, v{P+15}']
        L += [f'v_mul_f32 v{mx}, 0xbfb8aa3b, v{mx}', f'v_mul_f32 v{mn}, {hex(LOG2E)}, v{mn}']
        for j in range(16): L.append(f'v_fma_f32 v{E+j}, v{P+j}, s{s_c}, v{mx}')
        for j in range(16): L.append(f'v_fma_f32 v{E+16+j}, v{P+j}, -s{s_c}, v{mn}')
        for j in range(32): L.append(f'v_exp_f32 v{E+j}, v{E+j}')
        if normalize:
            for b in range(2):
                for j in range(4): L.append(f'v_add_f32 v{P+4*b+j}, v{E+16*b+j}, v{E+16*b+4+j}')
            for k in (8, 12):
                for b in range(2):
                    for j in range(4): L.append(f'v_add_f32 v{P+4*b+j}, v{P+4*b+j}, v{E+16*b+k+j}')
            for b in range(2):
                for j in range(2): L.append(f'v_add_f32 v{P+4*b+j}, v{P+4*b+j}, v{P+4*b+2+j}')
            for b in range(2): L.append(f'v_add_f32 v{P+4*b}, v{P+4*b}, v{P+4*b+1}')
            L += [f'v_rcp_f32 v{mx}, v{P}', f'v_rcp_f32 v{mn}, v{P+4}']
            for j in range(16): L.append(f'v_mul_f32 v{E+j}, v{E+j}, v{mx}')
            for j in range(16): L.append(f'v_mul_f32 v{E+16+j}, v{E+16+j}, v{mn}')
        for j in range(16): L.append(f'v_cvt_pk_bf16_f32 v{dst+j}, v{E+2*j}, v{E+2*j+1}')
        return L
    p.ext(phi_head(ACC0))
    body = phi_body(ACC0, True)
    PRE = opt.get('pre', 4)
    def gemm_slots(acc, addr, base, events={}):
        def rd(n):
            c, j = n >> 2, n & 3
            L = list(events.get(c, [])) if j == 0 else []
            return L + trpair(WF+4*(n % 8), addr, base+4096*c+1024*j)
        pro = []
        for n in range(PRE): pro += rd(n)
        slots = []
        for n in range(32):
            c, j = n >> 2, n & 3
            sl = [f'v_mfma_f32_32x32x16_bf16 {vr(acc,16)}, {vr(WF+4*(n%8),4)}, {vr(X+16*c+4*j,4)}, {"0" if n==0 else vr(acc,16)}']
            if n+PRE < 32: sl += rd(n+PRE)
            slots.append(sl)
        return pro, slots
    def ext2(L):
        for x in L:
            if isinstance(x, tuple) and x[0] == 'dma':
                p(x[1]); p(x[2], tok=x[3])
            else: p.ext([x])
    nhead = opt.get('phik_head', 34)
    p.ext(body[:nhead]); rest = body[nhead:]
    vg = opt.get('vgrp', 2)
    ev = {c: [('waittok', f'wv{c+vg-1}'), 's_barrier'] for c in range(0, 8, vg)}
    ev[0] = [('waittok', f'wv{vg-1}'), 's_waitcnt lgkmcnt(0)', 's_barrier', f'v_subrev_u32 v{vWg}, 1024, v{vWg}']
    pro, slots = gemm_slots(ACC1, vTRv, RB, ev)
    wq = [('dma', f's_add_u32 m0, s{s_m0b}, {RA+4096*c}', f'buffer_load_dwordx4 v{vWg}, s[{sW}:{sW+3}], s{s_wo+c} offen {LD} lds', f'wq{c}') for c in range(8)]
    npro = opt.get('npro', 8)
    ext2(interleave(pro, rest[:npro], start=4)); rest = rest[npro:]
    ext2(slotted(slots, [(rest, 0, opt.get('phik_last', 29)), (wq, opt.get('wq_at', 14), 31)]))
    stamp()
    p(f'v_readfirstlane_b32 s{s_E1}, v{vEp}')
    a0, a1, a2, a3, b0, b1 = E, E+1, E+2, E+3, E+4, E+5
    p(f'v_bfe_u32 v{a1}, v0, 1, 2')
    p(f'v_and_b32 v{a2}, 31, v0\nv_bfe_u32 v{a3}, v0, 5, 1')
    p(f'v_lshlrev_b32 v{a0}, 4, v{a1}\nv_lshl_add_u32 v{a0}, v{a2}, 6, v{a0}\nv_lshl_add_u32 v{a0}, v{a3}, 11, v{a0}')
    p(f's_add_u32 s{s_tmp}, s{s_st}, {ST}')
    p(f'v_bfe_u32 v{b1}, v0, 2, 1\nv_lshlrev_b32 v{b0}, 4, v{b1}\nv_lshl_add_u32 v{b0}, v{a2}, 5, v{b0}\nv_lshl_add_u32 v{b0}, v{a3}, 10, v{b0}')
    p(f'v_add_u32 v{a0}, s{s_tmp}, v{a0}')
    p(f's_lshl_b32 s{s_tmp}, s{s_w}, 11\ns_add_u32 s{s_tmp}, s{s_tmp}, {RB}')
    p(f'v_add_u32 v{b0}, s{s_tmp}, v{b0}')
    for j in range(1, 4): p(f'v_xor_b32 v{a0+j}, {16*j}, v{a0}')
    p(f'v_xor_b32 v{b1}, 16, v{b0}')
    for j in range(4): p(f'ds_write_b128 v{a0+j}, {vr(ACC0+4*j,4)}')
    p(f's_add_u32 s{s_E1}, s{s_E1}, 1')
    for j in range(4):
        p(f's_lshr_b32 s{s_tmp}, s{s_E1}, {2*j}\ns_and_b32 s{s_tmp2}, s{s_tmp}, 1\ns_and_b32 s{s_tmp}, s{s_tmp}, 2\ns_lshl_b32 s{s_tmp}, s{s_tmp}, 15\ns_or_b32 s{s_t+j}, s{s_tmp}, s{s_tmp2}')
    VB = E + 8
    for j in range(8): p(f'v_cvt_pk_bf16_f32 v{VB+j}, v{ACC1+2*j}, v{ACC1+2*j+1}')
    p(f'ds_write_b128 v{b0}, {vr(VB,4)}\nds_write_b128 v{b1}, {vr(VB+4,4)}')
    q_, r_, cq_ = P, P+1, P+2
    pa, va = P+4, P+5
    p(f'v_bfe_u32 v{q_}, v0, 4, 2\nv_bfe_u32 v{r_}, v0, 2, 2\nv_and_b32 v{cq_}, 3, v0')
    p(f's_and_b32 s{s_tmp2}, s{s_w}, 1\ns_lshl_b32 s{s_tmp2}, s{s_tmp2}, 1')
    p(f'v_lshrrev_b32 v{P+6}, 1, v{cq_}')
    p(f'v_and_b32 v{P+7}, 1, v{q_}')
    p(f'v_lshrrev_b32 v{P+8}, 1, v{r_}\nv_lshl_add_u32 v{P+8}, v{P+7}, 1, v{P+8}')
    p(f'v_or_b32 v{P+9}, s{s_tmp2}, v{P+6}\nv_xor_b32 v{P+9}, v{P+9}, v{P+8}')
    p(f'v_lshl_add_u32 v{P+10}, v{q_}, 2, v{r_}')
    p(f'v_and_b32 v{P+11}, 1, v{cq_}\nv_lshlrev_b32 v{P+11}, 3, v{P+11}')
    p(f'v_lshl_add_u32 v{pa}, v{P+9}, 4, v{P+11}\nv_lshl_add_u32 v{pa}, v{P+10}, 6, v{pa}')
    p(f's_lshr_b32 s{s_tmp3}, s{s_w}, 1\ns_lshl_b32 s{s_tmp}, s{s_tmp3}, 11\ns_add_u32 s{s_tmp}, s{s_tmp}, {ST}')
    p(f'v_add_u32 v{pa}, s{s_tmp}, v{pa}')
    p(f'v_xor_b32 v{P+9}, v{P+6}, v{P+7}\nv_lshl_add_u32 v{va}, v{P+9}, 4, v{P+11}\nv_lshl_add_u32 v{va}, v{P+10}, 5, v{va}')
    p(f's_lshl_b32 s{s_tmp}, s{s_tmp3}, 10\ns_add_u32 s{s_tmp}, s{s_tmp}, {RB}')
    p(f'v_add_u32 v{va}, s{s_tmp}, v{va}')
    ONES = ACC1
    for j in range(4): p(f'v_mov_b32 v{ONES+j}, 0x3f803f80')
    sa = P+12
    p(f'v_lshlrev_b32 v{sa}, 4, v{vLane}')
    p(f'v_and_b32 v{P+13}, 3, v0\nv_lshlrev_b32 v{P+13}, 5, v{P+13}\nv_bfe_u32 v{P+14}, v0, 4, 1\nv_lshl_add_u32 v{P+13}, v{P+14}, 4, v{P+13}\nv_add_u32 v{P+13}, 512, v{P+13}')
    p(f's_mov_b32 s{s_msk}, 0\ns_mov_b32 s{s_msk+1}, -1')
    p(f'v_cndmask_b32 v{sa}, v{sa}, v{P+13}, s[{s_msk}:{s_msk+1}]')
    p(f's_lshl_b32 s{s_tmp}, s{s_hp}, 4\ns_add_u32 s{s_tmp}, s{s_tmp}, s{s_rb}\ns_mul_i32 s{s_tmp}, s{s_tmp}, {KVP_SZ}\ns_mul_i32 s{s_tmp2}, s{s_w}, 640\ns_add_u32 s{s_tmp}, s{s_tmp}, s{s_tmp2}\ns_add_u32 s{s_so}, s{s_tmp}, {WS_KVP}')
    vMask = vT0
    p(f'v_mov_b32 v{vMask}, 0xfffefffe')
    p('s_waitcnt lgkmcnt(0)\ns_barrier')
    KV, Z = ACC1+4, ACC1+8
    for ks in range(4):
        p(f'ds_read_b64_tr_b16 {vr(WF+8*ks,2)}, v{pa} offset:{4096*ks}\nds_read_b64_tr_b16 {vr(WF+8*ks+2,2)}, v{pa} offset:{4096*ks+1024}')
        p(f'ds_read_b64_tr_b16 {vr(WF+8*ks+4,2)}, v{va} offset:{2048*ks}\nds_read_b64_tr_b16 {vr(WF+8*ks+6,2)}, v{va} offset:{2048*ks+512}')
    for ks in range(4):
        p(f'v_mfma_f32_16x16x32_bf16 {vr(Z,4)}, {vr(WF+8*ks,4)}, {vr(ONES,4)}, {"0" if ks==0 else vr(Z,4)}')
        p(f'v_mfma_f32_16x16x32_bf16 {vr(KV,4)}, {vr(WF+8*ks,4)}, {vr(WF+8*ks+4,4)}, {"0" if ks==0 else vr(KV,4)}')
    R0 = ACC1+12
    p(f'v_cvt_pk_bf16_f32 v{R0+2}, v{Z}, v{Z+1}\nv_cvt_pk_bf16_f32 v{R0+3}, v{Z+2}, v{Z+3}')
    p(f'v_cvt_pk_bf16_f32 v{R0}, v{KV}, v{KV+1}\nv_cvt_pk_bf16_f32 v{R0+1}, v{KV+2}, v{KV+3}')
    p(f'v_permlane32_swap_b32 v{R0}, v{R0+2}\nv_permlane32_swap_b32 v{R0+1}, v{R0+3}')
    for j in range(4): p(f'v_and_or_b32 v{R0+j}, v{R0+j}, v{vMask}, s{s_t+j}')
    p(f's_mov_b32 exec_hi, 0x000f000f')
    p(f'buffer_store_dwordx4 {vr(R0,4)}, v{sa}, s[{sWS}:{sWS+3}], s{s_so} offen sc1')
    p(f's_mov_b32 exec_hi, -1')
    stamp()
    p.wait_tok('wq7')
    p('s_barrier')
    s_rt, s_ct = 74, 75
    p(f's_and_b32 s{s_tmp}, s{s_loc}, 3\ns_lshl_b32 s{s_rt}, s{s_xcd}, 2\ns_add_u32 s{s_rt}, s{s_rt}, s{s_tmp}\ns_lshr_b32 s{s_ct}, s{s_loc}, 2')
    vOg = vWg
    p(f'v_bfe_u32 v{E}, v0, 4, 1\nv_lshlrev_b32 v{E}, 2, v{E}\nv_and_b32 v{E+1}, 7, v0\nv_xor_b32 v{E}, v{E}, v{E+1}\nv_lshlrev_b32 v{E}, 4, v{E}')
    p(f'v_lshrrev_b32 v{E+1}, 3, v0\nv_lshl_add_u32 v{E}, v{E+1}, 10, v{E}')
    p(f's_lshl_b32 s{s_tmp}, s{s_ct}, 7')
    p(f'v_add_u32 v{vOg}, s{s_tmp}, v{E}')
    s_r8 = 40
    for n in range(8):
        p(f's_add_u32 s{s_r8+n}, s{s_ct}, {n}\ns_and_b32 s{s_r8+n}, s{s_r8+n}, 7')
        if opt.get('norot2'): p(f's_mov_b32 s{s_r8+n}, {n}')
    def wo_dma(half):
        L = []
        for n in range(8):
            L.append(('dma', f's_lshl_b32 s{s_tmp3}, s{s_r8+n}, 15\n' + (f's_add_u32 s{s_tmp3}, s{s_tmp3}, 0x40000\n' if half else '') + f's_add_u32 m0, s{s_m0b}, {(RB if half==0 else RA)+4096*n}',
                      f'buffer_load_dwordx4 v{vOg}, s[{sO}:{sO+3}], s{s_tmp3} offen lds', f'wo{half}_{n}'))
        return L
    fill = []
    cA, cD = E+2, E+4
    fill += [f's_and_b32 s{s_tmp2}, s{s_w}, 1', f's_lshr_b32 s{s_tmp}, s{s_w}, 1', f's_mul_i32 s{s_tmp}, s{s_tmp}, 1600',
             f's_mul_i32 s{s_so+1}, s{s_tmp2}, 80', f's_add_u32 s{s_tmp}, s{s_tmp}, s{s_so+1}', f's_add_u32 s{s_tmp}, s{s_tmp}, {KT+16*80}',
             f'v_lshrrev_b32 v{cA}, 2, v{vLane}', f'v_mul_u32_u24 v{cA}, 160, v{cA}', f'v_add_u32 v{cA}, s{s_tmp}, v{cA}',
             f's_mov_b32 s{s_msk}, 0xf00', f's_mov_b32 s{s_msk+1}, 0', f'v_mov_b32 v{cD}, {ZERO}',
             f'v_cndmask_b32 v{cA}, v{cA}, v{cD}, s[{s_msk}:{s_msk+1}]',
             f'v_and_b32 v{cD}, 3, v0', f'v_lshl_add_u32 v{cA}, v{cD}, 4, v{cA}',
             f's_lshl_b32 s{s_tmp2}, s{s_tmp2}, 1', f's_lshl_b32 s{s_msk}, 3, s{s_tmp2}',
             f'v_mov_b32 v{cD+1}, 0x3f803f80',
             f'v_cndmask_b32 v{cD}, 0, v{cD+1}, s[{s_msk}:{s_msk+1}]',
             f'v_mov_b32 v{cD+1}, v{cD}', f'v_mov_b32 v{cD+2}, v{cD}', f'v_mov_b32 v{cD+3}, v{cD}',
             's_mov_b64 exec, 0xfff', f'ds_write_b128 v{cA}, {vr(cD,4)}', 's_mov_b64 exec, -1']
    p.ext(fill)
    SEL = ACC1
    fill = [f'v_and_b32 v{E}, 1, v0', f'v_lshlrev_b32 v{E}, 4, v{E}', f'v_mov_b32 v{E+1}, 0x3f80', f'v_lshlrev_b32 v{E}, v{E}, v{E+1}', f'v_bfe_u32 v{E+1}, v0, 1, 3']
    for j in range(8):
        fill += [f'v_cmp_eq_u32 s[{s_msk}:{s_msk+1}], {j}, v{E+1}', f'v_cndmask_b32 v{SEL+j}, 0, v{E}, s[{s_msk}:{s_msk+1}]']
    hA, hZ = ACC1+8, ACC1+9
    fill += [f'v_bfe_u32 v{E+2}, v0, 4, 2', f'v_mul_u32_u24 v{hA}, {KVP_SZ}, v{E+2}', f'v_and_b32 v{E+3}, 15, v0', f'v_lshl_add_u32 v{hA}, v{E+3}, 4, v{hA}',
             f'v_bfe_u32 v{E+3}, v0, 1, 2', f'v_lshl_add_u32 v{E+3}, v{E+3}, 2, v{E+2}', f'v_mul_u32_u24 v{hZ}, {KVP_SZ}, v{E+3}',
             f'v_and_b32 v{E+3}, 1, v0', f'v_lshl_add_u32 v{hZ}, v{E+3}, 4, v{hZ}', f'v_add_u32 v{hZ}, 512, v{hZ}',
             f's_mul_i32 s{s_tmp}, s{s_hp}, {16*KVP_SZ}', f's_mul_i32 s{s_tmp2}, s{s_w}, 640', f's_add_u32 s{s_tmp}, s{s_tmp}, s{s_tmp2}',
             f's_add_u32 s{s_so}, s{s_tmp}, {WS_KVP}']
    for m in range(1, 4): fill.append(f's_add_u32 s{s_so+m}, s{s_so}, {4*KVP_SZ*m}')
    HZ, HK = X, X+4
    def hop1_list():
        L = [f'buffer_load_dwordx4 {vr(HZ,4)}, v{hZ}, s[{sWS}:{sWS+3}], s{s_so} offen sc1']
        for m in range(4):
            for st in range(2):
                L.append(f'buffer_load_dwordx4 {vr(HK+8*m+4*st,4)}, v{hA}, s[{sWS}:{sWS+3}], s{s_so+m} offen offset:{256*st} sc1')
        return L
    def hop1_loads(): p.ext(hop1_list())
    pro, slots = gemm_slots(ACC0, vTR, RA)
    h1 = opt.get('h1_at', 20)
    ext2(pro)
    ext2(slotted(slots, [(fill, 0, h1-2), (wo_dma(0), 0, h1-2), (hop1_list(), h1, 31)]))
    stamp()
    EQ = X + 48
    p.ext(phi_head(ACC0))
    p.ext(phi_body(EQ, False))
    tK, tZ, aN, aX = E, E+1, E+2, E+3
    p(f'v_bfe_u32 v{E+4}, v0, 4, 1\nv_bfe_u32 v{E+5}, v0, 5, 1\nv_lshl_add_u32 v{E+4}, v{E+4}, 1, v{E+5}')
    p(f'v_and_b32 v{E+5}, 15, v0\nv_mul_u32_u24 v{tK}, 80, v{E+5}\nv_lshl_add_u32 v{tK}, v{E+4}, 3, v{tK}')
    p(f's_and_b32 s{s_tmp2}, s{s_w}, 1\ns_lshr_b32 s{s_tmp}, s{s_w}, 1\ns_mul_i32 s{s_tmp}, s{s_tmp}, 1600\ns_lshl_b32 s{s_tmp3}, s{s_tmp2}, 5\ns_add_u32 s{s_tmp}, s{s_tmp}, s{s_tmp3}\ns_add_u32 s{s_tmp}, s{s_tmp}, {KT}')
    p(f'v_add_u32 v{tK}, s{s_tmp}, v{tK}')
    p(f's_mul_i32 s{s_tmp2}, s{s_tmp2}, 80\ns_add_u32 s{s_tmp}, s{s_tmp}, s{s_tmp2}\ns_add_u32 s{s_tmp}, s{s_tmp}, {18*80}')
    p(f'v_bfe_u32 v{E+4}, v0, 4, 1\nv_and_b32 v{E+5}, 1, v0\nv_lshl_add_u32 v{E+4}, v{E+4}, 1, v{E+5}\nv_lshlrev_b32 v{tZ}, 3, v{E+4}\nv_add_u32 v{tZ}, s{s_tmp}, v{tZ}')
    p(f'v_bfe_u32 v{E+4}, v0, 3, 2\nv_and_b32 v{E+5}, 3, v0\nv_lshl_add_u32 v{E+4}, v{E+4}, 2, v{E+5}\nv_mul_u32_u24 v{aN}, 80, v{E+4}')
    p(f'v_bfe_u32 v{E+6}, v0, 5, 1\nv_mul_u32_u24 v{E+6}, 1600, v{E+6}\nv_add_u32 v{E+6}, {KT}, v{E+6}\nv_add_u32 v{aN}, v{aN}, v{E+6}')
    p(f'v_mul_u32_u24 v{aX}, 80, v{E+5}\nv_add_u32 v{aX}, v{aX}, v{E+6}\nv_add_u32 v{aX}, {16*80}, v{aX}')
    p(f'v_mov_b32 v{E+4}, {ZERO}')
    p(f's_mov_b32 s{s_msk}, 0x0f0f0f0f\ns_mov_b32 s{s_msk+1}, 0xf0f0f0f0')
    p(f'v_cndmask_b32 v{aN}, v{E+4}, v{aN}, s[{s_msk}:{s_msk+1}]')
    p(f's_mov_b32 s{s_msk}, 0x0000000f\ns_mov_b32 s{s_msk+1}, 0x000000f0')
    p(f'v_cndmask_b32 v{aX}, v{E+4}, v{aX}, s[{s_msk}:{s_msk+1}]')
    p(f's_mov_b32 s{s_sp}, 0')
    stamp()
    chk = E+8
    DZ, DK = P, P+4
    p('B_H1_CHK:')
    p(f'v_mov_b32 v{chk}, 0')
    for j in range(4): p(f'v_bitop3_b32 v{chk}, v{chk}, v{HZ+j}, s{s_t+j} bitop3:0xf6')
    p(f'v_mfma_f32_16x16x32_bf16 {vr(DZ,4)}, {vr(SEL,4)}, {vr(HZ,4)}, 0')
    for n in range(8):
        for j in range(4): p(f'v_bitop3_b32 v{chk}, v{chk}, v{HK+4*n+j}, s{s_t+j} bitop3:0xf6')
        p(f'v_mfma_f32_16x16x32_bf16 {vr(DK,4)}, {vr(SEL+4*(n&1),4)}, {vr(HK+4*n,4)}, {"0" if n==0 else vr(DK,4)}')
        if n == 2:
            for j in range(4): p(f'v_add_f32_dpp v{DZ+j}, v{DZ+j}, v{DZ+j} row_ror:2 row_mask:0xf bank_mask:0xf')
        if n == 3:
            for j in range(4): p(f'v_add_f32_dpp v{DZ+j}, v{DZ+j}, v{DZ+j} row_ror:4 row_mask:0xf bank_mask:0xf')
        if n == 4:
            p(f'v_cvt_pk_bf16_f32 v{DZ}, v{DZ}, v{DZ+1}\nv_cvt_pk_bf16_f32 v{DZ+1}, v{DZ+2}, v{DZ+3}')
    p(f'v_and_b32 v{chk}, 0x00010001, v{chk}')
    p(f'v_cmp_ne_u32 vcc, 0, v{chk}')
    p('s_cbranch_vccnz B_H1_RETRY')
    p('B_H1_OK:')
    p('s_mov_b64 exec, 0x00030003')
    p(f'ds_write_b64 v{tZ}, {vr(DZ,2)}')
    p('s_mov_b64 exec, -1')
    p(f'v_cvt_pk_bf16_f32 v{DK}, v{DK}, v{DK+1}\nv_cvt_pk_bf16_f32 v{DK+1}, v{DK+2}, v{DK+3}')
    p(f'ds_write_b64 v{tK}, {vr(DK,2)}')
    p('s_waitcnt lgkmcnt(0)\ns_barrier')
    stamp()
    for j in range(4): p(f'ds_read_b128 {vr(WF+4*j,4)}, v{aX} offset:{16*j}')
    for j in range(4): p(f'ds_read_b128 {vr(WF+16+4*j,4)}, v{aN} offset:{16*j}')
    ext2(wo_dma(1))
    AUX, NP, NM = P, ACC0, ACC1
    for j in range(4): p(f'v_mfma_f32_32x32x16_bf16 {vr(AUX,16)}, {vr(WF+4*j,4)}, {vr(EQ+4*j,4)}, {"0" if j==0 else vr(AUX,16)}')
    for j in range(2): p(f'v_mfma_f32_32x32x16_bf16 {vr(NP,16)}, {vr(WF+16+4*j,4)}, {vr(EQ+4*j,4)}, {"0" if j==0 else vr(NP,16)}')
    for j in range(2, 4): p(f'v_mfma_f32_32x32x16_bf16 {vr(NM,16)}, {vr(WF+16+4*j,4)}, {vr(EQ+4*j,4)}, {"0" if j==2 else vr(NM,16)}')
    vL16 = vEp
    p(f'v_lshlrev_b32 v{vL16}, 4, v{vLane}')
    p(f's_lshl_b32 s{s_tmp}, s{s_rb}, 2\ns_add_u32 s{s_tmp}, s{s_tmp}, s{s_w}\ns_lshl_b32 s{s_tmp}, s{s_tmp}, 4\ns_add_u32 s{s_tmp}, s{s_tmp}, s{s_hp}\ns_lshl_b32 s{s_tmp}, s{s_tmp}, 11\ns_add_u32 s{s_tmp2}, s{s_tmp}, {WS_OX}')
    c0 = E+10
    p(f'v_rcp_f32 v{c0}, v{AUX}\nv_rcp_f32 v{c0+1}, v{AUX+1}')
    p(f'v_mov_b32 v{vMask}, 0xfffefffe')
    p(f'v_mul_f32 v{c0+2}, v{AUX+2}, v{c0}\nv_fma_f32 v{c0+2}, v{AUX+3}, v{c0+1}, v{c0+2}\nv_add_f32 v{c0+2}, 0x358637bd, v{c0+2}')
    p(f'v_rcp_f32 v{c0+2}, v{c0+2}')
    p(f'v_mul_f32 v{c0}, v{c0}, v{c0+2}\nv_mul_f32 v{c0+1}, v{c0+1}, v{c0+2}')
    for j in range(16): p(f'v_mul_f32 v{NP+j}, v{NP+j}, v{c0}')
    OB = E+16
    for j in range(16): p(f'v_fmac_f32 v{NP+j}, v{NM+j}, v{c0+1}')
    for j in range(8):
        p(f'v_cvt_pk_bf16_f32 v{OB+j}, v{NP+2*j}, v{NP+2*j+1}')
        p(f'v_and_or_b32 v{OB+j}, v{OB+j}, v{vMask}, s{s_t+(j&3)}')
        if j == 3: p(f'buffer_store_dwordx4 {vr(OB,4)}, v{vL16}, s[{sWS}:{sWS+3}], s{s_tmp2} offen sc1')
    p(f'buffer_store_dwordx4 {vr(OB+4,4)}, v{vL16}, s[{sWS}:{sWS+3}], s{s_tmp2} offen offset:1024 sc1')
    stamp()
    p(f's_lshl_b32 s{s_tmp}, s{s_rt}, 2\ns_add_u32 s{s_tmp}, s{s_tmp}, s{s_w}\ns_lshl_b32 s{s_tmp}, s{s_tmp}, 14\ns_add_u32 s{s_so}, s{s_tmp}, {WS_OX}')
    for n in range(8): p(f's_lshl_b32 s{s_r8+n}, s{s_r8+n}, 11\ns_add_u32 s{s_r8+n}, s{s_r8+n}, s{s_so}')
    wa, wb, pl = E, E+1, E+2
    p(f'v_bfe_u32 v{E+4}, v0, 2, 2\nv_bfe_u32 v{E+5}, v0, 5, 1\nv_lshl_add_u32 v{E+5}, v{E+5}, 4, v{E+4}\nv_lshlrev_b32 v{wa}, 7, v{E+5}')
    p(f's_and_b32 s{s_tmp2}, s{s_w}, 1')
    p(f'v_lshrrev_b32 v{E+4}, 1, v{E+4}\nv_xor_b32 v{E+4}, s{s_tmp2}, v{E+4}\nv_lshl_add_u32 v{wa}, v{E+4}, 6, v{wa}')
    p(f'v_and_b32 v{E+4}, 63, v{vTRv}\nv_add_u32 v{wa}, v{wa}, v{E+4}')
    p(f's_xor_b32 s{s_tmp3}, s{s_tmp2}, 1\ns_lshl_b32 s{s_tmp3}, s{s_tmp3}, 15')
    p(f'v_add_u32 v{wa}, s{s_tmp3}, v{wa}\nv_xor_b32 v{wb}, 64, v{wa}')
    p(f'v_and_b32 v{pl}, 15, v0\nv_lshlrev_b32 v{pl}, 10, v{pl}\nv_add_u32 v{pl}, 1008, v{pl}')
    oa = E+3
    p(f'v_and_b32 v{E+4}, 31, v0\nv_bfe_u32 v{E+5}, v0, 5, 1\nv_lshlrev_b32 v{E+5}, 5, v{E+5}\nv_lshl_add_u32 v{oa}, v{E+4}, 11, v{E+5}')
    s_oo = 76
    p(f's_lshr_b32 s{s_tmp}, s{s_w}, 1\ns_lshl_b32 s{s_tmp3}, s{s_rt}, 1\ns_add_u32 s{s_tmp}, s{s_tmp}, s{s_tmp3}\ns_lshl_b32 s{s_tmp}, s{s_tmp}, 16')
    p(f's_lshl_b32 s{s_tmp3}, s{s_ct}, 1\ns_add_u32 s{s_tmp3}, s{s_tmp3}, s{s_tmp2}\ns_lshl_b32 s{s_tmp3}, s{s_tmp3}, 6\ns_add_u32 s{s_oo}, s{s_tmp}, s{s_tmp3}\ns_add_u32 s{s_oo}, s{s_oo}, 1024')
    xw, xr = E+6, E+7
    p(f's_add_u32 s{s_tmp}, s{s_st}, {ST}\ns_xor_b32 s{s_tmp3}, s{s_st}, 4096\ns_add_u32 s{s_tmp3}, s{s_tmp3}, {ST}')
    p(f'v_add_u32 v{xw}, s{s_tmp}, v{vL16}\nv_add_u32 v{xr}, s{s_tmp3}, v{vL16}')
    p.wait_tok('wo1_7')
    p('s_barrier')
    p(f's_mov_b32 s{s_sp}, 0')
    OF = X
    if not opt.get('nopoll2'):
        p('B_H2_POLL:')
        p(f'buffer_load_dwordx4 {vr(OF,4)}, v{pl}, s[{sWS}:{sWS+3}], s{s_so} offen sc1')
        p(f'v_mov_b32 v{chk}, 0')
        for j in range(4): p(f'v_bitop3_b32 v{chk}, v{chk}, v{OF+j}, s{s_t+j} bitop3:0xf6')
        p(f'v_and_b32 v{chk}, 0x00010001, v{chk}')
        p(f'v_cmp_ne_u32 vcc, 0, v{chk}')
        p(f's_add_u32 s{s_sp}, s{s_sp}, 1\ns_cmp_gt_u32 s{s_sp}, {SPIN_MAX}\ns_cbranch_scc1 B_H2_LOAD')
        p('s_cbranch_vccnz B_H2_POLL')
    p('B_H2_LOAD:')
    stamp()
    for n in range(16):
        p(f'buffer_load_dwordx4 {vr(OF+4*n,4)}, v{vL16}, s[{sWS}:{sWS+3}], s{s_r8+(n>>1)} offen offset:{1024*(n&1)} sc1')
    AK, AS = ACC0, P
    p(f'v_mov_b32 v{chk}, 0')
    def wofr(n, slot):
        off = 128*(32*(n >> 1) + 8*(n & 1))
        return [f'ds_read_b64_tr_b16 {vr(WF+8*slot,2)}, v{wa} offset:{off}', f'ds_read_b64_tr_b16 {vr(WF+8*slot+2,2)}, v{wa} offset:{off+512}',
                f'ds_read_b64_tr_b16 {vr(WF+8*slot+4,2)}, v{wb} offset:{off}', f'ds_read_b64_tr_b16 {vr(WF+8*slot+6,2)}, v{wb} offset:{off+512}']
    for n in range(3): p.ext(wofr(n, n))
    for n in range(16):
        p(f'v_mfma_f32_32x32x16_bf16 {vr(AS,16)}, {vr(WF+8*(n%4)+4,4)}, {vr(OF+4*n,4)}, {"0" if n==0 else vr(AS,16)}')
        if n+3 < 16: p.ext(wofr(n+3, (n+3) % 4)[:2])
        for j in range(2): p(f'v_bitop3_b32 v{chk}, v{chk}, v{OF+4*n+j}, s{s_t+j} bitop3:0xf6')
        p(f'v_mfma_f32_32x32x16_bf16 {vr(AK,16)}, {vr(WF+8*(n%4),4)}, {vr(OF+4*n,4)}, {"0" if n==0 else vr(AK,16)}')
        if n+3 < 16: p.ext(wofr(n+3, (n+3) % 4)[2:])
        for j in range(2, 4): p(f'v_bitop3_b32 v{chk}, v{chk}, v{OF+4*n+j}, s{s_t+j} bitop3:0xf6')
    p(f'v_and_b32 v{chk}, 0x00010001, v{chk}')
    p(f'v_cmp_ne_u32 vcc, 0, v{chk}')
    p('s_cbranch_vccnz B_H2_RETRY')
    p('B_H2_OK:')
    for j in range(4): p(f'ds_write_b128 v{xw}, {vr(AS+4*j,4)} offset:{1024*j}')
    p('s_waitcnt lgkmcnt(0)\ns_barrier')
    for j in range(4): p(f'ds_read_b128 {vr(AS+4*j,4)}, v{xr} offset:{1024*j}')
    STF = opt.get('outflag', '')
    for hh in range(2):
        for j in range(8): p(f'v_add_f32 v{AK+8*hh+j}, v{AK+8*hh+j}, v{AS+8*hh+j}')
        for j in range(4): p(f'v_cvt_pk_bf16_f32 v{OB+4*hh+j}, v{AK+8*hh+2*j}, v{AK+8*hh+2*j+1}')
        p(f'buffer_store_dwordx4 {vr(OB+4*hh,4)}, v{oa}, s[{sOUT}:{sOUT+3}], s{s_oo} offen offset:{16*hh} {STF}')
    p(f's_or_b32 s{s_tmp}, s2, s{s_w}\ns_cmp_lg_u32 s{s_tmp}, 0\ns_cbranch_scc1 B_END')
    p(f'v_mov_b32 v{E}, s{s_E1}\nv_mov_b32 v{E+1}, 0\ns_mov_b64 exec, 1')
    p(f'buffer_store_dword v{E}, v{E+1}, s[{sWS}:{sWS+3}], 0 offen offset:{WS_EB} sc1')
    if opt.get('amp'):
        p('s_waitcnt vmcnt(0)\ns_memrealtime s[90:91]\ns_waitcnt lgkmcnt(0)')
        if opt.get('amp_at', -1) < 0: p('s_mov_b32 s99, s90')
        p(f's_sub_u32 s92, s99, s78\ns_mul_i32 s92, s92, {opt["amp"]}\nB_AMP:\ns_memrealtime s[94:95]\ns_waitcnt lgkmcnt(0)\ns_sub_u32 s94, s94, s90\ns_cmp_lt_u32 s94, s92\ns_cbranch_scc1 B_AMP')
    p('B_END:')
    if opt.get('stamps'):
        p('s_mov_b64 exec, -1')
        p('s_waitcnt vmcnt(0)')
        p('s_memtime s[100:101]\ns_memrealtime s[76:77]\ns_waitcnt lgkmcnt(0)')
        for k in range(11): p(f'v_mov_b32 v{16+k}, s{80+2*k}')
        p('v_mov_b32 v27, s78\nv_mov_b32 v28, s76\n' + f'v_mov_b32 v29, s{s_sp}')
        p(f's_lshl_b32 s{s_tmp}, s2, 8\ns_lshl_b32 s{s_tmp2}, s{s_w}, 6\ns_add_u32 s{s_tmp}, s{s_tmp}, s{s_tmp2}\ns_add_u32 s{s_tmp}, s{s_tmp}, {WS_STAMP}')
        p('v_mov_b32 v0, 0\ns_mov_b64 exec, 1')
        for k in range(4): p(f'buffer_store_dwordx4 v[{16+4*k}:{19+4*k}], v0, s[{sWS}:{sWS+3}], s{s_tmp} offen offset:{16*k}')
    p('s_endpgm')
    p.assume_clean()
    p('B_H1_RETRY:')
    p(f's_add_u32 s{s_sp}, s{s_sp}, 1\ns_cmp_gt_u32 s{s_sp}, {SPIN_MAX}\ns_cbranch_scc1 B_H1_OK')
    p('s_sleep 4')
    hop1_loads()
    p('s_waitcnt vmcnt(0)\ns_branch B_H1_CHK')
    p('B_H2_RETRY:')
    p(f's_add_u32 s{s_sp}, s{s_sp}, 1\ns_cmp_gt_u32 s{s_sp}, {SPIN_MAX}\ns_cbranch_scc1 B_H2_OK')
    p('s_nop 15\ns_sleep 4\ns_branch B_H2_LOAD')
```

```python
from asmdsl import Prog, interleave, slotted
from common import *

def vr(a, n): return f'v[{a}:{a+n-1}]'

PITCH = 544
KTCH = 57 * PITCH
T1 = 2 * KTCH
T2 = T1 + 8192
CT = T1; CTS = 3328
KR0, KR1, G4B, G8B, F1K = 0, 1216, 2368, 2880, 3200
UT0 = T2; UTS = 4640; UPAD = 528
XCH = 0
A3S = 16384

def genA(p, opt):
    stamp_n = [0]
    def stamp():
        if opt.get('stamps'):
            k = stamp_n[0]; stamp_n[0] += 1
            if k < 10: p(f's_memtime s[{80+2*k}:{81+2*k}]')
    PK = opt.get('pkA', 0)
    sU, sPar, sOUT, sWS = 8, 12, 36, 40
    s_g, s_m, s_w, s_ch, s_nh = 44, 45, 46, 47, 48
    s_tmp, s_tmp2, s_tmp3 = 49, 50, 51
    s_ldt, s_dsk = 52, 54
    s_ldv, s_dsv = 56, 57
    s_E1, s_tag = 58, 59
    s_msk = 60
    s_sp = 68
    s_so = 62
    s_ctb, s_utb = 66, 67
    vEp, vLane = 1, 2
    BAND = 224
    FIXM = 248
    p('A_ROLE:')
    p(f's_load_dwordx2 s[{sU}:{sU+1}], s[0:1], 0')
    for i in range(6): p(f's_load_dwordx2 s[{sPar+4*i}:{sPar+4*i+1}], s[0:1], {8+8*i}')
    p(f's_load_dwordx4 s[{s_ldt}:{s_ldt+3}], s[0:1], 56')
    p(f's_load_dwordx2 s[{sOUT}:{sOUT+1}], s[0:1], 104')
    p(f's_load_dwordx2 s[{sWS}:{sWS+1}], s[0:1], 120')
    if opt.get('stamps'): p('s_memrealtime s[78:79]')
    stamp()
    if opt.get('prioA0'): p(f's_setprio {opt["prioA0"]}')
    t0, t1, t2, t3, t4, t5 = 3, 4, 5, 6, 7, 8
    p(f'v_lshrrev_b32 v{t0}, 6, v0\nv_and_b32 v{vLane}, 63, v0\nv_readfirstlane_b32 s{s_w}, v{t0}')
    p(f's_and_b32 s{s_g}, s2, 7\ns_bfe_u32 s{s_m}, s2, 0x50003')
    p(f's_lshr_b32 s{s_ch}, s{s_w}, 1\ns_and_b32 s{s_nh}, s{s_w}, 1')
    vUg = 9
    p(f'v_bfe_u32 v{t1}, v0, 4, 1\nv_lshlrev_b32 v{t1}, 2, v{t1}\nv_and_b32 v{t2}, 7, v0\nv_xor_b32 v{t1}, v{t1}, v{t2}\nv_lshlrev_b32 v{t1}, 4, v{t1}')
    p(f'v_lshrrev_b32 v{t2}, 3, v0\nv_lshl_add_u32 v{vUg}, v{t2}, 10, v{t1}')
    p(f's_lshl_b32 s{s_tmp}, s{s_m}, 16\ns_lshl_b32 s{s_tmp2}, s{s_g}, 7\ns_add_u32 s{s_so}, s{s_tmp}, s{s_tmp2}\ns_add_u32 s{s_so+1}, s{s_so}, 32768')
    vPg = 10
    p(f's_lshl_b32 s{s_tmp}, s{s_g}, 5\ns_add_u32 s{s_tmp}, s{s_tmp}, s{s_m}')
    p(f's_lshl_b32 s{s_tmp3}, s{s_tmp}, 2')
    p(f's_add_u32 s{s_tmp2}, s{s_tmp3}, s{s_w}\ns_lshl_b32 s{s_so+2}, s{s_tmp2}, 7')
    p(f'v_lshlrev_b32 v{vPg}, 1, v{vLane}')
    p(f'v_mov_b32 v{vEp}, 0')
    p(f's_lshl_b32 s{s_so+3}, s{s_g}, 8')
    p(f's_mov_b32 s{sU+2}, 0x200000\ns_mov_b32 s{sU+3}, 0x20000')
    for i in range(6): p(f's_mov_b32 s{sPar+4*i+2}, 0x20000\ns_mov_b32 s{sPar+4*i+3}, 0x20000')
    p(f's_mov_b32 s{sOUT+2}, 0x400000\ns_mov_b32 s{sOUT+3}, 0x20000\ns_mov_b32 s{sWS+2}, 0x10000000\ns_mov_b32 s{sWS+3}, 0x20000')
    p(f's_lshl_b32 s{s_tmp2}, s{s_w}, 10')
    p(f's_add_u32 m0, s{s_tmp2}, {T1}')
    p('s_waitcnt lgkmcnt(0)')
    if WS_BASE: p(f's_add_u32 s{sWS}, s{sWS}, {hex(WS_BASE)}\ns_addc_u32 s{sWS+1}, s{sWS+1}, 0\ns_mov_b32 s{sWS+2}, {hex(0x10000000-WS_BASE)}')
    LD = opt.get('ldflagA', '')
    PAR = 12
    for i in range(6): p(f'buffer_load_ushort v{PAR+i}, v{vPg}, s[{sPar+4*i}:{sPar+4*i+3}], s{s_so+2} offen {LD}')
    p(f's_load_dword s{s_ldv}, s[{s_ldt}:{s_ldt+1}], s{s_tmp3}')
    p(f's_load_dword s{s_dsv}, s[{s_dsk}:{s_dsk+1}], s{s_tmp3}')
    if opt.get('udelay'): p('s_waitcnt vmcnt(0)')
    p(f'buffer_load_dwordx4 v{vUg}, s[{sU}:{sU+3}], s{s_so} offen {LD} lds')
    p(f's_add_u32 m0, s{s_tmp2}, {T1+4096}')
    p(f'buffer_load_dwordx4 v{vUg}, s[{sU}:{sU+3}], s{s_so+1} offen {LD} lds', tok='utile')
    p(f'buffer_load_dword v{vEp}, v{vEp}, s[{sWS}:{sWS+3}], s{s_so+3} offen offset:{WS_EA} sc1')
    s_xcc, s_mode = 69, 70
    p(f's_getreg_b32 s{s_xcc}, hwreg(HW_REG_XCC_ID, 0, 4)')
    if opt.get('touch', 1):
        vPT = 86
        p(f's_cmp_lg_u32 s{s_w}, 3\ns_cbranch_scc1 A_NOTOUCH')
        p(f's_lshl_b32 s{s_tmp}, s{s_g}, 5\ns_add_u32 s{s_tmp}, s{s_tmp}, s{s_m}\ns_lshl_b32 s{s_tmp2}, s{s_tmp}, 2')
        p(f'v_and_b32 v{t0}, 3, v0\nv_add_u32 v{t0}, s{s_tmp2}, v{t0}')
        p(f'v_mul_u32_u24 v{t1}, 640, v{t0}\nv_add_u32 v{vPT}, {WS_KVP+512}, v{t1}')
        p(f'v_lshlrev_b32 v{t1}, 11, v{t0}\nv_add_u32 v{t1}, {WS_OX+1920}, v{t1}\ns_mov_b64 s[{s_msk}:{s_msk+1}], 0xf0\nv_cndmask_b32 v{vPT}, v{vPT}, v{t1}, s[{s_msk}:{s_msk+1}]')
        p(f'v_lshlrev_b32 v{t1}, 7, v{t0}\nv_add_u32 v{t1}, {WS_YF}, v{t1}\ns_mov_b64 s[{s_msk}:{s_msk+1}], 0xf00\nv_cndmask_b32 v{vPT}, v{vPT}, v{t1}, s[{s_msk}:{s_msk+1}]')
        p(f's_lshl_b32 s{s_tmp}, s{s_tmp}, 7\ns_add_u32 s{s_tmp}, s{s_tmp}, {WS_FLAG}\nv_mov_b32 v{t1}, s{s_tmp}\ns_mov_b64 s[{s_msk}:{s_msk+1}], 0xf000\nv_cndmask_b32 v{vPT}, v{vPT}, v{t1}, s[{s_msk}:{s_msk+1}]')
        p('s_mov_b64 exec, 0x1fff')
        p(f'buffer_load_dword v{vPT+1}, v{vPT}, s[{sWS}:{sWS+3}], 0 offen', tok='nocount')
        p('s_mov_b64 exec, -1')
        p('A_NOTOUCH:')
    vD = 20
    p(f'v_bfe_u32 v{t0}, v0, 4, 2\nv_and_b32 v{t1}, 15, v0\nv_lshlrev_b32 v{t0}, 3, v{t0}\nv_sub_u32 v{vD}, v{t0}, v{t1}\nv_add_u32 v{vD}, 16, v{vD}')
    bands = [(11, 13), (6, 10), (3, 5), (6, 10), (5, 11), (4, 12), (4, 10)]
    p(f's_mov_b32 s{s_tmp}, 0x10001')
    for n, (lo, hi) in enumerate(bands):
        if n == 3: continue
        bits = ((1 << (hi-lo+1)) - 1) << (lo+16)
        dst = BAND + 4*n
        mul = 0x3f80 if n < 6 else 0xffff
        p(f's_mov_b32 s{s_msk}, {hex(bits)}\ns_mov_b32 s{s_msk+1}, 0')
        p(f'v_lshrrev_b64 v[{t1}:{t2}], v{vD}, s[{s_msk}:{s_msk+1}]')
        p(f'v_and_b32 v{t3}, 0xaa, v{t1}\nv_and_b32 v{t1}, 0x55, v{t1}\nv_lshl_or_b32 v{t1}, v{t3}, 15, v{t1}')
        for j in range(4):
            if j: p(f'v_lshrrev_b32 v{t3}, {2*j}, v{t1}\nv_and_b32 v{t3}, s{s_tmp}, v{t3}')
            else: p(f'v_and_b32 v{t3}, s{s_tmp}, v{t1}')
            p(f'v_mul_u32_u24 v{dst+j}, {hex(mul)}, v{t3}')
    BC = [BAND, BAND+4, BAND+8, BAND+4]; B7, B9 = BAND+16, BAND+20
    def prefetch(*a, **k): pass
    trA, wT2, rT2, gUT = 21, 22, 24, 25
    p(f'v_bfe_u32 v{t0}, v0, 2, 2\nv_bfe_u32 v{t1}, v0, 5, 1\nv_lshrrev_b32 v{t2}, 1, v{t0}\nv_xor_b32 v{t1}, v{t1}, v{t2}')
    p(f'v_lshlrev_b32 v{t0}, 7, v{t0}\nv_lshl_add_u32 v{t0}, v{t1}, 6, v{t0}')
    p(f'v_bfe_u32 v{t1}, v0, 4, 1\nv_lshl_add_u32 v{t0}, v{t1}, 5, v{t0}\nv_and_b32 v{t1}, 3, v0\nv_lshl_add_u32 v{t0}, v{t1}, 3, v{t0}')
    p(f's_lshl_b32 s{s_tmp}, s{s_w}, 11\ns_add_u32 s{s_tmp}, s{s_tmp}, {T1}')
    p(f'v_add_u32 v{trA}, s{s_tmp}, v{t0}')
    p(f's_lshl_b32 s{s_tmp}, s{s_w}, 1')
    p(f'v_and_b32 v{t0}, 7, v0\nv_xor_b32 v{t0}, s{s_tmp}, v{t0}\nv_lshlrev_b32 v{t0}, 4, v{t0}\nv_lshl_add_u32 v{t0}, v{vLane}, 7, v{t0}')
    p(f'v_add_u32 v{wT2}, {T2}, v{t0}\nv_xor_b32 v{t0}, 16, v{t0}\nv_add_u32 v{wT2+1}, {T2}, v{t0}')
    p(f'v_lshlrev_b32 v{rT2}, 4, v0\nv_add_u32 v{rT2}, {T1}, v{rT2}')
    vL16 = 27
    p(f'v_lshlrev_b32 v{vL16}, 4, v{vLane}')
    p(f'v_bfe_u32 v{t0}, v0, 3, 3\nv_and_b32 v{t1}, 7, v0\nv_xor_b32 v{t0}, v{t0}, v{t1}\nv_lshlrev_b32 v{t0}, 4, v{t0}')
    p(f'v_lshrrev_b32 v{t1}, 3, v0\nv_lshl_add_u32 v{gUT}, v{t1}, 11, v{t0}')
    s_ob = 71
    p(f's_lshl_b32 s{s_tmp}, s{s_m}, 17\ns_lshl_b32 s{s_tmp2}, s{s_g}, 7\ns_add_u32 s{s_ob}, s{s_tmp}, s{s_tmp2}\ns_add_u32 s{s_ob+1}, s{s_ob}, 65536')
    p(f's_mul_i32 s{s_ctb}, s{s_ch}, {CTS}\ns_add_u32 s{s_ctb}, s{s_ctb}, {CT}\ns_mul_i32 s{s_utb}, s{s_ch}, {UTS}\ns_add_u32 s{s_utb}, s{s_utb}, {UT0}')
    p.wait_tok('utile')
    p('s_barrier')
    stamp()
    prefetch(f's_cmp_eq_u32 s{s_w}, 0')
    UB = 28
    for rd in range(4): p(f'ds_read_b64_tr_b16 {vr(UB+2*rd,2)}, v{trA} offset:{512*rd}')
    p('s_waitcnt lgkmcnt(0)')
    p(f'ds_write_b128 v{wT2}, {vr(UB,4)}\nds_write_b128 v{wT2+1}, {vr(UB+4,4)}')
    p(f's_cmp_eq_u32 s{s_ch}, 0')
    p(f's_cselect_b32 s{s_tmp}, 16, 0')
    p(f's_lshl_b32 s{s_ldv}, s{s_ldv}, s{s_tmp}\ns_and_b32 s{s_ldv}, s{s_ldv}, 0xffff0000\ns_lshl_b32 s{s_dsv}, s{s_dsv}, s{s_tmp}\ns_and_b32 s{s_dsv}, s{s_dsv}, 0xffff0000')
    DT = 36
    p(f'v_mov_b32 v{t0}, s{s_ldv}\nv_mov_b32 v{t4}, {hex(LOG2E)}\nv_mul_f32 v{t1}, v{t4}, v{t0}')
    p(f'v_fma_f32 v{t2}, v{t0}, v{t4}, -v{t1}\nv_fmac_f32 v{t2}, 0x32a57060, v{t0}')
    p(f'v_exp_f32 v{t1}, v{t1}\nv_mul_f32 v{t2}, 0x3f317218, v{t2}\nv_fmac_f32 v{t1}, v{t1}, v{t2}')
    p(f'v_cvt_pk_bf16_f32 v{t1}, v{t1}, v{t1}\nv_and_b32 v{DT}, 0xffff0000, v{t1}')
    for i in range(6): p(f'v_lshlrev_b32 v{PAR+i}, 16, v{PAR+i}')
    for i in range(4): p(f'v_mul_f32 v{PAR+i}, v{PAR+i}, v{DT}')
    Xr = 40
    S = [40+2*i for i in range(8)]
    P1, P8, P128, Y, Y2, P16, TMP = 56, 58, 60, 62, 64, 66, 68
    p(f'v_mul_f32 v{S[0]}, v{PAR+4}, v{PAR+2}\nv_mul_f32 v{S[0]+1}, v{PAR+4}, v{PAR+3}')
    p(f'v_fma_f32 v{S[0]}, -v{PAR+5}, v{PAR+3}, v{S[0]}\nv_fmac_f32 v{S[0]+1}, v{PAR+5}, v{PAR+2}')
    p(f'v_mul_f32 v{PAR}, {hex(LOG2E)}, v{PAR}\nv_mul_f32 v{PAR+1}, 0.15915494, v{PAR+1}')
    for dst, L in ((P1, 1), (P8, 8), (P128, 128)):
        if L == 1: p(f'v_exp_f32 v{t0}, v{PAR}\nv_fract_f32 v{t1}, v{PAR+1}')
        else:
            import struct
            lf = hex(struct.unpack('<I', struct.pack('<f', float(L)))[0])
            p(f'v_mul_f32 v{t0}, {lf}, v{PAR}\nv_mul_f32 v{t1}, {lf}, v{PAR+1}\nv_exp_f32 v{t0}, v{t0}\nv_fract_f32 v{t1}, v{t1}')
        p(f'v_cos_f32 v{t2}, v{t1}\nv_sin_f32 v{t3}, v{t1}\nv_mul_f32 v{dst}, v{t0}, v{t2}\nv_mul_f32 v{dst+1}, v{t0}, v{t3}')
    vW = 26
    p(f's_mul_i32 s{s_tmp}, s{s_ch}, {KTCH}\ns_lshl_b32 s{s_tmp2}, s{s_nh}, 8\ns_add_u32 s{s_tmp}, s{s_tmp}, s{s_tmp2}')
    p(f'v_lshl_add_u32 v{vW}, v{vLane}, 2, s{s_tmp}')
    p('s_waitcnt lgkmcnt(0)\ns_barrier')
    p(f'ds_read_b128 {vr(UB,4)}, v{rT2} offset:{T2-T1}\nds_read_b128 {vr(UB+4,4)}, v{rT2} offset:{T2-T1+4096}')
    ZR = 92
    for j in range(4): p(f'v_mov_b32 v{ZR+j}, 0')
    p(f'ds_write_b128 v{rT2}, {vr(ZR,4)}\nds_write_b128 v{rT2}, {vr(ZR,4)} offset:4096')
    p(f'buffer_store_dwordx4 {vr(UB,4)}, v{gUT}, s[{sOUT}:{sOUT+3}], s{s_ob} offen sc1')
    p(f'buffer_store_dwordx4 {vr(UB+4,4)}, v{gUT}, s[{sOUT}:{sOUT+3}], s{s_ob+1} offen sc1')
    prefetch(f's_cmp_eq_u32 s{s_w}, 1', touch=True)
    stamp()
    cv = [76, 77, 78, 79]; cvn = [0]
    def cmul(dst, a, b, conj=False):
        if PK:
            if dst == a:
                L = [f'v_pk_mul_f32 {vr(TMP,2)}, {vr(a,2)}, {vr(b,2)} op_sel:[0,0] op_sel_hi:[1,0]']; acc = TMP
            else:
                L = [f'v_pk_mul_f32 {vr(dst,2)}, {vr(a,2)}, {vr(b,2)} op_sel:[0,0] op_sel_hi:[1,0]']; acc = dst
            neg = 'neg_hi:[0,1,0]' if conj else 'neg_lo:[0,1,0]'
            L.append(f'v_pk_fma_f32 {vr(dst,2)}, {vr(a,2)}, {vr(b,2)}, {vr(acc,2)} op_sel:[1,1,0] op_sel_hi:[0,1,1] {neg}')
            return L
        T = TMP + 2*(cvn[0] & 1)
        s1, s2 = ('', '-') if conj else ('-', '')
        return [f'v_mul_f32 v{T}, v{a+1}, v{b+1}', f'v_mul_f32 v{T+1}, v{a}, v{b+1}',
                f'v_fma_f32 v{dst}, v{a}, v{b}, {s1}v{T}', f'v_fma_f32 v{dst+1}, v{a+1}, v{b}, {s2}v{T+1}']
    def put(reg, e):
        c = cv[cvn[0] & 3]; cvn[0] += 1
        return [f'v_cvt_pk_bf16_f32 v{c}, v{reg}, v{reg+1}', f'ds_write_b32 v{vW}, v{c} offset:{e*PITCH}']
    xs = []
    xs.append(put(S[0], 0))
    for o in range(1, 8): xs.append(cmul(S[o], S[o-1], P1) + put(S[o], o))
    for o in range(8): xs.append(cmul(S[o], S[o], P128) + put(S[o], 8+o))
    for k, o in enumerate((0, 2, 4, 6)): xs.append(cmul(S[o], S[o], P128) + put(S[o], 16+k))
    for k, o in enumerate((0, 2, 4, 6)): xs.append(cmul(S[o], S[o], P128) + put(S[o], 20+k))
    xs.append(cmul(S[0], S[0], P128) + put(S[0], 40))
    xs.append(cmul(S[4], S[4], P128) + put(S[4], 24))
    xs.append(cmul(S[0], S[0], P8) + put(S[0], 25))
    for i in range(1, 4):
        xs.append(cmul(S[4], S[4], P128) + put(S[4], 24+2*i))
        xs.append(cmul(S[0], S[0], P128) + put(S[0], 25+2*i))
    for i in range(8): xs.append(cmul(S[0], S[0], P128) + put(S[0], 32+i))
    ys = []
    ys.append([f'v_mov_b32 v{cv[0]}, 0x3f80', f'ds_write_b32 v{vW}, v{cv[0]} offset:{41*PITCH}'])
    ys.append([f'v_mov_b32 v{Y}, v{P8}', f'v_xor_b32 v{Y+1}, 0x80000000, v{P8+1}'] + put(Y, 42))
    for j in range(2, 16): ys.append(cmul(Y, Y, P8, conj=True) + put(Y, 41+j))
    def zipops(a, b):
        out = []
        for i in range(max(len(a), len(b))):
            if i < len(a): out.append(a[i])
            if i < len(b): out.append(b[i])
        return out
    yi = 0
    if not PK:
        def retmp(L, new): return [x.replace(f'v{TMP+3}', f'v{new+1}').replace(f'v{TMP+2}', f'v{new}').replace(f'v{TMP+1}', f'v{new+1}').replace(f'v{TMP}', f'v{new}') for x in L]
        ys = [retmp(y, 80) for y in ys]
    else:
        ys = [[x.replace(vr(TMP, 2), vr(80, 2)) for x in y] for y in ys]
    ys = [[x.replace(f'v{cv[0]}', 'v84').replace(f'v{cv[1]}', 'v85').replace(f'v{cv[2]}', 'v84').replace(f'v{cv[3]}', 'v85') for x in y] for y in ys]
    n = 0
    while n < len(xs):
        if n < 8 or n >= len(xs) - 8:
            p.ext(zipops(xs[n], ys[yi])); yi += 1; n += 1
        elif n in (24,):
            p.ext(zipops(xs[n], xs[n+1])); n += 2
        elif n == 26:
            p.ext(xs[n]); n += 1
        else:
            p.ext(zipops(xs[n], xs[n+1])); n += 2
    assert yi == 16
    vR = 3
    p(f'v_and_b32 v{t1}, 15, v0\nv_mul_u32_u24 v{vR}, {PITCH}, v{t1}\nv_bfe_u32 v{t2}, v0, 4, 2\nv_lshl_add_u32 v{vR}, v{t2}, 4, v{vR}')
    p(f's_mul_i32 s{s_tmp}, s{s_ch}, {KTCH}\nv_add_u32 v{vR}, s{s_tmp}, v{vR}')
    p(f'v_readfirstlane_b32 s{s_E1}, v{vEp}')
    p('s_waitcnt vmcnt(0) lgkmcnt(0)\ns_barrier')
    stamp()
    p(f's_add_u32 s{s_E1}, s{s_E1}, 1\ns_and_b32 s{s_tag}, s{s_E1}, 0xff')
    p(f's_cmp_lg_u32 s{s_w}, 0\ns_cbranch_scc1 A_NOFLAG')
    for j in range(4): p(f'v_mov_b32 v{40+j}, s{s_xcc if j == 1 else s_E1}')
    p(f's_lshl_b32 s{s_tmp}, s{s_g}, 5\ns_add_u32 s{s_tmp}, s{s_tmp}, s{s_m}\ns_lshl_b32 s{s_tmp}, s{s_tmp}, 7\ns_add_u32 s{s_tmp}, s{s_tmp}, {WS_FLAG}')
    p('s_mov_b64 exec, 0xff')
    p(f'buffer_store_dwordx4 v[40:43], v{vL16}, s[{sWS}:{sWS+3}], s{s_tmp} offen sc1')
    p('s_mov_b64 exec, -1')
    p('A_NOFLAG:')
    FR = 44
    D0, D1 = 28, 32
    j_, q_ = t1, t2
    p(f's_cmp_lg_u32 s{s_nh}, 0\ns_cbranch_scc1 A_KG1')
    def rdk(dst, e0, ks): return f'ds_read_b128 {vr(dst,4)}, v{vR} offset:{e0*PITCH+64*ks}'
    for ks in range(4):
        p(rdk(FR+12*ks, 41, ks)); p(rdk(FR+12*ks+4, 16, ks)); p(rdk(FR+12*ks+8, 0, ks))
    aW0, aW1, aG4, vDs = 6, 7, 8, 9
    p(f'v_lshrrev_b32 v{aW0}, 1, v{q_}\nv_lshlrev_b32 v{aW0}, 5, v{aW0}\nv_and_b32 v{aW1}, 1, v{q_}\nv_add_u32 v{aW0}, v{aW0}, v{aW1}')
    p(f'v_lshl_add_u32 v{aW0}, v{j_}, 1, v{aW0}\nv_lshlrev_b32 v{aW0}, 3, v{aW0}')
    p(f's_add_u32 s{s_tmp}, s{s_ctb}, {KR0+1064}\nv_sub_u32 v{aW0}, s{s_tmp}, v{aW0}')
    p(f'v_lshlrev_b32 v{aW1}, 4, v{q_}\nv_add_u32 v{aW1}, v{aW1}, v{j_}\nv_lshlrev_b32 v{aW1}, 4, v{aW1}')
    p(f's_add_u32 s{s_tmp}, s{s_ctb}, {KR0+1056-512}\nv_sub_u32 v{aW1}, s{s_tmp}, v{aW1}')
    p(f'v_lshlrev_b32 v{aG4}, 5, v{q_}\nv_add_u32 v{aG4}, v{aG4}, v{j_}\nv_lshlrev_b32 v{aG4}, 2, v{aG4}')
    p(f's_add_u32 s{s_tmp}, s{s_ctb}, {G4B+128-256}\nv_add_u32 v{aG4}, s{s_tmp}, v{aG4}')
    p(f'v_mov_b32 v{vDs}, 0\nv_mov_b32 v10, s{s_dsv}\ns_mov_b64 s[{s_msk}:{s_msk+1}], 1\nv_cndmask_b32 v{vDs}, v{vDs}, v10, s[{s_msk}:{s_msk+1}]')
    for ks in range(8):
        b = FR + 12*(ks & 3)
        p(f'v_mfma_f32_16x16x32_bf16 {vr(D1,4)}, {vr(b+4,4)}, {vr(b,4)}, {"0" if ks==0 else vr(D1,4)}')
        p(f'v_mfma_f32_16x16x32_bf16 {vr(D0,4)}, {vr(b+8,4)}, {vr(b,4)}, {"0" if ks==0 else vr(D0,4)}')
        if ks < 4:
            p(rdk(b, 41, ks+4)); p(rdk(b+4, 16, ks+4)); p(rdk(b+8, 0, ks+4))
    cA, cB, cC, cD, cE, cF = 12, 13, 14, 15, 16, 17
    p(f'v_cvt_pk_bf16_f32 v{cA}, v{D1+2}, v{D1+2}')
    p(f'v_cvt_pk_bf16_f32 v{cB}, v{D1+1}, v{D1}')
    p(f'v_cvt_pk_bf16_f32 v{cC}, v{D1+2}, v{D1+1}')
    p(f'v_cvt_pk_bf16_f32 v{cD}, v{D1}, v{D1}')
    p(f'v_cvt_pk_bf16_f32 v{cE}, v{D1+3}, v{D1+2}')
    p(f'v_cvt_pk_bf16_f32 v{cF}, v{D1+3}, v{D1+3}')
    p('s_mov_b32 exec_hi, 0')
    p(f'ds_write_b16 v{aW1}, v{cE} offset:2\nds_write_b32 v{aW1}, v{cA} offset:4\nds_write_b64 v{aW1}, {vr(cC,2)} offset:8\nds_write_b16 v{aW1}, v{cD} offset:16')
    p(f'ds_write_b32 v{aW1}, v{cE} offset:{KR1+4}\nds_write_b64 v{aW1}, {vr(cA,2)} offset:{KR1+8}\nds_write_b32 v{aW1}, v{cD} offset:{KR1+16}')
    p('s_mov_b32 exec_lo, 0\ns_mov_b32 exec_hi, 0x80000000')
    p(f'v_mov_b32 v18, s{s_ctb}\nds_write_b32 v18, v{cF} offset:{F1K}\nv_mov_b32 v{D1+3}, 0')
    p('s_mov_b32 exec_hi, -1')
    p(f'v_cvt_pk_bf16_f32 v{cA}, v{D1}, v{D1+1}\nv_cvt_pk_bf16_f32 v{cB}, v{D1+2}, v{D1+3}')
    p(f'ds_write_b32 v{aG4}, v{cA}\nds_write_b32 v{aG4}, v{cB} offset:64')
    p('s_mov_b32 exec_lo, -1')
    p(f'v_add_f32 v{D0}, v{D0}, v{vDs}')
    p(f'v_cvt_pk_bf16_f32 v{cC}, v{D0+3}, v{D0+2}\nv_cvt_pk_bf16_f32 v{cD}, v{D0+1}, v{D0}\nv_cvt_pk_bf16_f32 v{cE}, v{D0+2}, v{D0+1}')
    p(f'ds_write_b64 v{aW0}, {vr(cC,2)}')
    p(f'ds_write_b16 v{aW0}, v{cC} offset:{KR1+2}\nds_write_b32 v{aW0}, v{cE} offset:{KR1+4}\nds_write_b16_d16_hi v{aW0}, v{cD} offset:{KR1+8}')
    p('s_branch A_KG2')
    p.assume_clean()
    p('A_KG1:')
    for ks in range(8):
        if ks < 6: p(rdk(FR+8*ks, 41, ks)); p(rdk(FR+8*ks+4, 32, ks))
    p(f'v_lshlrev_b32 v6, 4, v{vLane}\nv_mov_b32 v7, {UPAD+4096}\ns_mov_b32 s{s_msk}, 0\ns_mov_b32 s{s_msk+1}, 2')
    p(f'v_cndmask_b32 v6, v6, v7, s[{s_msk}:{s_msk+1}]\nv_add_u32 v6, s{s_utb}, v6')
    p('s_mov_b32 exec_hi, 3')
    p(f'ds_write_b128 v6, {vr(ZR,4)}')
    p('s_mov_b32 exec_hi, -1')
    p(f'v_lshlrev_b32 v8, 2, v{j_}\nv_add_u32 v8, v8, v{q_}\nv_lshlrev_b32 v8, 3, v8\ns_add_u32 s{s_tmp}, s{s_ctb}, {G8B+64}\nv_add_u32 v8, s{s_tmp}, v8')
    for ks in range(8):
        b = FR + 8*(ks % 6)
        p(f'v_mfma_f32_16x16x32_bf16 {vr(D0,4)}, {vr(b,4)}, {vr(b+4,4)}, {"0" if ks==0 else vr(D0,4)}')
        if ks < 2: p(rdk(b, 41, ks+6)); p(rdk(b+4, 32, ks+6))
    p(f'v_mov_b32 v18, s{s_ctb}')
    p(f'v_cvt_pk_bf16_f32 v{cA}, v{D0}, v{D0+1}\nv_cvt_pk_bf16_f32 v{cB}, v{D0+2}, v{D0+3}\nv_cvt_pk_bf16_f32 v{cC}, v{D0}, v{D0}\nv_cvt_pk_bf16_f32 v{cD}, v{D0}, v{D0}')
    p('s_mov_b32 exec_lo, 0x00ff00ff\ns_mov_b32 exec_hi, 0x00ff00ff')
    p(f'ds_write_b64 v8, {vr(cA,2)}')
    p('s_mov_b64 exec, 0x100')
    p(f'ds_write_b16 v18, v{cC} offset:{KR0+42}\nds_write_b32 v18, v{cC} offset:{KR0+44}\nds_write_b16 v18, v{cC} offset:{KR0+48}')
    p(f'ds_write_b32 v18, v{cC} offset:{KR1+44}\nds_write_b32 v18, v{cC} offset:{KR1+48}')
    p('s_mov_b64 exec, -1')
    p('A_KG2:')
    p('s_waitcnt lgkmcnt(0)')
    p.assume_clean()
    stamp()
    p(f'v_and_b32 v6, 31, v0\nv_lshlrev_b32 v6, 7, v6')
    p(f's_lshl_b32 s{s_tmp}, s{s_g}, 12\ns_add_u32 s{s_tmp}, s{s_tmp}, {WS_FLAG}\ns_mov_b32 s{s_sp}, 0')
    p(f's_lshl1_add_u32 s{s_tmp2}, s{s_m}, s{s_ch}\ns_lshl_b32 s{s_tmp2}, s{s_tmp2}, 11\ns_lshl_b32 s{s_tmp3}, s{s_g}, 7\ns_add_u32 s{s_so+2}, s{s_tmp2}, s{s_tmp3}')
    p(f's_lshl_b32 s{s_tmp2}, s{s_nh}, 21\ns_add_u32 s{s_tmp2}, s{s_tmp2}, s{s_so+2}\ns_add_u32 s{s_so+3}, s{s_tmp2}, 0x100000')
    p(f'v_lshrrev_b32 v10, 3, v{vLane}\nv_lshlrev_b32 v10, 17, v10\nv_and_b32 v11, 7, v0\nv_lshl_add_u32 v10, v11, 4, v10')
    p(f's_lshl_b32 s{s_tmp3}, s{s_nh}, 11\ns_add_u32 s{s_tmp3}, s{s_tmp3}, s{s_utb}\ns_add_u32 m0, s{s_tmp3}, {UPAD}')
    p('A_F_POLL:')
    p(f'buffer_load_dwordx2 v[8:9], v6, s[{sWS}:{sWS+3}], s{s_tmp} offen sc1')
    p(f's_add_u32 s{s_sp}, s{s_sp}, 1\ns_cmp_gt_u32 s{s_sp}, {SPIN_MAX}\ns_cbranch_scc1 A_F_GO')
    p(f'v_cmp_ne_u32 vcc, s{s_E1}, v8')
    p('s_cbranch_vccnz A_F_POLL')
    p('A_F_GO:')
    p(f'buffer_load_dwordx4 v10, s[{sOUT}:{sOUT+3}], s{s_tmp2} offen sc1 lds')
    p(f's_add_u32 m0, s{s_tmp3}, {UPAD+1024}')
    p(f'v_cmp_ne_u32 vcc, s{s_xcc}, v9')
    p(f'buffer_load_dwordx4 v10, s[{sOUT}:{sOUT+3}], s{s_so+3} offen sc1 lds')
    p(f's_or_b32 s{s_mode}, vcc_lo, vcc_hi')
    if opt.get('slowA'): p(f's_mov_b32 s{s_mode}, 1')
    vU, vK0, vK1, vG4, vG8 = 3, 6, 7, 8, 9
    p(f'v_lshlrev_b32 v{vU}, 1, v{j_}\nv_add_u32 v{vU}, v{vU}, v{q_}\nv_lshlrev_b32 v{vU}, 4, v{vU}\nv_add_u32 v{vU}, s{s_utb}, v{vU}')
    p(f'v_lshlrev_b32 v10, 3, v{q_}\nv_sub_u32 v10, v10, v{j_}\nv_lshlrev_b32 v10, 1, v10')
    p(f'v_and_b32 v11, 1, v0\nv_mul_u32_u24 v11, {KR1+2}, v11\nv_sub_u32 v10, v10, v11')
    p(f's_add_u32 s{s_tmp}, s{s_ctb}, {KR1+1056-512}\nv_add_u32 v{vK0}, s{s_tmp}, v10\nv_subrev_u32 v{vK1}, 512, v{vK0}')
    p(f'v_lshlrev_b32 v10, 2, v{q_}\nv_sub_u32 v10, v{j_}, v10')
    p(f's_add_u32 s{s_tmp}, s{s_ctb}, {G4B+8}\nv_lshl_add_u32 v{vG4}, v10, 3, s{s_tmp}\nv_add_u32 v{vG4}, 96, v{vG4}')
    p(f's_add_u32 s{s_tmp}, s{s_ctb}, {G8B+4}\nv_lshl_add_u32 v{vG8}, v10, 2, s{s_tmp}\nv_add_u32 v{vG8}, 48, v{vG8}')
    vY = 26
    p(f'v_and_b32 v10, 1, v{q_}\nv_lshrrev_b32 v11, 2, v{j_}\nv_lshl_add_u32 v10, v10, 2, v11\nv_lshlrev_b32 v{vY}, 17, v10')
    p(f'v_lshrrev_b32 v10, 1, v{q_}\nv_and_b32 v11, 3, v0\nv_lshl_add_u32 v10, v10, 2, v11\nv_lshl_add_u32 v{vY}, v10, 4, v{vY}')
    xw, xr = 23, 24
    p(f's_lshl_b32 s{s_tmp}, s{s_w}, 12\ns_xor_b32 s{s_tmp2}, s{s_tmp}, 4096')
    p(f'v_add_u32 v{xw}, s{s_tmp}, v{vL16}\nv_add_u32 v{xr}, s{s_tmp2}, v{vL16}')
    p('s_waitcnt vmcnt(0)\ns_barrier')
    stamp()
    ACC = 28
    KF = 60
    UF = 128
    def acc(t): return vr(ACC+4*t, 4)
    def rdK(s):
        a, o = (vK0, 16*(8-s)) if s <= 8 else (vK1, 16*(16-s))
        return [f'ds_read2_b32 {vr(KF+4*s,2)}, v{a} offset0:{o} offset1:{o+1}', f'ds_read2_b32 {vr(KF+4*s+2,2)}, v{a} offset0:{o+2} offset1:{o+3}']
    def rdU(n, slot): return f'ds_read_b128 {vr(UF+4*slot,4)}, v{vU} offset:{64*n+512}'
    started = set()
    def mf(t, A, B):
        c = acc(t) if t in started else '0'
        started.add(t)
        return f'v_mfma_f32_16x16x32_bf16 {acc(t)}, {vr(A,4)}, {vr(B,4)}, {c}'
    stn = [0]
    def two_mode(instrs):
        k = stn[0]; stn[0] += 1
        L = [f's_cmp_eq_u32 s{s_mode}, 0', f's_cbranch_scc0 A_SM{k}a'] + instrs + [f's_branch A_SM{k}b', f'A_SM{k}a:'] + [x + ' sc1' for x in instrs] + [f'A_SM{k}b:']
        return L
    YP = 12
    def ypack(t, r):
        L = [f'v_cvt_pk_bf16_f32 v{r}, v{ACC+4*t}, v{ACC+4*t+1}', f'v_cvt_pk_bf16_f32 v{r+1}, v{ACC+4*t+2}, v{ACC+4*t+3}',
             f'v_cvt_pk_bf16_f32 v{r+2}, v{ACC+4*t+4}, v{ACC+4*t+5}', f'v_cvt_pk_bf16_f32 v{r+3}, v{ACC+4*t+6}, v{ACC+4*t+7}',
             f's_add_u32 s{s_so+(t>>1&1)}, s{s_so+2}, {t << 19}',
             f'v_permlane16_swap_b32 v{r}, v{r+2}', f'v_permlane16_swap_b32 v{r+1}, v{r+3}']
        return L
    def yst(t, r): return f'buffer_store_dwordx4 {vr(r,4)}, v{vY}, s[{sOUT}:{sOUT+3}], s{s_so+(t>>1&1)} offen'
    p(f's_cmp_lg_u32 s{s_nh}, 0\ns_cbranch_scc1 A_CONV_P')
    PREU = 5
    FX = 160
    p(f'v_mov_b32 v18, s{s_ctb}\nds_read_b32 v{FX+4}, v18 offset:{F1K}')
    order = [-8] + list(range(0, 57))
    korder = list(range(16, -1, -1))
    pro = []
    kq = list(korder)
    p(rdU(order[0], 0))
    p.ext(rdK(kq.pop(0)))
    for i in range(1, PREU):
        p(rdU(order[i], i)); p.ext(rdK(kq.pop(0)))
    for j in range(4): p(f'v_and_b32 v{FX+j}, v{FIXM+j}, v{FX+4}')
    for i, n in enumerate(order):
        sl = UF + 4*(i % 8)
        ms = []
        if n >= 0:
            for t in range(2, 8):
                s = 8*t - n
                if 0 <= s <= 16: ms.append(mf(t, KF+4*s, sl))
        if n % 8 == 0 and -8 <= n <= 24: ms.append(mf((n+32)//8, FX, sl))
        nxt = []
        if i + PREU < len(order): nxt.append(rdU(order[i+PREU], (i+PREU) % 8))
        if kq: nxt += rdK(kq.pop(0))
        p(ms[0]); p.ext(nxt); p.ext(ms[1:])
    for k, t in enumerate((2, 3)): p(f'ds_write_b128 v{xw}, {acc(t)} offset:{XCH+1024*k}')
    p('s_waitcnt lgkmcnt(0)\ns_barrier')
    for k in range(4): p(f'ds_read_b128 {vr(UF+4*k,4)}, v{xr} offset:{XCH+1024*k}')
    for k, t in enumerate((4, 5, 6, 7)):
        for j in range(4): p(f'v_add_f32 v{ACC+4*t+j}, v{ACC+4*t+j}, v{UF+4*k+j}')
        if k & 1: p.ext(ypack(t-1, YP+2*(k-1)))
    p.ext(two_mode([yst(4, YP), yst(6, YP+4)]))
    p('s_branch A_CONV_END')
    p.assume_clean()
    started.clear()
    p('A_CONV_P:')
    G4F = 160
    G8F = 184
    WD = 200
    WFR = 252
    order = list(range(-8, 9))
    kneed = []
    for n in order:
        for s in ([8-n] + ([-n] if n <= 0 else [])):
            if s not in kneed: kneed.append(s)
    kq = list(kneed)
    extra = []
    for d in range(3):
        for i in range(4): extra.append(f'ds_read_b64 {vr(G4F+8*d+2*i,2)}, v{vG4} offset:{128*d+8*(3-i)}')
    for d in range(4):
        extra.append(f'ds_read2_b32 {vr(G8F+4*d,2)}, v{vG8} offset0:{16*d+3} offset1:{16*d+2}')
        extra.append(f'ds_read2_b32 {vr(G8F+4*d+2,2)}, v{vG8} offset0:{16*d+1} offset1:{16*d}')
    PP = 3
    for i in range(PP):
        p(rdU(order[i], i)); p.ext(rdK(kq.pop(0))); p.ext(rdK(kq.pop(0)))
    for i, n in enumerate(order):
        sl = UF + 4*(i % 8)
        ms = [mf(1, KF+4*(8-n), sl)]
        if n <= 0: ms.append(mf(0, KF+4*(-n), sl))
        nxt = []
        if i + PP < len(order): nxt.append(rdU(order[i+PP], (i+PP) % 8))
        for _ in range(2):
            if kq: nxt += rdK(kq.pop(0))
        if not kq:
            for _ in range(3):
                if extra: nxt.append(extra.pop(0))
        p(ms[0]); p.ext(nxt); p.ext(ms[1:])
    p.ext(extra)
    FA = [UF, UF+8, UF+16]; FB = [UF+4, UF+12, UF+20]
    def rdF(be): return [f'ds_read_b128 {vr(FA[be%3],4)}, v{vU} offset:{512*be+496}', f'ds_read_b128 {vr(FB[be%3],4)}, v{vU} offset:{512*be+480}']
    def win(be):
        fa, fb = FA[be % 3], FB[be % 3]
        L = [f'v_mfma_f32_16x16x32_bf16 {vr(WD+4*c,4)}, {vr(fa if c<3 else fb,4)}, {vr(BC[c],4)}, 0' for c in range(4)]
        if be < 4:
            L += [f'v_mfma_f32_16x16x32_bf16 {vr(WD+16,4)}, {vr(fa,4)}, {vr(B7,4)}, 0', f'v_mfma_f32_16x16x32_bf16 {vr(WD+20,4)}, {vr(fb,4)}, {vr(B9,4)}, 0']
        return L
    def wfr(be): return KF + 12*(be & 1)
    def cvts(be):
        w = wfr(be); L = []
        for i in range(4):
            L.append(f'v_cvt_pk_bf16_f32 v{w+2*i}, v{WD+i}, v{WD+4+i}')
            L.append(f'v_cvt_pk_bf16_f32 v{w+2*i+1}, v{WD+8+i}, v{WD+12+i}')
        if be < 4:
            for i in range(4): L.append(f'v_cvt_pk_bf16_f32 v{w+8+i}, v{WD+16+i}, v{WD+20+i}')
        return L
    def cons(be):
        w = wfr(be); L = []
        for d in range(3):
            if be + d <= 5:
                L.append(mf(2+be+d, w, G4F+8*d)); L.append(mf(2+be+d, w+4, G4F+8*d+4))
        if be < 4:
            for d in range(4):
                if be + d <= 3: L.append(mf(4+be+d, w+8, G8F+4*d))
        return L
    p.ext(rdF(0)); p.ext(rdF(1))
    p.ext(win(0)); p.ext(rdF(2))
    p.ext(cvts(0))
    for be in range(6):
        if be < 5:
            p.ext(win(be+1))
            if be + 3 <= 5: p.ext(rdF(be+3))
            c = cons(be); cv_ = cvts(be+1)
            k = min(3, len(c))
            p.ext(c[:k])
            if be == 0: p.ext(ypack(0, YP))
            p.ext(interleave(c[k:], cv_) if len(c) > k else cv_)
        else: p.ext(cons(be))
    for k, t in enumerate((4, 5, 6, 7)): p(f'ds_write_b128 v{xw}, {acc(t)} offset:{XCH+1024*k}')
    p('s_waitcnt lgkmcnt(0)\ns_barrier')
    for k in range(2): p(f'ds_read_b128 {vr(UF+4*k,4)}, v{xr} offset:{XCH+1024*k}')
    for k, t in enumerate((2, 3)):
        for j in range(4): p(f'v_add_f32 v{ACC+4*t+j}, v{ACC+4*t+j}, v{UF+4*k+j}')
    p.ext(ypack(2, YP+4))
    p.ext(two_mode([yst(0, YP), yst(2, YP+4)]))
    p('A_CONV_END:')
    p.assume_clean()
    stamp()
    F1, F2 = 16384, 16384 + 8192
    FV = 28
    for j in range(4): p(f'v_mov_b32 v{FV+j}, s{s_E1}')
    p(f's_lshl_b32 s{s_tmp}, s{s_g}, 5\ns_add_u32 s{s_tmp}, s{s_tmp}, s{s_m}\ns_lshl2_add_u32 s{s_tmp}, s{s_tmp}, s{s_w}\ns_lshl_b32 s{s_tmp}, s{s_tmp}, 7\ns_add_u32 s{s_tmp}, s{s_tmp}, {WS_YF}')
    p(f'v_and_b32 v3, 7, v0\nv_bfe_u32 v4, v0, 3, 1\nv_lshl_add_u32 v3, v4, 5, v3\nv_lshlrev_b32 v3, 8, v3')
    p(f's_cmp_lt_u32 s{s_m}, 16\ns_cselect_b32 s{s_tmp2}, 128, 0\ns_lshl_b32 s{s_tmp3}, s{s_g}, 3\ns_add_u32 s{s_tmp3}, s{s_tmp3}, s{s_w}\ns_lshl_b32 s{s_tmp3}, s{s_tmp3}, 11\ns_add_u32 s{s_tmp2}, s{s_tmp2}, s{s_tmp3}\ns_add_u32 s{s_so}, s{s_tmp2}, {WS_YF}')
    p(f'v_bfe_u32 v4, v0, 4, 1\nv_lshlrev_b32 v4, 2, v4\nv_and_b32 v5, 7, v0\nv_xor_b32 v4, v4, v5\nv_lshlrev_b32 v4, 4, v4\nv_lshrrev_b32 v5, 3, v0\nv_lshl_add_u32 v4, v5, 11, v4')
    p(f's_lshl_b32 s{s_tmp2}, s{s_w}, 10\ns_add_u32 m0, s{s_tmp2}, {F1}')
    p('s_waitcnt vmcnt(0)')
    p('s_mov_b64 exec, 0xff')
    p.ext(two_mode([f'buffer_store_dwordx4 {vr(FV,4)}, v{vL16}, s[{sWS}:{sWS+3}], s{s_tmp} offen']))
    p('s_mov_b64 exec, -1')
    p(f'v_subrev_u32 v{trA}, {T1-F1}, v{trA}')
    p(f'v_bfe_u32 v6, v0, 3, 2\nv_lshlrev_b32 v6, 4, v6\nv_bfe_u32 v7, v0, 5, 1\nv_lshl_add_u32 v6, v7, 3, v6\nv_and_b32 v7, 7, v0\nv_add_u32 v6, v6, v7')
    p(f's_lshl_b32 s{s_tmp}, s{s_w}, 1\nv_xor_b32 v7, s{s_tmp}, v7\nv_lshlrev_b32 v7, 4, v7\nv_lshl_add_u32 v6, v6, 7, v7\nv_add_u32 v6, {F2}, v6\nv_xor_b32 v7, 16, v6')
    p(f'v_lshlrev_b32 v9, 4, v0')
    p(f's_mov_b32 s{s_sp}, 0')
    p('A_Y_POLL:')
    p(f'buffer_load_dword v18, v3, s[{sWS}:{sWS+3}], s{s_so} offen sc1')
    p(f's_add_u32 s{s_sp}, s{s_sp}, 1\ns_cmp_gt_u32 s{s_sp}, {SPIN_MAX}\ns_cbranch_scc1 A_Y_LOAD')
    p(f'v_cmp_ne_u32 vcc, s{s_E1}, v18')
    p('s_cbranch_vccz A_Y_LOAD\ns_sleep 2\ns_branch A_Y_POLL')
    p('A_Y_LOAD:')
    p(f'buffer_load_dwordx4 v4, s[{sOUT}:{sOUT+3}], s{s_ob} offen sc1 lds')
    p(f's_add_u32 m0, s{s_tmp2}, {F1+4096}')
    p(f'buffer_load_dwordx4 v4, s[{sOUT}:{sOUT+3}], s{s_ob+1} offen sc1 lds')
    p('s_waitcnt vmcnt(0)\ns_barrier')
    stamp()
    for rd in range(4): p(f'ds_read_b64_tr_b16 {vr(UB+2*rd,2)}, v{trA} offset:{512*rd}')
    p(f'ds_write_b128 v6, {vr(UB,4)}\nds_write_b128 v7, {vr(UB+4,4)}')
    p('s_waitcnt lgkmcnt(0)\ns_barrier')
    p(f'ds_read_b128 v[52:55], v9 offset:{F2}\nds_read_b128 v[56:59], v9 offset:{F2+4096}')
    p('s_waitcnt lgkmcnt(0)')
    fin = [f'buffer_store_dwordx4 v[52:55], v{gUT}, s[{sOUT}:{sOUT+3}], s{s_ob} offen', f'buffer_store_dwordx4 v[56:59], v{gUT}, s[{sOUT}:{sOUT+3}], s{s_ob+1} offen']
    if opt.get('outflagA'): p.ext([x + ' ' + opt['outflagA'] for x in fin])
    else: p.ext(two_mode(fin))
    p(f's_or_b32 s{s_tmp}, s{s_m}, s{s_w}\ns_cmp_lg_u32 s{s_tmp}, 0\ns_cbranch_scc1 A_END')
    p(f'v_mov_b32 v10, s{s_E1}\nv_mov_b32 v11, 0\ns_lshl_b32 s{s_tmp}, s{s_g}, 8\ns_mov_b64 exec, 1')
    p(f'buffer_store_dword v10, v11, s[{sWS}:{sWS+3}], s{s_tmp} offen offset:{WS_EA} sc1')
    p('A_END:')
    if opt.get('stamps'):
        p('s_mov_b64 exec, -1')
        p('s_waitcnt vmcnt(0)')
        p('s_memtime s[100:101]\ns_memrealtime s[76:77]\ns_waitcnt lgkmcnt(0)')
        for k in range(11): p(f'v_mov_b32 v{16+k}, s{80+2*k}')
        p('v_mov_b32 v27, s78\nv_mov_b32 v28, s76\n' + f'v_mov_b32 v29, s{s_sp}')
        p(f's_lshl_b32 s{s_tmp}, s2, 8\ns_lshl_b32 s{s_tmp2}, s{s_w}, 6\ns_add_u32 s{s_tmp}, s{s_tmp}, s{s_tmp2}\ns_add_u32 s{s_tmp}, s{s_tmp}, {WS_STAMP}')
        p('v_mov_b32 v0, 0\ns_mov_b64 exec, 1')
        for k in range(4): p(f'buffer_store_dwordx4 v[{16+4*k}:{19+4*k}], v0, s[{sWS}:{sWS+3}], s{s_tmp} offen offset:{16*k}')
    p('s_endpgm')
    p.assume_clean()
```

```python
from asmdsl import Prog, interleave, slotted
from common import *

RA, RB, ST = 0, 32768, 65536
KT = ST
ZERO = ST + 3200

def vr(a, n): return f'v[{a}:{a+n-1}]'
def L_(txt): return [x for x in txt.split('\n') if x.strip()]

def genB(p, opt):
    stamp_n = [0]
    def stamp():
        if opt.get('amp') and stamp_n[0] == opt.get('amp_at', -1): p('s_memrealtime s[76:77]\ns_waitcnt lgkmcnt(0)\ns_mov_b32 s99, s76')
        if opt.get('amp'): stamp_n[0] += 1
        if opt.get('stamps'):
            k = stamp_n[0]; stamp_n[0] += 1
            p(f's_memtime s[{80+2*k}:{81+2*k}]') if k < 10 else None
    def ext2(L):
        for x in L:
            if isinstance(x, tuple) and x[0] == 'dma':
                p(x[1]); p(x[2], tok=x[3])
            else: p.ext([x])
    sX, sW, sP, sO, sOUT, sWS = 8, 12, 16, 20, 24, 28
    s_rb, s_hp, s_w, s_loc, s_xcd = 32, 33, 34, 35, 36
    s_m0b, s_st = 37, 38
    s_p1 = 39
    s_xo = 40
    s_wo = 48
    s_t = 56
    s_E1 = 60
    s_tmp, s_tmp2, s_tmp3 = 61, 62, 63
    s_c = 64
    s_p2 = 65
    s_msk = 66
    s_sp, s_rdy = 68, 69
    s_so = 70
    s_rt, s_ct, s_oo = 74, 75, 76
    s_F, s_H = 4, 5
    ACC0, ACC1, P, WF, PA, E, X = 16, 32, 48, 64, 88, 96, 128
    NSL = 6
    vA1, vA2 = 8, 12
    vTR, vTRv, vWg, vL16, vEp = 1, 2, 3, 4, 5
    vT0, vT1 = 6, 7
    a0, b0, pa, va, sa, vMask, hA, hZ = PA, PA+1, PA+2, PA+3, PA+4, PA+5, PA+6, PA+7
    vXg = E; vSR = E + 4
    t0, t1, t2, t3, t4, t5 = E + 8, E + 9, E + 10, E + 11, E + 12, E + 13
    LD = opt.get('ldflag', '')

    p('B_ROLE:')
    p(f's_load_dwordx4 s[{sX}:{sX+3}], s[0:1], 72')
    p(f's_load_dwordx2 s[{sP}:{sP+1}], s[0:1], 88')
    p(f's_load_dwordx2 s[{sO}:{sO+1}], s[0:1], 96')
    p(f's_load_dwordx2 s[{sOUT}:{sOUT+1}], s[0:1], 104')
    p(f's_load_dwordx2 s[{sWS}:{sWS+1}], s[0:1], 120')
    if opt.get('stamps') or opt.get('amp'): p('s_memrealtime s[78:79]')
    stamp()
    if opt.get('prioB0'): p(f's_setprio {opt["prioB0"]}')
    p(f'v_lshrrev_b32 v{t0}, 6, v0')
    p(f's_and_b32 s{s_xcd}, s2, 7\ns_lshr_b32 s{s_loc}, s2, 3')
    p(f'v_readfirstlane_b32 s{s_w}, v{t0}')
    if opt.get('map', '4x8') == '8x4':
        p(f's_and_b32 s{s_tmp}, s{s_xcd}, 1\ns_lshl_b32 s{s_tmp}, s{s_tmp}, 3\ns_and_b32 s{s_tmp2}, s{s_loc}, 7\ns_add_u32 s{s_rb}, s{s_tmp}, s{s_tmp2}')
        p(f's_lshr_b32 s{s_tmp}, s{s_xcd}, 1\ns_lshl_b32 s{s_tmp}, s{s_tmp}, 2\ns_lshr_b32 s{s_tmp3}, s{s_loc}, 3\ns_add_u32 s{s_hp}, s{s_tmp}, s{s_tmp3}')
        p(f's_lshl_b32 s{s_tmp3}, s{s_tmp3}, 1\ns_add_u32 s{s_tmp}, s{s_tmp2}, s{s_tmp3}\ns_and_b32 s{s_tmp}, s{s_tmp}, 7')
    else:
        p(f's_and_b32 s{s_tmp}, s{s_xcd}, 3\ns_and_b32 s{s_tmp2}, s{s_loc}, 3\ns_lshl2_add_u32 s{s_rb}, s{s_tmp}, s{s_tmp2}')
        p(f's_lshr_b32 s{s_tmp}, s{s_xcd}, 2\ns_lshr_b32 s{s_tmp3}, s{s_loc}, 2\ns_lshl3_add_u32 s{s_hp}, s{s_tmp}, s{s_tmp3}')
        p(f's_lshl1_add_u32 s{s_tmp}, s{s_tmp2}, s{s_tmp3}\ns_and_b32 s{s_tmp}, s{s_tmp}, 7')
    p(f's_lshl_b32 s{s_xo}, s{s_tmp}, 7\ns_mul_i32 s{s_wo}, s{s_xo}, 1536')
    p(f'v_bfe_u32 v{t1}, v0, 3, 3\nv_lshl_add_u32 v{t1}, v{t0}, 5, v{t1}')
    p(f'v_and_b32 v{t2}, 7, v0\nv_bfe_u32 v{t3}, v0, 4, 2\nv_xor_b32 v{t2}, v{t2}, v{t3}\nv_lshlrev_b32 v{t2}, 4, v{t2}')
    p(f's_lshl_b32 s{s_tmp}, s{s_rb}, 17')
    p(f'v_lshl_add_u32 v{t1}, v{t1}, 10, v{t2}\nv_add_u32 v{vXg}, s{s_tmp}, v{t1}')
    p(f'v_xor_b32 v{vXg+1}, 64, v{vXg}\nv_add_u32 v{vXg+2}, 16384, v{vXg}\nv_add_u32 v{vXg+1}, 8192, v{vXg+1}\nv_add_u32 v{vXg+3}, 16384, v{vXg+1}')
    p(f'v_lshrrev_b32 v{t1}, 2, v0\nv_mul_u32_u24 v{t1}, 3072, v{t1}\nv_and_b32 v{t2}, 3, v0\nv_lshl_add_u32 v{t1}, v{t2}, 4, v{t1}')
    p(f's_lshl_b32 s{s_tmp}, s{s_hp}, 6\ns_add_u32 s{s_tmp}, s{s_tmp}, 1024')
    p(f'v_add_u32 v{vWg}, s{s_tmp}, v{t1}')
    p(f's_lshl_b32 s{s_m0b}, s{s_w}, 10\ns_lshl_b32 s{s_st}, s{s_w}, 12')
    p(f's_mov_b32 s{sW+2}, 0x180000\ns_mov_b32 s{sW+3}, 0x20000')
    p('s_waitcnt lgkmcnt(0)')
    p(f's_mov_b32 s{sW}, s{sX+2}\ns_mov_b32 s{sW+1}, s{sX+3}\ns_mov_b32 s{sX+2}, 0x200000\ns_mov_b32 s{sX+3}, 0x20000')
    def xslot(c): return RB + 16384*((c+1) % 3)
    def issue_k(c):
        L = []
        for i in range(4):
            L.append(('dma', f's_add_u32 m0, s{s_st}, {xslot(c)+1024*i}', f'buffer_load_dwordx4 v{vXg+i}, s[{sX}:{sX+3}], s{s_xo+c} offen {LD} lds', None))
        L.append(('dma', f's_add_u32 m0, s{s_m0b}, {RA+4096*c}', f'buffer_load_dwordx4 v{vWg}, s[{sW}:{sW+3}], s{s_wo+c} offen {LD} lds', f'wk{c}'))
        return L
    def issue_v(c):
        return [('dma', f's_add_u32 m0, s{s_st}, {RB+16384*(c>>2)+1024*(c&3)-1024}', f'buffer_load_dwordx4 v{vWg}, s[{sW}:{sW+3}], s{s_wo+c} offen offset:1024 {LD} lds', f'wv{c}')]
    def nextoff(c): p(f's_add_u32 s{s_xo+c}, s{s_xo+c-1}, 128\ns_and_b32 s{s_xo+c}, s{s_xo+c}, 1023\ns_mul_i32 s{s_wo+c}, s{s_xo+c}, 1536')
    ext2(issue_k(0))
    p(f'v_and_b32 v{vL16}, 63, v0\nv_lshlrev_b32 v{vL16}, 4, v{vL16}\nv_mov_b32 v{vEp}, 0')
    for s, n in ((sP, 0x4000), (sWS, 0x10000000 - WS_BASE)): p(f's_mov_b32 s{s+2}, {hex(n)}\ns_mov_b32 s{s+3}, 0x20000')
    if WS_BASE: p(f's_add_u32 s{sWS}, s{sWS}, {hex(WS_BASE)}\ns_addc_u32 s{sWS+1}, s{sWS+1}, 0')
    p(f's_lshl_b32 s{s_tmp2}, s{s_hp}, 10\ns_add_u32 m0, s{s_m0b}, {RA+28672}')
    nextoff(1)
    p(f'buffer_load_dwordx4 v{vL16}, s[{sP}:{sP+3}], s{s_tmp2} offen lds', tok='wphi')
    p(f'buffer_load_dword v{vEp}, v{vEp}, s[{sWS}:{sWS+3}], 0 offen offset:{WS_EB} sc1')
    ext2(issue_k(1)); nextoff(2)
    ext2(issue_k(2))
    for c in range(3, 8): nextoff(c)
    for s, n in ((sO, 0x80000), (sOUT, 0x400000)): p(f's_mov_b32 s{s+2}, {hex(n)}\ns_mov_b32 s{s+3}, 0x20000')
    R_, CQ, NH, H_ = P, P+1, P+2, P+3
    p(f'v_bfe_u32 v{R_}, v0, 2, 2\nv_and_b32 v{CQ}, 3, v0\nv_bfe_u32 v{NH}, v0, 4, 1\nv_bfe_u32 v{H_}, v0, 5, 1')
    p(f'v_lshl_add_u32 v{t0}, v{H_}, 3, v{R_}\nv_lshlrev_b32 v{t0}, 6, v{t0}')
    p(f'v_lshl_add_u32 v{t1}, v{NH}, 2, v{CQ}\nv_lshl_add_u32 v{vTR}, v{t1}, 3, v{t0}')
    p(f'v_and_b32 v{t1}, 1, v{CQ}\nv_lshl_add_u32 v{t2}, v{t1}, 1, v{NH}')
    p(f'v_lshrrev_b32 v{t3}, 1, v{CQ}\nv_lshl_add_u32 v{t2}, v{t2}, 1, v{t3}')
    p(f'v_lshl_add_u32 v{vTRv}, v{t2}, 3, v{t0}')
    p(f's_add_u32 s{s_tmp}, s{s_st}, {RB}')
    p(f'v_bfe_u32 v{t0}, v0, 1, 3\nv_xor_b32 v{t0}, v{t0}, v{H_}\nv_lshlrev_b32 v{t0}, 4, v{t0}')
    p(f'v_and_b32 v{t4}, 31, v0\nv_lshl_add_u32 v{t0}, v{t4}, 7, v{t0}\nv_add_u32 v{vSR}, s{s_tmp}, v{t0}')
    for j in range(1, 4): p(f'v_xor_b32 v{vSR+j}, {32*j}, v{vSR}')
    p(f'v_lshl_add_u32 v{t2}, v{NH}, 1, v{t3}\nv_lshlrev_b32 v{t2}, 3, v{t2}\nv_lshl_add_u32 v{t2}, v{t1}, 9, v{t2}')
    p(f'v_lshl_add_u32 v{t0}, v{H_}, 2, v{R_}\nv_lshl_add_u32 v{t2}, v{t0}, 5, v{t2}')
    p(f's_add_u32 s{s_tmp}, s{s_m0b}, {RA+28672}\nv_add_u32 v{t5}, s{s_tmp}, v{t2}')
    p(f's_mov_b32 s{s_c}, {hex(LOG2E)}\ns_and_b32 s{s_F}, s{s_w}, 1\ns_lshr_b32 s{s_H}, s{s_w}, 1')
    u0, u1, u2, u3, u4 = P+4, P+5, P+6, P+7, P+8
    kfill = []
    kfill += L_(f'''v_bfe_u32 v{u0}, v0, 1, 2
v_lshlrev_b32 v{a0}, 4, v{u0}
v_lshl_add_u32 v{a0}, v{t4}, 6, v{a0}
v_lshl_add_u32 v{a0}, v{H_}, 11, v{a0}
s_add_u32 s{s_tmp}, s{s_st}, {ST}
v_add_u32 v{a0}, s{s_tmp}, v{a0}
v_bfe_u32 v{u0}, v0, 2, 1
v_lshlrev_b32 v{b0}, 4, v{u0}
v_lshl_add_u32 v{b0}, v{t4}, 5, v{b0}
v_lshl_add_u32 v{b0}, v{H_}, 10, v{b0}
s_add_u32 s{s_tmp}, s{s_st}, {RB}
v_add_u32 v{b0}, s{s_tmp}, v{b0}''')
    kfill += L_(f'''v_lshrrev_b32 v{u0}, 1, v{R_}
v_lshl_add_u32 v{u0}, v{NH}, 1, v{u0}
s_lshl_b32 s{s_tmp2}, s{s_F}, 1
v_or_b32 v{u1}, s{s_tmp2}, v{t3}
v_xor_b32 v{u1}, v{u1}, v{u0}
v_bfe_u32 v{u2}, v0, 2, 4
v_lshlrev_b32 v{u3}, 3, v{t1}
v_lshl_add_u32 v{pa}, v{u1}, 4, v{u3}
v_lshl_add_u32 v{pa}, v{u2}, 6, v{pa}
s_lshl_b32 s{s_tmp}, s{s_H}, 11
s_add_u32 s{s_tmp}, s{s_tmp}, {ST}
v_add_u32 v{pa}, s{s_tmp}, v{pa}
v_xor_b32 v{u1}, v{t3}, v{NH}
v_lshl_add_u32 v{va}, v{u1}, 4, v{u3}
v_lshl_add_u32 v{va}, v{u2}, 5, v{va}
s_lshl_b32 s{s_tmp}, s{s_H}, 10
s_add_u32 s{s_tmp}, s{s_tmp}, {RB}
v_add_u32 v{va}, s{s_tmp}, v{va}''')
    kfill += L_(f'''v_lshlrev_b32 v{u0}, 5, v{CQ}
v_lshl_add_u32 v{u0}, v{NH}, 4, v{u0}
v_add_u32 v{u0}, 512, v{u0}
s_mov_b32 s{s_msk}, 0
s_mov_b32 s{s_msk+1}, -1
v_cndmask_b32 v{sa}, v{vL16}, v{u0}, s[{s_msk}:{s_msk+1}]
s_mul_i32 s{s_tmp}, s{s_hp}, {16*KVP_SZ}
s_mul_i32 s{s_tmp2}, s{s_w}, 640
s_add_u32 s{s_tmp}, s{s_tmp}, s{s_tmp2}
s_add_u32 s{s_so}, s{s_tmp}, {WS_KVP}
s_mul_i32 s{s_tmp}, s{s_rb}, {KVP_SZ}
s_add_u32 s{s_p1}, s{s_so}, s{s_tmp}
s_add_u32 s{s_so+1}, s{s_so}, {4*KVP_SZ}
s_add_u32 s{s_so+2}, s{s_so}, {8*KVP_SZ}
s_add_u32 s{s_so+3}, s{s_so}, {12*KVP_SZ}
v_mov_b32 v{vMask}, 0xfffefffe
v_bfe_u32 v{u0}, v0, 4, 2
v_mul_u32_u24 v{hA}, {KVP_SZ}, v{u0}
v_and_b32 v{u1}, 15, v0
v_lshl_add_u32 v{hA}, v{u1}, 4, v{hA}
v_bfe_u32 v{u1}, v0, 1, 2
v_lshl_add_u32 v{u1}, v{u1}, 2, v{u0}
v_mul_u32_u24 v{hZ}, {KVP_SZ}, v{u1}
v_and_b32 v{u1}, 1, v0
v_lshl_add_u32 v{hZ}, v{u1}, 4, v{hZ}
v_add_u32 v{hZ}, 512, v{hZ}
s_lshl2_add_u32 s{s_tmp}, s{s_rb}, s{s_w}
s_lshl4_add_u32 s{s_tmp}, s{s_tmp}, s{s_hp}
s_lshl_b32 s{s_tmp}, s{s_tmp}, 11
s_add_u32 s{s_p2}, s{s_tmp}, {WS_OX}
s_and_b32 s{s_tmp}, s{s_loc}, 3
s_lshl2_add_u32 s{s_rt}, s{s_xcd}, s{s_tmp}
s_lshr_b32 s{s_ct}, s{s_loc}, 2''')
    tagfill = [f'v_readfirstlane_b32 s{s_E1}, v{vEp}', 's_nop 0', f's_add_u32 s{s_E1}, s{s_E1}, 1']
    for j in range(4):
        tagfill += L_(f's_lshr_b32 s{s_tmp}, s{s_E1}, {2*j}\ns_and_b32 s{s_tmp2}, s{s_tmp}, 1\ns_and_b32 s{s_tmp}, s{s_tmp}, 2\ns_lshl_b32 s{s_tmp}, s{s_tmp}, 15\ns_or_b32 s{s_t+j}, s{s_tmp}, s{s_tmp2}')
    p.ext(kfill)
    def trpair(dst, addr, off, d2=256):
        return [f'ds_read_b64_tr_b16 {vr(dst,2)}, v{addr} offset:{off}', f'ds_read_b64_tr_b16 {vr(dst+2,2)}, v{addr} offset:{off+d2}']
    for c in range(8):
        p.wait_tok(f'wk{c}')
        if c == 0: stamp()
        for j in range(4): p(f'ds_read_b128 {vr(X+16*c+4*j,4)}, v{vSR+j} offset:{xslot(c)-RB}')
        p('s_barrier')
        for j in range(4): p.ext(trpair(WF+4*j, vTR, RA+4096*c+1024*j))
        if c == 1:
            p.ext(trpair(vA1, t5, 0))
        for j in range(4):
            p(f'v_mfma_f32_32x32x16_bf16 {vr(ACC0,16)}, {vr(WF+4*j,4)}, {vr(X+16*c+4*j,4)}, {"0" if (c==0 and j==0) else vr(ACC0,16)}')
        if c == 1:
            p(f's_mov_b32 s{s_msk}, 0x0f0f0f0f\ns_mov_b32 s{s_msk+1}, 0x0f0f0f0f')
            for j in range(4): p(f'v_cndmask_b32 v{vA2+j}, v{vA1+j}, 0, s[{s_msk}:{s_msk+1}]')
            for j in range(4): p(f'v_cndmask_b32 v{vA1+j}, 0, v{vA1+j}, s[{s_msk}:{s_msk+1}]')
            p.ext(tagfill)
        if c + 3 < 8: ext2(issue_k(c + 3))
        elif c < 7:
            for cc in range(4*(c-5), 4*(c-5)+4): ext2(issue_v(cc))
    stamp()
    if opt.get('prioB'): p(f's_setprio {opt["prioB"]}')
    def phi_head(acc):
        L = [f'v_cvt_pk_bf16_f32 v{E+j}, v{acc+2*j}, v{acc+2*j+1}' for j in range(8)]
        L.insert(4, f'v_mfma_f32_32x32x16_bf16 {vr(P,16)}, {vr(vA1,4)}, {vr(E,4)}, 0')
        L.insert(4, L.pop(5)); L.insert(5, L.pop(6))
        L.append(f'v_mfma_f32_32x32x16_bf16 {vr(P,16)}, {vr(vA2,4)}, {vr(E+4,4)}, {vr(P,16)}')
        return L
    def phi_body(dst, normalize, wr=None):
        mx, mn = vT0, vT1
        L = [f'v_max3_f32 v{mx}, v{P}, v{P+1}, v{P+2}', f'v_min3_f32 v{mn}, v{P}, v{P+1}, v{P+2}']
        for j in range(3, 15, 2):
            L += [f'v_max3_f32 v{mx}, v{mx}, v{P+j}, v{P+j+1}', f'v_min3_f32 v{mn}, v{mn}, v{P+j}, v{P+j+1}']
        L += [f'v_max_f32 v{mx}, v{mx}, v{P+15}', f'v_min_f32 v{mn}, v{mn}, v{P+15}']
        L += [f'v_mul_f32 v{mx}, 0xbfb8aa3b, v{mx}', f'v_mul_f32 v{mn}, {hex(LOG2E)}, v{mn}']
        fm = [f'v_fma_f32 v{E+j}, v{P+j}, s{s_c}, v{mx}' for j in range(16)] + [f'v_fma_f32 v{E+16+j}, v{P+j}, -s{s_c}, v{mn}' for j in range(16)]
        ex = [f'v_exp_f32 v{E+j}, v{E+j}' for j in range(32)]
        L += fm[:2]
        for j in range(32):
            if j + 2 < 32: L.append(fm[j+2])
            L.append(ex[j])
        if normalize:
            for b in range(2):
                for j in range(4): L.append(f'v_add_f32 v{P+4*b+j}, v{E+16*b+j}, v{E+16*b+4+j}')
            for k in (8, 12):
                for b in range(2):
                    for j in range(4): L.append(f'v_add_f32 v{P+4*b+j}, v{P+4*b+j}, v{E+16*b+k+j}')
            for b in range(2):
                for j in range(2): L.append(f'v_add_f32 v{P+4*b+j}, v{P+4*b+j}, v{P+4*b+2+j}')
            for b in range(2): L.append(f'v_add_f32 v{P+4*b}, v{P+4*b}, v{P+4*b+1}')
            L += [f'v_rcp_f32 v{mx}, v{P}', f'v_rcp_f32 v{mn}, v{P+4}']
            for j in range(1, 4): L.append(f'v_xor_b32 v{P+8+j}, {16*j}, v{a0}')
            for g in range(4):
                for j in range(8): L.append(f'v_mul_f32 v{E+8*g+j}, v{E+8*g+j}, v{mx if g < 2 else mn}')
                for j in range(4): L.append(f'v_cvt_pk_bf16_f32 v{dst+4*g+j}, v{E+8*g+2*j}, v{E+8*g+2*j+1}')
                L.append(f'ds_write_b128 v{a0 if g == 0 else P+8+g}, {vr(dst+4*g,4)}')
        else:
            for j in range(16): L.append(f'v_cvt_pk_bf16_f32 v{dst+j}, v{E+2*j}, v{E+2*j+1}')
        return L
    PRE = opt.get('pre', 4)
    def gemm_slots(acc, addr, offf, events={}):
        def rd(n):
            c, j = n >> 2, n & 3
            L = list(events.get(c, [])) if j == 0 else []
            return L + trpair(WF+4*(n % NSL), addr, offf(c, j))
        pro = []
        for n in range(PRE): pro += rd(n)
        slots = []
        for n in range(32):
            c, j = n >> 2, n & 3
            sl = [f'v_mfma_f32_32x32x16_bf16 {vr(acc,16)}, {vr(WF+4*(n%NSL),4)}, {vr(X+16*c+4*j,4)}, {"0" if n==0 else vr(acc,16)}']
            if n+PRE < 32: sl += rd(n+PRE)
            slots.append(sl)
        return pro, slots
    p.ext(phi_head(ACC0))
    body = phi_body(ACC0, True)
    vg = opt.get('vgrp', 2)
    ev = {c: [('waittok', f'wv{c+vg-1}'), 's_barrier'] for c in range(0, 8, vg)}
    ev[0] = [('waittok', f'wv{vg-1}'), 's_barrier', f'v_subrev_u32 v{vWg}, 1024, v{vWg}']
    pro, slots = gemm_slots(ACC1, vTRv, lambda c, j: RB + 16384*(c >> 2) + 4096*j + 1024*(c & 3), ev)
    wq = [('dma', f's_add_u32 m0, s{s_m0b}, {RA+4096*c}', f'buffer_load_dwordx4 v{vWg}, s[{sW}:{sW+3}], s{s_wo+c} offen {LD} lds', f'wq{c}') for c in range(8)]
    ext2(pro)
    nhead = opt.get('phik_head', 8)
    p.ext(body[:nhead]); rest = body[nhead:]
    ext2(slotted(slots, [(rest, 0, opt.get('phik_last', 31)), (wq, opt.get('wq_at', 12), opt.get('wq_end', 28))]))
    stamp()
    VB = E; ONES = P
    p(f'v_xor_b32 v{P+4}, 16, v{b0}')
    for j in range(4): p(f'v_mov_b32 v{ONES+j}, 0x3f803f80')
    for j in range(8):
        p(f'v_cvt_pk_bf16_f32 v{VB+j}, v{ACC1+2*j}, v{ACC1+2*j+1}')
        if j == 3: p(f'ds_write_b128 v{b0}, {vr(VB,4)}')
    p(f'ds_write_b128 v{P+4}, {vr(VB+4,4)}')
    p('s_waitcnt lgkmcnt(0)\ns_barrier')
    KV, Z, R0 = P+8, P+12, E+8
    FRG = ACC0
    for ks in range(4):
        p.ext(trpair(FRG+8*ks, pa, 4096*ks, 1024)); p.ext(trpair(FRG+8*ks+4, va, 4096*ks, 512))
    for ks in range(4):
        p(f'v_mfma_f32_16x16x32_bf16 {vr(Z,4)}, {vr(FRG+8*ks,4)}, {vr(ONES,4)}, {"0" if ks==0 else vr(Z,4)}')
        p(f'v_mfma_f32_16x16x32_bf16 {vr(KV,4)}, {vr(FRG+8*ks,4)}, {vr(FRG+8*ks+4,4)}, {"0" if ks==0 else vr(KV,4)}')
    p(f's_mov_b32 s{s_rdy}, 0\ns_mov_b32 s{s_sp}, 0')
    p(f'v_cvt_pk_bf16_f32 v{R0+2}, v{Z}, v{Z+1}\nv_cvt_pk_bf16_f32 v{R0+3}, v{Z+2}, v{Z+3}')
    p(f'v_cvt_pk_bf16_f32 v{R0}, v{KV}, v{KV+1}\nv_cvt_pk_bf16_f32 v{R0+1}, v{KV+2}, v{KV+3}')
    p(f'v_permlane32_swap_b32 v{R0}, v{R0+2}\nv_permlane32_swap_b32 v{R0+1}, v{R0+3}')
    for j in range(4): p(f'v_and_or_b32 v{R0+j}, v{R0+j}, v{vMask}, s{s_t+j}')
    p(f's_mov_b32 exec_hi, 0x000f000f')
    p(f'buffer_store_dwordx4 {vr(R0,4)}, v{sa}, s[{sWS}:{sWS+3}], s{s_p1} offen sc1')
    p(f's_mov_b32 exec_hi, -1')
    stamp()
    p.wait_tok('wq7')
    p('s_barrier')
    pro, slots = gemm_slots(ACC0, vTR, lambda c, j: RA + 4096*c + 1024*j)
    ext2(pro)
    cA, cD = E+2, E+4
    p.ext(L_(f'''s_mul_i32 s{s_tmp}, s{s_H}, 1600
s_mul_i32 s{s_tmp2}, s{s_F}, 80
s_add_u32 s{s_tmp}, s{s_tmp}, s{s_tmp2}
s_add_u32 s{s_tmp3}, s{s_tmp}, {KT+16*80}
v_bfe_u32 v{cA}, v0, 2, 4
v_mul_u32_u24 v{cA}, 160, v{cA}
v_add_u32 v{cA}, s{s_tmp3}, v{cA}
s_mov_b64 s[{s_msk}:{s_msk+1}], 0xf00
v_mov_b32 v{cD}, {ZERO}
v_cndmask_b32 v{cA}, v{cA}, v{cD}, s[{s_msk}:{s_msk+1}]
v_and_b32 v{cD}, 3, v0
v_lshl_add_u32 v{cA}, v{cD}, 4, v{cA}
s_lshl_b32 s{s_tmp2}, s{s_F}, 1
s_lshl_b32 s{s_msk}, 3, s{s_tmp2}
v_mov_b32 v{cD+1}, 0x3f803f80
v_cndmask_b32 v{cD}, 0, v{cD+1}, s[{s_msk}:{s_msk+1}]
v_mov_b32 v{cD+1}, v{cD}
v_mov_b32 v{cD+2}, v{cD}
v_mov_b32 v{cD+3}, v{cD}
s_mov_b64 exec, 0xfff
ds_write_b128 v{cA}, {vr(cD,4)}
s_mov_b64 exec, -1'''))
    SEL = ACC1
    tK, tZ, aN, aX, zc = ACC1+8, ACC1+9, ACC1+10, ACC1+11, ACC1+12
    w0, w1, w2 = ACC1+13, ACC1+14, ACC1+15
    vOg = vWg
    s_r8 = s_xo
    fill = L_(f'''v_and_b32 v{w0}, 1, v0
v_lshlrev_b32 v{w0}, 4, v{w0}
v_mov_b32 v{w1}, 0x3f80
v_lshlrev_b32 v{w0}, v{w0}, v{w1}
v_bfe_u32 v{w1}, v0, 1, 3''')
    mk = [(s_msk, s_msk+1), (6, 7)]
    for j in range(0, 8, 2):
        fill += [f'v_cmp_eq_u32 s[{mk[0][0]}:{mk[0][1]}], {j}, v{w1}', f'v_cmp_eq_u32 s[{mk[1][0]}:{mk[1][1]}], {j+1}, v{w1}', f's_nop 0',
                 f'v_cndmask_b32 v{SEL+j}, 0, v{w0}, s[{mk[0][0]}:{mk[0][1]}]', f'v_cndmask_b32 v{SEL+j+1}, 0, v{w0}, s[{mk[1][0]}:{mk[1][1]}]']
    fill += L_(f'''v_bfe_u32 v{w0}, v0, 4, 1
v_lshlrev_b32 v{w0}, 2, v{w0}
v_and_b32 v{w1}, 7, v0
v_xor_b32 v{w0}, v{w0}, v{w1}
v_lshlrev_b32 v{w0}, 4, v{w0}
v_lshrrev_b32 v{w1}, 3, v0
v_lshl_add_u32 v{w0}, v{w1}, 10, v{w0}
s_lshl_b32 s{s_tmp2}, s{s_ct}, 7
v_add_u32 v{vOg}, s{s_tmp2}, v{w0}''')
    for n in range(8): fill += L_(f's_add_u32 s{s_r8+n}, s{s_ct}, {n}\ns_and_b32 s{s_r8+n}, s{s_r8+n}, 7')
    fill += L_(f'''v_bfe_u32 v{w0}, v0, 4, 1
v_bfe_u32 v{w1}, v0, 5, 1
v_lshl_add_u32 v{w2}, v{w0}, 1, v{w1}
v_and_b32 v{tK}, 15, v0
v_mul_u32_u24 v{tK}, 80, v{tK}
v_lshl_add_u32 v{tK}, v{w2}, 3, v{tK}
s_lshl_b32 s{s_tmp2}, s{s_F}, 5
s_add_u32 s{s_tmp}, s{s_tmp}, s{s_tmp2}
s_add_u32 s{s_tmp3}, s{s_tmp}, {KT+18*80}
v_and_b32 v{w2}, 1, v0
v_lshl_add_u32 v{w2}, v{w0}, 1, v{w2}
v_lshlrev_b32 v{tZ}, 3, v{w2}
v_add_u32 v{tZ}, s{s_tmp3}, v{tZ}
s_mul_i32 s{s_tmp2}, s{s_F}, 80
s_sub_u32 s{s_tmp}, s{s_tmp}, s{s_tmp2}
s_add_u32 s{s_tmp}, s{s_tmp}, {KT}
v_add_u32 v{tK}, s{s_tmp}, v{tK}
v_bfe_u32 v{w0}, v0, 3, 2
v_and_b32 v{w2}, 3, v0
v_lshl_add_u32 v{w0}, v{w0}, 2, v{w2}
v_mul_u32_u24 v{aN}, 80, v{w0}
v_mul_u32_u24 v{w1}, 1600, v{w1}
v_add_u32 v{w1}, {KT}, v{w1}
v_add_u32 v{aN}, v{aN}, v{w1}
v_mul_u32_u24 v{aX}, 80, v{w2}
v_add_u32 v{aX}, v{aX}, v{w1}
v_add_u32 v{aX}, {16*80}, v{aX}
v_mov_b32 v{w0}, {ZERO}
s_mov_b32 s{s_msk}, 0x0f0f0f0f
s_mov_b32 s{s_msk+1}, 0xf0f0f0f0
v_cndmask_b32 v{aN}, v{w0}, v{aN}, s[{s_msk}:{s_msk+1}]
s_mov_b32 s{s_msk}, 0x0000000f
s_mov_b32 s{s_msk+1}, 0x000000f0
v_cndmask_b32 v{aX}, v{w0}, v{aX}, s[{s_msk}:{s_msk+1}]''')
    def wo_dma(half):
        return [('dma', f's_lshl_b32 s3, s{s_r8+n}, 15\n' + (f's_add_u32 s3, s3, 0x40000\n' if half else '') + f's_add_u32 m0, s{s_m0b}, {(RB if half==0 else RA)+4096*n}',
                 f'buffer_load_dwordx4 v{vOg}, s[{sO}:{sO+3}], s3 offen lds', f'wo{half}_{n}') for n in range(8)]
    HZ, HK = E+12, X
    HZ = X + 32
    def z_load(): return f'buffer_load_dwordx4 {vr(HZ,4)}, v{hZ}, s[{sWS}:{sWS+3}], s{s_so} offen sc1'
    def kv_list():
        return [f'buffer_load_dwordx4 {vr(HK+8*m+4*st,4)}, v{hA}, s[{sWS}:{sWS+3}], s{s_so+m} offen offset:{256*st} sc1' for m in range(4) for st in range(2)]
    def z_check():
        return [f'v_xor_b32 v{zc}, s{s_t}, v{HZ}'] + [f'v_bitop3_b32 v{zc}, v{zc}, v{HZ+j}, s{s_t+j} bitop3:0xf6' for j in range(1, 4)] + [f'v_and_b32 v{zc}, 0x00010001, v{zc}', f'v_cmp_ne_u32 vcc, 0, v{zc}']
    zat = opt.get('z_at', 10); h1 = opt.get('h1_at', 28)
    assert zat >= 9
    ext2(slotted(slots[:h1], [(fill, 0, h1-1), ([z_load()], zat, zat)]))
    p.ext(z_check())
    p('s_cbranch_vccnz B_H1_LATE')
    p(f's_mov_b32 s{s_rdy}, 1')
    p.ext(kv_list())
    p('B_H1_LATE:')
    ext2(slotted(slots[h1:], []))
    stamp()
    EQ = X + 48
    hd = phi_head(ACC0); bd = phi_body(EQ, False)
    wo0 = wo_dma(0)
    ext2(wo0[:2]); ext2(hd); ext2(wo0[2:4])
    ext2(interleave(bd, wo0[4:]))
    stamp()
    chk = zc
    DZ, DK = P, P+4
    p(f's_cmp_eq_u32 s{s_rdy}, 0\ns_cbranch_scc1 B_H1_POLL')
    p('B_H1_CHK:')
    p(f'v_mfma_f32_16x16x32_bf16 {vr(DZ,4)}, {vr(SEL,4)}, {vr(HZ,4)}, 0')
    for n in range(8):
        p(f'v_mfma_f32_16x16x32_bf16 {vr(DK,4)}, {vr(SEL+4*(n&1),4)}, {vr(HK+4*n,4)}, {"0" if n==0 else vr(DK,4)}')
        for j in range(4):
            if n == 0 and j == 0: p(f'v_xor_b32 v{chk}, s{s_t}, v{HK}')
            else: p(f'v_bitop3_b32 v{chk}, v{chk}, v{HK+4*n+j}, s{s_t+j} bitop3:0xf6')
        if n == 1:
            for j in range(4): p(f'v_add_f32_dpp v{DZ+j}, v{DZ+j}, v{DZ+j} row_ror:2 row_mask:0xf bank_mask:0xf')
        if n == 2:
            for j in range(4): p(f'v_add_f32_dpp v{DZ+j}, v{DZ+j}, v{DZ+j} row_ror:4 row_mask:0xf bank_mask:0xf')
        if n == 3:
            p(f'v_cvt_pk_bf16_f32 v{DZ}, v{DZ}, v{DZ+1}\nv_cvt_pk_bf16_f32 v{DZ+1}, v{DZ+2}, v{DZ+3}')
            p('s_mov_b64 exec, 0x00030003')
            p(f'ds_write_b64 v{tZ}, {vr(DZ,2)}')
            p('s_mov_b64 exec, -1')
    p(f'v_and_b32 v{chk}, 0x00010001, v{chk}')
    p(f'v_cmp_ne_u32 vcc, 0, v{chk}')
    p('s_cbranch_vccnz B_H1_RETRY')
    p('B_H1_OK:')
    p(f'v_cvt_pk_bf16_f32 v{DK}, v{DK}, v{DK+1}\nv_cvt_pk_bf16_f32 v{DK+1}, v{DK+2}, v{DK+3}')
    p(f'ds_write_b64 v{tK}, {vr(DK,2)}')
    p('s_waitcnt lgkmcnt(0)\ns_barrier')
    stamp()
    OFR = X
    for j in range(4): p(f'ds_read_b128 {vr(OFR+4*j,4)}, v{aX} offset:{16*j}')
    for j in range(4): p(f'ds_read_b128 {vr(OFR+16+4*j,4)}, v{aN} offset:{16*j}')
    AUX, NP, NM = P, ACC0, ACC1
    for j in range(4): p(f'v_mfma_f32_32x32x16_bf16 {vr(AUX,16)}, {vr(OFR+4*j,4)}, {vr(EQ+4*j,4)}, {"0" if j==0 else vr(AUX,16)}')
    for j in range(2): p(f'v_mfma_f32_32x32x16_bf16 {vr(NP,16)}, {vr(OFR+16+4*j,4)}, {vr(EQ+4*j,4)}, {"0" if j==0 else vr(NP,16)}')
    for j in range(2, 4): p(f'v_mfma_f32_32x32x16_bf16 {vr(NM,16)}, {vr(OFR+16+4*j,4)}, {vr(EQ+4*j,4)}, {"0" if j==2 else vr(NM,16)}')
    c0 = E
    p(f'v_rcp_f32 v{c0}, v{AUX}\nv_rcp_f32 v{c0+1}, v{AUX+1}')
    p(f'v_mul_f32 v{c0+2}, v{AUX+2}, v{c0}\nv_fma_f32 v{c0+2}, v{AUX+3}, v{c0+1}, v{c0+2}\nv_add_f32 v{c0+2}, 0x358637bd, v{c0+2}')
    p(f'v_rcp_f32 v{c0+2}, v{c0+2}')
    p(f'v_mul_f32 v{c0}, v{c0}, v{c0+2}\nv_mul_f32 v{c0+1}, v{c0+1}, v{c0+2}')
    OB = E+16
    for hh in range(2):
        for j in range(8*hh, 8*hh+8): p(f'v_mul_f32 v{NP+j}, v{NP+j}, v{c0}')
        for j in range(8*hh, 8*hh+8): p(f'v_fmac_f32 v{NP+j}, v{NM+j}, v{c0+1}')
        for j in range(4*hh, 4*hh+4): p(f'v_cvt_pk_bf16_f32 v{OB+j}, v{NP+2*j}, v{NP+2*j+1}')
        for j in range(4*hh, 4*hh+4): p(f'v_and_or_b32 v{OB+j}, v{OB+j}, v{vMask}, s{s_t+(j&3)}')
        p(f'buffer_store_dwordx4 {vr(OB+4*hh,4)}, v{vL16}, s[{sWS}:{sWS+3}], s{s_p2} offen offset:{1024*hh} sc1')
    stamp()
    setup = L_(f'''s_lshl2_add_u32 s{s_tmp}, s{s_rt}, s{s_w}
s_lshl_b32 s{s_tmp}, s{s_tmp}, 14
s_add_u32 s{s_so}, s{s_tmp}, {WS_OX}''')
    wa, wb, pl, oa, xw, xr = E, E+1, E+2, E+3, E+6, E+7
    chk = E+8
    setup += L_(f'''v_bfe_u32 v{E+4}, v0, 2, 2
v_bfe_u32 v{E+5}, v0, 5, 1
v_lshl_add_u32 v{E+9}, v{E+5}, 4, v{E+4}
v_lshlrev_b32 v{wa}, 7, v{E+9}
v_lshrrev_b32 v{E+4}, 1, v{E+4}
v_xor_b32 v{E+4}, s{s_F}, v{E+4}
v_lshl_add_u32 v{wa}, v{E+4}, 6, v{wa}
v_and_b32 v{E+4}, 63, v{vTRv}
v_add_u32 v{wa}, v{wa}, v{E+4}
s_xor_b32 s{s_tmp3}, s{s_F}, 1
s_lshl_b32 s{s_tmp3}, s{s_tmp3}, 15
v_add_u32 v{wa}, s{s_tmp3}, v{wa}
v_xor_b32 v{wb}, 64, v{wa}
v_and_b32 v{pl}, 7, v0
v_lshlrev_b32 v{pl}, 11, v{pl}
v_add_u32 v{pl}, 2032, v{pl}
v_and_b32 v{E+4}, 31, v0
v_lshlrev_b32 v{E+5}, 5, v{E+5}
v_lshl_add_u32 v{oa}, v{E+4}, 11, v{E+5}
s_lshl1_add_u32 s{s_tmp}, s{s_rt}, s{s_H}
s_lshl_b32 s{s_tmp}, s{s_tmp}, 16
s_lshl1_add_u32 s{s_tmp3}, s{s_ct}, s{s_F}
s_lshl_b32 s{s_tmp3}, s{s_tmp3}, 6
s_add_u32 s{s_oo}, s{s_tmp}, s{s_tmp3}
s_add_u32 s{s_oo}, s{s_oo}, 1024
s_add_u32 s{s_tmp}, s{s_st}, {ST}
s_xor_b32 s{s_tmp3}, s{s_st}, 4096
s_add_u32 s{s_tmp3}, s{s_tmp3}, {ST}
v_add_u32 v{xw}, s{s_tmp}, v{vL16}
v_add_u32 v{xr}, s{s_tmp3}, v{vL16}''')
    ext2(interleave(setup, wo_dma(1)))
    for n in range(8): p(f's_lshl_b32 s{s_r8+n}, s{s_r8+n}, 11\ns_add_u32 s{s_r8+n}, s{s_r8+n}, s{s_so}')
    OF = X
    if not opt.get('nopoll2'):
        p('B_H2_POLL:')
        p(f'buffer_load_dwordx4 {vr(OF,4)}, v{pl}, s[{sWS}:{sWS+3}], s{s_so} offen sc1')
        p(f's_add_u32 s{s_sp}, s{s_sp}, 1\ns_cmp_gt_u32 s{s_sp}, {SPIN_MAX}\ns_cbranch_scc1 B_H2_FIRST')
        p(f'v_xor_b32 v{chk}, s{s_t}, v{OF}')
        for j in range(1, 4): p(f'v_bitop3_b32 v{chk}, v{chk}, v{OF+j}, s{s_t+j} bitop3:0xf6')
        p(f'v_and_b32 v{chk}, 0x00010001, v{chk}')
        p(f'v_cmp_ne_u32 vcc, 0, v{chk}')
        p('s_cbranch_vccnz B_H2_POLL')
    p('B_H2_FIRST:')
    stamp()
    def o_loads():
        for n in range(16):
            p(f'buffer_load_dwordx4 {vr(OF+4*n,4)}, v{vL16}, s[{sWS}:{sWS+3}], s{s_r8+(n>>1)} offen offset:{1024*(n&1)} sc1')
    o_loads()
    p('s_waitcnt vmcnt(16)\ns_barrier')
    p('B_H2_GO:')
    AK, AS = ACC0, P
    W2 = X + 64
    def wofr(n, slot):
        off = 128*(32*(n >> 1) + 8*(n & 1))
        return trpair(W2+8*slot+4, wb, off, 512) + trpair(W2+8*slot, wa, off, 512)
    NS2 = 5
    for n in range(3): p.ext(wofr(n, n))
    for n in range(16):
        p(f'v_mfma_f32_32x32x16_bf16 {vr(AS,16)}, {vr(W2+8*(n%NS2)+4,4)}, {vr(OF+4*n,4)}, {"0" if n==0 else vr(AS,16)}')
        if n+3 < 16: p.ext(wofr(n+3, (n+3) % NS2)[:2])
        for j in range(2):
            if n == 0 and j == 0: p(f'v_xor_b32 v{chk}, s{s_t}, v{OF}')
            else: p(f'v_bitop3_b32 v{chk}, v{chk}, v{OF+4*n+j}, s{s_t+j} bitop3:0xf6')
        p(f'v_mfma_f32_32x32x16_bf16 {vr(AK,16)}, {vr(W2+8*(n%NS2),4)}, {vr(OF+4*n,4)}, {"0" if n==0 else vr(AK,16)}')
        if n+3 < 16: p.ext(wofr(n+3, (n+3) % NS2)[2:])
        for j in range(2, 4): p(f'v_bitop3_b32 v{chk}, v{chk}, v{OF+4*n+j}, s{s_t+j} bitop3:0xf6')
    p(f'v_and_b32 v{chk}, 0x00010001, v{chk}')
    p(f'v_cmp_ne_u32 vcc, 0, v{chk}')
    p('s_cbranch_vccnz B_H2_RETRY')
    p('B_H2_OK:')
    for j in range(4): p(f'ds_write_b128 v{xw}, {vr(AS+4*j,4)} offset:{1024*j}')
    p('s_waitcnt lgkmcnt(0)\ns_barrier')
    for j in range(4): p(f'ds_read_b128 {vr(AS+4*j,4)}, v{xr} offset:{1024*j}')
    STF = opt.get('outflag', '')
    for hh in range(2):
        for j in range(8): p(f'v_add_f32 v{AK+8*hh+j}, v{AK+8*hh+j}, v{AS+8*hh+j}')
        for j in range(4): p(f'v_cvt_pk_bf16_f32 v{OB+4*hh+j}, v{AK+8*hh+2*j}, v{AK+8*hh+2*j+1}')
        p(f'buffer_store_dwordx4 {vr(OB+4*hh,4)}, v{oa}, s[{sOUT}:{sOUT+3}], s{s_oo} offen offset:{16*hh} {STF}')
    p(f's_or_b32 s{s_tmp}, s2, s{s_w}\ns_cmp_lg_u32 s{s_tmp}, 0\ns_cbranch_scc1 B_END')
    p(f'v_mov_b32 v{E}, s{s_E1}\nv_mov_b32 v{E+1}, 0\ns_mov_b64 exec, 1')
    p(f'buffer_store_dword v{E}, v{E+1}, s[{sWS}:{sWS+3}], 0 offen offset:{WS_EB} sc1')
    if opt.get('amp'):
        p('s_waitcnt vmcnt(0)\ns_memrealtime s[90:91]\ns_waitcnt lgkmcnt(0)')
        if opt.get('amp_at', -1) < 0: p('s_mov_b32 s99, s90')
        p(f's_sub_u32 s92, s99, s78\ns_mul_i32 s92, s92, {opt["amp"]}\nB_AMP:\ns_memrealtime s[94:95]\ns_waitcnt lgkmcnt(0)\ns_sub_u32 s94, s94, s90\ns_cmp_lt_u32 s94, s92\ns_cbranch_scc1 B_AMP')
    p('B_END:')
    if opt.get('stamps'):
        p('s_mov_b64 exec, -1')
        p('s_waitcnt vmcnt(0)')
        p('s_memtime s[100:101]\ns_memrealtime s[76:77]\ns_waitcnt lgkmcnt(0)')
        for k in range(11): p(f'v_mov_b32 v{16+k}, s{80+2*k}')
        p('v_mov_b32 v27, s78\nv_mov_b32 v28, s76\n' + f'v_mov_b32 v29, s{s_sp}\nv_mov_b32 v30, s{s_rdy}')
        p(f's_lshl_b32 s{s_tmp}, s2, 8\ns_lshl_b32 s{s_tmp2}, s{s_w}, 6\ns_add_u32 s{s_tmp}, s{s_tmp}, s{s_tmp2}\ns_add_u32 s{s_tmp}, s{s_tmp}, {WS_STAMP}')
        p('v_mov_b32 v0, 0\ns_mov_b64 exec, 1')
        for k in range(4): p(f'buffer_store_dwordx4 v[{16+4*k}:{19+4*k}], v0, s[{sWS}:{sWS+3}], s{s_tmp} offen offset:{16*k}')
    p('s_endpgm')
    p.assume_clean()
    p('B_H1_POLL:')
    p(z_load())
    p(f's_add_u32 s{s_sp}, s{s_sp}, 1\ns_cmp_gt_u32 s{s_sp}, {SPIN_MAX}\ns_cbranch_scc1 B_H1_GO')
    p.ext(z_check())
    p('s_cbranch_vccnz B_H1_POLL')
    p('B_H1_GO:')
    p.ext(kv_list())
    p('s_waitcnt vmcnt(0)\ns_branch B_H1_CHK')
    p('B_H1_RETRY:')
    p(f's_add_u32 s{s_sp}, s{s_sp}, 1\ns_cmp_gt_u32 s{s_sp}, {SPIN_MAX}\ns_cbranch_scc1 B_H1_OK')
    p('s_sleep 2\ns_branch B_H1_GO')
    p('B_H2_RETRY:')
    p(f's_add_u32 s{s_sp}, s{s_sp}, 1\ns_cmp_gt_u32 s{s_sp}, {SPIN_MAX}\ns_cbranch_scc1 B_H2_OK')
    p('s_sleep 2')
    o_loads()
    p('s_branch B_H2_GO')
    p.assume_clean()
```

```python
import sys, json
from asmdsl import Prog
from common import *
import genB
NAME = 'concat_heads__ssm_conv_s4__linear_kernel_hedgehog__prompt'
def build(opt):
    hdr = open(f'cdna_kernels/{NAME}.s.ref').read().split('\n')
    head = [l for l in hdr if l.startswith(';') and '@launch' not in l and 'Override' not in l and 'grid=ceil' not in l]
    head = head[:17]
    p = Prog()
    p('s_cmp_ge_u32 s2, 512\ns_cbranch_scc1 K_EXIT')
    if opt.get('pf', 1):
        p('s_getpc_b64 s[4:5]')
        p('s_bfe_u32 s3, s2, 0x50003\ns_lshl_b32 s3, s3, 10')
        p('v_lshl_add_u32 v255, v0, 7, s3')
        p('v_cmp_gt_u32 vcc, 8, v0\ns_and_saveexec_b64 s[6:7], vcc\ns_cbranch_execz K_NOPF')
        p('global_load_dword v254, v255, s[4:5]')
        p('K_NOPF:\ns_mov_b64 exec, s[6:7]')
        p.assume_clean()
    p('s_cmp_ge_u32 s2, 256\ns_cbranch_scc1 A_ROLE')
    genB.genB(p, opt)
    p.assume_clean()
    if opt.get('noA'):
        p('A_ROLE:\ns_endpgm')
    else:
        import genA
        genA.genA(p, opt)
    p('K_EXIT:\ns_endpgm')
    if opt.get('pf', 1): p(f'.fill ({NAME}_kernel + 33024 - .) / 4, 4, 0xbf810000')
    body = p.finalize()
    txt = '\n'.join(head) + f"""
; Generated by gen/gen.py (hand-written generator). One launch, 512 workgroups: ids <256 attention part, ids 256..511 SSM part.
; @launch grid=(512,1,1) block=(256,1,1) lds=81920
.amdgcn_target "amdgcn-amd-amdhsa--gfx950"
.text
.globl {NAME}_kernel
.p2align 8
.type {NAME}_kernel,@function
{NAME}_kernel:
{body}
.section .rodata,"a"
.p2align 6
.amdhsa_kernel {NAME}_kernel
  .amdhsa_next_free_vgpr 256
  .amdhsa_next_free_sgpr 102
  .amdhsa_accum_offset 256
  .amdhsa_group_segment_fixed_size 0
  .amdhsa_kernarg_size 128
  .amdhsa_user_sgpr_count 2
  .amdhsa_user_sgpr_kernarg_segment_ptr 1
  .amdhsa_system_sgpr_workgroup_id_x 1
.end_amdhsa_kernel
"""
    return txt
if __name__ == '__main__':
    out = sys.argv[1]
    opt = {}
    for a in sys.argv[2:]:
        k, _, v = a.partition('=')
        try: v = int(v)
        except ValueError: v = v if v else 1
        opt[k] = v
    open(out, 'w').write(build(opt))
```

```python
import re
WAR_MFMAS = 0

REG_RE = re.compile(r'(?<![\w.])([vsa])\[(\d+):(\d+)\]|(?<![\w.])([vsa])(\d+)(?![\w\[])|(?<![\w.])(vcc_lo|vcc_hi|vcc|exec_lo|exec_hi|exec|m0|scc)(?![\w])')

def regs_of(tok):
    out = []
    for m in REG_RE.finditer(tok):
        if m.group(1):
            out += [(m.group(1), i) for i in range(int(m.group(2)), int(m.group(3)) + 1)]
        elif m.group(4):
            out.append((m.group(4), int(m.group(5))))
        else:
            n = m.group(6)
            if n.startswith('vcc'): out.append(('x', 'vcc'))
            elif n.startswith('exec'): out.append(('x', 'exec'))
            else: out.append(('x', n))
    return out

TRANS = ('v_exp_f32', 'v_log_f32', 'v_rcp_f32', 'v_rsq_f32', 'v_sqrt_f32', 'v_sin_f32', 'v_cos_f32', 'v_rcp_iflag_f32')

class Ins:
    __slots__ = ('text', 'op', 'dst', 'src', 'kind', 'passes', 'srcC', 'tok', 'dma', 'wide_store', 'data')
    def __init__(self, text):
        self.text = text
        t = text.split(';')[0].strip()
        self.tok = None; self.dma = False; self.passes = 0; self.srcC = []; self.wide_store = False; self.data = []
        if t.endswith(':') or t == '' or t.startswith('.'):
            self.op = 'label' if t.endswith(':') else 'nop_dir'; self.dst = []; self.src = []; self.kind = self.op; return
        parts = t.split(None, 1)
        op = parts[0]; self.op = op
        rest = parts[1] if len(parts) > 1 else ''
        ops = [o.strip() for o in rest.split(',')]
        R = [regs_of(o) for o in ops]
        flat = lambda L: [r for x in L for r in x]
        base = re.sub(r'_(e32|e64|dpp|sdwa)$', '', op)
        if op.startswith('v_mfma'):
            self.kind = 'mfma'; self.dst = R[0]; self.src = flat(R[1:]); self.srcC = R[3] if len(R) > 3 else []
            self.passes = 8 if '32x32' in op else 4
        elif op.startswith('buffer_load') or op.startswith('global_load'):
            self.kind = 'vmem'
            if re.search(r'\blds\b', rest):
                self.dma = True; self.dst = []; self.src = flat(R) + [('x', 'm0')]
            else:
                self.dst = R[0]; self.src = flat(R[1:])
                if 'd16' in op: self.src += R[0]
        elif op.startswith('buffer_store') or op.startswith('global_store') or op.startswith('buffer_atomic') or op.startswith('global_atomic'):
            self.kind = 'vmem'; self.dst = []; self.src = flat(R)
            if op.endswith('x4') or op.endswith('x3'):
                self.wide_store = True; self.data = R[0] if op.startswith('buffer') else R[1]
        elif op.startswith('ds_read'):
            self.kind = 'ds'; self.dst = R[0]; self.src = flat(R[1:])
        elif op.startswith('ds_write'):
            self.kind = 'ds'; self.dst = []; self.src = flat(R)
        elif op.startswith('s_load') or op.startswith('s_memtime') or op.startswith('s_memrealtime'):
            self.kind = 'smem'; self.dst = R[0]; self.src = flat(R[1:])
        elif op.startswith('v_'):
            self.kind = 'valu'
            if base.startswith('v_cmpx'):
                self.dst = R[0] + [('x', 'exec')]; self.src = flat(R[1:])
            elif base.startswith('v_permlane') and 'swap' in base:
                self.dst = R[0] + R[1]; self.src = R[0] + R[1]
            elif base in ('v_fmac_f32', 'v_dot2c_f32_bf16', 'v_writelane_b32') or op.endswith('_dpp') or op.endswith('_sdwa'):
                self.dst = R[0]; self.src = flat(R)
            elif base in ('v_add_co_u32', 'v_sub_co_u32', 'v_addc_co_u32'):
                self.dst = R[0] + R[1]; self.src = flat(R[2:])
            elif base == 'v_nop':
                self.dst = []; self.src = []
            else:
                self.dst = R[0]; self.src = flat(R[1:])
        elif op.startswith('s_'):
            self.kind = 'salu'
            if op in ('s_waitcnt', 's_barrier', 's_nop', 's_endpgm', 's_sleep', 's_setprio', 's_branch') or op.startswith('s_cbranch'):
                self.dst = []; self.src = []
                if 'vcc' in op: self.src = [('x', 'vcc')]
                if 'exec' in op: self.src = [('x', 'exec')]
                if op != 's_nop' and op != 's_setprio' and op != 's_sleep': self.kind = 'ctrl'
            elif op.startswith('s_cmp') or op.startswith('s_bitcmp'):
                self.dst = []; self.src = flat(R)
            elif 'saveexec' in op:
                self.dst = R[0] + [('x', 'exec')]; self.src = flat(R[1:]) + [('x', 'exec')]
            elif op in ('s_setpc_b64',):
                self.dst = []; self.src = flat(R); self.kind = 'ctrl'
            else:
                self.dst = R[0]; self.src = flat(R[1:])
                if op in ('s_addk_i32', 's_mulk_i32'): self.src += R[0]
        else:
            raise ValueError('unknown op: ' + text)

class Prog:
    def __init__(self):
        self.items = []
        self.ntok = 0
    def __call__(self, text, tok=None):
        for line in text.split('\n'):
            line = line.strip()
            if not line: continue
            i = Ins(line); i.tok = tok; self.items.append(i)
    def ext(self, lst):
        for x in lst:
            if isinstance(x, str): self(x)
            else: self.items.append(x)
    def wait_tok(self, tok):
        self.items.append(('waittok', tok))
    def assume_clean(self):
        self.items.append(('clean', None))

    def save_state(self):
        self.ntok += 1; self.items.append(('save', self.ntok)); self.items.append(('clean', None)); return self.ntok
    def restore_state(self, k):
        self.items.append(('restore', k))
    def finalize(self, verbose=True):
        out = []
        vq = []; lq = []
        def emit(t): out.append(Ins(t))
        def need(q, regs):
            idx = -1
            for n, e in enumerate(q):
                if e[0] & regs: idx = n
            return idx
        nw = 0; saved = {}
        for it in self.items:
            if isinstance(it, tuple):
                if it[0] == 'waittok':
                    idx = -1
                    for n, e in enumerate(vq):
                        if e[1] == it[1]: idx = n
                    if idx >= 0:
                        N = len(vq) - 1 - idx
                        emit(f's_waitcnt vmcnt({min(N,62)})'); vq = vq[idx + 1:]
                elif it[0] == 'save': saved[it[1]] = (list(vq), list(lq))
                elif it[0] == 'restore': vq, lq = saved[it[1]]
                elif it[0] == 'clean':
                    vq = []; lq = []
                continue
            i = it
            if i.op == 's_waitcnt':
                m = re.search(r'vmcnt\((\d+)\)', i.text)
                if m:
                    N = int(m.group(1)); vq = vq[max(0, len(vq) - N):] if N < len(vq) else vq
                m = re.search(r'lgkmcnt\((\d+)\)', i.text)
                if m:
                    N = int(m.group(1))
                    if N == 0: lq = []
                    elif not any(e[2] for e in lq): lq = lq[max(0, len(lq) - N):] if N < len(lq) else lq
                out.append(i); continue
            regs = set(i.src) | set(i.dst)
            w = []
            idx = need(vq, regs)
            if idx >= 0:
                N = len(vq) - 1 - idx
                w.append(f'vmcnt({min(N,62)})'); vq = vq[idx + 1:]
            idx = need(lq, regs)
            if idx >= 0:
                if any(e[2] for e in lq):
                    w.append('lgkmcnt(0)'); lq = []
                else:
                    N = len(lq) - 1 - idx
                    w.append(f'lgkmcnt({min(N,14)})'); lq = lq[idx + 1:]
            if w: emit('s_waitcnt ' + ' '.join(w)); nw += 1
            out.append(i)
            if i.kind == 'vmem' and i.tok == 'nocount': pass
            elif i.kind == 'vmem':
                vq.append((set(i.dst), i.tok, False))
                assert len(vq) <= 63, 'vmcnt overflow at ' + i.text
            elif i.kind == 'ds': lq.append((set(i.dst), i.tok, False))
            elif i.kind == 'smem': lq.append((set(i.dst), i.tok, True))
        res = []; nnop = 0
        def states(x):
            if x.kind in ('label', 'nop_dir'): return 0
            if x.op == 's_nop': return int(x.text.split()[1], 0) + 1
            return 1
        for i in out:
            if i.kind in ('label', 'nop_dir'):
                res.append(i); continue
            req = 0; dist = 0
            S = set(i.src); D = set(i.dst)
            isvalu = i.kind == 'valu'
            base = re.sub(r'_(e32|e64|dpp|sdwa)$', '', i.op)
            for p in reversed(res):
                if dist >= 20: break
                if p.kind in ('label', 'nop_dir'): continue
                PD = set(p.dst); need_ = 0
                if p.kind == 'mfma':
                    big = {4: 8, 8: 12}[p.passes]
                    if i.kind == 'mfma':
                        AB = S - set(i.srcC) if i.srcC else S
                        ab = set(regs_of(i.text.split(',')[1])) | set(regs_of(i.text.split(',')[2]))
                        if ab & PD: need_ = max(need_, big)
                        if set(i.srcC) & PD:
                            if not (list(i.srcC) == list(p.dst) and i.passes == p.passes): need_ = max(need_, {4: 6, 8: 10}[p.passes])
                        elif D & PD: need_ = max(need_, big)
                    elif i.kind in ('valu', 'vmem', 'ds'):
                        if (S | D) & PD: need_ = max(need_, big)
                        if isvalu and D & set(p.srcC): need_ = max(need_, {4: 3, 8: 7}[p.passes])
                elif p.kind == 'valu':
                    pv = {r for r in PD if r[0] == 'v'}; ps = {r for r in PD if r[0] == 's' or r == ('x', 'vcc')}
                    if i.kind == 'mfma' and S & pv: need_ = max(need_, 2)
                    if i.kind == 'mfma' and ('x', 'exec') in PD: need_ = max(need_, 4)
                    if isvalu:
                        if (i.op.endswith('_dpp') or base.startswith('v_permlane')) and S & pv: need_ = max(need_, 2)
                        if (i.op.endswith('_dpp')) and ('x', 'exec') in PD: need_ = max(need_, 5)
                        if base in ('v_readfirstlane_b32', 'v_readlane_b32') and S & pv: need_ = max(need_, 1)
                        if base in ('v_readfirstlane_b32', 'v_readlane_b32', 'v_writelane_b32') and ('x', 'exec') in PD: need_ = max(need_, 4)
                        if S & ps: need_ = max(need_, 4 if base in ('v_readlane_b32', 'v_writelane_b32') else 2)
                        pb = re.sub(r'_(e32|e64|dpp|sdwa)$', '', p.op)
                        if pb in TRANS and S & pv: need_ = max(need_, 1)
                        if (p.op.endswith('_sdwa') or 'op_sel' in p.text and not p.op.startswith('v_pk')) and (S | D) & pv: need_ = max(need_, 1)
                    if i.kind == 'vmem' and S & ps: need_ = max(need_, 5)
                    if i.kind in ('salu', 'ctrl') and S & ps: need_ = max(need_, 1)
                elif p.kind == 'salu':
                    if ('x', 'm0') in PD and i.dma: need_ = max(need_, 1)
                elif p.kind == 'vmem':
                    if p.wide_store and D & set(p.data): need_ = max(need_, 2 if isvalu else 1)
                req = max(req, need_ - dist)
                dist += states(p)
            if req > 0:
                res.append(Ins(f's_nop {req - 1}')); nnop += req
            res.append(i)
        recent = []
        for k, i in enumerate(res):
            if i.kind == 'mfma':
                ops = i.text.split(',')
                recent.append((k, set(regs_of(ops[1])) | set(regs_of(ops[2]))))
            elif i.kind == 'ds' and i.dst:
                for back, (kk, ab) in enumerate(reversed((recent[-WAR_MFMAS:] if WAR_MFMAS else []))):
                    if ab & set(i.dst) and k - kk < 40: print('[asmdsl] WAR warning (%d mfma between): %s  <- %s' % (back, i.text, res[kk].text))
        if verbose: print(f'[asmdsl] {len(res)} lines, {nw} auto waits, {nnop} hazard nop states')
        return '\n'.join(('' if x.kind == 'label' else '    ') + x.text for x in res)

def interleave(main, fill, start=0, per=None):
    n = len(main) - start
    out = list(main[:start]); fi = 0
    for k, m in enumerate(main[start:]):
        out.append(m)
        tgt = (k + 1) * len(fill) // n
        while fi < tgt:
            out.append(fill[fi]); fi += 1
    out += fill[fi:]
    return out


def cost(x):
    if isinstance(x, tuple): return 3.0 if x[0] == 'dma' else 0.0
    op = x.split()[0]
    if op in TRANS: return 2.0
    if op.startswith('s_'): return 0.5
    if op.startswith('buffer_') : return 2.0
    return 1.0

def slotted(slots, fills):
    extra = [[] for _ in slots]
    for items, a, b in fills:
        b = min(b, len(slots) - 1)
        tot = sum(cost(x) for x in items); acc = 0.0; n = b - a + 1
        for x in items:
            k = a + min(n - 1, int((acc + 0.5 * cost(x)) * n / tot)) if tot > 0 else a
            extra[k].append(x); acc += cost(x)
    out = []
    for sl, ex in zip(slots, extra): out += sl + ex
    return out
```

```python
from asmdsl import Prog, interleave, slotted
from common import *

def vr(a, n): return f'v[{a}:{a+n-1}]'

PITCH = 544
KTCH = 57 * PITCH
T1 = 2 * KTCH
T2 = T1 + 8192
CT = T1; CTS = 3328
KR0, KR1, G4B, G8B, F1K = 0, 1216, 2368, 2880, 3200
UT0 = T2; UTS = 4640; UPAD = 528
XCH = 0
A3S = 16384

def genA(p, opt):
    stamp_n = [0]
    def stamp():
        if opt.get('stamps'):
            k = stamp_n[0]; stamp_n[0] += 1
            if k < 10: p(f's_memtime s[{80+2*k}:{81+2*k}]')
    PK = opt.get('pkA', 0)
    sU, sPar, sOUT, sWS = 8, 12, 36, 40
    s_g, s_m, s_w, s_ch, s_nh = 44, 45, 46, 47, 48
    s_tmp, s_tmp2, s_tmp3 = 49, 50, 51
    s_ldt, s_dsk = 52, 54
    s_ldv, s_dsv = 56, 57
    s_E1, s_tag = 58, 59
    s_msk = 60
    s_sp = 68
    s_so = 62
    s_ctb, s_utb = 66, 67
    vEp, vLane = 1, 2
    BAND = 224
    FIXM = 248
    p('A_ROLE:')
    p(f's_load_dwordx2 s[{sU}:{sU+1}], s[0:1], 0')
    for i in range(6): p(f's_load_dwordx2 s[{sPar+4*i}:{sPar+4*i+1}], s[0:1], {8+8*i}')
    p(f's_load_dwordx4 s[{s_ldt}:{s_ldt+3}], s[0:1], 56')
    p(f's_load_dwordx2 s[{sOUT}:{sOUT+1}], s[0:1], 104')
    p(f's_load_dwordx2 s[{sWS}:{sWS+1}], s[0:1], 120')
    if opt.get('stamps'): p('s_memrealtime s[78:79]')
    stamp()
    if opt.get('prioA0'): p(f's_setprio {opt["prioA0"]}')
    t0, t1, t2, t3, t4, t5 = 3, 4, 5, 6, 7, 8
    p(f'v_lshrrev_b32 v{t0}, 6, v0\nv_and_b32 v{vLane}, 63, v0\nv_readfirstlane_b32 s{s_w}, v{t0}')
    p(f's_and_b32 s{s_g}, s2, 7\ns_bfe_u32 s{s_m}, s2, 0x50003')
    p(f's_lshr_b32 s{s_ch}, s{s_w}, 1\ns_and_b32 s{s_nh}, s{s_w}, 1')
    vUg = 9
    p(f'v_bfe_u32 v{t1}, v0, 4, 1\nv_lshlrev_b32 v{t1}, 2, v{t1}\nv_and_b32 v{t2}, 7, v0\nv_xor_b32 v{t1}, v{t1}, v{t2}\nv_lshlrev_b32 v{t1}, 4, v{t1}')
    p(f'v_lshrrev_b32 v{t2}, 3, v0\nv_lshl_add_u32 v{vUg}, v{t2}, 10, v{t1}')
    p(f's_lshl_b32 s{s_tmp}, s{s_m}, 16\ns_lshl_b32 s{s_tmp2}, s{s_g}, 7\ns_add_u32 s{s_so}, s{s_tmp}, s{s_tmp2}\ns_add_u32 s{s_so+1}, s{s_so}, 32768')
    vPg = 10
    p(f's_lshl_b32 s{s_tmp}, s{s_g}, 5\ns_add_u32 s{s_tmp}, s{s_tmp}, s{s_m}')
    p(f's_lshl_b32 s{s_tmp3}, s{s_tmp}, 2')
    p(f's_add_u32 s{s_tmp2}, s{s_tmp3}, s{s_w}\ns_lshl_b32 s{s_so+2}, s{s_tmp2}, 7')
    p(f'v_lshlrev_b32 v{vPg}, 1, v{vLane}')
    p(f'v_mov_b32 v{vEp}, 0')
    p(f's_lshl_b32 s{s_so+3}, s{s_g}, 8')
    p(f's_mov_b32 s{sU+2}, 0x200000\ns_mov_b32 s{sU+3}, 0x20000')
    for i in range(6): p(f's_mov_b32 s{sPar+4*i+2}, 0x20000\ns_mov_b32 s{sPar+4*i+3}, 0x20000')
    p(f's_mov_b32 s{sOUT+2}, 0x400000\ns_mov_b32 s{sOUT+3}, 0x20000\ns_mov_b32 s{sWS+2}, 0x10000000\ns_mov_b32 s{sWS+3}, 0x20000')
    p(f's_lshl_b32 s{s_tmp2}, s{s_w}, 10')
    p(f's_add_u32 m0, s{s_tmp2}, {T1}')
    p('s_waitcnt lgkmcnt(0)')
    if WS_BASE: p(f's_add_u32 s{sWS}, s{sWS}, {hex(WS_BASE)}\ns_addc_u32 s{sWS+1}, s{sWS+1}, 0\ns_mov_b32 s{sWS+2}, {hex(0x10000000-WS_BASE)}')
    LD = opt.get('ldflagA', '')
    PAR = 12
    for i in range(6): p(f'buffer_load_ushort v{PAR+i}, v{vPg}, s[{sPar+4*i}:{sPar+4*i+3}], s{s_so+2} offen {LD}')
    p(f's_load_dword s{s_ldv}, s[{s_ldt}:{s_ldt+1}], s{s_tmp3}')
    p(f's_load_dword s{s_dsv}, s[{s_dsk}:{s_dsk+1}], s{s_tmp3}')
    if opt.get('udelay'): p('s_waitcnt vmcnt(0)')
    p(f'buffer_load_dwordx4 v{vUg}, s[{sU}:{sU+3}], s{s_so} offen {LD} lds')
    p(f's_add_u32 m0, s{s_tmp2}, {T1+4096}')
    p(f'buffer_load_dwordx4 v{vUg}, s[{sU}:{sU+3}], s{s_so+1} offen {LD} lds', tok='utile')
    p(f'buffer_load_dword v{vEp}, v{vEp}, s[{sWS}:{sWS+3}], s{s_so+3} offen offset:{WS_EA} sc1')
    if opt.get('prioA0'): p(f's_setprio {opt.get("prioA1", 0)}')
    yield
    s_xcc, s_mode = 69, 70
    p(f's_getreg_b32 s{s_xcc}, hwreg(HW_REG_XCC_ID, 0, 4)')
    if opt.get('touch', 1):
        vPT = 86
        p(f's_cmp_lg_u32 s{s_w}, 3\ns_cbranch_scc1 A_NOTOUCH')
        p(f's_lshl_b32 s{s_tmp}, s{s_g}, 5\ns_add_u32 s{s_tmp}, s{s_tmp}, s{s_m}\ns_lshl_b32 s{s_tmp2}, s{s_tmp}, 2')
        p(f'v_and_b32 v{t0}, 3, v0\nv_add_u32 v{t0}, s{s_tmp2}, v{t0}')
        p(f'v_mul_u32_u24 v{t1}, 640, v{t0}\nv_add_u32 v{vPT}, {WS_KVP+512}, v{t1}')
        p(f'v_lshlrev_b32 v{t1}, 11, v{t0}\nv_add_u32 v{t1}, {WS_OX+1920}, v{t1}\ns_mov_b64 s[{s_msk}:{s_msk+1}], 0xf0\nv_cndmask_b32 v{vPT}, v{vPT}, v{t1}, s[{s_msk}:{s_msk+1}]')
        p(f'v_lshlrev_b32 v{t1}, 7, v{t0}\nv_add_u32 v{t1}, {WS_YF}, v{t1}\ns_mov_b64 s[{s_msk}:{s_msk+1}], 0xf00\nv_cndmask_b32 v{vPT}, v{vPT}, v{t1}, s[{s_msk}:{s_msk+1}]')
        p(f's_lshl_b32 s{s_tmp}, s{s_tmp}, 7\ns_add_u32 s{s_tmp}, s{s_tmp}, {WS_FLAG}\nv_mov_b32 v{t1}, s{s_tmp}\ns_mov_b64 s[{s_msk}:{s_msk+1}], 0xf000\nv_cndmask_b32 v{vPT}, v{vPT}, v{t1}, s[{s_msk}:{s_msk+1}]')
        p('s_mov_b64 exec, 0x1fff')
        p(f'buffer_load_dword v{vPT+1}, v{vPT}, s[{sWS}:{sWS+3}], 0 offen', tok='nocount')
        p('s_mov_b64 exec, -1')
        p('A_NOTOUCH:')
    vD = 20
    p(f'v_bfe_u32 v{t0}, v0, 4, 2\nv_and_b32 v{t1}, 15, v0\nv_lshlrev_b32 v{t0}, 3, v{t0}\nv_sub_u32 v{vD}, v{t0}, v{t1}\nv_add_u32 v{vD}, 16, v{vD}')
    bands = [(11, 13), (6, 10), (3, 5), (6, 10), (5, 11), (4, 12), (4, 10)]
    p(f's_mov_b32 s{s_tmp}, 0x10001')
    for n, (lo, hi) in enumerate(bands):
        if n == 3: continue
        bits = ((1 << (hi-lo+1)) - 1) << (lo+16)
        dst = BAND + 4*n
        mul = 0x3f80 if n < 6 else 0xffff
        p(f's_mov_b32 s{s_msk}, {hex(bits)}\ns_mov_b32 s{s_msk+1}, 0')
        p(f'v_lshrrev_b64 v[{t1}:{t2}], v{vD}, s[{s_msk}:{s_msk+1}]')
        p(f'v_and_b32 v{t3}, 0xaa, v{t1}\nv_and_b32 v{t1}, 0x55, v{t1}\nv_lshl_or_b32 v{t1}, v{t3}, 15, v{t1}')
        for j in range(4):
            if j: p(f'v_lshrrev_b32 v{t3}, {2*j}, v{t1}\nv_and_b32 v{t3}, s{s_tmp}, v{t3}')
            else: p(f'v_and_b32 v{t3}, s{s_tmp}, v{t1}')
            p(f'v_mul_u32_u24 v{dst+j}, {hex(mul)}, v{t3}')
    BC = [BAND, BAND+4, BAND+8, BAND+4]; B7, B9 = BAND+16, BAND+20
    def prefetch(*a, **k): pass
    trA, wT2, rT2, gUT = 21, 22, 24, 25
    p(f'v_bfe_u32 v{t0}, v0, 2, 2\nv_bfe_u32 v{t1}, v0, 5, 1\nv_lshrrev_b32 v{t2}, 1, v{t0}\nv_xor_b32 v{t1}, v{t1}, v{t2}')
    p(f'v_lshlrev_b32 v{t0}, 7, v{t0}\nv_lshl_add_u32 v{t0}, v{t1}, 6, v{t0}')
    p(f'v_bfe_u32 v{t1}, v0, 4, 1\nv_lshl_add_u32 v{t0}, v{t1}, 5, v{t0}\nv_and_b32 v{t1}, 3, v0\nv_lshl_add_u32 v{t0}, v{t1}, 3, v{t0}')
    p(f's_lshl_b32 s{s_tmp}, s{s_w}, 11\ns_add_u32 s{s_tmp}, s{s_tmp}, {T1}')
    p(f'v_add_u32 v{trA}, s{s_tmp}, v{t0}')
    p(f's_lshl_b32 s{s_tmp}, s{s_w}, 1')
    p(f'v_and_b32 v{t0}, 7, v0\nv_xor_b32 v{t0}, s{s_tmp}, v{t0}\nv_lshlrev_b32 v{t0}, 4, v{t0}\nv_lshl_add_u32 v{t0}, v{vLane}, 7, v{t0}')
    p(f'v_add_u32 v{wT2}, {T2}, v{t0}\nv_xor_b32 v{t0}, 16, v{t0}\nv_add_u32 v{wT2+1}, {T2}, v{t0}')
    p(f'v_lshlrev_b32 v{rT2}, 4, v0\nv_add_u32 v{rT2}, {T1}, v{rT2}')
    vL16 = 27
    p(f'v_lshlrev_b32 v{vL16}, 4, v{vLane}')
    p(f'v_bfe_u32 v{t0}, v0, 3, 3\nv_and_b32 v{t1}, 7, v0\nv_xor_b32 v{t0}, v{t0}, v{t1}\nv_lshlrev_b32 v{t0}, 4, v{t0}')
    p(f'v_lshrrev_b32 v{t1}, 3, v0\nv_lshl_add_u32 v{gUT}, v{t1}, 11, v{t0}')
    s_ob = 71
    p(f's_lshl_b32 s{s_tmp}, s{s_m}, 17\ns_lshl_b32 s{s_tmp2}, s{s_g}, 7\ns_add_u32 s{s_ob}, s{s_tmp}, s{s_tmp2}\ns_add_u32 s{s_ob+1}, s{s_ob}, 65536')
    p(f's_mul_i32 s{s_ctb}, s{s_ch}, {CTS}\ns_add_u32 s{s_ctb}, s{s_ctb}, {CT}\ns_mul_i32 s{s_utb}, s{s_ch}, {UTS}\ns_add_u32 s{s_utb}, s{s_utb}, {UT0}')
    p.wait_tok('utile')
    p('s_barrier')
    stamp()
    prefetch(f's_cmp_eq_u32 s{s_w}, 0')
    UB = 96
    for rd in range(4): p(f'ds_read_b64_tr_b16 {vr(UB+2*rd,2)}, v{trA} offset:{512*rd}')
    p('s_waitcnt lgkmcnt(0)')
    p(f'ds_write_b128 v{wT2}, {vr(UB,4)}\nds_write_b128 v{wT2+1}, {vr(UB+4,4)}')
    p(f's_cmp_eq_u32 s{s_ch}, 0')
    p(f's_cselect_b32 s{s_tmp}, 16, 0')
    p(f's_lshl_b32 s{s_ldv}, s{s_ldv}, s{s_tmp}\ns_and_b32 s{s_ldv}, s{s_ldv}, 0xffff0000\ns_lshl_b32 s{s_dsv}, s{s_dsv}, s{s_tmp}\ns_and_b32 s{s_dsv}, s{s_dsv}, 0xffff0000')
    DT = 36
    p(f'v_mov_b32 v{t0}, s{s_ldv}\nv_mov_b32 v{t4}, {hex(LOG2E)}\nv_mul_f32 v{t1}, v{t4}, v{t0}')
    p(f'v_fma_f32 v{t2}, v{t0}, v{t4}, -v{t1}\nv_fmac_f32 v{t2}, 0x32a57060, v{t0}')
    p(f'v_exp_f32 v{t1}, v{t1}\nv_mul_f32 v{t2}, 0x3f317218, v{t2}\nv_fmac_f32 v{t1}, v{t1}, v{t2}')
    p(f'v_cvt_pk_bf16_f32 v{t1}, v{t1}, v{t1}\nv_and_b32 v{DT}, 0xffff0000, v{t1}')
    for i in range(6): p(f'v_lshlrev_b32 v{PAR+i}, 16, v{PAR+i}')
    for i in range(4): p(f'v_mul_f32 v{PAR+i}, v{PAR+i}, v{DT}')
    Xr = 40
    S = [40+2*i for i in range(8)]
    P1, P8, P128, Y, Y2, P16, TMP = 56, 58, 60, 62, 64, 66, 68
    p(f'v_mul_f32 v{S[0]}, v{PAR+4}, v{PAR+2}\nv_mul_f32 v{S[0]+1}, v{PAR+4}, v{PAR+3}')
    p(f'v_fma_f32 v{S[0]}, -v{PAR+5}, v{PAR+3}, v{S[0]}\nv_fmac_f32 v{S[0]+1}, v{PAR+5}, v{PAR+2}')
    p(f'v_mul_f32 v{PAR}, {hex(LOG2E)}, v{PAR}\nv_mul_f32 v{PAR+1}, 0.15915494, v{PAR+1}')
    for dst, L in ((P1, 1), (P8, 8), (P128, 128)):
        if L == 1: p(f'v_exp_f32 v{t0}, v{PAR}\nv_fract_f32 v{t1}, v{PAR+1}')
        else:
            import struct
            lf = hex(struct.unpack('<I', struct.pack('<f', float(L)))[0])
            p(f'v_mul_f32 v{t0}, {lf}, v{PAR}\nv_mul_f32 v{t1}, {lf}, v{PAR+1}\nv_exp_f32 v{t0}, v{t0}\nv_fract_f32 v{t1}, v{t1}')
        p(f'v_cos_f32 v{t2}, v{t1}\nv_sin_f32 v{t3}, v{t1}\nv_mul_f32 v{dst}, v{t0}, v{t2}\nv_mul_f32 v{dst+1}, v{t0}, v{t3}')
    vW = 26
    p(f's_mul_i32 s{s_tmp}, s{s_ch}, {KTCH}\ns_lshl_b32 s{s_tmp2}, s{s_nh}, 8\ns_add_u32 s{s_tmp}, s{s_tmp}, s{s_tmp2}')
    p(f'v_lshl_add_u32 v{vW}, v{vLane}, 2, s{s_tmp}')
    p('s_waitcnt lgkmcnt(0)\ns_barrier')
    p(f'ds_read_b128 {vr(UB,4)}, v{rT2} offset:{T2-T1}\nds_read_b128 {vr(UB+4,4)}, v{rT2} offset:{T2-T1+4096}')
    ZR = 92
    for j in range(4): p(f'v_mov_b32 v{ZR+j}, 0')
    p(f'ds_write_b128 v{rT2}, {vr(ZR,4)}\nds_write_b128 v{rT2}, {vr(ZR,4)} offset:4096')
    p(f'buffer_store_dwordx4 {vr(UB,4)}, v{gUT}, s[{sOUT}:{sOUT+3}], s{s_ob} offen' + (' sc1' if opt.get('ut_sc1') else ''))
    p(f'buffer_store_dwordx4 {vr(UB+4,4)}, v{gUT}, s[{sOUT}:{sOUT+3}], s{s_ob+1} offen' + (' sc1' if opt.get('ut_sc1') else ''))
    prefetch(f's_cmp_eq_u32 s{s_w}, 1', touch=True)
    stamp()
    cv = [76, 77, 78, 79]; cvn = [0]
    def cmul(dst, a, b, conj=False):
        if PK:
            if dst == a:
                L = [f'v_pk_mul_f32 {vr(TMP,2)}, {vr(a,2)}, {vr(b,2)} op_sel:[0,0] op_sel_hi:[1,0]']; acc = TMP
            else:
                L = [f'v_pk_mul_f32 {vr(dst,2)}, {vr(a,2)}, {vr(b,2)} op_sel:[0,0] op_sel_hi:[1,0]']; acc = dst
            neg = 'neg_hi:[0,1,0]' if conj else 'neg_lo:[0,1,0]'
            L.append(f'v_pk_fma_f32 {vr(dst,2)}, {vr(a,2)}, {vr(b,2)}, {vr(acc,2)} op_sel:[1,1,0] op_sel_hi:[0,1,1] {neg}')
            return L
        T = TMP + 2*(cvn[0] & 1)
        s1, s2 = ('', '-') if conj else ('-', '')
        return [f'v_mul_f32 v{T}, v{a+1}, v{b+1}', f'v_mul_f32 v{T+1}, v{a}, v{b+1}',
                f'v_fma_f32 v{dst}, v{a}, v{b}, {s1}v{T}', f'v_fma_f32 v{dst+1}, v{a+1}, v{b}, {s2}v{T+1}']
    def put(reg, e):
        c = cv[cvn[0] & 3]; cvn[0] += 1
        return [f'v_cvt_pk_bf16_f32 v{c}, v{reg}, v{reg+1}', f'ds_write_b32 v{vW}, v{c} offset:{e*PITCH}']
    xs = []
    xs.append(put(S[0], 0))
    for o in range(1, 8): xs.append(cmul(S[o], S[o-1], P1) + put(S[o], o))
    for o in range(8): xs.append(cmul(S[o], S[o], P128) + put(S[o], 8+o))
    for k, o in enumerate((0, 2, 4, 6)): xs.append(cmul(S[o], S[o], P128) + put(S[o], 16+k))
    for k, o in enumerate((0, 2, 4, 6)): xs.append(cmul(S[o], S[o], P128) + put(S[o], 20+k))
    xs.append(cmul(S[0], S[0], P128) + put(S[0], 40))
    xs.append(cmul(S[4], S[4], P128) + put(S[4], 24))
    xs.append(cmul(S[0], S[0], P8) + put(S[0], 25))
    for i in range(1, 4):
        xs.append(cmul(S[4], S[4], P128) + put(S[4], 24+2*i))
        xs.append(cmul(S[0], S[0], P128) + put(S[0], 25+2*i))
    for i in range(8): xs.append(cmul(S[0], S[0], P128) + put(S[0], 32+i))
    ys = []
    ys.append([f'v_mov_b32 v{cv[0]}, 0x3f80', f'ds_write_b32 v{vW}, v{cv[0]} offset:{41*PITCH}'])
    ys.append([f'v_mov_b32 v{Y}, v{P8}', f'v_xor_b32 v{Y+1}, 0x80000000, v{P8+1}'] + put(Y, 42))
    for j in range(2, 16): ys.append(cmul(Y, Y, P8, conj=True) + put(Y, 41+j))
    def zipops(a, b):
        out = []
        for i in range(max(len(a), len(b))):
            if i < len(a): out.append(a[i])
            if i < len(b): out.append(b[i])
        return out
    yi = 0
    if not PK:
        def retmp(L, new): return [x.replace(f'v{TMP+3}', f'v{new+1}').replace(f'v{TMP+2}', f'v{new}').replace(f'v{TMP+1}', f'v{new+1}').replace(f'v{TMP}', f'v{new}') for x in L]
        ys = [retmp(y, 80) for y in ys]
    else:
        ys = [[x.replace(vr(TMP, 2), vr(80, 2)) for x in y] for y in ys]
    ys = [[x.replace(f'v{cv[0]}', 'v84').replace(f'v{cv[1]}', 'v85').replace(f'v{cv[2]}', 'v84').replace(f'v{cv[3]}', 'v85') for x in y] for y in ys]
    n = 0
    while n < len(xs):
        if n < 8 or n >= len(xs) - 8:
            p.ext(zipops(xs[n], ys[yi])); yi += 1; n += 1
        elif n in (24,):
            p.ext(zipops(xs[n], xs[n+1])); n += 2
        elif n == 26:
            p.ext(xs[n]); n += 1
        else:
            p.ext(zipops(xs[n], xs[n+1])); n += 2
    assert yi == 16
    vR = 3
    p(f'v_and_b32 v{t1}, 15, v0\nv_mul_u32_u24 v{vR}, {PITCH}, v{t1}\nv_bfe_u32 v{t2}, v0, 4, 2\nv_lshl_add_u32 v{vR}, v{t2}, 4, v{vR}')
    p(f's_mul_i32 s{s_tmp}, s{s_ch}, {KTCH}\nv_add_u32 v{vR}, s{s_tmp}, v{vR}')
    p(f'v_readfirstlane_b32 s{s_E1}, v{vEp}')
    p('s_waitcnt vmcnt(0) lgkmcnt(0)\ns_barrier')
    stamp()
    p(f's_add_u32 s{s_E1}, s{s_E1}, 1\ns_and_b32 s{s_tag}, s{s_E1}, 0xff')
    p(f's_cmp_lg_u32 s{s_w}, 0\ns_cbranch_scc1 A_NOFLAG')
    for j in range(4): p(f'v_mov_b32 v{40+j}, s{s_xcc if j == 1 else s_E1}')
    p(f's_lshl_b32 s{s_tmp}, s{s_g}, 5\ns_add_u32 s{s_tmp}, s{s_tmp}, s{s_m}\ns_lshl_b32 s{s_tmp}, s{s_tmp}, 7\ns_add_u32 s{s_tmp}, s{s_tmp}, {WS_FLAG}')
    p('s_mov_b64 exec, 0xff')
    p(f'buffer_store_dwordx4 v[40:43], v{vL16}, s[{sWS}:{sWS+3}], s{s_tmp} offen sc1')
    p('s_mov_b64 exec, -1')
    p('A_NOFLAG:')
    FR = 44
    D0, D1 = 28, 32
    j_, q_ = t1, t2
    p(f's_cmp_lg_u32 s{s_nh}, 0\ns_cbranch_scc1 A_KG1')
    def rdk(dst, e0, ks): return f'ds_read_b128 {vr(dst,4)}, v{vR} offset:{e0*PITCH+64*ks}'
    for ks in range(4):
        p(rdk(FR+12*ks, 41, ks)); p(rdk(FR+12*ks+4, 16, ks)); p(rdk(FR+12*ks+8, 0, ks))
    aW0, aW1, aG4, vDs = 6, 7, 8, 9
    p(f'v_lshrrev_b32 v{aW0}, 1, v{q_}\nv_lshlrev_b32 v{aW0}, 5, v{aW0}\nv_and_b32 v{aW1}, 1, v{q_}\nv_add_u32 v{aW0}, v{aW0}, v{aW1}')
    p(f'v_lshl_add_u32 v{aW0}, v{j_}, 1, v{aW0}\nv_lshlrev_b32 v{aW0}, 3, v{aW0}')
    p(f's_add_u32 s{s_tmp}, s{s_ctb}, {KR0+1064}\nv_sub_u32 v{aW0}, s{s_tmp}, v{aW0}')
    p(f'v_lshlrev_b32 v{aW1}, 4, v{q_}\nv_add_u32 v{aW1}, v{aW1}, v{j_}\nv_lshlrev_b32 v{aW1}, 4, v{aW1}')
    p(f's_add_u32 s{s_tmp}, s{s_ctb}, {KR0+1056-512}\nv_sub_u32 v{aW1}, s{s_tmp}, v{aW1}')
    p(f'v_lshlrev_b32 v{aG4}, 5, v{q_}\nv_add_u32 v{aG4}, v{aG4}, v{j_}\nv_lshlrev_b32 v{aG4}, 2, v{aG4}')
    p(f's_add_u32 s{s_tmp}, s{s_ctb}, {G4B+128-256}\nv_add_u32 v{aG4}, s{s_tmp}, v{aG4}')
    p(f'v_mov_b32 v{vDs}, 0\nv_mov_b32 v10, s{s_dsv}\ns_mov_b64 s[{s_msk}:{s_msk+1}], 1\nv_cndmask_b32 v{vDs}, v{vDs}, v10, s[{s_msk}:{s_msk+1}]')
    for ks in range(8):
        b = FR + 12*(ks & 3)
        p(f'v_mfma_f32_16x16x32_bf16 {vr(D1,4)}, {vr(b+4,4)}, {vr(b,4)}, {"0" if ks==0 else vr(D1,4)}')
        p(f'v_mfma_f32_16x16x32_bf16 {vr(D0,4)}, {vr(b+8,4)}, {vr(b,4)}, {"0" if ks==0 else vr(D0,4)}')
        if ks < 4:
            p(rdk(b, 41, ks+4)); p(rdk(b+4, 16, ks+4)); p(rdk(b+8, 0, ks+4))
    cA, cB, cC, cD, cE, cF = 12, 13, 14, 15, 16, 17
    p(f'v_cvt_pk_bf16_f32 v{cA}, v{D1+2}, v{D1+2}')
    p(f'v_cvt_pk_bf16_f32 v{cB}, v{D1+1}, v{D1}')
    p(f'v_cvt_pk_bf16_f32 v{cC}, v{D1+2}, v{D1+1}')
    p(f'v_cvt_pk_bf16_f32 v{cD}, v{D1}, v{D1}')
    p(f'v_cvt_pk_bf16_f32 v{cE}, v{D1+3}, v{D1+2}')
    p(f'v_cvt_pk_bf16_f32 v{cF}, v{D1+3}, v{D1+3}')
    p('s_mov_b32 exec_hi, 0')
    p(f'ds_write_b16 v{aW1}, v{cE} offset:2\nds_write_b32 v{aW1}, v{cA} offset:4\nds_write_b64 v{aW1}, {vr(cC,2)} offset:8\nds_write_b16 v{aW1}, v{cD} offset:16')
    p(f'ds_write_b32 v{aW1}, v{cE} offset:{KR1+4}\nds_write_b64 v{aW1}, {vr(cA,2)} offset:{KR1+8}\nds_write_b32 v{aW1}, v{cD} offset:{KR1+16}')
    p('s_mov_b32 exec_lo, 0\ns_mov_b32 exec_hi, 0x80000000')
    p(f'v_mov_b32 v18, s{s_ctb}\nds_write_b32 v18, v{cF} offset:{F1K}\nv_mov_b32 v{D1+3}, 0')
    p('s_mov_b32 exec_hi, -1')
    p(f'v_cvt_pk_bf16_f32 v{cA}, v{D1}, v{D1+1}\nv_cvt_pk_bf16_f32 v{cB}, v{D1+2}, v{D1+3}')
    p(f'ds_write_b32 v{aG4}, v{cA}\nds_write_b32 v{aG4}, v{cB} offset:64')
    p('s_mov_b32 exec_lo, -1')
    p(f'v_add_f32 v{D0}, v{D0}, v{vDs}')
    p(f'v_cvt_pk_bf16_f32 v{cC}, v{D0+3}, v{D0+2}\nv_cvt_pk_bf16_f32 v{cD}, v{D0+1}, v{D0}\nv_cvt_pk_bf16_f32 v{cE}, v{D0+2}, v{D0+1}')
    p(f'ds_write_b64 v{aW0}, {vr(cC,2)}')
    p(f'ds_write_b16 v{aW0}, v{cC} offset:{KR1+2}\nds_write_b32 v{aW0}, v{cE} offset:{KR1+4}\nds_write_b16_d16_hi v{aW0}, v{cD} offset:{KR1+8}')
    p('s_branch A_KG2')
    p.assume_clean()
    p('A_KG1:')
    for ks in range(8):
        if ks < 6: p(rdk(FR+8*ks, 41, ks)); p(rdk(FR+8*ks+4, 32, ks))
    p(f'v_lshlrev_b32 v6, 4, v{vLane}\nv_mov_b32 v7, {UPAD+4096}\ns_mov_b32 s{s_msk}, 0\ns_mov_b32 s{s_msk+1}, 2')
    p(f'v_cndmask_b32 v6, v6, v7, s[{s_msk}:{s_msk+1}]\nv_add_u32 v6, s{s_utb}, v6')
    p('s_mov_b32 exec_hi, 3')
    p(f'ds_write_b128 v6, {vr(ZR,4)}')
    p('s_mov_b32 exec_hi, -1')
    p(f'v_lshlrev_b32 v8, 2, v{j_}\nv_add_u32 v8, v8, v{q_}\nv_lshlrev_b32 v8, 3, v8\ns_add_u32 s{s_tmp}, s{s_ctb}, {G8B+64}\nv_add_u32 v8, s{s_tmp}, v8')
    for ks in range(8):
        b = FR + 8*(ks % 6)
        p(f'v_mfma_f32_16x16x32_bf16 {vr(D0,4)}, {vr(b,4)}, {vr(b+4,4)}, {"0" if ks==0 else vr(D0,4)}')
        if ks < 2: p(rdk(b, 41, ks+6)); p(rdk(b+4, 32, ks+6))
    p(f'v_mov_b32 v18, s{s_ctb}')
    p(f'v_cvt_pk_bf16_f32 v{cA}, v{D0}, v{D0+1}\nv_cvt_pk_bf16_f32 v{cB}, v{D0+2}, v{D0+3}\nv_cvt_pk_bf16_f32 v{cC}, v{D0}, v{D0}\nv_cvt_pk_bf16_f32 v{cD}, v{D0}, v{D0}')
    p('s_mov_b32 exec_lo, 0x00ff00ff\ns_mov_b32 exec_hi, 0x00ff00ff')
    p(f'ds_write_b64 v8, {vr(cA,2)}')
    p('s_mov_b64 exec, 0x100')
    p(f'ds_write_b16 v18, v{cC} offset:{KR0+42}\nds_write_b32 v18, v{cC} offset:{KR0+44}\nds_write_b16 v18, v{cC} offset:{KR0+48}')
    p(f'ds_write_b32 v18, v{cC} offset:{KR1+44}\nds_write_b32 v18, v{cC} offset:{KR1+48}')
    p('s_mov_b64 exec, -1')
    p('A_KG2:')
    p('s_waitcnt lgkmcnt(0)')
    p.assume_clean()
    stamp()
    p(f'v_and_b32 v6, 31, v0\nv_lshlrev_b32 v6, 7, v6')
    p(f's_lshl_b32 s{s_tmp}, s{s_g}, 12\ns_add_u32 s{s_tmp}, s{s_tmp}, {WS_FLAG}\ns_mov_b32 s{s_sp}, 0')
    p(f's_lshl1_add_u32 s{s_tmp2}, s{s_m}, s{s_ch}\ns_lshl_b32 s{s_tmp2}, s{s_tmp2}, 11\ns_lshl_b32 s{s_tmp3}, s{s_g}, 7\ns_add_u32 s{s_so+2}, s{s_tmp2}, s{s_tmp3}')
    p(f's_lshl_b32 s{s_tmp2}, s{s_nh}, 21\ns_add_u32 s{s_tmp2}, s{s_tmp2}, s{s_so+2}\ns_add_u32 s{s_so+3}, s{s_tmp2}, 0x100000')
    p(f'v_lshrrev_b32 v10, 3, v{vLane}\nv_lshlrev_b32 v10, 17, v10\nv_and_b32 v11, 7, v0\nv_lshl_add_u32 v10, v11, 4, v10')
    p(f's_lshl_b32 s{s_tmp3}, s{s_nh}, 11\ns_add_u32 s{s_tmp3}, s{s_tmp3}, s{s_utb}\ns_add_u32 m0, s{s_tmp3}, {UPAD}')
    p('A_F_POLL:')
    p(f'buffer_load_dwordx2 v[8:9], v6, s[{sWS}:{sWS+3}], s{s_tmp} offen sc1')
    p(f's_add_u32 s{s_sp}, s{s_sp}, 1\ns_cmp_gt_u32 s{s_sp}, {SPIN_MAX}\ns_cbranch_scc1 A_F_GO')
    p(f'v_cmp_ne_u32 vcc, s{s_E1}, v8')
    p('s_cbranch_vccnz A_F_POLL')
    p('A_F_GO:')
    p(f'v_cmp_ne_u32 vcc, s{s_xcc}, v9')
    p(f's_or_b32 s{s_mode}, vcc_lo, vcc_hi')
    if opt.get('slowA'): p(f's_mov_b32 s{s_mode}, 1')
    if not opt.get('ut_sc1'):
        p(f's_cmp_lg_u32 s{s_mode}, 0\ns_cbranch_scc1 A_F_SLOW')
    p('A_F_DMA:')
    p(f'buffer_load_dwordx4 v10, s[{sOUT}:{sOUT+3}], s{s_tmp2} offen sc1 lds')
    p(f's_add_u32 m0, s{s_tmp3}, {UPAD+1024}')
    p(f'buffer_load_dwordx4 v10, s[{sOUT}:{sOUT+3}], s{s_so+3} offen sc1 lds')
    vU, vK0, vK1, vG4, vG8 = 3, 6, 7, 8, 9
    p(f'v_lshlrev_b32 v{vU}, 1, v{j_}\nv_add_u32 v{vU}, v{vU}, v{q_}\nv_lshlrev_b32 v{vU}, 4, v{vU}\nv_add_u32 v{vU}, s{s_utb}, v{vU}')
    p(f'v_lshlrev_b32 v10, 3, v{q_}\nv_sub_u32 v10, v10, v{j_}\nv_lshlrev_b32 v10, 1, v10')
    p(f'v_and_b32 v11, 1, v0\nv_mul_u32_u24 v11, {KR1+2}, v11\nv_sub_u32 v10, v10, v11')
    p(f's_add_u32 s{s_tmp}, s{s_ctb}, {KR1+1056-512}\nv_add_u32 v{vK0}, s{s_tmp}, v10\nv_subrev_u32 v{vK1}, 512, v{vK0}')
    p(f'v_lshlrev_b32 v10, 2, v{q_}\nv_sub_u32 v10, v{j_}, v10')
    p(f's_add_u32 s{s_tmp}, s{s_ctb}, {G4B+8}\nv_lshl_add_u32 v{vG4}, v10, 3, s{s_tmp}\nv_add_u32 v{vG4}, 96, v{vG4}')
    p(f's_add_u32 s{s_tmp}, s{s_ctb}, {G8B+4}\nv_lshl_add_u32 v{vG8}, v10, 2, s{s_tmp}\nv_add_u32 v{vG8}, 48, v{vG8}')
    vY = 26
    p(f'v_and_b32 v10, 1, v{q_}\nv_lshrrev_b32 v11, 2, v{j_}\nv_lshl_add_u32 v10, v10, 2, v11\nv_lshlrev_b32 v{vY}, 17, v10')
    p(f'v_lshrrev_b32 v10, 1, v{q_}\nv_and_b32 v11, 3, v0\nv_lshl_add_u32 v10, v10, 2, v11\nv_lshl_add_u32 v{vY}, v10, 4, v{vY}')
    xw, xr = 23, 24
    p(f's_lshl_b32 s{s_tmp}, s{s_w}, 12\ns_xor_b32 s{s_tmp2}, s{s_tmp}, 4096')
    p(f'v_add_u32 v{xw}, s{s_tmp}, v{vL16}\nv_add_u32 v{xr}, s{s_tmp2}, v{vL16}')
    p('s_waitcnt vmcnt(0)\ns_barrier')
    stamp()
    ACC = 28
    KF = 60
    UF = 128
    def acc(t): return vr(ACC+4*t, 4)
    def rdK(s):
        a, o = (vK0, 16*(8-s)) if s <= 8 else (vK1, 16*(16-s))
        return [f'ds_read2_b32 {vr(KF+4*s,2)}, v{a} offset0:{o} offset1:{o+1}', f'ds_read2_b32 {vr(KF+4*s+2,2)}, v{a} offset0:{o+2} offset1:{o+3}']
    def rdU(n, slot): return f'ds_read_b128 {vr(UF+4*slot,4)}, v{vU} offset:{64*n+512}'
    started = set()
    def mf(t, A, B):
        c = acc(t) if t in started else '0'
        started.add(t)
        return f'v_mfma_f32_16x16x32_bf16 {acc(t)}, {vr(A,4)}, {vr(B,4)}, {c}'
    stn = [0]
    def two_mode(instrs):
        k = stn[0]; stn[0] += 1
        L = [f's_cmp_eq_u32 s{s_mode}, 0', f's_cbranch_scc0 A_SM{k}a'] + instrs + [f's_branch A_SM{k}b', f'A_SM{k}a:'] + [x + ' sc1' for x in instrs] + [f'A_SM{k}b:']
        return L
    YP = 12
    def ypack(t, r):
        L = [f'v_cvt_pk_bf16_f32 v{r}, v{ACC+4*t}, v{ACC+4*t+1}', f'v_cvt_pk_bf16_f32 v{r+1}, v{ACC+4*t+2}, v{ACC+4*t+3}',
             f'v_cvt_pk_bf16_f32 v{r+2}, v{ACC+4*t+4}, v{ACC+4*t+5}', f'v_cvt_pk_bf16_f32 v{r+3}, v{ACC+4*t+6}, v{ACC+4*t+7}',
             f's_add_u32 s{s_so+(t>>1&1)}, s{s_so+2}, {t << 19}',
             f'v_permlane16_swap_b32 v{r}, v{r+2}', f'v_permlane16_swap_b32 v{r+1}, v{r+3}']
        return L
    def yst(t, r): return f'buffer_store_dwordx4 {vr(r,4)}, v{vY}, s[{sOUT}:{sOUT+3}], s{s_so+(t>>1&1)} offen'
    p(f's_cmp_lg_u32 s{s_nh}, 0\ns_cbranch_scc1 A_CONV_P')
    PREU = 5
    FX = 160
    p(f'v_mov_b32 v18, s{s_ctb}\nds_read_b32 v{FX+4}, v18 offset:{F1K}')
    order = [-8] + list(range(0, 57))
    korder = list(range(16, -1, -1))
    pro = []
    kq = list(korder)
    p(rdU(order[0], 0))
    p.ext(rdK(kq.pop(0)))
    for i in range(1, PREU):
        p(rdU(order[i], i)); p.ext(rdK(kq.pop(0)))
    for j in range(4): p(f'v_and_b32 v{FX+j}, v{FIXM+j}, v{FX+4}')
    for i, n in enumerate(order):
        sl = UF + 4*(i % 8)
        ms = []
        if n >= 0:
            for t in range(2, 8):
                s = 8*t - n
                if 0 <= s <= 16: ms.append(mf(t, KF+4*s, sl))
        if n % 8 == 0 and -8 <= n <= 24: ms.append(mf((n+32)//8, FX, sl))
        nxt = []
        if i + PREU < len(order): nxt.append(rdU(order[i+PREU], (i+PREU) % 8))
        if kq: nxt += rdK(kq.pop(0))
        p(ms[0]); p.ext(nxt); p.ext(ms[1:])
    for k, t in enumerate((2, 3)): p(f'ds_write_b128 v{xw}, {acc(t)} offset:{XCH+1024*k}')
    p('s_waitcnt lgkmcnt(0)\ns_barrier')
    for k in range(4): p(f'ds_read_b128 {vr(UF+4*k,4)}, v{xr} offset:{XCH+1024*k}')
    for k, t in enumerate((4, 5, 6, 7)):
        for j in range(4): p(f'v_add_f32 v{ACC+4*t+j}, v{ACC+4*t+j}, v{UF+4*k+j}')
        if k & 1: p.ext(ypack(t-1, YP+2*(k-1)))
    p.ext(two_mode([yst(4, YP), yst(6, YP+4)]))
    p('s_branch A_CONV_END')
    p.assume_clean()
    started.clear()
    p('A_CONV_P:')
    G4F = 160
    G8F = 184
    WD = 200
    WFR = 252
    order = list(range(-8, 9))
    kneed = []
    for n in order:
        for s in ([8-n] + ([-n] if n <= 0 else [])):
            if s not in kneed: kneed.append(s)
    kq = list(kneed)
    extra = []
    for d in range(3):
        for i in range(4): extra.append(f'ds_read_b64 {vr(G4F+8*d+2*i,2)}, v{vG4} offset:{128*d+8*(3-i)}')
    for d in range(4):
        extra.append(f'ds_read2_b32 {vr(G8F+4*d,2)}, v{vG8} offset0:{16*d+3} offset1:{16*d+2}')
        extra.append(f'ds_read2_b32 {vr(G8F+4*d+2,2)}, v{vG8} offset0:{16*d+1} offset1:{16*d}')
    PP = 3
    for i in range(PP):
        p(rdU(order[i], i)); p.ext(rdK(kq.pop(0))); p.ext(rdK(kq.pop(0)))
    for i, n in enumerate(order):
        sl = UF + 4*(i % 8)
        ms = [mf(1, KF+4*(8-n), sl)]
        if n <= 0: ms.append(mf(0, KF+4*(-n), sl))
        nxt = []
        if i + PP < len(order): nxt.append(rdU(order[i+PP], (i+PP) % 8))
        for _ in range(2):
            if kq: nxt += rdK(kq.pop(0))
        if not kq:
            for _ in range(3):
                if extra: nxt.append(extra.pop(0))
        p(ms[0]); p.ext(nxt); p.ext(ms[1:])
    p.ext(extra)
    FA = [UF, UF+8, UF+16]; FB = [UF+4, UF+12, UF+20]
    def rdF(be): return [f'ds_read_b128 {vr(FA[be%3],4)}, v{vU} offset:{512*be+496}', f'ds_read_b128 {vr(FB[be%3],4)}, v{vU} offset:{512*be+480}']
    def win(be):
        fa, fb = FA[be % 3], FB[be % 3]
        L = [f'v_mfma_f32_16x16x32_bf16 {vr(WD+4*c,4)}, {vr(fa if c<3 else fb,4)}, {vr(BC[c],4)}, 0' for c in range(4)]
        if be < 4:
            L += [f'v_mfma_f32_16x16x32_bf16 {vr(WD+16,4)}, {vr(fa,4)}, {vr(B7,4)}, 0', f'v_mfma_f32_16x16x32_bf16 {vr(WD+20,4)}, {vr(fb,4)}, {vr(B9,4)}, 0']
        return L
    def wfr(be): return KF + 12*(be & 1)
    def cvts(be):
        w = wfr(be); L = []
        for i in range(4):
            L.append(f'v_cvt_pk_bf16_f32 v{w+2*i}, v{WD+i}, v{WD+4+i}')
            L.append(f'v_cvt_pk_bf16_f32 v{w+2*i+1}, v{WD+8+i}, v{WD+12+i}')
        if be < 4:
            for i in range(4): L.append(f'v_cvt_pk_bf16_f32 v{w+8+i}, v{WD+16+i}, v{WD+20+i}')
        return L
    def cons(be):
        w = wfr(be); L = []
        for d in range(3):
            if be + d <= 5:
                L.append(mf(2+be+d, w, G4F+8*d)); L.append(mf(2+be+d, w+4, G4F+8*d+4))
        if be < 4:
            for d in range(4):
                if be + d <= 3: L.append(mf(4+be+d, w+8, G8F+4*d))
        return L
    p.ext(rdF(0)); p.ext(rdF(1))
    p.ext(win(0)); p.ext(rdF(2))
    p.ext(cvts(0))
    for be in range(6):
        if be < 5:
            p.ext(win(be+1))
            if be + 3 <= 5: p.ext(rdF(be+3))
            c = cons(be); cv_ = cvts(be+1)
            k = min(3, len(c))
            p.ext(c[:k])
            if be == 0: p.ext(ypack(0, YP))
            p.ext(interleave(c[k:], cv_) if len(c) > k else cv_)
        else: p.ext(cons(be))
    for k, t in enumerate((4, 5, 6, 7)): p(f'ds_write_b128 v{xw}, {acc(t)} offset:{XCH+1024*k}')
    p('s_waitcnt lgkmcnt(0)\ns_barrier')
    for k in range(2): p(f'ds_read_b128 {vr(UF+4*k,4)}, v{xr} offset:{XCH+1024*k}')
    for k, t in enumerate((2, 3)):
        for j in range(4): p(f'v_add_f32 v{ACC+4*t+j}, v{ACC+4*t+j}, v{UF+4*k+j}')
    p.ext(ypack(2, YP+4))
    p.ext(two_mode([yst(0, YP), yst(2, YP+4)]))
    p('A_CONV_END:')
    p.assume_clean()
    stamp()
    F1, F2 = 16384, 16384 + 8192
    FV = 28
    for j in range(4): p(f'v_mov_b32 v{FV+j}, s{s_E1}')
    p(f's_lshl_b32 s{s_tmp}, s{s_g}, 5\ns_add_u32 s{s_tmp}, s{s_tmp}, s{s_m}\ns_lshl2_add_u32 s{s_tmp}, s{s_tmp}, s{s_w}\ns_lshl_b32 s{s_tmp}, s{s_tmp}, 7\ns_add_u32 s{s_tmp}, s{s_tmp}, {WS_YF}')
    p(f'v_and_b32 v3, 7, v0\nv_bfe_u32 v4, v0, 3, 1\nv_lshl_add_u32 v3, v4, 5, v3\nv_lshlrev_b32 v3, 8, v3')
    p(f's_cmp_lt_u32 s{s_m}, 16\ns_cselect_b32 s{s_tmp2}, 128, 0\ns_lshl_b32 s{s_tmp3}, s{s_g}, 3\ns_add_u32 s{s_tmp3}, s{s_tmp3}, s{s_w}\ns_lshl_b32 s{s_tmp3}, s{s_tmp3}, 11\ns_add_u32 s{s_tmp2}, s{s_tmp2}, s{s_tmp3}\ns_add_u32 s{s_so}, s{s_tmp2}, {WS_YF}')
    p(f'v_bfe_u32 v4, v0, 4, 1\nv_lshlrev_b32 v4, 2, v4\nv_and_b32 v5, 7, v0\nv_xor_b32 v4, v4, v5\nv_lshlrev_b32 v4, 4, v4\nv_lshrrev_b32 v5, 3, v0\nv_lshl_add_u32 v4, v5, 11, v4')
    p(f's_lshl_b32 s{s_tmp2}, s{s_w}, 10\ns_add_u32 m0, s{s_tmp2}, {F1}')
    p('s_waitcnt vmcnt(0)')
    p('s_mov_b64 exec, 0xff')
    p.ext(two_mode([f'buffer_store_dwordx4 {vr(FV,4)}, v{vL16}, s[{sWS}:{sWS+3}], s{s_tmp} offen']))
    p('s_mov_b64 exec, -1')
    p(f'v_subrev_u32 v{trA}, {T1-F1}, v{trA}')
    p(f'v_bfe_u32 v6, v0, 3, 2\nv_lshlrev_b32 v6, 4, v6\nv_bfe_u32 v7, v0, 5, 1\nv_lshl_add_u32 v6, v7, 3, v6\nv_and_b32 v7, 7, v0\nv_add_u32 v6, v6, v7')
    p(f's_lshl_b32 s{s_tmp}, s{s_w}, 1\nv_xor_b32 v7, s{s_tmp}, v7\nv_lshlrev_b32 v7, 4, v7\nv_lshl_add_u32 v6, v6, 7, v7\nv_add_u32 v6, {F2}, v6\nv_xor_b32 v7, 16, v6')
    p(f'v_lshlrev_b32 v9, 4, v0')
    p(f's_mov_b32 s{s_sp}, 0')
    p('A_Y_POLL:')
    p(f'buffer_load_dword v18, v3, s[{sWS}:{sWS+3}], s{s_so} offen sc1')
    p(f's_add_u32 s{s_sp}, s{s_sp}, 1\ns_cmp_gt_u32 s{s_sp}, {SPIN_MAX}\ns_cbranch_scc1 A_Y_LOAD')
    p(f'v_cmp_ne_u32 vcc, s{s_E1}, v18')
    p('s_cbranch_vccz A_Y_LOAD\ns_sleep 2\ns_branch A_Y_POLL')
    p('A_Y_LOAD:')
    p(f'buffer_load_dwordx4 v4, s[{sOUT}:{sOUT+3}], s{s_ob} offen sc1 lds')
    p(f's_add_u32 m0, s{s_tmp2}, {F1+4096}')
    p(f'buffer_load_dwordx4 v4, s[{sOUT}:{sOUT+3}], s{s_ob+1} offen sc1 lds')
    p('s_waitcnt vmcnt(0)\ns_barrier')
    stamp()
    for rd in range(4): p(f'ds_read_b64_tr_b16 {vr(UB+2*rd,2)}, v{trA} offset:{512*rd}')
    p(f'ds_write_b128 v6, {vr(UB,4)}\nds_write_b128 v7, {vr(UB+4,4)}')
    p('s_waitcnt lgkmcnt(0)\ns_barrier')
    p(f'ds_read_b128 v[52:55], v9 offset:{F2}\nds_read_b128 v[56:59], v9 offset:{F2+4096}')
    p('s_waitcnt lgkmcnt(0)')
    fin = [f'buffer_store_dwordx4 v[52:55], v{gUT}, s[{sOUT}:{sOUT+3}], s{s_ob} offen', f'buffer_store_dwordx4 v[56:59], v{gUT}, s[{sOUT}:{sOUT+3}], s{s_ob+1} offen']
    if opt.get('outflagA'): p.ext([x + ' ' + opt['outflagA'] for x in fin])
    else: p.ext(two_mode(fin))
    p(f's_or_b32 s{s_tmp}, s{s_m}, s{s_w}\ns_cmp_lg_u32 s{s_tmp}, 0\ns_cbranch_scc1 A_END')
    p(f'v_mov_b32 v10, s{s_E1}\nv_mov_b32 v11, 0\ns_lshl_b32 s{s_tmp}, s{s_g}, 8\ns_mov_b64 exec, 1')
    p(f'buffer_store_dword v10, v11, s[{sWS}:{sWS+3}], s{s_tmp} offen offset:{WS_EA} sc1')
    p('A_END:')
    if opt.get('stamps'):
        p('s_mov_b64 exec, -1')
        p('s_waitcnt vmcnt(0)')
        p('s_memtime s[100:101]\ns_memrealtime s[76:77]\ns_waitcnt lgkmcnt(0)')
        for k in range(11): p(f'v_mov_b32 v{16+k}, s{80+2*k}')
        p('v_mov_b32 v27, s78\nv_mov_b32 v28, s76\n' + f'v_mov_b32 v29, s{s_sp}')
        p(f's_lshl_b32 s{s_tmp}, s2, 8\ns_lshl_b32 s{s_tmp2}, s{s_w}, 6\ns_add_u32 s{s_tmp}, s{s_tmp}, s{s_tmp2}\ns_add_u32 s{s_tmp}, s{s_tmp}, {WS_STAMP}')
        p('v_mov_b32 v0, 0\ns_mov_b64 exec, 1')
        for k in range(4): p(f'buffer_store_dwordx4 v[{16+4*k}:{19+4*k}], v0, s[{sWS}:{sWS+3}], s{s_tmp} offen offset:{16*k}')
    p('s_endpgm')
    p.assume_clean()
    if not opt.get('ut_sc1'):
        p('A_F_SLOW:')
        p(f'buffer_store_dwordx4 {vr(UB,4)}, v{gUT}, s[{sOUT}:{sOUT+3}], s{s_ob} offen sc1')
        p(f'buffer_store_dwordx4 {vr(UB+4,4)}, v{gUT}, s[{sOUT}:{sOUT+3}], s{s_ob+1} offen sc1')
        for j in range(4): p(f'v_mov_b32 v{12+j}, s{s_E1}')
        p(f's_lshl_b32 s73, s{s_g}, 5\ns_add_u32 s73, s73, s{s_m}\ns_lshl2_add_u32 s73, s73, s{s_w}\ns_lshl_b32 s73, s73, 7\ns_add_u32 s73, s73, {WS_FLAG2}')
        p('s_waitcnt vmcnt(0)\ns_mov_b64 exec, 0xff')
        p(f'buffer_store_dwordx4 v[12:15], v{vL16}, s[{sWS}:{sWS+3}], s73 offen sc1')
        p('s_mov_b64 exec, -1')
        p(f's_lshl_b32 s73, s{s_g}, 14\ns_add_u32 s73, s73, {WS_FLAG2}\ns_add_u32 s74, s73, 8192\nv_lshlrev_b32 v16, 3, v{vL16}')
        p('A_F_POLL2:')
        p(f'buffer_load_dword v12, v16, s[{sWS}:{sWS+3}], s73 offen sc1')
        p(f'buffer_load_dword v13, v16, s[{sWS}:{sWS+3}], s74 offen sc1')
        p(f's_add_u32 s{s_sp}, s{s_sp}, 1\ns_cmp_gt_u32 s{s_sp}, {SPIN_MAX}\ns_cbranch_scc1 A_F_DMA')
        p(f'v_xor_b32 v12, s{s_E1}, v12\nv_xor_b32 v13, s{s_E1}, v13\nv_or_b32 v12, v12, v13\nv_cmp_ne_u32 vcc, 0, v12')
        p('s_cbranch_vccz A_F_DMA\ns_sleep 2\ns_branch A_F_POLL2')
        p.assume_clean()
```

```python
from asmdsl import Prog, interleave, slotted
from common import *

RA, RB, ST = 0, 32768, 65536
KT = ST
ZERO = ST + 3200

def vr(a, n): return f'v[{a}:{a+n-1}]'
def L_(txt): return [x for x in txt.split('\n') if x.strip()]

def genB(p, opt):
    stamp_n = [0]
    def stamp():
        if opt.get('amp') and stamp_n[0] == opt.get('amp_at', -1): p('s_memrealtime s[76:77]\ns_waitcnt lgkmcnt(0)\ns_mov_b32 s99, s76')
        if opt.get('amp'): stamp_n[0] += 1
        if opt.get('stamps'):
            k = stamp_n[0]; stamp_n[0] += 1
            p(f's_memtime s[{80+2*k}:{81+2*k}]') if k < 10 else None
    def ext2(L):
        for x in L:
            if isinstance(x, tuple) and x[0] == 'dma':
                p(x[1]); p(x[2], tok=x[3])
            else: p.ext([x])
    sX, sW, sP, sO, sOUT, sWS = 8, 12, 16, 20, 24, 28
    s_rb, s_hp, s_w, s_loc, s_xcd = 32, 33, 34, 35, 36
    s_m0b, s_st = 37, 38
    s_p1 = 39
    s_xo = 40
    s_wo = 48
    s_t = 56
    s_E1 = 60
    s_tmp, s_tmp2, s_tmp3 = 61, 62, 63
    s_c = 64
    s_p2 = 65
    s_msk = 66
    s_sp, s_rdy = 68, 69
    s_so = 70
    s_rt, s_ct, s_oo = 74, 75, 76
    s_F, s_H = 4, 5
    ACC0, ACC1, P, WF, PA, E, X = 16, 32, 48, 64, 88, 96, 128
    NSL = 6
    vA1, vA2 = 8, 12
    vTR, vTRv, vWg, vL16, vEp = 1, 2, 3, 4, 5
    vT0, vT1 = 6, 7
    a0, b0, pa, va, sa, vMask, hA, hZ = PA, PA+1, PA+2, PA+3, PA+4, PA+5, PA+6, PA+7
    vXg = E; vSR = E + 4
    t0, t1, t2, t3, t4, t5 = E + 8, E + 9, E + 10, E + 11, E + 12, E + 13
    LD = opt.get('ldflag', '')

    p('B_ROLE:')
    p(f's_load_dwordx4 s[{sX}:{sX+3}], s[0:1], 72')
    p(f's_load_dwordx2 s[{sP}:{sP+1}], s[0:1], 88')
    p(f's_load_dwordx2 s[{sO}:{sO+1}], s[0:1], 96')
    p(f's_load_dwordx2 s[{sOUT}:{sOUT+1}], s[0:1], 104')
    p(f's_load_dwordx2 s[{sWS}:{sWS+1}], s[0:1], 120')
    if opt.get('stamps') or opt.get('amp'): p('s_memrealtime s[78:79]')
    stamp()
    if opt.get('prioB0'): p(f's_setprio {opt["prioB0"]}')
    p(f'v_lshrrev_b32 v{t0}, 6, v0')
    p(f's_and_b32 s{s_xcd}, s2, 7\ns_lshr_b32 s{s_loc}, s2, 3')
    p(f'v_readfirstlane_b32 s{s_w}, v{t0}')
    if opt.get('map', '4x8') == '8x4':
        p(f's_and_b32 s{s_tmp}, s{s_xcd}, 1\ns_lshl_b32 s{s_tmp}, s{s_tmp}, 3\ns_and_b32 s{s_tmp2}, s{s_loc}, 7\ns_add_u32 s{s_rb}, s{s_tmp}, s{s_tmp2}')
        p(f's_lshr_b32 s{s_tmp}, s{s_xcd}, 1\ns_lshl_b32 s{s_tmp}, s{s_tmp}, 2\ns_lshr_b32 s{s_tmp3}, s{s_loc}, 3\ns_add_u32 s{s_hp}, s{s_tmp}, s{s_tmp3}')
        p(f's_lshl_b32 s{s_tmp3}, s{s_tmp3}, 1\ns_add_u32 s{s_tmp}, s{s_tmp2}, s{s_tmp3}\ns_and_b32 s{s_tmp}, s{s_tmp}, 7')
    else:
        p(f's_and_b32 s{s_tmp}, s{s_xcd}, 3\ns_and_b32 s{s_tmp2}, s{s_loc}, 3\ns_lshl2_add_u32 s{s_rb}, s{s_tmp}, s{s_tmp2}')
        p(f's_lshr_b32 s{s_tmp}, s{s_xcd}, 2\ns_lshr_b32 s{s_tmp3}, s{s_loc}, 2\ns_lshl3_add_u32 s{s_hp}, s{s_tmp}, s{s_tmp3}')
        p(f's_lshl1_add_u32 s{s_tmp}, s{s_tmp2}, s{s_tmp3}\ns_and_b32 s{s_tmp}, s{s_tmp}, 7')
    p(f's_lshl_b32 s{s_xo}, s{s_tmp}, 7\ns_mul_i32 s{s_wo}, s{s_xo}, 1536')
    p(f'v_bfe_u32 v{t1}, v0, 3, 3\nv_lshl_add_u32 v{t1}, v{t0}, 5, v{t1}')
    p(f'v_and_b32 v{t2}, 7, v0\nv_bfe_u32 v{t3}, v0, 4, 2\nv_xor_b32 v{t2}, v{t2}, v{t3}\nv_lshlrev_b32 v{t2}, 4, v{t2}')
    p(f's_lshl_b32 s{s_tmp}, s{s_rb}, 17')
    p(f'v_lshl_add_u32 v{t1}, v{t1}, 10, v{t2}\nv_add_u32 v{vXg}, s{s_tmp}, v{t1}')
    p(f'v_xor_b32 v{vXg+1}, 64, v{vXg}\nv_add_u32 v{vXg+2}, 16384, v{vXg}\nv_add_u32 v{vXg+1}, 8192, v{vXg+1}\nv_add_u32 v{vXg+3}, 16384, v{vXg+1}')
    p(f'v_lshrrev_b32 v{t1}, 2, v0\nv_mul_u32_u24 v{t1}, 3072, v{t1}\nv_and_b32 v{t2}, 3, v0\nv_lshl_add_u32 v{t1}, v{t2}, 4, v{t1}')
    p(f's_lshl_b32 s{s_tmp}, s{s_hp}, 6\ns_add_u32 s{s_tmp}, s{s_tmp}, 1024')
    p(f'v_add_u32 v{vWg}, s{s_tmp}, v{t1}')
    p(f's_lshl_b32 s{s_m0b}, s{s_w}, 10\ns_lshl_b32 s{s_st}, s{s_w}, 12')
    p(f's_mov_b32 s{sW+2}, 0x180000\ns_mov_b32 s{sW+3}, 0x20000')
    p('s_waitcnt lgkmcnt(0)')
    p(f's_mov_b32 s{sW}, s{sX+2}\ns_mov_b32 s{sW+1}, s{sX+3}\ns_mov_b32 s{sX+2}, 0x200000\ns_mov_b32 s{sX+3}, 0x20000')
    def xslot(c): return RB + 16384*((c+1) % 3)
    def issue_k(c):
        L = []
        for i in range(4):
            L.append(('dma', f's_add_u32 m0, s{s_st}, {xslot(c)+1024*i}', f'buffer_load_dwordx4 v{vXg+i}, s[{sX}:{sX+3}], s{s_xo+c} offen {opt.get("ldflagx", LD)} lds', None))
        L.append(('dma', f's_add_u32 m0, s{s_m0b}, {RA+4096*c}', f'buffer_load_dwordx4 v{vWg}, s[{sW}:{sW+3}], s{s_wo+c} offen {LD} lds', f'wk{c}'))
        return L
    def issue_v(c):
        return [('dma', f's_add_u32 m0, s{s_st}, {RB+16384*(c>>2)+1024*(c&3)-1024}', f'buffer_load_dwordx4 v{vWg}, s[{sW}:{sW+3}], s{s_wo+c} offen offset:1024 {LD} lds', f'wv{c}')]
    def nextoff(c): p(f's_add_u32 s{s_xo+c}, s{s_xo+c-1}, 128\ns_and_b32 s{s_xo+c}, s{s_xo+c}, 1023\ns_mul_i32 s{s_wo+c}, s{s_xo+c}, 1536')
    ext2(issue_k(0))
    p(f'v_and_b32 v{vL16}, 63, v0\nv_lshlrev_b32 v{vL16}, 4, v{vL16}\nv_mov_b32 v{vEp}, 0')
    for s, n in ((sP, 0x4000), (sWS, 0x10000000 - WS_BASE)): p(f's_mov_b32 s{s+2}, {hex(n)}\ns_mov_b32 s{s+3}, 0x20000')
    if WS_BASE: p(f's_add_u32 s{sWS}, s{sWS}, {hex(WS_BASE)}\ns_addc_u32 s{sWS+1}, s{sWS+1}, 0')
    p(f's_lshl_b32 s{s_tmp2}, s{s_hp}, 10\ns_add_u32 m0, s{s_m0b}, {RA+28672}')
    nextoff(1)
    p(f'buffer_load_dwordx4 v{vL16}, s[{sP}:{sP+3}], s{s_tmp2} offen lds', tok='wphi')
    p(f'buffer_load_dword v{vEp}, v{vEp}, s[{sWS}:{sWS+3}], 0 offen offset:{WS_EB} sc1')
    for c in range(2, 8): nextoff(c)
    if not opt.get('late12', 1): ext2(issue_k(1)); ext2(issue_k(2))
    for s, n in ((sO, 0x80000), (sOUT, 0x400000)): p(f's_mov_b32 s{s+2}, {hex(n)}\ns_mov_b32 s{s+3}, 0x20000')
    R_, CQ, NH, H_ = P, P+1, P+2, P+3
    p(f'v_bfe_u32 v{R_}, v0, 2, 2\nv_and_b32 v{CQ}, 3, v0\nv_bfe_u32 v{NH}, v0, 4, 1\nv_bfe_u32 v{H_}, v0, 5, 1')
    p(f'v_lshl_add_u32 v{t0}, v{H_}, 3, v{R_}\nv_lshlrev_b32 v{t0}, 6, v{t0}')
    p(f'v_lshl_add_u32 v{t1}, v{NH}, 2, v{CQ}\nv_lshl_add_u32 v{vTR}, v{t1}, 3, v{t0}')
    p(f'v_and_b32 v{t1}, 1, v{CQ}\nv_lshl_add_u32 v{t2}, v{t1}, 1, v{NH}')
    p(f'v_lshrrev_b32 v{t3}, 1, v{CQ}\nv_lshl_add_u32 v{t2}, v{t2}, 1, v{t3}')
    p(f'v_lshl_add_u32 v{vTRv}, v{t2}, 3, v{t0}')
    p(f's_add_u32 s{s_tmp}, s{s_st}, {RB}')
    p(f'v_bfe_u32 v{t0}, v0, 1, 3\nv_xor_b32 v{t0}, v{t0}, v{H_}\nv_lshlrev_b32 v{t0}, 4, v{t0}')
    p(f'v_and_b32 v{t4}, 31, v0\nv_lshl_add_u32 v{t0}, v{t4}, 7, v{t0}\nv_add_u32 v{vSR}, s{s_tmp}, v{t0}')
    for j in range(1, 4): p(f'v_xor_b32 v{vSR+j}, {32*j}, v{vSR}')
    p(f'v_lshl_add_u32 v{t2}, v{NH}, 1, v{t3}\nv_lshlrev_b32 v{t2}, 3, v{t2}\nv_lshl_add_u32 v{t2}, v{t1}, 9, v{t2}')
    p(f'v_lshl_add_u32 v{t0}, v{H_}, 2, v{R_}\nv_lshl_add_u32 v{t2}, v{t0}, 5, v{t2}')
    p(f's_add_u32 s{s_tmp}, s{s_m0b}, {RA+28672}\nv_add_u32 v{t5}, s{s_tmp}, v{t2}')
    p(f's_mov_b32 s{s_c}, {hex(LOG2E)}\ns_and_b32 s{s_F}, s{s_w}, 1\ns_lshr_b32 s{s_H}, s{s_w}, 1')
    u0, u1, u2, u3, u4 = P+4, P+5, P+6, P+7, P+8
    kfill = []
    kfill += L_(f'''v_bfe_u32 v{u0}, v0, 1, 2
v_lshlrev_b32 v{a0}, 4, v{u0}
v_lshl_add_u32 v{a0}, v{t4}, 6, v{a0}
v_lshl_add_u32 v{a0}, v{H_}, 11, v{a0}
s_add_u32 s{s_tmp}, s{s_st}, {ST}
v_add_u32 v{a0}, s{s_tmp}, v{a0}
v_bfe_u32 v{u0}, v0, 2, 1
v_lshlrev_b32 v{b0}, 4, v{u0}
v_lshl_add_u32 v{b0}, v{t4}, 5, v{b0}
v_lshl_add_u32 v{b0}, v{H_}, 10, v{b0}
s_add_u32 s{s_tmp}, s{s_st}, {RB}
v_add_u32 v{b0}, s{s_tmp}, v{b0}''')
    kfill += L_(f'''v_lshrrev_b32 v{u0}, 1, v{R_}
v_lshl_add_u32 v{u0}, v{NH}, 1, v{u0}
s_lshl_b32 s{s_tmp2}, s{s_F}, 1
v_or_b32 v{u1}, s{s_tmp2}, v{t3}
v_xor_b32 v{u1}, v{u1}, v{u0}
v_bfe_u32 v{u2}, v0, 2, 4
v_lshlrev_b32 v{u3}, 3, v{t1}
v_lshl_add_u32 v{pa}, v{u1}, 4, v{u3}
v_lshl_add_u32 v{pa}, v{u2}, 6, v{pa}
s_lshl_b32 s{s_tmp}, s{s_H}, 11
s_add_u32 s{s_tmp}, s{s_tmp}, {ST}
v_add_u32 v{pa}, s{s_tmp}, v{pa}
v_xor_b32 v{u1}, v{t3}, v{NH}
v_lshl_add_u32 v{va}, v{u1}, 4, v{u3}
v_lshl_add_u32 v{va}, v{u2}, 5, v{va}
s_lshl_b32 s{s_tmp}, s{s_H}, 10
s_add_u32 s{s_tmp}, s{s_tmp}, {RB}
v_add_u32 v{va}, s{s_tmp}, v{va}''')
    kfill += L_(f'''v_lshlrev_b32 v{u0}, 5, v{CQ}
v_lshl_add_u32 v{u0}, v{NH}, 4, v{u0}
v_add_u32 v{u0}, 512, v{u0}
s_mov_b32 s{s_msk}, 0
s_mov_b32 s{s_msk+1}, -1
v_cndmask_b32 v{sa}, v{vL16}, v{u0}, s[{s_msk}:{s_msk+1}]
s_mul_i32 s{s_tmp}, s{s_hp}, {16*KVP_SZ}
s_mul_i32 s{s_tmp2}, s{s_w}, 640
s_add_u32 s{s_tmp}, s{s_tmp}, s{s_tmp2}
s_add_u32 s{s_so}, s{s_tmp}, {WS_KVP}
s_mul_i32 s{s_tmp}, s{s_rb}, {KVP_SZ}
s_add_u32 s{s_p1}, s{s_so}, s{s_tmp}
s_add_u32 s{s_so+1}, s{s_so}, {4*KVP_SZ}
s_add_u32 s{s_so+2}, s{s_so}, {8*KVP_SZ}
s_add_u32 s{s_so+3}, s{s_so}, {12*KVP_SZ}
v_mov_b32 v{vMask}, 0xfffefffe
v_bfe_u32 v{u0}, v0, 4, 2
v_mul_u32_u24 v{hA}, {KVP_SZ}, v{u0}
v_and_b32 v{u1}, 15, v0
v_lshl_add_u32 v{hA}, v{u1}, 4, v{hA}
v_bfe_u32 v{u1}, v0, 1, 2
v_lshl_add_u32 v{u1}, v{u1}, 2, v{u0}
v_mul_u32_u24 v{hZ}, {KVP_SZ}, v{u1}
v_and_b32 v{u1}, 1, v0
v_lshl_add_u32 v{hZ}, v{u1}, 4, v{hZ}
v_add_u32 v{hZ}, 512, v{hZ}
s_lshl2_add_u32 s{s_tmp}, s{s_rb}, s{s_w}
s_lshl4_add_u32 s{s_tmp}, s{s_tmp}, s{s_hp}
s_lshl_b32 s{s_tmp}, s{s_tmp}, 11
s_add_u32 s{s_p2}, s{s_tmp}, {WS_OX}
s_and_b32 s{s_tmp}, s{s_loc}, 3
s_lshl2_add_u32 s{s_rt}, s{s_xcd}, s{s_tmp}
s_lshr_b32 s{s_ct}, s{s_loc}, 2''')
    tagfill = [f'v_readfirstlane_b32 s{s_E1}, v{vEp}', 's_nop 0', f's_add_u32 s{s_E1}, s{s_E1}, 1']
    for j in range(4):
        tagfill += L_(f's_lshr_b32 s{s_tmp}, s{s_E1}, {2*j}\ns_and_b32 s{s_tmp2}, s{s_tmp}, 1\ns_and_b32 s{s_tmp}, s{s_tmp}, 2\ns_lshl_b32 s{s_tmp}, s{s_tmp}, 15\ns_or_b32 s{s_t+j}, s{s_tmp}, s{s_tmp2}')
    if opt.get('late12', 1): ext2(issue_k(1))
    p.ext(kfill)
    if opt.get('late12', 1): ext2(issue_k(2))
    def trpair(dst, addr, off, d2=256):
        return [f'ds_read_b64_tr_b16 {vr(dst,2)}, v{addr} offset:{off}', f'ds_read_b64_tr_b16 {vr(dst+2,2)}, v{addr} offset:{off+d2}']
    for c in range(8):
        p.wait_tok(f'wk{c}')
        if c == 0: stamp()
        for j in range(4): p(f'ds_read_b128 {vr(X+16*c+4*j,4)}, v{vSR+j} offset:{xslot(c)-RB}')
        p('s_barrier')
        for j in range(4): p.ext(trpair(WF+4*j, vTR, RA+4096*c+1024*j))
        if c == 1:
            p.ext(trpair(vA1, t5, 0))
        for j in range(4):
            p(f'v_mfma_f32_32x32x16_bf16 {vr(ACC0,16)}, {vr(WF+4*j,4)}, {vr(X+16*c+4*j,4)}, {"0" if (c==0 and j==0) else vr(ACC0,16)}')
        if c == 1:
            p(f's_mov_b32 s{s_msk}, 0x0f0f0f0f\ns_mov_b32 s{s_msk+1}, 0x0f0f0f0f')
            for j in range(4): p(f'v_cndmask_b32 v{vA2+j}, v{vA1+j}, 0, s[{s_msk}:{s_msk+1}]')
            for j in range(4): p(f'v_cndmask_b32 v{vA1+j}, 0, v{vA1+j}, s[{s_msk}:{s_msk+1}]')
            p.ext(tagfill)
        if c + 3 < 8: ext2(issue_k(c + 3))
        elif c < 7:
            for cc in range(4*(c-5), 4*(c-5)+4): ext2(issue_v(cc))
    stamp()
    if opt.get('prioB'): p(f's_setprio {opt["prioB"]}')
    def phi_head(acc):
        L = [f'v_cvt_pk_bf16_f32 v{E+j}, v{acc+2*j}, v{acc+2*j+1}' for j in range(8)]
        L.insert(4, f'v_mfma_f32_32x32x16_bf16 {vr(P,16)}, {vr(vA1,4)}, {vr(E,4)}, 0')
        L.insert(4, L.pop(5)); L.insert(5, L.pop(6))
        L.append(f'v_mfma_f32_32x32x16_bf16 {vr(P,16)}, {vr(vA2,4)}, {vr(E+4,4)}, {vr(P,16)}')
        return L
    def phi_body(dst, normalize, wr=None):
        mx, mn = vT0, vT1
        L = [f'v_max3_f32 v{mx}, v{P}, v{P+1}, v{P+2}', f'v_min3_f32 v{mn}, v{P}, v{P+1}, v{P+2}']
        for j in range(3, 15, 2):
            L += [f'v_max3_f32 v{mx}, v{mx}, v{P+j}, v{P+j+1}', f'v_min3_f32 v{mn}, v{mn}, v{P+j}, v{P+j+1}']
        L += [f'v_max_f32 v{mx}, v{mx}, v{P+15}', f'v_min_f32 v{mn}, v{mn}, v{P+15}']
        L += [f'v_mul_f32 v{mx}, 0xbfb8aa3b, v{mx}', f'v_mul_f32 v{mn}, {hex(LOG2E)}, v{mn}']
        fm = [f'v_fma_f32 v{E+j}, v{P+j}, s{s_c}, v{mx}' for j in range(16)] + [f'v_fma_f32 v{E+16+j}, v{P+j}, -s{s_c}, v{mn}' for j in range(16)]
        ex = [f'v_exp_f32 v{E+j}, v{E+j}' for j in range(32)]
        L += fm[:2]
        for j in range(32):
            if j + 2 < 32: L.append(fm[j+2])
            L.append(ex[j])
        if normalize:
            for b in range(2):
                for j in range(4): L.append(f'v_add_f32 v{P+4*b+j}, v{E+16*b+j}, v{E+16*b+4+j}')
            for k in (8, 12):
                for b in range(2):
                    for j in range(4): L.append(f'v_add_f32 v{P+4*b+j}, v{P+4*b+j}, v{E+16*b+k+j}')
            for b in range(2):
                for j in range(2): L.append(f'v_add_f32 v{P+4*b+j}, v{P+4*b+j}, v{P+4*b+2+j}')
            for b in range(2): L.append(f'v_add_f32 v{P+4*b}, v{P+4*b}, v{P+4*b+1}')
            L += [f'v_rcp_f32 v{mx}, v{P}', f'v_rcp_f32 v{mn}, v{P+4}']
            for j in range(1, 4): L.append(f'v_xor_b32 v{P+8+j}, {16*j}, v{a0}')
            for g in range(4):
                for j in range(8): L.append(f'v_mul_f32 v{E+8*g+j}, v{E+8*g+j}, v{mx if g < 2 else mn}')
                for j in range(4): L.append(f'v_cvt_pk_bf16_f32 v{dst+4*g+j}, v{E+8*g+2*j}, v{E+8*g+2*j+1}')
                L.append(f'ds_write_b128 v{a0 if g == 0 else P+8+g}, {vr(dst+4*g,4)}')
        else:
            for j in range(16): L.append(f'v_cvt_pk_bf16_f32 v{dst+j}, v{E+2*j}, v{E+2*j+1}')
        return L
    PRE = opt.get('pre', 4)
    def gemm_slots(acc, addr, offf, events={}):
        def rd(n):
            c, j = n >> 2, n & 3
            L = list(events.get(c, [])) if j == 0 else []
            return L + trpair(WF+4*(n % NSL), addr, offf(c, j))
        pro = []
        for n in range(PRE): pro += rd(n)
        slots = []
        for n in range(32):
            c, j = n >> 2, n & 3
            sl = [f'v_mfma_f32_32x32x16_bf16 {vr(acc,16)}, {vr(WF+4*(n%NSL),4)}, {vr(X+16*c+4*j,4)}, {"0" if n==0 else vr(acc,16)}']
            if n+PRE < 32: sl += rd(n+PRE)
            slots.append(sl)
        return pro, slots
    p.ext(phi_head(ACC0))
    body = phi_body(ACC0, True)
    vg = opt.get('vgrp', 2)
    ev = {c: [('waittok', f'wv{c+vg-1}'), 's_barrier'] for c in range(0, 8, vg)}
    ev[0] = [('waittok', f'wv{vg-1}'), 's_barrier', f'v_subrev_u32 v{vWg}, 1024, v{vWg}']
    pro, slots = gemm_slots(ACC1, vTRv, lambda c, j: RB + 16384*(c >> 2) + 4096*j + 1024*(c & 3), ev)
    wq = [('dma', f's_add_u32 m0, s{s_m0b}, {RA+4096*c}', f'buffer_load_dwordx4 v{vWg}, s[{sW}:{sW+3}], s{s_wo+c} offen {LD} lds', f'wq{c}') for c in range(8)]
    ext2(pro)
    nhead = opt.get('phik_head', 8)
    p.ext(body[:nhead]); rest = body[nhead:]
    ext2(slotted(slots, [(rest, 0, opt.get('phik_last', 31)), (wq, opt.get('wq_at', 12), opt.get('wq_end', 28))]))
    stamp()
    VB = E; ONES = P
    p(f'v_xor_b32 v{P+4}, 16, v{b0}')
    for j in range(4): p(f'v_mov_b32 v{ONES+j}, 0x3f803f80')
    for j in range(8):
        p(f'v_cvt_pk_bf16_f32 v{VB+j}, v{ACC1+2*j}, v{ACC1+2*j+1}')
        if j == 3: p(f'ds_write_b128 v{b0}, {vr(VB,4)}')
    p(f'ds_write_b128 v{P+4}, {vr(VB+4,4)}')
    p('s_waitcnt lgkmcnt(0)\ns_barrier')
    KV, Z, R0 = P+8, P+12, E+8
    FRG = ACC0
    for ks in range(4):
        p.ext(trpair(FRG+8*ks, pa, 4096*ks, 1024)); p.ext(trpair(FRG+8*ks+4, va, 4096*ks, 512))
    for ks in range(4):
        p(f'v_mfma_f32_16x16x32_bf16 {vr(Z,4)}, {vr(FRG+8*ks,4)}, {vr(ONES,4)}, {"0" if ks==0 else vr(Z,4)}')
        p(f'v_mfma_f32_16x16x32_bf16 {vr(KV,4)}, {vr(FRG+8*ks,4)}, {vr(FRG+8*ks+4,4)}, {"0" if ks==0 else vr(KV,4)}')
    p(f's_mov_b32 s{s_rdy}, 0\ns_mov_b32 s{s_sp}, 0')
    p(f'v_cvt_pk_bf16_f32 v{R0+2}, v{Z}, v{Z+1}\nv_cvt_pk_bf16_f32 v{R0+3}, v{Z+2}, v{Z+3}')
    p(f'v_cvt_pk_bf16_f32 v{R0}, v{KV}, v{KV+1}\nv_cvt_pk_bf16_f32 v{R0+1}, v{KV+2}, v{KV+3}')
    p(f'v_permlane32_swap_b32 v{R0}, v{R0+2}\nv_permlane32_swap_b32 v{R0+1}, v{R0+3}')
    for j in range(4): p(f'v_and_or_b32 v{R0+j}, v{R0+j}, v{vMask}, s{s_t+j}')
    p(f's_mov_b32 exec_hi, 0x000f000f')
    p(f'buffer_store_dwordx4 {vr(R0,4)}, v{sa}, s[{sWS}:{sWS+3}], s{s_p1} offen sc1')
    p(f's_mov_b32 exec_hi, -1')
    stamp()
    p.wait_tok('wq7')
    p('s_barrier')
    pro, slots = gemm_slots(ACC0, vTR, lambda c, j: RA + 4096*c + 1024*j)
    ext2(pro)
    cA, cD = E+2, E+4
    p.ext(L_(f'''s_mul_i32 s{s_tmp}, s{s_H}, 1600
s_mul_i32 s{s_tmp2}, s{s_F}, 80
s_add_u32 s{s_tmp}, s{s_tmp}, s{s_tmp2}
s_add_u32 s{s_tmp3}, s{s_tmp}, {KT+16*80}
v_bfe_u32 v{cA}, v0, 2, 4
v_mul_u32_u24 v{cA}, 160, v{cA}
v_add_u32 v{cA}, s{s_tmp3}, v{cA}
s_mov_b64 s[{s_msk}:{s_msk+1}], 0xf00
v_mov_b32 v{cD}, {ZERO}
v_cndmask_b32 v{cA}, v{cA}, v{cD}, s[{s_msk}:{s_msk+1}]
v_and_b32 v{cD}, 3, v0
v_lshl_add_u32 v{cA}, v{cD}, 4, v{cA}
s_lshl_b32 s{s_tmp2}, s{s_F}, 1
s_lshl_b32 s{s_msk}, 3, s{s_tmp2}
v_mov_b32 v{cD+1}, 0x3f803f80
v_cndmask_b32 v{cD}, 0, v{cD+1}, s[{s_msk}:{s_msk+1}]
v_mov_b32 v{cD+1}, v{cD}
v_mov_b32 v{cD+2}, v{cD}
v_mov_b32 v{cD+3}, v{cD}
s_mov_b64 exec, 0xfff
ds_write_b128 v{cA}, {vr(cD,4)}
s_mov_b64 exec, -1'''))
    SEL = ACC1
    tK, tZ, aN, aX, zc = ACC1+8, ACC1+9, ACC1+10, ACC1+11, ACC1+12
    w0, w1, w2 = ACC1+13, ACC1+14, ACC1+15
    vOg = vWg
    s_r8 = s_xo
    fill = L_(f'''v_and_b32 v{w0}, 1, v0
v_lshlrev_b32 v{w0}, 4, v{w0}
v_mov_b32 v{w1}, 0x3f80
v_lshlrev_b32 v{w0}, v{w0}, v{w1}
v_bfe_u32 v{w1}, v0, 1, 3''')
    mk = [(s_msk, s_msk+1), (6, 7)]
    for j in range(0, 8, 2):
        fill += [f'v_cmp_eq_u32 s[{mk[0][0]}:{mk[0][1]}], {j}, v{w1}', f'v_cmp_eq_u32 s[{mk[1][0]}:{mk[1][1]}], {j+1}, v{w1}', f's_nop 0',
                 f'v_cndmask_b32 v{SEL+j}, 0, v{w0}, s[{mk[0][0]}:{mk[0][1]}]', f'v_cndmask_b32 v{SEL+j+1}, 0, v{w0}, s[{mk[1][0]}:{mk[1][1]}]']
    fill += L_(f'''v_bfe_u32 v{w0}, v0, 4, 1
v_lshlrev_b32 v{w0}, 2, v{w0}
v_and_b32 v{w1}, 7, v0
v_xor_b32 v{w0}, v{w0}, v{w1}
v_lshlrev_b32 v{w0}, 4, v{w0}
v_lshrrev_b32 v{w1}, 3, v0
v_lshl_add_u32 v{w0}, v{w1}, 10, v{w0}
s_lshl_b32 s{s_tmp2}, s{s_ct}, 7
v_add_u32 v{vOg}, s{s_tmp2}, v{w0}''')
    for n in range(8): fill += L_(f's_add_u32 s{s_r8+n}, s{s_ct}, {n}\ns_and_b32 s{s_r8+n}, s{s_r8+n}, 7')
    fill += L_(f'''v_bfe_u32 v{w0}, v0, 4, 1
v_bfe_u32 v{w1}, v0, 5, 1
v_lshl_add_u32 v{w2}, v{w0}, 1, v{w1}
v_and_b32 v{tK}, 15, v0
v_mul_u32_u24 v{tK}, 80, v{tK}
v_lshl_add_u32 v{tK}, v{w2}, 3, v{tK}
s_lshl_b32 s{s_tmp2}, s{s_F}, 5
s_add_u32 s{s_tmp}, s{s_tmp}, s{s_tmp2}
s_add_u32 s{s_tmp3}, s{s_tmp}, {KT+18*80}
v_and_b32 v{w2}, 1, v0
v_lshl_add_u32 v{w2}, v{w0}, 1, v{w2}
v_lshlrev_b32 v{tZ}, 3, v{w2}
v_add_u32 v{tZ}, s{s_tmp3}, v{tZ}
s_mul_i32 s{s_tmp2}, s{s_F}, 80
s_sub_u32 s{s_tmp}, s{s_tmp}, s{s_tmp2}
s_add_u32 s{s_tmp}, s{s_tmp}, {KT}
v_add_u32 v{tK}, s{s_tmp}, v{tK}
v_bfe_u32 v{w0}, v0, 3, 2
v_and_b32 v{w2}, 3, v0
v_lshl_add_u32 v{w0}, v{w0}, 2, v{w2}
v_mul_u32_u24 v{aN}, 80, v{w0}
v_mul_u32_u24 v{w1}, 1600, v{w1}
v_add_u32 v{w1}, {KT}, v{w1}
v_add_u32 v{aN}, v{aN}, v{w1}
v_mul_u32_u24 v{aX}, 80, v{w2}
v_add_u32 v{aX}, v{aX}, v{w1}
v_add_u32 v{aX}, {16*80}, v{aX}
v_mov_b32 v{w0}, {ZERO}
s_mov_b32 s{s_msk}, 0x0f0f0f0f
s_mov_b32 s{s_msk+1}, 0xf0f0f0f0
v_cndmask_b32 v{aN}, v{w0}, v{aN}, s[{s_msk}:{s_msk+1}]
s_mov_b32 s{s_msk}, 0x0000000f
s_mov_b32 s{s_msk+1}, 0x000000f0
v_cndmask_b32 v{aX}, v{w0}, v{aX}, s[{s_msk}:{s_msk+1}]''')
    def wo_dma(half):
        return [('dma', f's_lshl_b32 s3, s{s_r8+n}, 15\n' + (f's_add_u32 s3, s3, 0x40000\n' if half else '') + f's_add_u32 m0, s{s_m0b}, {(RB if half==0 else RA)+4096*n}',
                 f'buffer_load_dwordx4 v{vOg}, s[{sO}:{sO+3}], s3 offen lds', f'wo{half}_{n}') for n in range(8)]
    HZ, HK = E+12, X
    HZ = X + 32
    def z_load(): return f'buffer_load_dwordx4 {vr(HZ,4)}, v{hZ}, s[{sWS}:{sWS+3}], s{s_so} offen sc1'
    def kv_list():
        return [f'buffer_load_dwordx4 {vr(HK+8*m+4*st,4)}, v{hA}, s[{sWS}:{sWS+3}], s{s_so+m} offen offset:{256*st} sc1' for m in range(4) for st in range(2)]
    def z_check():
        return [f'v_xor_b32 v{zc}, s{s_t}, v{HZ}'] + [f'v_bitop3_b32 v{zc}, v{zc}, v{HZ+j}, s{s_t+j} bitop3:0xf6' for j in range(1, 4)] + [f'v_and_b32 v{zc}, 0x00010001, v{zc}', f'v_cmp_ne_u32 vcc, 0, v{zc}']
    zat = opt.get('z_at', 10); h1 = opt.get('h1_at', 28)
    assert zat >= 9
    ext2(slotted(slots[:h1], [(fill, 0, h1-1), ([z_load()], zat, zat)]))
    p.ext(z_check())
    p('s_cbranch_vccnz B_H1_LATE')
    p(f's_mov_b32 s{s_rdy}, 1')
    p.ext(kv_list())
    p('B_H1_LATE:')
    ext2(slotted(slots[h1:], []))
    stamp()
    EQ = X + 48
    hd = phi_head(ACC0); bd = phi_body(EQ, False)
    wo0 = wo_dma(0)
    ext2(wo0[:2]); ext2(hd); ext2(wo0[2:4])
    ext2(interleave(bd, wo0[4:]))
    stamp()
    chk = zc
    DZ, DK = P, P+4
    p(f's_cmp_eq_u32 s{s_rdy}, 0\ns_cbranch_scc1 B_H1_POLL')
    p('B_H1_CHK:')
    p(f'v_mfma_f32_16x16x32_bf16 {vr(DZ,4)}, {vr(SEL,4)}, {vr(HZ,4)}, 0')
    for n in range(8):
        p(f'v_mfma_f32_16x16x32_bf16 {vr(DK,4)}, {vr(SEL+4*(n&1),4)}, {vr(HK+4*n,4)}, {"0" if n==0 else vr(DK,4)}')
        for j in range(4):
            if n == 0 and j == 0: p(f'v_xor_b32 v{chk}, s{s_t}, v{HK}')
            else: p(f'v_bitop3_b32 v{chk}, v{chk}, v{HK+4*n+j}, s{s_t+j} bitop3:0xf6')
        if n == 1:
            for j in range(4): p(f'v_add_f32_dpp v{DZ+j}, v{DZ+j}, v{DZ+j} row_ror:2 row_mask:0xf bank_mask:0xf')
        if n == 2:
            for j in range(4): p(f'v_add_f32_dpp v{DZ+j}, v{DZ+j}, v{DZ+j} row_ror:4 row_mask:0xf bank_mask:0xf')
        if n == 3:
            p(f'v_cvt_pk_bf16_f32 v{DZ}, v{DZ}, v{DZ+1}\nv_cvt_pk_bf16_f32 v{DZ+1}, v{DZ+2}, v{DZ+3}')
            p('s_mov_b64 exec, 0x00030003')
            p(f'ds_write_b64 v{tZ}, {vr(DZ,2)}')
            p('s_mov_b64 exec, -1')
    p(f'v_and_b32 v{chk}, 0x00010001, v{chk}')
    p(f'v_cmp_ne_u32 vcc, 0, v{chk}')
    p('s_cbranch_vccnz B_H1_RETRY')
    p('B_H1_OK:')
    p(f'v_cvt_pk_bf16_f32 v{DK}, v{DK}, v{DK+1}\nv_cvt_pk_bf16_f32 v{DK+1}, v{DK+2}, v{DK+3}')
    p(f'ds_write_b64 v{tK}, {vr(DK,2)}')
    p('s_waitcnt lgkmcnt(0)\ns_barrier')
    stamp()
    OFR = X
    for j in range(4): p(f'ds_read_b128 {vr(OFR+4*j,4)}, v{aX} offset:{16*j}')
    for j in range(4): p(f'ds_read_b128 {vr(OFR+16+4*j,4)}, v{aN} offset:{16*j}')
    AUX, NP, NM = P, ACC0, ACC1
    for j in range(4): p(f'v_mfma_f32_32x32x16_bf16 {vr(AUX,16)}, {vr(OFR+4*j,4)}, {vr(EQ+4*j,4)}, {"0" if j==0 else vr(AUX,16)}')
    for j in range(2): p(f'v_mfma_f32_32x32x16_bf16 {vr(NP,16)}, {vr(OFR+16+4*j,4)}, {vr(EQ+4*j,4)}, {"0" if j==0 else vr(NP,16)}')
    for j in range(2, 4): p(f'v_mfma_f32_32x32x16_bf16 {vr(NM,16)}, {vr(OFR+16+4*j,4)}, {vr(EQ+4*j,4)}, {"0" if j==2 else vr(NM,16)}')
    c0 = E
    p(f'v_rcp_f32 v{c0}, v{AUX}\nv_rcp_f32 v{c0+1}, v{AUX+1}')
    p(f'v_mul_f32 v{c0+2}, v{AUX+2}, v{c0}\nv_fma_f32 v{c0+2}, v{AUX+3}, v{c0+1}, v{c0+2}\nv_add_f32 v{c0+2}, 0x358637bd, v{c0+2}')
    p(f'v_rcp_f32 v{c0+2}, v{c0+2}')
    p(f'v_mul_f32 v{c0}, v{c0}, v{c0+2}\nv_mul_f32 v{c0+1}, v{c0+1}, v{c0+2}')
    OB = E+16
    for hh in range(2):
        for j in range(8*hh, 8*hh+8): p(f'v_mul_f32 v{NP+j}, v{NP+j}, v{c0}')
        for j in range(8*hh, 8*hh+8): p(f'v_fmac_f32 v{NP+j}, v{NM+j}, v{c0+1}')
        for j in range(4*hh, 4*hh+4): p(f'v_cvt_pk_bf16_f32 v{OB+j}, v{NP+2*j}, v{NP+2*j+1}')
        for j in range(4*hh, 4*hh+4): p(f'v_and_or_b32 v{OB+j}, v{OB+j}, v{vMask}, s{s_t+(j&3)}')
        p(f'buffer_store_dwordx4 {vr(OB+4*hh,4)}, v{vL16}, s[{sWS}:{sWS+3}], s{s_p2} offen offset:{1024*hh} sc1')
    stamp()
    setup = L_(f'''s_lshl2_add_u32 s{s_tmp}, s{s_rt}, s{s_w}
s_lshl_b32 s{s_tmp}, s{s_tmp}, 14
s_add_u32 s{s_so}, s{s_tmp}, {WS_OX}''')
    wa, wb, pl, oa, xw, xr = E, E+1, E+2, E+3, E+6, E+7
    chk = E+8
    setup += L_(f'''v_bfe_u32 v{E+4}, v0, 2, 2
v_bfe_u32 v{E+5}, v0, 5, 1
v_lshl_add_u32 v{E+9}, v{E+5}, 4, v{E+4}
v_lshlrev_b32 v{wa}, 7, v{E+9}
v_lshrrev_b32 v{E+4}, 1, v{E+4}
v_xor_b32 v{E+4}, s{s_F}, v{E+4}
v_lshl_add_u32 v{wa}, v{E+4}, 6, v{wa}
v_and_b32 v{E+4}, 63, v{vTRv}
v_add_u32 v{wa}, v{wa}, v{E+4}
s_xor_b32 s{s_tmp3}, s{s_F}, 1
s_lshl_b32 s{s_tmp3}, s{s_tmp3}, 15
v_add_u32 v{wa}, s{s_tmp3}, v{wa}
v_xor_b32 v{wb}, 64, v{wa}
v_and_b32 v{pl}, 7, v0
v_lshlrev_b32 v{pl}, 11, v{pl}
v_add_u32 v{pl}, 2032, v{pl}
v_and_b32 v{E+4}, 31, v0
v_lshlrev_b32 v{E+5}, 5, v{E+5}
v_lshl_add_u32 v{oa}, v{E+4}, 11, v{E+5}
s_lshl1_add_u32 s{s_tmp}, s{s_rt}, s{s_H}
s_lshl_b32 s{s_tmp}, s{s_tmp}, 16
s_lshl1_add_u32 s{s_tmp3}, s{s_ct}, s{s_F}
s_lshl_b32 s{s_tmp3}, s{s_tmp3}, 6
s_add_u32 s{s_oo}, s{s_tmp}, s{s_tmp3}
s_add_u32 s{s_oo}, s{s_oo}, 1024
s_add_u32 s{s_tmp}, s{s_st}, {ST}
s_xor_b32 s{s_tmp3}, s{s_st}, 4096
s_add_u32 s{s_tmp3}, s{s_tmp3}, {ST}
v_add_u32 v{xw}, s{s_tmp}, v{vL16}
v_add_u32 v{xr}, s{s_tmp3}, v{vL16}''')
    ext2(interleave(setup, wo_dma(1)))
    for n in range(8): p(f's_lshl_b32 s{s_r8+n}, s{s_r8+n}, 11\ns_add_u32 s{s_r8+n}, s{s_r8+n}, s{s_so}')
    OF = X
    if not opt.get('nopoll2'):
        p('B_H2_POLL:')
        p(f'buffer_load_dwordx4 {vr(OF,4)}, v{pl}, s[{sWS}:{sWS+3}], s{s_so} offen sc1')
        p(f's_add_u32 s{s_sp}, s{s_sp}, 1\ns_cmp_gt_u32 s{s_sp}, {SPIN_MAX}\ns_cbranch_scc1 B_H2_FIRST')
        p(f'v_xor_b32 v{chk}, s{s_t}, v{OF}')
        for j in range(1, 4): p(f'v_bitop3_b32 v{chk}, v{chk}, v{OF+j}, s{s_t+j} bitop3:0xf6')
        p(f'v_and_b32 v{chk}, 0x00010001, v{chk}')
        p(f'v_cmp_ne_u32 vcc, 0, v{chk}')
        p('s_cbranch_vccnz B_H2_POLL')
    p('B_H2_FIRST:')
    stamp()
    def o_loads():
        for n in range(16):
            p(f'buffer_load_dwordx4 {vr(OF+4*n,4)}, v{vL16}, s[{sWS}:{sWS+3}], s{s_r8+(n>>1)} offen offset:{1024*(n&1)} sc1')
    o_loads()
    p('s_waitcnt vmcnt(16)\ns_barrier')
    p('B_H2_GO:')
    AK, AS = ACC0, P
    W2 = X + 64
    def wofr(n, slot):
        off = 128*(32*(n >> 1) + 8*(n & 1))
        return trpair(W2+8*slot+4, wb, off, 512) + trpair(W2+8*slot, wa, off, 512)
    NS2 = 5
    for n in range(3): p.ext(wofr(n, n))
    for n in range(16):
        p(f'v_mfma_f32_32x32x16_bf16 {vr(AS,16)}, {vr(W2+8*(n%NS2)+4,4)}, {vr(OF+4*n,4)}, {"0" if n==0 else vr(AS,16)}')
        if n+3 < 16: p.ext(wofr(n+3, (n+3) % NS2)[:2])
        for j in range(2):
            if n == 0 and j == 0: p(f'v_xor_b32 v{chk}, s{s_t}, v{OF}')
            else: p(f'v_bitop3_b32 v{chk}, v{chk}, v{OF+4*n+j}, s{s_t+j} bitop3:0xf6')
        p(f'v_mfma_f32_32x32x16_bf16 {vr(AK,16)}, {vr(W2+8*(n%NS2),4)}, {vr(OF+4*n,4)}, {"0" if n==0 else vr(AK,16)}')
        if n+3 < 16: p.ext(wofr(n+3, (n+3) % NS2)[2:])
        for j in range(2, 4): p(f'v_bitop3_b32 v{chk}, v{chk}, v{OF+4*n+j}, s{s_t+j} bitop3:0xf6')
    p(f'v_and_b32 v{chk}, 0x00010001, v{chk}')
    p(f'v_cmp_ne_u32 vcc, 0, v{chk}')
    p('s_cbranch_vccnz B_H2_RETRY')
    p('B_H2_OK:')
    for j in range(4): p(f'ds_write_b128 v{xw}, {vr(AS+4*j,4)} offset:{1024*j}')
    p('s_waitcnt lgkmcnt(0)\ns_barrier')
    for j in range(4): p(f'ds_read_b128 {vr(AS+4*j,4)}, v{xr} offset:{1024*j}')
    STF = opt.get('outflag', '')
    for hh in range(2):
        for j in range(8): p(f'v_add_f32 v{AK+8*hh+j}, v{AK+8*hh+j}, v{AS+8*hh+j}')
        for j in range(4): p(f'v_cvt_pk_bf16_f32 v{OB+4*hh+j}, v{AK+8*hh+2*j}, v{AK+8*hh+2*j+1}')
        p(f'buffer_store_dwordx4 {vr(OB+4*hh,4)}, v{oa}, s[{sOUT}:{sOUT+3}], s{s_oo} offen offset:{16*hh} {STF}')
    p(f's_or_b32 s{s_tmp}, s2, s{s_w}\ns_cmp_lg_u32 s{s_tmp}, 0\ns_cbranch_scc1 B_END')
    p(f'v_mov_b32 v{E}, s{s_E1}\nv_mov_b32 v{E+1}, 0\ns_mov_b64 exec, 1')
    p(f'buffer_store_dword v{E}, v{E+1}, s[{sWS}:{sWS+3}], 0 offen offset:{WS_EB} sc1')
    if opt.get('amp'):
        p('s_waitcnt vmcnt(0)\ns_memrealtime s[90:91]\ns_waitcnt lgkmcnt(0)')
        if opt.get('amp_at', -1) < 0: p('s_mov_b32 s99, s90')
        p(f's_sub_u32 s92, s99, s78\ns_mul_i32 s92, s92, {opt["amp"]}\nB_AMP:\ns_memrealtime s[94:95]\ns_waitcnt lgkmcnt(0)\ns_sub_u32 s94, s94, s90\ns_cmp_lt_u32 s94, s92\ns_cbranch_scc1 B_AMP')
    p('B_END:')
    if opt.get('stamps'):
        p('s_mov_b64 exec, -1')
        p('s_waitcnt vmcnt(0)')
        p('s_memtime s[100:101]\ns_memrealtime s[76:77]\ns_waitcnt lgkmcnt(0)')
        for k in range(11): p(f'v_mov_b32 v{16+k}, s{80+2*k}')
        p('v_mov_b32 v27, s78\nv_mov_b32 v28, s76\n' + f'v_mov_b32 v29, s{s_sp}\nv_mov_b32 v30, s{s_rdy}')
        p(f's_lshl_b32 s{s_tmp}, s2, 8\ns_lshl_b32 s{s_tmp2}, s{s_w}, 6\ns_add_u32 s{s_tmp}, s{s_tmp}, s{s_tmp2}\ns_add_u32 s{s_tmp}, s{s_tmp}, {WS_STAMP}')
        p('v_mov_b32 v0, 0\ns_mov_b64 exec, 1')
        for k in range(4): p(f'buffer_store_dwordx4 v[{16+4*k}:{19+4*k}], v0, s[{sWS}:{sWS+3}], s{s_tmp} offen offset:{16*k}')
    p('s_endpgm')
    p.assume_clean()
    p('B_H1_POLL:')
    p(z_load())
    p(f's_add_u32 s{s_sp}, s{s_sp}, 1\ns_cmp_gt_u32 s{s_sp}, {SPIN_MAX}\ns_cbranch_scc1 B_H1_GO')
    p.ext(z_check())
    p('s_cbranch_vccnz B_H1_POLL')
    p('B_H1_GO:')
    p.ext(kv_list())
    p('s_waitcnt vmcnt(0)\ns_branch B_H1_CHK')
    p('B_H1_RETRY:')
    p(f's_add_u32 s{s_sp}, s{s_sp}, 1\ns_cmp_gt_u32 s{s_sp}, {SPIN_MAX}\ns_cbranch_scc1 B_H1_OK')
    p('s_sleep 2\ns_branch B_H1_GO')
    p('B_H2_RETRY:')
    p(f's_add_u32 s{s_sp}, s{s_sp}, 1\ns_cmp_gt_u32 s{s_sp}, {SPIN_MAX}\ns_cbranch_scc1 B_H2_OK')
    p('s_sleep 2')
    o_loads()
    p('s_branch B_H2_GO')
    p.assume_clean()
```

```python
import sys, json
from asmdsl import Prog
from common import *
import genB
NAME = 'concat_heads__ssm_conv_s4__linear_kernel_hedgehog__prompt'
def build(opt):
    hdr = open(f'cdna_kernels/{NAME}.s.ref').read().split('\n')
    head = [l for l in hdr if l.startswith(';') and '@launch' not in l and 'Override' not in l and 'grid=ceil' not in l]
    head = head[:17]
    p = Prog()
    p('s_cmp_ge_u32 s2, 512\ns_cbranch_scc1 K_EXIT')
    if opt.get('pf', 1):
        p('s_getpc_b64 s[4:5]')
        p('s_bfe_u32 s3, s2, 0x50003\ns_lshl_b32 s3, s3, 10')
        p('v_lshl_add_u32 v255, v0, 7, s3')
        p('v_cmp_gt_u32 vcc, 8, v0\ns_and_saveexec_b64 s[6:7], vcc\ns_cbranch_execz K_NOPF')
        p('global_load_dword v254, v255, s[4:5]')
        p('K_NOPF:\ns_mov_b64 exec, s[6:7]')
        p.assume_clean()
    if opt.get('noA'):
        p('s_cmp_ge_u32 s2, 256\ns_cbranch_scc1 K_EXIT')
        genB.genB(p, opt)
    else:
        import genA
        p('s_cmp_lt_u32 s2, 256\ns_cbranch_scc1 B_ROLE')
        ga = genA.genA(p, opt)
        next(ga)
        saved = p.save_state()
        p('s_branch A_REST')
        genB.genB(p, opt)
        p.assume_clean()
        p('A_REST:')
        p.restore_state(saved)
        for _ in ga: pass
    p('K_EXIT:\ns_endpgm')
    if opt.get('pf', 1): p(f'.fill ({NAME}_kernel + 33024 - .) / 4, 4, 0xbf810000')
    body = p.finalize()
    txt = '\n'.join(head) + f"""
; Generated by gen/gen.py (hand-written generator). One launch, 512 workgroups: ids <256 attention part, ids 256..511 SSM part.
; @launch grid=(512,1,1) block=(256,1,1) lds=81920
.amdgcn_target "amdgcn-amd-amdhsa--gfx950"
.text
.globl {NAME}_kernel
.p2align 8
.type {NAME}_kernel,@function
{NAME}_kernel:
{body}
.section .rodata,"a"
.p2align 6
.amdhsa_kernel {NAME}_kernel
  .amdhsa_next_free_vgpr 256
  .amdhsa_next_free_sgpr 102
  .amdhsa_accum_offset 256
  .amdhsa_group_segment_fixed_size 0
  .amdhsa_kernarg_size 128
  .amdhsa_user_sgpr_count 2
  .amdhsa_user_sgpr_kernarg_segment_ptr 1
  .amdhsa_system_sgpr_workgroup_id_x 1
.end_amdhsa_kernel
"""
    return txt
if __name__ == '__main__':
    out = sys.argv[1]
    opt = {}
    for a in sys.argv[2:]:
        k, _, v = a.partition('=')
        try: v = int(v)
        except ValueError: v = v if v else 1
        opt[k] = v
    open(out, 'w').write(build(opt))
```

```python
import re
WAR_MFMAS = 0

REG_RE = re.compile(r'(?<![\w.])([vsa])\[(\d+):(\d+)\]|(?<![\w.])([vsa])(\d+)(?![\w\[])|(?<![\w.])(vcc_lo|vcc_hi|vcc|exec_lo|exec_hi|exec|m0|scc)(?![\w])')

def regs_of(tok):
    out = []
    for m in REG_RE.finditer(tok):
        if m.group(1):
            out += [(m.group(1), i) for i in range(int(m.group(2)), int(m.group(3)) + 1)]
        elif m.group(4):
            out.append((m.group(4), int(m.group(5))))
        else:
            n = m.group(6)
            if n.startswith('vcc'): out.append(('x', 'vcc'))
            elif n.startswith('exec'): out.append(('x', 'exec'))
            else: out.append(('x', n))
    return out

TRANS = ('v_exp_f32', 'v_log_f32', 'v_rcp_f32', 'v_rsq_f32', 'v_sqrt_f32', 'v_sin_f32', 'v_cos_f32', 'v_rcp_iflag_f32')

class Ins:
    __slots__ = ('text', 'op', 'dst', 'src', 'kind', 'passes', 'srcC', 'tok', 'dma', 'wide_store', 'data')
    def __init__(self, text):
        self.text = text
        t = text.split(';')[0].strip()
        self.tok = None; self.dma = False; self.passes = 0; self.srcC = []; self.wide_store = False; self.data = []
        if t.endswith(':') or t == '' or t.startswith('.'):
            self.op = 'label' if t.endswith(':') else 'nop_dir'; self.dst = []; self.src = []; self.kind = self.op; return
        parts = t.split(None, 1)
        op = parts[0]; self.op = op
        rest = parts[1] if len(parts) > 1 else ''
        ops = [o.strip() for o in rest.split(',')]
        R = [regs_of(o) for o in ops]
        flat = lambda L: [r for x in L for r in x]
        base = re.sub(r'_(e32|e64|dpp|sdwa)$', '', op)
        if op.startswith('v_mfma'):
            self.kind = 'mfma'; self.dst = R[0]; self.src = flat(R[1:]); self.srcC = R[3] if len(R) > 3 else []
            self.passes = 8 if '32x32' in op else 4
        elif op.startswith('buffer_load') or op.startswith('global_load'):
            self.kind = 'vmem'
            if re.search(r'\blds\b', rest):
                self.dma = True; self.dst = []; self.src = flat(R) + [('x', 'm0')]
            else:
                self.dst = R[0]; self.src = flat(R[1:])
                if 'd16' in op: self.src += R[0]
        elif op.startswith('buffer_store') or op.startswith('global_store') or op.startswith('buffer_atomic') or op.startswith('global_atomic'):
            self.kind = 'vmem'; self.dst = []; self.src = flat(R)
            if op.endswith('x4') or op.endswith('x3'):
                self.wide_store = True; self.data = R[0] if op.startswith('buffer') else R[1]
        elif op == 'buffer_wbl2':
            self.kind = 'vmem'; self.dst = []; self.src = []
        elif op.startswith('ds_read'):
            self.kind = 'ds'; self.dst = R[0]; self.src = flat(R[1:])
        elif op.startswith('ds_write'):
            self.kind = 'ds'; self.dst = []; self.src = flat(R)
        elif op.startswith('s_load') or op.startswith('s_memtime') or op.startswith('s_memrealtime'):
            self.kind = 'smem'; self.dst = R[0]; self.src = flat(R[1:])
        elif op.startswith('v_'):
            self.kind = 'valu'
            if base.startswith('v_cmpx'):
                self.dst = R[0] + [('x', 'exec')]; self.src = flat(R[1:])
            elif base.startswith('v_permlane') and 'swap' in base:
                self.dst = R[0] + R[1]; self.src = R[0] + R[1]
            elif base in ('v_fmac_f32', 'v_dot2c_f32_bf16', 'v_writelane_b32') or op.endswith('_dpp') or op.endswith('_sdwa'):
                self.dst = R[0]; self.src = flat(R)
            elif base in ('v_add_co_u32', 'v_sub_co_u32', 'v_addc_co_u32'):
                self.dst = R[0] + R[1]; self.src = flat(R[2:])
            elif base == 'v_nop':
                self.dst = []; self.src = []
            else:
                self.dst = R[0]; self.src = flat(R[1:])
        elif op.startswith('s_'):
            self.kind = 'salu'
            if op in ('s_waitcnt', 's_barrier', 's_nop', 's_endpgm', 's_sleep', 's_setprio', 's_branch') or op.startswith('s_cbranch'):
                self.dst = []; self.src = []
                if 'vcc' in op: self.src = [('x', 'vcc')]
                if 'exec' in op: self.src = [('x', 'exec')]
                if op != 's_nop' and op != 's_setprio' and op != 's_sleep': self.kind = 'ctrl'
            elif op.startswith('s_cmp') or op.startswith('s_bitcmp'):
                self.dst = []; self.src = flat(R)
            elif 'saveexec' in op:
                self.dst = R[0] + [('x', 'exec')]; self.src = flat(R[1:]) + [('x', 'exec')]
            elif op in ('s_setpc_b64',):
                self.dst = []; self.src = flat(R); self.kind = 'ctrl'
            else:
                self.dst = R[0]; self.src = flat(R[1:])
                if op in ('s_addk_i32', 's_mulk_i32', 's_bitset0_b32', 's_bitset1_b32'): self.src += R[0]
        else:
            raise ValueError('unknown op: ' + text)

class Prog:
    def __init__(self):
        self.items = []
        self.ntok = 0
    def __call__(self, text, tok=None):
        for line in text.split('\n'):
            line = line.strip()
            if not line: continue
            i = Ins(line); i.tok = tok; self.items.append(i)
    def ext(self, lst):
        for x in lst:
            if isinstance(x, str): self(x)
            else: self.items.append(x)
    def wait_tok(self, tok):
        self.items.append(('waittok', tok))
    def assume_clean(self):
        self.items.append(('clean', None))

    def pretend(self, instrs, toks):
        self.items.append(('pretend', [(Ins(t), k) for t, k in zip(instrs, toks)]))
    def save_state(self):
        self.ntok += 1; self.items.append(('save', self.ntok)); self.items.append(('clean', None)); return self.ntok
    def restore_state(self, k):
        self.items.append(('restore', k))
    def finalize(self, verbose=True):
        out = []
        vq = []; lq = []
        def emit(t): out.append(Ins(t))
        def need(q, regs):
            idx = -1
            for n, e in enumerate(q):
                if e[0] & regs: idx = n
            return idx
        nw = 0; saved = {}
        for it in self.items:
            if isinstance(it, tuple):
                if it[0] == 'waittok':
                    idx = -1
                    for n, e in enumerate(vq):
                        if e[1] == it[1]: idx = n
                    if idx >= 0:
                        N = len(vq) - 1 - idx
                        emit(f's_waitcnt vmcnt({min(N,62)})'); vq = vq[idx + 1:]
                elif it[0] == 'pretend': vq += [(set(x.dst), k, False) for x, k in it[1]]
                elif it[0] == 'lgkm_assume': pass
                elif it[0] == 'save': saved[it[1]] = (list(vq), list(lq))
                elif it[0] == 'restore': vq, lq = saved[it[1]]
                elif it[0] == 'clean':
                    vq = []; lq = []
                continue
            i = it
            if i.op == 's_waitcnt':
                m = re.search(r'vmcnt\((\d+)\)', i.text)
                if m:
                    N = int(m.group(1)); vq = vq[max(0, len(vq) - N):] if N < len(vq) else vq
                m = re.search(r'lgkmcnt\((\d+)\)', i.text)
                if m:
                    N = int(m.group(1))
                    if N == 0: lq = []
                    elif not any(e[2] for e in lq): lq = lq[max(0, len(lq) - N):] if N < len(lq) else lq
                out.append(i); continue
            regs = set(i.src) | set(i.dst)
            w = []
            idx = need(vq, regs)
            if idx >= 0:
                N = len(vq) - 1 - idx
                w.append(f'vmcnt({min(N,62)})'); vq = vq[idx + 1:]
            idx = need(lq, regs)
            if idx >= 0:
                if any(e[2] for e in lq):
                    w.append('lgkmcnt(0)'); lq = []
                else:
                    N = len(lq) - 1 - idx
                    w.append(f'lgkmcnt({min(N,14)})'); lq = lq[idx + 1:]
            if w: emit('s_waitcnt ' + ' '.join(w)); nw += 1
            out.append(i)
            if i.kind == 'vmem' and i.tok == 'nocount': pass
            elif i.kind == 'vmem':
                vq.append((set(i.dst), i.tok, False))
                assert len(vq) <= 63, 'vmcnt overflow at ' + i.text
            elif i.kind == 'ds': lq.append((set(i.dst), i.tok, False))
            elif i.kind == 'smem': lq.append((set(i.dst), i.tok, True))
        res = []; nnop = 0
        def states(x):
            if x.kind in ('label', 'nop_dir'): return 0
            if x.op == 's_nop': return int(x.text.split()[1], 0) + 1
            return 1
        for i in out:
            if i.kind in ('label', 'nop_dir'):
                res.append(i); continue
            req = 0; dist = 0
            S = set(i.src); D = set(i.dst)
            isvalu = i.kind == 'valu'
            base = re.sub(r'_(e32|e64|dpp|sdwa)$', '', i.op)
            for p in reversed(res):
                if dist >= 20: break
                if p.kind in ('label', 'nop_dir'): continue
                PD = set(p.dst); need_ = 0
                if p.kind == 'mfma':
                    big = {4: 8, 8: 12}[p.passes]
                    if i.kind == 'mfma':
                        AB = S - set(i.srcC) if i.srcC else S
                        ab = set(regs_of(i.text.split(',')[1])) | set(regs_of(i.text.split(',')[2]))
                        if ab & PD: need_ = max(need_, big)
                        if set(i.srcC) & PD:
                            if not (list(i.srcC) == list(p.dst) and i.passes == p.passes): need_ = max(need_, {4: 6, 8: 10}[p.passes])
                        elif D & PD: need_ = max(need_, big)
                    elif i.kind in ('valu', 'vmem', 'ds'):
                        if (S | D) & PD: need_ = max(need_, big)
                        if isvalu and D & set(p.srcC): need_ = max(need_, {4: 3, 8: 7}[p.passes])
                elif p.kind == 'valu':
                    pv = {r for r in PD if r[0] == 'v'}; ps = {r for r in PD if r[0] == 's' or r == ('x', 'vcc')}
                    if i.kind == 'mfma' and S & pv: need_ = max(need_, 2)
                    if i.kind == 'mfma' and ('x', 'exec') in PD: need_ = max(need_, 4)
                    if isvalu:
                        if (i.op.endswith('_dpp') or base.startswith('v_permlane')) and S & pv: need_ = max(need_, 2)
                        if (i.op.endswith('_dpp')) and ('x', 'exec') in PD: need_ = max(need_, 5)
                        if base in ('v_readfirstlane_b32', 'v_readlane_b32') and S & pv: need_ = max(need_, 1)
                        if base in ('v_readfirstlane_b32', 'v_readlane_b32', 'v_writelane_b32') and ('x', 'exec') in PD: need_ = max(need_, 4)
                        if S & ps: need_ = max(need_, 4 if base in ('v_readlane_b32', 'v_writelane_b32') else 2)
                        pb = re.sub(r'_(e32|e64|dpp|sdwa)$', '', p.op)
                        if pb in TRANS and S & pv: need_ = max(need_, 1)
                        if (p.op.endswith('_sdwa') or 'op_sel' in p.text and not p.op.startswith('v_pk')) and (S | D) & pv: need_ = max(need_, 1)
                    if i.kind == 'vmem' and S & ps: need_ = max(need_, 5)
                    if i.kind in ('salu', 'ctrl') and S & ps: need_ = max(need_, 1)
                elif p.kind == 'salu':
                    if ('x', 'm0') in PD and (i.dma or 'addtid' in i.op): need_ = max(need_, 1)
                elif p.kind == 'vmem':
                    if p.wide_store and D & set(p.data): need_ = max(need_, 2 if isvalu else 1)
                req = max(req, need_ - dist)
                dist += states(p)
            if req > 0:
                res.append(Ins(f's_nop {req - 1}')); nnop += req
            res.append(i)
        recent = []
        for k, i in enumerate(res):
            if i.kind == 'mfma':
                ops = i.text.split(',')
                recent.append((k, set(regs_of(ops[1])) | set(regs_of(ops[2]))))
            elif i.kind == 'ds' and i.dst:
                for back, (kk, ab) in enumerate(reversed((recent[-WAR_MFMAS:] if WAR_MFMAS else []))):
                    if ab & set(i.dst) and k - kk < 40: print('[asmdsl] WAR warning (%d mfma between): %s  <- %s' % (back, i.text, res[kk].text))
        if verbose: print(f'[asmdsl] {len(res)} lines, {nw} auto waits, {nnop} hazard nop states')
        return '\n'.join(('' if x.kind == 'label' else '    ') + x.text for x in res)

def interleave(main, fill, start=0, per=None):
    n = len(main) - start
    out = list(main[:start]); fi = 0
    for k, m in enumerate(main[start:]):
        out.append(m)
        tgt = (k + 1) * len(fill) // n
        while fi < tgt:
            out.append(fill[fi]); fi += 1
    out += fill[fi:]
    return out


def cost(x):
    if isinstance(x, tuple): return 3.0 if x[0] == 'dma' else 0.0
    op = x.split()[0]
    if op in TRANS: return 2.0
    if op.startswith('s_'): return 0.5
    if op.startswith('buffer_') : return 2.0
    return 1.0

def slotted(slots, fills):
    extra = [[] for _ in slots]
    for items, a, b in fills:
        b = min(b, len(slots) - 1)
        tot = sum(cost(x) for x in items); acc = 0.0; n = b - a + 1
        for x in items:
            k = a + min(n - 1, int((acc + 0.5 * cost(x)) * n / tot)) if tot > 0 else a
            extra[k].append(x); acc += cost(x)
    out = []
    for sl, ex in zip(slots, extra): out += sl + ex
    return out
```

```python
from asmdsl import Prog, interleave, slotted
from common import *

def vr(a, n): return f'v[{a}:{a+n-1}]'

PITCH = 544
KTCH = 57 * PITCH
T1 = 2 * KTCH
T2 = T1 + 8192
CT = T1; CTS = 3328
KR0, KR1, G4B, G8B, F1K = 0, 1216, 2368, 2880, 3200
UT0 = T2; UTS = 4640; UPAD = 528
XCH = 0
A3S = 16384

def genA(p, opt):
    stamp_n = [0]
    def stamp(kind='main'):
        if kind != opt.get('stampsetA', 'main') and not (kind == 'main' and stamp_n[0] == 0): return
        if opt.get('stamps'):
            k = stamp_n[0]; stamp_n[0] += 1
            if k < 10: p(f's_memtime s[{80+2*k}:{81+2*k}]')
    PK = opt.get('pkA', 0)
    sU, sPar, sOUT, sWS = 8, 12, 36, 40
    s_g, s_m, s_w, s_ch, s_nh = 44, 45, 46, 47, 48
    s_tmp, s_tmp2, s_tmp3 = 49, 50, 51
    s_ldt, s_dsk = 52, 54
    s_ldv, s_dsv = 56, 57
    s_E1, s_tag = 58, 59
    s_msk = 60
    s_sp = 68
    s_so = 62
    s_ctb, s_utb = 66, 67
    vEp, vLane = 1, 2
    BAND = 224
    FIXM = 248
    p('A_ROLE:')
    p(f's_load_dwordx2 s[{sU}:{sU+1}], s[0:1], 0')
    for i in range(6): p(f's_load_dwordx2 s[{sPar+4*i}:{sPar+4*i+1}], s[0:1], {8+8*i}')
    p(f's_load_dwordx4 s[{s_ldt}:{s_ldt+3}], s[0:1], 56')
    p(f's_load_dwordx2 s[{sOUT}:{sOUT+1}], s[0:1], 104')
    p(f's_load_dwordx2 s[{sWS}:{sWS+1}], s[0:1], 120')
    if opt.get('stamps'): p('s_memrealtime s[78:79]')
    stamp()
    if opt.get('prioA0'): p(f's_setprio {opt["prioA0"]}')
    t0, t1, t2, t3, t4, t5 = 3, 4, 5, 6, 7, 8
    p(f'v_lshrrev_b32 v{t0}, 6, v0\nv_and_b32 v{vLane}, 63, v0\nv_readfirstlane_b32 s{s_w}, v{t0}')
    p(f's_and_b32 s{s_g}, s2, 7\ns_bfe_u32 s{s_m}, s2, 0x50003')
    p(f's_lshr_b32 s{s_ch}, s{s_w}, 1\ns_and_b32 s{s_nh}, s{s_w}, 1')
    vUg = 9
    p(f'v_bfe_u32 v{t1}, v0, 4, 1\nv_lshlrev_b32 v{t1}, 2, v{t1}\nv_and_b32 v{t2}, 7, v0\nv_xor_b32 v{t1}, v{t1}, v{t2}\nv_lshlrev_b32 v{t1}, 4, v{t1}')
    p(f'v_lshrrev_b32 v{t2}, 3, v0\nv_lshl_add_u32 v{vUg}, v{t2}, 10, v{t1}')
    p(f's_lshl_b32 s{s_tmp}, s{s_m}, 16\ns_lshl_b32 s{s_tmp2}, s{s_g}, 7\ns_add_u32 s{s_so}, s{s_tmp}, s{s_tmp2}\ns_add_u32 s{s_so+1}, s{s_so}, 32768')
    vPg = 10
    p(f's_lshl_b32 s{s_tmp}, s{s_g}, 5\ns_add_u32 s{s_tmp}, s{s_tmp}, s{s_m}')
    p(f's_lshl_b32 s{s_tmp3}, s{s_tmp}, 2')
    p(f's_add_u32 s{s_tmp2}, s{s_tmp3}, s{s_w}\ns_lshl_b32 s{s_so+2}, s{s_tmp2}, 7')
    p(f'v_lshlrev_b32 v{vPg}, 1, v{vLane}')
    p(f'v_mov_b32 v{vEp}, 0')
    p(f's_lshl_b32 s{s_so+3}, s{s_g}, 8')
    p(f's_mov_b32 s{sU+2}, 0x200000\ns_mov_b32 s{sU+3}, 0x20000')
    for i in range(6): p(f's_mov_b32 s{sPar+4*i+2}, 0x20000\ns_mov_b32 s{sPar+4*i+3}, 0x20000')
    p(f's_mov_b32 s{sOUT+2}, 0x400000\ns_mov_b32 s{sOUT+3}, 0x20000\ns_mov_b32 s{sWS+2}, 0x10000000\ns_mov_b32 s{sWS+3}, 0x20000')
    p(f's_lshl_b32 s{s_tmp2}, s{s_w}, 10')
    p(f's_add_u32 m0, s{s_tmp2}, {T1}')
    p('s_waitcnt lgkmcnt(0)')
    if WS_BASE: p(f's_add_u32 s{sWS}, s{sWS}, {hex(WS_BASE)}\ns_addc_u32 s{sWS+1}, s{sWS+1}, 0\ns_mov_b32 s{sWS+2}, {hex(0x10000000-WS_BASE)}')
    stamp('a')
    LD = opt.get('ldflagA', '')
    PAR = 12
    for i in range(6): p(f'buffer_load_ushort v{PAR+i}, v{vPg}, s[{sPar+4*i}:{sPar+4*i+3}], s{s_so+2} offen {LD}')
    p(f's_load_dword s{s_ldv}, s[{s_ldt}:{s_ldt+1}], s{s_tmp3}')
    p(f's_load_dword s{s_dsv}, s[{s_dsk}:{s_dsk+1}], s{s_tmp3}')
    if opt.get('udelay'): p('s_waitcnt vmcnt(0)')
    p(f'buffer_load_dwordx4 v{vUg}, s[{sU}:{sU+3}], s{s_so} offen {LD} lds')
    p(f's_add_u32 m0, s{s_tmp2}, {T1+4096}')
    p(f'buffer_load_dwordx4 v{vUg}, s[{sU}:{sU+3}], s{s_so+1} offen {LD} lds', tok='utile')
    p(f'buffer_load_dword v{vEp}, v{vEp}, s[{sWS}:{sWS+3}], s{s_so+3} offen offset:{WS_EA} sc1')
    if not opt.get('touch_early'):
        if opt.get('prioA0'): p(f's_setprio {opt.get("prioA1", 0)}')
        stamp('a')
        yield
        stamp('a')
    s_xcc, s_mode = 69, 70
    p(f's_getreg_b32 s{s_xcc}, hwreg(HW_REG_XCC_ID, 0, 4)')
    if opt.get('touch', 1):
        vPT = 86
        p(f's_cmp_lg_u32 s{s_w}, 3\ns_cbranch_scc1 A_NOTOUCH')
        p(f's_lshl_b32 s{s_tmp}, s{s_g}, 5\ns_add_u32 s{s_tmp}, s{s_tmp}, s{s_m}\ns_lshl_b32 s{s_tmp2}, s{s_tmp}, 2')
        p(f'v_and_b32 v{t0}, 3, v0\nv_add_u32 v{t0}, s{s_tmp2}, v{t0}')
        p(f'v_mul_u32_u24 v{t1}, 640, v{t0}\nv_add_u32 v{vPT}, {WS_KVP+512}, v{t1}')
        p(f'v_lshlrev_b32 v{t1}, 11, v{t0}\nv_add_u32 v{t1}, {WS_OX+1920}, v{t1}\ns_mov_b64 s[{s_msk}:{s_msk+1}], 0xf0\nv_cndmask_b32 v{vPT}, v{vPT}, v{t1}, s[{s_msk}:{s_msk+1}]')
        p(f'v_lshlrev_b32 v{t1}, 7, v{t0}\nv_add_u32 v{t1}, {WS_YF}, v{t1}\ns_mov_b64 s[{s_msk}:{s_msk+1}], 0xf00\nv_cndmask_b32 v{vPT}, v{vPT}, v{t1}, s[{s_msk}:{s_msk+1}]')
        p(f's_lshl_b32 s{s_tmp}, s{s_tmp}, 7\ns_add_u32 s{s_tmp}, s{s_tmp}, {WS_FLAG}\nv_mov_b32 v{t1}, s{s_tmp}\ns_mov_b64 s[{s_msk}:{s_msk+1}], 0xf000\nv_cndmask_b32 v{vPT}, v{vPT}, v{t1}, s[{s_msk}:{s_msk+1}]')
        if opt.get('touchkv', 0):
            p(f's_lshr_b32 s{s_tmp2}, s{s_tmp2}, 2\ns_mul_i32 s{s_tmp2}, s{s_tmp2}, {KVP_SZ}\ns_add_u32 s{s_tmp2}, s{s_tmp2}, {WS_KVP}')
            p(f'v_bfe_u32 v{t1}, v0, 2, 2\nv_mul_u32_u24 v{t1}, 640, v{t1}\nv_and_b32 v{t2}, 3, v0\nv_lshl_add_u32 v{t1}, v{t2}, 7, v{t1}\nv_add_u32 v{t1}, s{s_tmp2}, v{t1}')
            p(f's_mov_b32 s{s_msk}, 0xffff0000\nv_cndmask_b32 v{vPT}, v{vPT}, v{t1}, s[{s_msk}:{s_msk+1}]')
            p('s_mov_b32 exec_lo, 0xffff1f0f\ns_mov_b32 exec_hi, 0')
        else: p('s_mov_b64 exec, 0x1fff')
        p(f'buffer_load_dword v{vPT+1}, v{vPT}, s[{sWS}:{sWS+3}], 0 offen', tok='nocount')
        p('s_mov_b64 exec, -1')
        p('A_NOTOUCH:')
    mp = str(opt.get('mallpf', ''))
    if mp:
        p(f's_cmp_lg_u32 s{s_w}, 2\ns_cbranch_scc1 A_NOMP')
        p('s_load_dwordx2 s[72:73], s[0:1], 96\ns_load_dwordx2 s[76:77], s[0:1], 80')
        p(f's_lshl_b32 s{s_tmp}, s{s_g}, 5\ns_add_u32 s{s_tmp}, s{s_tmp}, s{s_m}')
        p(f's_lshl_b32 s{s_tmp2}, s{s_tmp}, 11\ns_mul_i32 s{s_tmp}, s{s_tmp}, 6144')
        p(f'v_lshlrev_b32 v{t0}, 7, v{vLane}')
        p(f'v_bfe_u32 v{t1}, v0, 3, 1\nv_mul_u32_u24 v{t1}, 3072, v{t1}\nv_and_b32 v{t2}, 7, v0\nv_lshl_add_u32 v{t1}, v{t2}, 7, v{t1}')
        p(f'v_bfe_u32 v{t2}, v0, 4, 1\nv_xor_b32 v{t2}, 1, v{t2}\nv_lshl_add_u32 v{t1}, v{t2}, 11, v{t1}')
        p('s_mov_b32 s74, 0x80000\ns_mov_b32 s75, 0x20000\ns_waitcnt lgkmcnt(0)')
        if 'o' in mp:
            p('s_mov_b64 exec, 0xffff')
            p(f'buffer_load_dword v88, v{t0}, s[72:75], s{s_tmp2} offen', tok='nocount')
        if 'v' in mp or 'q' in mp:
            p('s_mov_b32 s72, s76\ns_mov_b32 s73, s77\ns_mov_b32 s74, 0x180000')
            p('s_mov_b64 exec, ' + ('0xffff' if 'q' not in mp else '0x7fffffff'))
            if 'q' in mp: p('s_mov_b32 exec_lo, -1')
            p(f'buffer_load_dword v89, v{t1}, s[72:75], s{s_tmp} offen', tok='nocount')
        p('s_mov_b64 exec, -1')
        p('A_NOMP:')
    if opt.get('touch_early'):
        if opt.get('prioA0'): p(f's_setprio {opt.get("prioA1", 0)}')
        stamp('a')
        yield
        stamp('a')
    stamp('a')
    vD = 20
    p(f'v_bfe_u32 v{t0}, v0, 4, 2\nv_and_b32 v{t1}, 15, v0\nv_lshlrev_b32 v{t0}, 3, v{t0}\nv_sub_u32 v{vD}, v{t0}, v{t1}\nv_add_u32 v{vD}, 16, v{vD}')
    bands = [(11, 13), (6, 10), (3, 5), (6, 10), (5, 11), (4, 12), (4, 10)]
    p(f's_mov_b32 s{s_tmp}, 0x10001')
    for n, (lo, hi) in enumerate(bands):
        if n == 3: continue
        bits = ((1 << (hi-lo+1)) - 1) << (lo+16)
        dst = BAND + 4*n
        mul = 0x3f80 if n < 6 else 0xffff
        p(f's_mov_b32 s{s_msk}, {hex(bits)}\ns_mov_b32 s{s_msk+1}, 0')
        p(f'v_lshrrev_b64 v[{t1}:{t2}], v{vD}, s[{s_msk}:{s_msk+1}]')
        p(f'v_and_b32 v{t3}, 0xaa, v{t1}\nv_and_b32 v{t1}, 0x55, v{t1}\nv_lshl_or_b32 v{t1}, v{t3}, 15, v{t1}')
        for j in range(4):
            if j: p(f'v_lshrrev_b32 v{t3}, {2*j}, v{t1}\nv_and_b32 v{t3}, s{s_tmp}, v{t3}')
            else: p(f'v_and_b32 v{t3}, s{s_tmp}, v{t1}')
            p(f'v_mul_u32_u24 v{dst+j}, {hex(mul)}, v{t3}')
    BC = [BAND, BAND+4, BAND+8, BAND+4]; B7, B9 = BAND+16, BAND+20
    stamp('a')
    def prefetch(*a, **k): pass
    trA, wT2, rT2, gUT = 21, 22, 24, 25
    p(f'v_bfe_u32 v{t0}, v0, 2, 2\nv_bfe_u32 v{t1}, v0, 5, 1\nv_lshrrev_b32 v{t2}, 1, v{t0}\nv_xor_b32 v{t1}, v{t1}, v{t2}')
    p(f'v_lshlrev_b32 v{t0}, 7, v{t0}\nv_lshl_add_u32 v{t0}, v{t1}, 6, v{t0}')
    p(f'v_bfe_u32 v{t1}, v0, 4, 1\nv_lshl_add_u32 v{t0}, v{t1}, 5, v{t0}\nv_and_b32 v{t1}, 3, v0\nv_lshl_add_u32 v{t0}, v{t1}, 3, v{t0}')
    p(f's_lshl_b32 s{s_tmp}, s{s_w}, 11\ns_add_u32 s{s_tmp}, s{s_tmp}, {T1}')
    p(f'v_add_u32 v{trA}, s{s_tmp}, v{t0}')
    p(f's_lshl_b32 s{s_tmp}, s{s_w}, 1')
    p(f'v_and_b32 v{t0}, 7, v0\nv_xor_b32 v{t0}, s{s_tmp}, v{t0}\nv_lshlrev_b32 v{t0}, 4, v{t0}\nv_lshl_add_u32 v{t0}, v{vLane}, 7, v{t0}')
    p(f'v_add_u32 v{wT2}, {T2}, v{t0}\nv_xor_b32 v{t0}, 16, v{t0}\nv_add_u32 v{wT2+1}, {T2}, v{t0}')
    p(f'v_lshlrev_b32 v{rT2}, 4, v0\nv_add_u32 v{rT2}, {T1}, v{rT2}')
    vL16 = 27
    p(f'v_lshlrev_b32 v{vL16}, 4, v{vLane}')
    p(f'v_bfe_u32 v{t0}, v0, 3, 3\nv_and_b32 v{t1}, 7, v0\nv_xor_b32 v{t0}, v{t0}, v{t1}\nv_lshlrev_b32 v{t0}, 4, v{t0}')
    p(f'v_lshrrev_b32 v{t1}, 3, v0\nv_lshl_add_u32 v{gUT}, v{t1}, 11, v{t0}')
    s_ob = 71
    p(f's_lshl_b32 s{s_tmp}, s{s_m}, 17\ns_lshl_b32 s{s_tmp2}, s{s_g}, 7\ns_add_u32 s{s_ob}, s{s_tmp}, s{s_tmp2}\ns_add_u32 s{s_ob+1}, s{s_ob}, 65536')
    p(f's_mul_i32 s{s_ctb}, s{s_ch}, {CTS}\ns_add_u32 s{s_ctb}, s{s_ctb}, {CT}\ns_mul_i32 s{s_utb}, s{s_ch}, {UTS}\ns_add_u32 s{s_utb}, s{s_utb}, {UT0}')
    stamp('a')
    p.wait_tok('utile')
    stamp('a')
    p('s_barrier')
    stamp('a')
    stamp()
    prefetch(f's_cmp_eq_u32 s{s_w}, 0')
    UB = 96
    for rd in range(4): p(f'ds_read_b64_tr_b16 {vr(UB+2*rd,2)}, v{trA} offset:{512*rd}')
    p('s_waitcnt lgkmcnt(0)')
    p(f'ds_write_b128 v{wT2}, {vr(UB,4)}\nds_write_b128 v{wT2+1}, {vr(UB+4,4)}')
    p(f's_cmp_eq_u32 s{s_ch}, 0')
    p(f's_cselect_b32 s{s_tmp}, 16, 0')
    p(f's_lshl_b32 s{s_ldv}, s{s_ldv}, s{s_tmp}\ns_and_b32 s{s_ldv}, s{s_ldv}, 0xffff0000\ns_lshl_b32 s{s_dsv}, s{s_dsv}, s{s_tmp}\ns_and_b32 s{s_dsv}, s{s_dsv}, 0xffff0000')
    DT = 36
    p(f'v_mov_b32 v{t0}, s{s_ldv}\nv_mov_b32 v{t4}, {hex(LOG2E)}\nv_mul_f32 v{t1}, v{t4}, v{t0}')
    p(f'v_fma_f32 v{t2}, v{t0}, v{t4}, -v{t1}\nv_fmac_f32 v{t2}, 0x32a57060, v{t0}')
    p(f'v_exp_f32 v{t1}, v{t1}\nv_mul_f32 v{t2}, 0x3f317218, v{t2}\nv_fmac_f32 v{t1}, v{t1}, v{t2}')
    p(f'v_cvt_pk_bf16_f32 v{t1}, v{t1}, v{t1}\nv_and_b32 v{DT}, 0xffff0000, v{t1}')
    for i in range(6): p(f'v_lshlrev_b32 v{PAR+i}, 16, v{PAR+i}')
    for i in range(4): p(f'v_mul_f32 v{PAR+i}, v{PAR+i}, v{DT}')
    Xr = 40
    S = [40+2*i for i in range(8)]
    P1, P8, P128, Y, Y2, P16, TMP = 56, 58, 60, 62, 64, 66, 68
    p(f'v_mul_f32 v{S[0]}, v{PAR+4}, v{PAR+2}\nv_mul_f32 v{S[0]+1}, v{PAR+4}, v{PAR+3}')
    p(f'v_fma_f32 v{S[0]}, -v{PAR+5}, v{PAR+3}, v{S[0]}\nv_fmac_f32 v{S[0]+1}, v{PAR+5}, v{PAR+2}')
    p(f'v_mul_f32 v{PAR}, {hex(LOG2E)}, v{PAR}\nv_mul_f32 v{PAR+1}, 0.15915494, v{PAR+1}')
    for dst, L in ((P1, 1), (P8, 8), (P128, 128)):
        if L == 1: p(f'v_exp_f32 v{t0}, v{PAR}\nv_fract_f32 v{t1}, v{PAR+1}')
        else:
            import struct
            lf = hex(struct.unpack('<I', struct.pack('<f', float(L)))[0])
            p(f'v_mul_f32 v{t0}, {lf}, v{PAR}\nv_mul_f32 v{t1}, {lf}, v{PAR+1}\nv_exp_f32 v{t0}, v{t0}\nv_fract_f32 v{t1}, v{t1}')
        p(f'v_cos_f32 v{t2}, v{t1}\nv_sin_f32 v{t3}, v{t1}\nv_mul_f32 v{dst}, v{t0}, v{t2}\nv_mul_f32 v{dst+1}, v{t0}, v{t3}')
    vW = 26
    p(f's_mul_i32 s{s_tmp}, s{s_ch}, {KTCH}\ns_lshl_b32 s{s_tmp2}, s{s_nh}, 8\ns_add_u32 s{s_tmp}, s{s_tmp}, s{s_tmp2}')
    p(f'v_lshl_add_u32 v{vW}, v{vLane}, 2, s{s_tmp}')
    p('s_waitcnt lgkmcnt(0)\ns_barrier')
    p(f'ds_read_b128 {vr(UB,4)}, v{rT2} offset:{T2-T1}\nds_read_b128 {vr(UB+4,4)}, v{rT2} offset:{T2-T1+4096}')
    ZR = 92
    for j in range(4): p(f'v_mov_b32 v{ZR+j}, 0')
    p(f'ds_write_b128 v{rT2}, {vr(ZR,4)}\nds_write_b128 v{rT2}, {vr(ZR,4)} offset:4096')
    p(f'buffer_store_dwordx4 {vr(UB,4)}, v{gUT}, s[{sOUT}:{sOUT+3}], s{s_ob} offen' + (' sc1' if opt.get('ut_sc1') else ''))
    p(f'buffer_store_dwordx4 {vr(UB+4,4)}, v{gUT}, s[{sOUT}:{sOUT+3}], s{s_ob+1} offen' + (' sc1' if opt.get('ut_sc1') else ''))
    prefetch(f's_cmp_eq_u32 s{s_w}, 1', touch=True)
    stamp()
    EARLY = opt.get('earlyA', 0)
    def flag_block():
        p(f'v_readfirstlane_b32 s{s_E1}, v{vEp}')
        p(f's_add_u32 s{s_E1}, s{s_E1}, 1\ns_and_b32 s{s_tag}, s{s_E1}, 0xff')
        p(f's_cmp_lg_u32 s{s_w}, 0\ns_cbranch_scc1 A_NOFLAG')
        for j in range(4): p(f'v_mov_b32 v{12+j}, s{s_xcc if j == 1 else s_E1}')
        p(f's_lshl_b32 s{s_tmp}, s{s_g}, 5\ns_add_u32 s{s_tmp}, s{s_tmp}, s{s_m}\ns_lshl_b32 s{s_tmp}, s{s_tmp}, 7\ns_add_u32 s{s_tmp}, s{s_tmp}, {WS_FLAG}')
        p('s_mov_b64 exec, 0xff')
        p(f'buffer_store_dwordx4 v[12:15], v{vL16}, s[{sWS}:{sWS+3}], s{s_tmp} offen sc1')
        p('s_mov_b64 exec, -1')
        p('A_NOFLAG:')

    def poll_block():
        p(f'v_and_b32 v6, 31, v0\nv_lshlrev_b32 v6, 7, v6')
        p(f's_lshl_b32 s{s_tmp}, s{s_g}, 12\ns_add_u32 s{s_tmp}, s{s_tmp}, {WS_FLAG}\ns_mov_b32 s{s_sp}, 0')
        p(f's_lshl1_add_u32 s{s_tmp2}, s{s_m}, s{s_ch}\ns_lshl_b32 s{s_tmp2}, s{s_tmp2}, 11\ns_lshl_b32 s{s_tmp3}, s{s_g}, 7\ns_add_u32 s{s_so+2}, s{s_tmp2}, s{s_tmp3}')
        p(f's_lshl_b32 s{s_tmp2}, s{s_nh}, 21\ns_add_u32 s{s_tmp2}, s{s_tmp2}, s{s_so+2}\ns_add_u32 s{s_so+3}, s{s_tmp2}, 0x100000')
        p(f'v_lshrrev_b32 v10, 3, v{vLane}\nv_lshlrev_b32 v10, 17, v10\nv_and_b32 v11, 7, v0\nv_lshl_add_u32 v10, v11, 4, v10')
        p(f's_lshl_b32 s{s_tmp3}, s{s_nh}, 11\ns_add_u32 s{s_tmp3}, s{s_tmp3}, s{s_utb}\ns_add_u32 m0, s{s_tmp3}, {UPAD}')
        p('A_F_POLL:')
        p(f'buffer_load_dwordx2 v[8:9], v6, s[{sWS}:{sWS+3}], s{s_tmp} offen sc1')
        p(f's_add_u32 s{s_sp}, s{s_sp}, 1\ns_cmp_gt_u32 s{s_sp}, {SPIN_MAX}\ns_cbranch_scc1 A_F_GO')
        p(f'v_cmp_ne_u32 vcc, s{s_E1}, v8')
        p('s_cbranch_vccnz A_F_POLL')
        p('A_F_GO:')
        p(f'v_cmp_ne_u32 vcc, s{s_xcc}, v9')
        p(f's_or_b32 s{s_mode}, vcc_lo, vcc_hi')
        if opt.get('slowA'): p(f's_mov_b32 s{s_mode}, 1')
        if not opt.get('ut_sc1'):
            p(f's_cmp_lg_u32 s{s_mode}, 0\ns_cbranch_scc1 A_F_SLOW')
        p('A_F_DMA:')
        p(f'buffer_load_dwordx4 v10, s[{sOUT}:{sOUT+3}], s{s_tmp2} offen sc1 lds')
        p(f's_add_u32 m0, s{s_tmp3}, {UPAD+1024}')
        p(f'buffer_load_dwordx4 v10, s[{sOUT}:{sOUT+3}], s{s_so+3} offen sc1 lds')

    cv = [76, 77, 78, 79]; cvn = [0]
    def cmul(dst, a, b, conj=False):
        if PK:
            if dst == a:
                L = [f'v_pk_mul_f32 {vr(TMP,2)}, {vr(a,2)}, {vr(b,2)} op_sel:[0,0] op_sel_hi:[1,0]']; acc = TMP
            else:
                L = [f'v_pk_mul_f32 {vr(dst,2)}, {vr(a,2)}, {vr(b,2)} op_sel:[0,0] op_sel_hi:[1,0]']; acc = dst
            neg = 'neg_hi:[0,1,0]' if conj else 'neg_lo:[0,1,0]'
            L.append(f'v_pk_fma_f32 {vr(dst,2)}, {vr(a,2)}, {vr(b,2)}, {vr(acc,2)} op_sel:[1,1,0] op_sel_hi:[0,1,1] {neg}')
            return L
        T = TMP + 2*(cvn[0] & 1)
        s1, s2 = ('', '-') if conj else ('-', '')
        return [f'v_mul_f32 v{T}, v{a+1}, v{b+1}', f'v_mul_f32 v{T+1}, v{a}, v{b+1}',
                f'v_fma_f32 v{dst}, v{a}, v{b}, {s1}v{T}', f'v_fma_f32 v{dst+1}, v{a+1}, v{b}, {s2}v{T+1}']
    def put(reg, e):
        c = cv[cvn[0] & 3]; cvn[0] += 1
        return [f'v_cvt_pk_bf16_f32 v{c}, v{reg}, v{reg+1}', f'ds_write_b32 v{vW}, v{c} offset:{e*PITCH}']
    xs = []
    xs.append(put(S[0], 0))
    for o in range(1, 8): xs.append(cmul(S[o], S[o-1], P1) + put(S[o], o))
    for o in range(8): xs.append(cmul(S[o], S[o], P128) + put(S[o], 8+o))
    for k, o in enumerate((0, 2, 4, 6)): xs.append(cmul(S[o], S[o], P128) + put(S[o], 16+k))
    for k, o in enumerate((0, 2, 4, 6)): xs.append(cmul(S[o], S[o], P128) + put(S[o], 20+k))
    xs.append(cmul(S[0], S[0], P128) + put(S[0], 40))
    xs.append(cmul(S[4], S[4], P128) + put(S[4], 24))
    xs.append(cmul(S[0], S[0], P8) + put(S[0], 25))
    for i in range(1, 4):
        xs.append(cmul(S[4], S[4], P128) + put(S[4], 24+2*i))
        xs.append(cmul(S[0], S[0], P128) + put(S[0], 25+2*i))
    for i in range(8): xs.append(cmul(S[0], S[0], P128) + put(S[0], 32+i))
    ys = []
    ys.append([f'v_mov_b32 v{cv[0]}, 0x3f80', f'ds_write_b32 v{vW}, v{cv[0]} offset:{41*PITCH}'])
    ys.append([f'v_mov_b32 v{Y}, v{P8}', f'v_xor_b32 v{Y+1}, 0x80000000, v{P8+1}'] + put(Y, 42))
    for j in range(2, 16): ys.append(cmul(Y, Y, P8, conj=True) + put(Y, 41+j))
    def zipops(a, b):
        out = []
        for i in range(max(len(a), len(b))):
            if i < len(a): out.append(a[i])
            if i < len(b): out.append(b[i])
        return out
    yi = 0
    if not PK:
        def retmp(L, new): return [x.replace(f'v{TMP+3}', f'v{new+1}').replace(f'v{TMP+2}', f'v{new}').replace(f'v{TMP+1}', f'v{new+1}').replace(f'v{TMP}', f'v{new}') for x in L]
        ys = [retmp(y, 80) for y in ys]
    else:
        ys = [[x.replace(vr(TMP, 2), vr(80, 2)) for x in y] for y in ys]
    ys = [[x.replace(f'v{cv[0]}', 'v84').replace(f'v{cv[1]}', 'v85').replace(f'v{cv[2]}', 'v84').replace(f'v{cv[3]}', 'v85') for x in y] for y in ys]
    n = 0
    fl_at, po_at = opt.get('flag_at', 6), opt.get('poll_at', 27)
    while n < len(xs):
        if EARLY and n == fl_at:
            p('s_waitcnt vmcnt(0)\ns_barrier')
            flag_block()
        if EARLY and n == po_at: poll_block()
        if n < 8 or n >= len(xs) - 8:
            p.ext(zipops(xs[n], ys[yi])); yi += 1; n += 1
        elif n in (24,):
            p.ext(zipops(xs[n], xs[n+1])); n += 2
        elif n == 26:
            p.ext(xs[n]); n += 1
        else:
            p.ext(zipops(xs[n], xs[n+1])); n += 2
    assert yi == 16
    vR = 3
    p(f'v_and_b32 v{t1}, 15, v0\nv_mul_u32_u24 v{vR}, {PITCH}, v{t1}\nv_bfe_u32 v{t2}, v0, 4, 2\nv_lshl_add_u32 v{vR}, v{t2}, 4, v{vR}')
    p(f's_mul_i32 s{s_tmp}, s{s_ch}, {KTCH}\nv_add_u32 v{vR}, s{s_tmp}, v{vR}')
    p(('s_waitcnt lgkmcnt(0)' if EARLY else 's_waitcnt vmcnt(0) lgkmcnt(0)') + '\ns_barrier')
    stamp()
    if not EARLY: flag_block()
    FR = 44
    D0, D1 = 28, 32
    j_, q_ = t1, t2
    p(f's_cmp_lg_u32 s{s_nh}, 0\ns_cbranch_scc1 A_KG1')
    def rdk(dst, e0, ks): return f'ds_read_b128 {vr(dst,4)}, v{vR} offset:{e0*PITCH+64*ks}'
    for ks in range(4):
        p(rdk(FR+12*ks, 41, ks)); p(rdk(FR+12*ks+4, 16, ks)); p(rdk(FR+12*ks+8, 0, ks))
    aW0, aW1, aG4, vDs = 6, 7, 8, 9
    p(f'v_lshrrev_b32 v{aW0}, 1, v{q_}\nv_lshlrev_b32 v{aW0}, 5, v{aW0}\nv_and_b32 v{aW1}, 1, v{q_}\nv_add_u32 v{aW0}, v{aW0}, v{aW1}')
    p(f'v_lshl_add_u32 v{aW0}, v{j_}, 1, v{aW0}\nv_lshlrev_b32 v{aW0}, 3, v{aW0}')
    p(f's_add_u32 s{s_tmp}, s{s_ctb}, {KR0+1064}\nv_sub_u32 v{aW0}, s{s_tmp}, v{aW0}')
    p(f'v_lshlrev_b32 v{aW1}, 4, v{q_}\nv_add_u32 v{aW1}, v{aW1}, v{j_}\nv_lshlrev_b32 v{aW1}, 4, v{aW1}')
    p(f's_add_u32 s{s_tmp}, s{s_ctb}, {KR0+1056-512}\nv_sub_u32 v{aW1}, s{s_tmp}, v{aW1}')
    p(f'v_lshlrev_b32 v{aG4}, 5, v{q_}\nv_add_u32 v{aG4}, v{aG4}, v{j_}\nv_lshlrev_b32 v{aG4}, 2, v{aG4}')
    p(f's_add_u32 s{s_tmp}, s{s_ctb}, {G4B+128-256}\nv_add_u32 v{aG4}, s{s_tmp}, v{aG4}')
    p(f'v_mov_b32 v{vDs}, 0\nv_mov_b32 v10, s{s_dsv}\ns_mov_b64 s[{s_msk}:{s_msk+1}], 1\nv_cndmask_b32 v{vDs}, v{vDs}, v10, s[{s_msk}:{s_msk+1}]')
    for ks in range(8):
        b = FR + 12*(ks & 3)
        p(f'v_mfma_f32_16x16x32_bf16 {vr(D1,4)}, {vr(b+4,4)}, {vr(b,4)}, {"0" if ks==0 else vr(D1,4)}')
        p(f'v_mfma_f32_16x16x32_bf16 {vr(D0,4)}, {vr(b+8,4)}, {vr(b,4)}, {"0" if ks==0 else vr(D0,4)}')
        if ks < 4:
            p(rdk(b, 41, ks+4)); p(rdk(b+4, 16, ks+4)); p(rdk(b+8, 0, ks+4))
    cA, cB, cC, cD, cE, cF = 12, 13, 14, 15, 16, 17
    p(f'v_cvt_pk_bf16_f32 v{cA}, v{D1+2}, v{D1+2}')
    p(f'v_cvt_pk_bf16_f32 v{cB}, v{D1+1}, v{D1}')
    p(f'v_cvt_pk_bf16_f32 v{cC}, v{D1+2}, v{D1+1}')
    p(f'v_cvt_pk_bf16_f32 v{cD}, v{D1}, v{D1}')
    p(f'v_cvt_pk_bf16_f32 v{cE}, v{D1+3}, v{D1+2}')
    p(f'v_cvt_pk_bf16_f32 v{cF}, v{D1+3}, v{D1+3}')
    p('s_mov_b32 exec_hi, 0')
    p(f'ds_write_b16 v{aW1}, v{cE} offset:2\nds_write_b32 v{aW1}, v{cA} offset:4\nds_write_b64 v{aW1}, {vr(cC,2)} offset:8\nds_write_b16 v{aW1}, v{cD} offset:16')
    p(f'ds_write_b32 v{aW1}, v{cE} offset:{KR1+4}\nds_write_b64 v{aW1}, {vr(cA,2)} offset:{KR1+8}\nds_write_b32 v{aW1}, v{cD} offset:{KR1+16}')
    p('s_mov_b32 exec_lo, 0\ns_mov_b32 exec_hi, 0x80000000')
    p(f'v_mov_b32 v18, s{s_ctb}\nds_write_b32 v18, v{cF} offset:{F1K}\nv_mov_b32 v{D1+3}, 0')
    p('s_mov_b32 exec_hi, -1')
    p(f'v_cvt_pk_bf16_f32 v{cA}, v{D1}, v{D1+1}\nv_cvt_pk_bf16_f32 v{cB}, v{D1+2}, v{D1+3}')
    p(f'ds_write_b32 v{aG4}, v{cA}\nds_write_b32 v{aG4}, v{cB} offset:64')
    p('s_mov_b32 exec_lo, -1')
    p(f'v_add_f32 v{D0}, v{D0}, v{vDs}')
    p(f'v_cvt_pk_bf16_f32 v{cC}, v{D0+3}, v{D0+2}\nv_cvt_pk_bf16_f32 v{cD}, v{D0+1}, v{D0}\nv_cvt_pk_bf16_f32 v{cE}, v{D0+2}, v{D0+1}')
    p(f'ds_write_b64 v{aW0}, {vr(cC,2)}')
    p(f'ds_write_b16 v{aW0}, v{cC} offset:{KR1+2}\nds_write_b32 v{aW0}, v{cE} offset:{KR1+4}\nds_write_b16_d16_hi v{aW0}, v{cD} offset:{KR1+8}')
    p('s_branch A_KG2')
    p.assume_clean()
    p('A_KG1:')
    for ks in range(8):
        if ks < 6: p(rdk(FR+8*ks, 41, ks)); p(rdk(FR+8*ks+4, 32, ks))
    p(f'v_lshlrev_b32 v6, 4, v{vLane}\nv_mov_b32 v7, {UPAD+4096}\ns_mov_b32 s{s_msk}, 0\ns_mov_b32 s{s_msk+1}, 2')
    p(f'v_cndmask_b32 v6, v6, v7, s[{s_msk}:{s_msk+1}]\nv_add_u32 v6, s{s_utb}, v6')
    p('s_mov_b32 exec_hi, 3')
    p(f'ds_write_b128 v6, {vr(ZR,4)}')
    p('s_mov_b32 exec_hi, -1')
    p(f'v_lshlrev_b32 v8, 2, v{j_}\nv_add_u32 v8, v8, v{q_}\nv_lshlrev_b32 v8, 3, v8\ns_add_u32 s{s_tmp}, s{s_ctb}, {G8B+64}\nv_add_u32 v8, s{s_tmp}, v8')
    for ks in range(8):
        b = FR + 8*(ks % 6)
        p(f'v_mfma_f32_16x16x32_bf16 {vr(D0,4)}, {vr(b,4)}, {vr(b+4,4)}, {"0" if ks==0 else vr(D0,4)}')
        if ks < 2: p(rdk(b, 41, ks+6)); p(rdk(b+4, 32, ks+6))
    p(f'v_mov_b32 v18, s{s_ctb}')
    p(f'v_cvt_pk_bf16_f32 v{cA}, v{D0}, v{D0+1}\nv_cvt_pk_bf16_f32 v{cB}, v{D0+2}, v{D0+3}\nv_cvt_pk_bf16_f32 v{cC}, v{D0}, v{D0}\nv_cvt_pk_bf16_f32 v{cD}, v{D0}, v{D0}')
    p('s_mov_b32 exec_lo, 0x00ff00ff\ns_mov_b32 exec_hi, 0x00ff00ff')
    p(f'ds_write_b64 v8, {vr(cA,2)}')
    p('s_mov_b64 exec, 0x100')
    p(f'ds_write_b16 v18, v{cC} offset:{KR0+42}\nds_write_b32 v18, v{cC} offset:{KR0+44}\nds_write_b16 v18, v{cC} offset:{KR0+48}')
    p(f'ds_write_b32 v18, v{cC} offset:{KR1+44}\nds_write_b32 v18, v{cC} offset:{KR1+48}')
    p('s_mov_b64 exec, -1')
    p('A_KG2:')
    if opt.get('prioA0'): p(f's_setprio {opt.get("prioA2", 0)}')
    p('s_waitcnt lgkmcnt(0)')
    p.assume_clean()
    stamp()
    if not EARLY: poll_block()
    vU, vK0, vK1, vG4, vG8 = 3, 6, 7, 8, 9
    p(f'v_lshlrev_b32 v{vU}, 1, v{j_}\nv_add_u32 v{vU}, v{vU}, v{q_}\nv_lshlrev_b32 v{vU}, 4, v{vU}\nv_add_u32 v{vU}, s{s_utb}, v{vU}')
    p(f'v_lshlrev_b32 v10, 3, v{q_}\nv_sub_u32 v10, v10, v{j_}\nv_lshlrev_b32 v10, 1, v10')
    p(f'v_and_b32 v11, 1, v0\nv_mul_u32_u24 v11, {KR1+2}, v11\nv_sub_u32 v10, v10, v11')
    p(f's_add_u32 s{s_tmp}, s{s_ctb}, {KR1+1056-512}\nv_add_u32 v{vK0}, s{s_tmp}, v10\nv_subrev_u32 v{vK1}, 512, v{vK0}')
    p(f'v_lshlrev_b32 v10, 2, v{q_}\nv_sub_u32 v10, v{j_}, v10')
    p(f's_add_u32 s{s_tmp}, s{s_ctb}, {G4B+8}\nv_lshl_add_u32 v{vG4}, v10, 3, s{s_tmp}\nv_add_u32 v{vG4}, 96, v{vG4}')
    p(f's_add_u32 s{s_tmp}, s{s_ctb}, {G8B+4}\nv_lshl_add_u32 v{vG8}, v10, 2, s{s_tmp}\nv_add_u32 v{vG8}, 48, v{vG8}')
    vY = 26
    p(f'v_and_b32 v10, 1, v{q_}\nv_lshrrev_b32 v11, 2, v{j_}\nv_lshl_add_u32 v10, v10, 2, v11\nv_lshlrev_b32 v{vY}, 17, v10')
    p(f'v_lshrrev_b32 v10, 1, v{q_}\nv_and_b32 v11, 3, v0\nv_lshl_add_u32 v10, v10, 2, v11\nv_lshl_add_u32 v{vY}, v10, 4, v{vY}')
    xw, xr = 23, 24
    p(f's_lshl_b32 s{s_tmp}, s{s_w}, 12\ns_xor_b32 s{s_tmp2}, s{s_tmp}, 4096')
    p(f'v_add_u32 v{xw}, s{s_tmp}, v{vL16}\nv_add_u32 v{xr}, s{s_tmp2}, v{vL16}')
    p('s_waitcnt vmcnt(0)\ns_barrier')
    stamp()
    ACC = 28
    KF = 60
    UF = 128
    def acc(t): return vr(ACC+4*t, 4)
    def rdK(s):
        a, o = (vK0, 16*(8-s)) if s <= 8 else (vK1, 16*(16-s))
        return [f'ds_read2_b32 {vr(KF+4*s,2)}, v{a} offset0:{o} offset1:{o+1}', f'ds_read2_b32 {vr(KF+4*s+2,2)}, v{a} offset0:{o+2} offset1:{o+3}']
    def rdU(n, slot): return f'ds_read_b128 {vr(UF+4*slot,4)}, v{vU} offset:{64*n+512}'
    started = set()
    def mf(t, A, B):
        c = acc(t) if t in started else '0'
        started.add(t)
        return f'v_mfma_f32_16x16x32_bf16 {acc(t)}, {vr(A,4)}, {vr(B,4)}, {c}'
    stn = [0]
    def two_mode(instrs):
        k = stn[0]; stn[0] += 1
        L = [f's_cmp_eq_u32 s{s_mode}, 0', f's_cbranch_scc0 A_SM{k}a'] + instrs + [f's_branch A_SM{k}b', f'A_SM{k}a:'] + [x + ' sc1' for x in instrs] + [f'A_SM{k}b:']
        return L
    YP = 12
    def ypack(t, r):
        L = [f'v_cvt_pk_bf16_f32 v{r}, v{ACC+4*t}, v{ACC+4*t+1}', f'v_cvt_pk_bf16_f32 v{r+1}, v{ACC+4*t+2}, v{ACC+4*t+3}',
             f'v_cvt_pk_bf16_f32 v{r+2}, v{ACC+4*t+4}, v{ACC+4*t+5}', f'v_cvt_pk_bf16_f32 v{r+3}, v{ACC+4*t+6}, v{ACC+4*t+7}',
             f's_add_u32 s{s_so+(t>>1&1)}, s{s_so+2}, {t << 19}',
             f'v_permlane16_swap_b32 v{r}, v{r+2}', f'v_permlane16_swap_b32 v{r+1}, v{r+3}']
        return L
    def yst(t, r): return f'buffer_store_dwordx4 {vr(r,4)}, v{vY}, s[{sOUT}:{sOUT+3}], s{s_so+(t>>1&1)} offen'
    p(f's_cmp_lg_u32 s{s_nh}, 0\ns_cbranch_scc1 A_CONV_P')
    PREU = 5
    FX = 160
    p(f'v_mov_b32 v18, s{s_ctb}\nds_read_b32 v{FX+4}, v18 offset:{F1K}')
    order = [-8] + list(range(0, 57))
    korder = list(range(16, -1, -1))
    pro = []
    kq = list(korder)
    p(rdU(order[0], 0))
    p.ext(rdK(kq.pop(0)))
    for i in range(1, PREU):
        p(rdU(order[i], i)); p.ext(rdK(kq.pop(0)))
    for j in range(4): p(f'v_and_b32 v{FX+j}, v{FIXM+j}, v{FX+4}')
    for i, n in enumerate(order):
        sl = UF + 4*(i % 8)
        ms = []
        if n >= 0:
            for t in range(2, 8):
                s = 8*t - n
                if 0 <= s <= 16: ms.append(mf(t, KF+4*s, sl))
        if n % 8 == 0 and -8 <= n <= 24: ms.append(mf((n+32)//8, FX, sl))
        nxt = []
        if i + PREU < len(order): nxt.append(rdU(order[i+PREU], (i+PREU) % 8))
        if kq: nxt += rdK(kq.pop(0))
        p(ms[0]); p.ext(nxt); p.ext(ms[1:])
    for k, t in enumerate((2, 3)): p(f'ds_write_b128 v{xw}, {acc(t)} offset:{XCH+1024*k}')
    p('s_waitcnt lgkmcnt(0)\ns_barrier')
    for k in range(4): p(f'ds_read_b128 {vr(UF+4*k,4)}, v{xr} offset:{XCH+1024*k}')
    for k, t in enumerate((4, 5, 6, 7)):
        for j in range(4): p(f'v_add_f32 v{ACC+4*t+j}, v{ACC+4*t+j}, v{UF+4*k+j}')
        if k & 1: p.ext(ypack(t-1, YP+2*(k-1)))
    p.ext(two_mode([yst(4, YP), yst(6, YP+4)]))
    p('s_branch A_CONV_END')
    p.assume_clean()
    started.clear()
    p('A_CONV_P:')
    G4F = 160
    G8F = 184
    WD = 200
    WFR = 252
    order = list(range(-8, 9))
    kneed = []
    for n in order:
        for s in ([8-n] + ([-n] if n <= 0 else [])):
            if s not in kneed: kneed.append(s)
    kq = list(kneed)
    extra = []
    for d in range(3):
        for i in range(4): extra.append(f'ds_read_b64 {vr(G4F+8*d+2*i,2)}, v{vG4} offset:{128*d+8*(3-i)}')
    for d in range(4):
        extra.append(f'ds_read2_b32 {vr(G8F+4*d,2)}, v{vG8} offset0:{16*d+3} offset1:{16*d+2}')
        extra.append(f'ds_read2_b32 {vr(G8F+4*d+2,2)}, v{vG8} offset0:{16*d+1} offset1:{16*d}')
    PP = 3
    for i in range(PP):
        p(rdU(order[i], i)); p.ext(rdK(kq.pop(0))); p.ext(rdK(kq.pop(0)))
    for i, n in enumerate(order):
        sl = UF + 4*(i % 8)
        ms = [mf(1, KF+4*(8-n), sl)]
        if n <= 0: ms.append(mf(0, KF+4*(-n), sl))
        nxt = []
        if i + PP < len(order): nxt.append(rdU(order[i+PP], (i+PP) % 8))
        for _ in range(2):
            if kq: nxt += rdK(kq.pop(0))
        if not kq:
            for _ in range(3):
                if extra: nxt.append(extra.pop(0))
        p(ms[0]); p.ext(nxt); p.ext(ms[1:])
    p.ext(extra)
    FA = [UF, UF+8, UF+16]; FB = [UF+4, UF+12, UF+20]
    def rdF(be): return [f'ds_read_b128 {vr(FA[be%3],4)}, v{vU} offset:{512*be+496}', f'ds_read_b128 {vr(FB[be%3],4)}, v{vU} offset:{512*be+480}']
    def win(be):
        fa, fb = FA[be % 3], FB[be % 3]
        L = [f'v_mfma_f32_16x16x32_bf16 {vr(WD+4*c,4)}, {vr(fa if c<3 else fb,4)}, {vr(BC[c],4)}, 0' for c in range(4)]
        if be < 4:
            L += [f'v_mfma_f32_16x16x32_bf16 {vr(WD+16,4)}, {vr(fa,4)}, {vr(B7,4)}, 0', f'v_mfma_f32_16x16x32_bf16 {vr(WD+20,4)}, {vr(fb,4)}, {vr(B9,4)}, 0']
        return L
    def wfr(be): return KF + 12*(be & 1)
    def cvts(be):
        w = wfr(be); L = []
        for i in range(4):
            L.append(f'v_cvt_pk_bf16_f32 v{w+2*i}, v{WD+i}, v{WD+4+i}')
            L.append(f'v_cvt_pk_bf16_f32 v{w+2*i+1}, v{WD+8+i}, v{WD+12+i}')
        if be < 4:
            for i in range(4): L.append(f'v_cvt_pk_bf16_f32 v{w+8+i}, v{WD+16+i}, v{WD+20+i}')
        return L
    def cons(be):
        w = wfr(be); L = []
        for d in range(3):
            if be + d <= 5:
                L.append(mf(2+be+d, w, G4F+8*d)); L.append(mf(2+be+d, w+4, G4F+8*d+4))
        if be < 4:
            for d in range(4):
                if be + d <= 3: L.append(mf(4+be+d, w+8, G8F+4*d))
        return L
    p.ext(rdF(0)); p.ext(rdF(1))
    p.ext(win(0)); p.ext(rdF(2))
    p.ext(cvts(0))
    for be in range(6):
        if be < 5:
            p.ext(win(be+1))
            if be + 3 <= 5: p.ext(rdF(be+3))
            c = cons(be); cv_ = cvts(be+1)
            k = min(3, len(c))
            p.ext(c[:k])
            if be == 0: p.ext(ypack(0, YP))
            p.ext(interleave(c[k:], cv_) if len(c) > k else cv_)
        else: p.ext(cons(be))
    for k, t in enumerate((4, 5, 6, 7)): p(f'ds_write_b128 v{xw}, {acc(t)} offset:{XCH+1024*k}')
    p('s_waitcnt lgkmcnt(0)\ns_barrier')
    for k in range(2): p(f'ds_read_b128 {vr(UF+4*k,4)}, v{xr} offset:{XCH+1024*k}')
    for k, t in enumerate((2, 3)):
        for j in range(4): p(f'v_add_f32 v{ACC+4*t+j}, v{ACC+4*t+j}, v{UF+4*k+j}')
    p.ext(ypack(2, YP+4))
    p.ext(two_mode([yst(0, YP), yst(2, YP+4)]))
    p('A_CONV_END:')
    p.assume_clean()
    stamp()
    F1, F2 = 16384, 16384 + 8192
    FV = 28
    for j in range(4): p(f'v_mov_b32 v{FV+j}, s{s_E1}')
    p(f's_lshl_b32 s{s_tmp}, s{s_g}, 5\ns_add_u32 s{s_tmp}, s{s_tmp}, s{s_m}\ns_lshl2_add_u32 s{s_tmp}, s{s_tmp}, s{s_w}\ns_lshl_b32 s{s_tmp}, s{s_tmp}, 7\ns_add_u32 s{s_tmp}, s{s_tmp}, {WS_YF}')
    p(f'v_and_b32 v3, 7, v0\nv_bfe_u32 v4, v0, 3, 1\nv_lshl_add_u32 v3, v4, 5, v3\nv_lshlrev_b32 v3, 8, v3')
    p(f's_cmp_lt_u32 s{s_m}, 16\ns_cselect_b32 s{s_tmp2}, 128, 0\ns_lshl_b32 s{s_tmp3}, s{s_g}, 3\ns_add_u32 s{s_tmp3}, s{s_tmp3}, s{s_w}\ns_lshl_b32 s{s_tmp3}, s{s_tmp3}, 11\ns_add_u32 s{s_tmp2}, s{s_tmp2}, s{s_tmp3}\ns_add_u32 s{s_so}, s{s_tmp2}, {WS_YF}')
    p(f'v_bfe_u32 v4, v0, 4, 1\nv_lshlrev_b32 v4, 2, v4\nv_and_b32 v5, 7, v0\nv_xor_b32 v4, v4, v5\nv_lshlrev_b32 v4, 4, v4\nv_lshrrev_b32 v5, 3, v0\nv_lshl_add_u32 v4, v5, 11, v4')
    p(f's_lshl_b32 s{s_tmp2}, s{s_w}, 10\ns_add_u32 m0, s{s_tmp2}, {F1}')
    p('s_waitcnt vmcnt(0)')
    p('s_mov_b64 exec, 0xff')
    p.ext(two_mode([f'buffer_store_dwordx4 {vr(FV,4)}, v{vL16}, s[{sWS}:{sWS+3}], s{s_tmp} offen']))
    p('s_mov_b64 exec, -1')
    p(f'v_subrev_u32 v{trA}, {T1-F1}, v{trA}')
    p(f'v_bfe_u32 v6, v0, 3, 2\nv_lshlrev_b32 v6, 4, v6\nv_bfe_u32 v7, v0, 5, 1\nv_lshl_add_u32 v6, v7, 3, v6\nv_and_b32 v7, 7, v0\nv_add_u32 v6, v6, v7')
    p(f's_lshl_b32 s{s_tmp}, s{s_w}, 1\nv_xor_b32 v7, s{s_tmp}, v7\nv_lshlrev_b32 v7, 4, v7\nv_lshl_add_u32 v6, v6, 7, v7\nv_add_u32 v6, {F2}, v6\nv_xor_b32 v7, 16, v6')
    p(f'v_lshlrev_b32 v9, 4, v0')
    p(f's_mov_b32 s{s_sp}, 0')
    p('A_Y_POLL:')
    p(f'buffer_load_dword v18, v3, s[{sWS}:{sWS+3}], s{s_so} offen sc1')
    p(f's_add_u32 s{s_sp}, s{s_sp}, 1\ns_cmp_gt_u32 s{s_sp}, {SPIN_MAX}\ns_cbranch_scc1 A_Y_LOAD')
    p(f'v_cmp_ne_u32 vcc, s{s_E1}, v18')
    p('s_cbranch_vccz A_Y_LOAD\ns_sleep 2\ns_branch A_Y_POLL')
    p('A_Y_LOAD:')
    p(f'buffer_load_dwordx4 v4, s[{sOUT}:{sOUT+3}], s{s_ob} offen sc1 lds')
    p(f's_add_u32 m0, s{s_tmp2}, {F1+4096}')
    p(f'buffer_load_dwordx4 v4, s[{sOUT}:{sOUT+3}], s{s_ob+1} offen sc1 lds')
    p('s_waitcnt vmcnt(0)\ns_barrier')
    stamp()
    for rd in range(4): p(f'ds_read_b64_tr_b16 {vr(UB+2*rd,2)}, v{trA} offset:{512*rd}')
    p(f'ds_write_b128 v6, {vr(UB,4)}\nds_write_b128 v7, {vr(UB+4,4)}')
    p('s_waitcnt lgkmcnt(0)\ns_barrier')
    p(f'ds_read_b128 v[52:55], v9 offset:{F2}\nds_read_b128 v[56:59], v9 offset:{F2+4096}')
    p('s_waitcnt lgkmcnt(0)')
    fin = [f'buffer_store_dwordx4 v[52:55], v{gUT}, s[{sOUT}:{sOUT+3}], s{s_ob} offen', f'buffer_store_dwordx4 v[56:59], v{gUT}, s[{sOUT}:{sOUT+3}], s{s_ob+1} offen']
    if opt.get('outflagA'): p.ext([x + ' ' + opt['outflagA'] for x in fin])
    else: p.ext(two_mode(fin))
    p(f's_or_b32 s{s_tmp}, s{s_m}, s{s_w}\ns_cmp_lg_u32 s{s_tmp}, 0\ns_cbranch_scc1 A_END')
    p(f'v_mov_b32 v10, s{s_E1}\nv_mov_b32 v11, 0\ns_lshl_b32 s{s_tmp}, s{s_g}, 8\ns_mov_b64 exec, 1')
    p(f'buffer_store_dword v10, v11, s[{sWS}:{sWS+3}], s{s_tmp} offen offset:{WS_EA} sc1')
    p('A_END:')
    if opt.get('stamps'):
        p('s_mov_b64 exec, -1')
        p('s_waitcnt vmcnt(0)')
        p('s_memtime s[100:101]\ns_memrealtime s[76:77]\ns_waitcnt lgkmcnt(0)')
        for k in range(11): p(f'v_mov_b32 v{16+k}, s{80+2*k}')
        p('v_mov_b32 v27, s78\nv_mov_b32 v28, s76\n' + f'v_mov_b32 v29, s{s_sp}')
        p(f's_lshl_b32 s{s_tmp}, s2, 8\ns_lshl_b32 s{s_tmp2}, s{s_w}, 6\ns_add_u32 s{s_tmp}, s{s_tmp}, s{s_tmp2}\ns_add_u32 s{s_tmp}, s{s_tmp}, {WS_STAMP}')
        p('v_mov_b32 v0, 0\ns_mov_b64 exec, 1')
        for k in range(4): p(f'buffer_store_dwordx4 v[{16+4*k}:{19+4*k}], v0, s[{sWS}:{sWS+3}], s{s_tmp} offen offset:{16*k}')
    p('s_endpgm')
    p.assume_clean()
    if not opt.get('ut_sc1'):
        p('A_F_SLOW:')
        p(f'buffer_store_dwordx4 {vr(UB,4)}, v{gUT}, s[{sOUT}:{sOUT+3}], s{s_ob} offen sc1')
        p(f'buffer_store_dwordx4 {vr(UB+4,4)}, v{gUT}, s[{sOUT}:{sOUT+3}], s{s_ob+1} offen sc1')
        for j in range(4): p(f'v_mov_b32 v{12+j}, s{s_E1}')
        p(f's_lshl_b32 s73, s{s_g}, 5\ns_add_u32 s73, s73, s{s_m}\ns_lshl2_add_u32 s73, s73, s{s_w}\ns_lshl_b32 s73, s73, 7\ns_add_u32 s73, s73, {WS_FLAG2}')
        p('s_waitcnt vmcnt(0)\ns_mov_b64 exec, 0xff')
        p(f'buffer_store_dwordx4 v[12:15], v{vL16}, s[{sWS}:{sWS+3}], s73 offen sc1')
        p('s_mov_b64 exec, -1')
        p(f's_lshl_b32 s73, s{s_g}, 14\ns_add_u32 s73, s73, {WS_FLAG2}\ns_add_u32 s74, s73, 8192\nv_lshlrev_b32 v16, 3, v{vL16}')
        p('A_F_POLL2:')
        p(f'buffer_load_dword v12, v16, s[{sWS}:{sWS+3}], s73 offen sc1')
        p(f'buffer_load_dword v13, v16, s[{sWS}:{sWS+3}], s74 offen sc1')
        p(f's_add_u32 s{s_sp}, s{s_sp}, 1\ns_cmp_gt_u32 s{s_sp}, {SPIN_MAX}\ns_cbranch_scc1 A_F_DMA')
        p(f'v_xor_b32 v12, s{s_E1}, v12\nv_xor_b32 v13, s{s_E1}, v13\nv_or_b32 v12, v12, v13\nv_cmp_ne_u32 vcc, 0, v12')
        p('s_cbranch_vccz A_F_DMA\ns_sleep 2\ns_branch A_F_POLL2')
        p.assume_clean()
```

```python
from asmdsl import Prog, interleave, slotted
from common import *

RA, RB, ST = 0, 32768, 65536
KT = ST
ZERO = ST + 3200

def vr(a, n): return f'v[{a}:{a+n-1}]'
def L_(txt): return [x for x in txt.split('\n') if x.strip()]

def genB(p, opt):
    stamp_n = [0]
    def stamp(kind='main'):
        if kind != opt.get('stampset', 'main') and not (kind == 'main' and stamp_n[0] == 0): return
        if opt.get('amp') and stamp_n[0] == opt.get('amp_at', -1): p('s_memrealtime s[76:77]\ns_waitcnt lgkmcnt(0)\ns_mov_b32 s99, s76')
        if opt.get('amp'): stamp_n[0] += 1
        if opt.get('stamps'):
            k = stamp_n[0]; stamp_n[0] += 1
            p(f's_memtime s[{80+2*k}:{81+2*k}]') if k < 10 else None
    cap = [opt.get('vmcap', 0)]
    def ext2(L):
        for x in L:
            if isinstance(x, tuple) and x[0] == 'dma':
                p(x[1])
                if cap[0]: p(f's_waitcnt vmcnt({cap[0]})')
                p(x[2], tok=x[3])
            else: p.ext([x])
    sX, sW, sP, sO, sOUT, sWS = 8, 12, 16, 20, 24, 28
    s_rb, s_hp, s_w, s_loc, s_xcd = 32, 33, 34, 35, 36
    s_m0b, s_st = 37, 38
    s_p1 = 39
    s_xo = 40
    s_wo = 48
    s_t = 56
    s_E1 = 60
    s_tmp, s_tmp2, s_tmp3 = 61, 62, 63
    s_c = 64
    s_p2 = 65
    s_msk = 66
    s_sp, s_rdy = 68, 69
    s_so = 70
    s_rt, s_ct, s_oo = 74, 75, 76
    s_F, s_H = 4, 5
    ACC0, ACC1, P, WF, PA, E, X = 16, 32, 48, 64, 88, 96, 128
    NSL = 6
    vA1, vA2 = 8, 12
    vTR, vTRv, vWg, vL16, vEp = 1, 2, 3, 4, 5
    vT0, vT1 = 6, 7
    a0, b0, pa, va, sa, vMask, hA, hZ = PA, PA+1, PA+2, PA+3, PA+4, PA+5, PA+6, PA+7
    vXg = E; vSR = E + 4
    t0, t1, t2, t3, t4, t5 = E + 8, E + 9, E + 10, E + 11, E + 12, E + 13
    LD = opt.get('ldflag', '')

    p('B_ROLE:')
    p(f's_load_dwordx4 s[{sX}:{sX+3}], s[0:1], 72')
    p(f's_load_dwordx2 s[{sP}:{sP+1}], s[0:1], 88')
    p(f's_load_dwordx2 s[{sO}:{sO+1}], s[0:1], 96')
    p(f's_load_dwordx2 s[{sOUT}:{sOUT+1}], s[0:1], 104')
    p(f's_load_dwordx2 s[{sWS}:{sWS+1}], s[0:1], 120')
    if opt.get('stamps') or opt.get('amp'): p('s_memrealtime s[78:79]')
    stamp()
    if opt.get('prioB0'): p(f's_setprio {opt["prioB0"]}')
    p(f'v_lshrrev_b32 v{t0}, 6, v0')
    p(f's_and_b32 s{s_xcd}, s2, 7\ns_lshr_b32 s{s_loc}, s2, 3')
    p(f'v_readfirstlane_b32 s{s_w}, v{t0}')
    if opt.get('map', '4x8') == '8x4':
        p(f's_and_b32 s{s_tmp}, s{s_xcd}, 1\ns_lshl_b32 s{s_tmp}, s{s_tmp}, 3\ns_and_b32 s{s_tmp2}, s{s_loc}, 7\ns_add_u32 s{s_rb}, s{s_tmp}, s{s_tmp2}')
        p(f's_lshr_b32 s{s_tmp}, s{s_xcd}, 1\ns_lshl_b32 s{s_tmp}, s{s_tmp}, 2\ns_lshr_b32 s{s_tmp3}, s{s_loc}, 3\ns_add_u32 s{s_hp}, s{s_tmp}, s{s_tmp3}')
        p(f's_lshl_b32 s{s_tmp3}, s{s_tmp3}, 1\ns_add_u32 s{s_tmp}, s{s_tmp2}, s{s_tmp3}\ns_and_b32 s{s_tmp}, s{s_tmp}, 7')
    else:
        p(f's_and_b32 s{s_tmp}, s{s_xcd}, 3\ns_and_b32 s{s_tmp2}, s{s_loc}, 3\ns_lshl2_add_u32 s{s_rb}, s{s_tmp}, s{s_tmp2}')
        p(f's_lshr_b32 s{s_tmp}, s{s_xcd}, 2\ns_lshr_b32 s{s_tmp3}, s{s_loc}, 2\ns_lshl3_add_u32 s{s_hp}, s{s_tmp}, s{s_tmp3}')
        p(f's_lshl1_add_u32 s{s_tmp}, s{s_tmp2}, s{s_tmp3}\ns_and_b32 s{s_tmp}, s{s_tmp}, 7')
    p(f's_lshl_b32 s{s_xo}, s{s_tmp}, 7\ns_mul_i32 s{s_wo}, s{s_xo}, 1536')
    p(f'v_bfe_u32 v{t1}, v0, 3, 3\nv_lshl_add_u32 v{t1}, v{t0}, 5, v{t1}')
    p(f'v_and_b32 v{t2}, 7, v0\nv_bfe_u32 v{t3}, v0, 4, 2\nv_xor_b32 v{t2}, v{t2}, v{t3}\nv_lshlrev_b32 v{t2}, 4, v{t2}')
    p(f's_lshl_b32 s{s_tmp}, s{s_rb}, 17')
    p(f'v_lshl_add_u32 v{t1}, v{t1}, 10, v{t2}\nv_add_u32 v{vXg}, s{s_tmp}, v{t1}')
    p(f'v_xor_b32 v{vXg+1}, 64, v{vXg}\nv_add_u32 v{vXg+2}, 16384, v{vXg}\nv_add_u32 v{vXg+1}, 8192, v{vXg+1}\nv_add_u32 v{vXg+3}, 16384, v{vXg+1}')
    p(f'v_lshrrev_b32 v{t1}, 2, v0\nv_mul_u32_u24 v{t1}, 3072, v{t1}\nv_and_b32 v{t2}, 3, v0\nv_lshl_add_u32 v{t1}, v{t2}, 4, v{t1}')
    p(f's_lshl_b32 s{s_tmp}, s{s_hp}, 6\ns_add_u32 s{s_tmp}, s{s_tmp}, 1024')
    p(f'v_add_u32 v{vWg}, s{s_tmp}, v{t1}')
    p(f's_lshl_b32 s{s_m0b}, s{s_w}, 10\ns_lshl_b32 s{s_st}, s{s_w}, 12')
    p(f's_mov_b32 s{sW+2}, 0x180000\ns_mov_b32 s{sW+3}, 0x20000')
    p('s_waitcnt lgkmcnt(0)')
    p(f's_mov_b32 s{sW}, s{sX+2}\ns_mov_b32 s{sW+1}, s{sX+3}\ns_mov_b32 s{sX+2}, 0x200000\ns_mov_b32 s{sX+3}, 0x20000')
    def xslot(c): return RB + 16384*((c+1) % 3)
    def issue_k(c):
        L = []
        for i in range(4):
            L.append(('dma', f's_add_u32 m0, s{s_st}, {xslot(c)+1024*i}', f'buffer_load_dwordx4 v{vXg+i}, s[{sX}:{sX+3}], s{s_xo+c} offen {opt.get("ldflagx", LD)} lds', None))
        L.append(('dma', f's_add_u32 m0, s{s_m0b}, {RA+4096*c}', f'buffer_load_dwordx4 v{vWg}, s[{sW}:{sW+3}], s{s_wo+c} offen {LD} lds', f'wk{c}'))
        return L
    def issue_v(c):
        return [('dma', f's_add_u32 m0, s{s_st}, {RB+16384*(c>>2)+1024*(c&3)-1024}', f'buffer_load_dwordx4 v{vWg}, s[{sW}:{sW+3}], s{s_wo+c} offen offset:1024 {LD} lds', f'wv{c}')]
    def nextoff(c): p(f's_add_u32 s{s_xo+c}, s{s_xo+c-1}, 128\ns_and_b32 s{s_xo+c}, s{s_xo+c}, 1023\ns_mul_i32 s{s_wo+c}, s{s_xo+c}, 1536')
    ext2(issue_k(0))
    p(f'v_and_b32 v{vL16}, 63, v0\nv_lshlrev_b32 v{vL16}, 4, v{vL16}\nv_mov_b32 v{vEp}, 0')
    for s, n in ((sP, 0x4000), (sWS, 0x10000000 - WS_BASE)): p(f's_mov_b32 s{s+2}, {hex(n)}\ns_mov_b32 s{s+3}, 0x20000')
    if WS_BASE: p(f's_add_u32 s{sWS}, s{sWS}, {hex(WS_BASE)}\ns_addc_u32 s{sWS+1}, s{sWS+1}, 0')
    p(f's_lshl_b32 s{s_tmp2}, s{s_hp}, 10\ns_add_u32 m0, s{s_m0b}, {RA+28672}')
    nextoff(1)
    p(f'buffer_load_dwordx4 v{vL16}, s[{sP}:{sP+3}], s{s_tmp2} offen lds', tok='wphi')
    p(f'buffer_load_dword v{vEp}, v{vEp}, s[{sWS}:{sWS+3}], 0 offen offset:{WS_EB} sc1')
    for c in range(2, 8): nextoff(c)
    if not opt.get('late12', 0): ext2(issue_k(1)); ext2(issue_k(2))
    for s, n in ((sO, 0x80000), (sOUT, 0x400000)): p(f's_mov_b32 s{s+2}, {hex(n)}\ns_mov_b32 s{s+3}, 0x20000')
    R_, CQ, NH, H_ = P, P+1, P+2, P+3
    p(f'v_bfe_u32 v{R_}, v0, 2, 2\nv_and_b32 v{CQ}, 3, v0\nv_bfe_u32 v{NH}, v0, 4, 1\nv_bfe_u32 v{H_}, v0, 5, 1')
    p(f'v_lshl_add_u32 v{t0}, v{H_}, 3, v{R_}\nv_lshlrev_b32 v{t0}, 6, v{t0}')
    p(f'v_lshl_add_u32 v{t1}, v{NH}, 2, v{CQ}\nv_lshl_add_u32 v{vTR}, v{t1}, 3, v{t0}')
    p(f'v_and_b32 v{t1}, 1, v{CQ}\nv_lshl_add_u32 v{t2}, v{t1}, 1, v{NH}')
    p(f'v_lshrrev_b32 v{t3}, 1, v{CQ}\nv_lshl_add_u32 v{t2}, v{t2}, 1, v{t3}')
    p(f'v_lshl_add_u32 v{vTRv}, v{t2}, 3, v{t0}')
    p(f's_add_u32 s{s_tmp}, s{s_st}, {RB}')
    p(f'v_bfe_u32 v{t0}, v0, 1, 3\nv_xor_b32 v{t0}, v{t0}, v{H_}\nv_lshlrev_b32 v{t0}, 4, v{t0}')
    p(f'v_and_b32 v{t4}, 31, v0\nv_lshl_add_u32 v{t0}, v{t4}, 7, v{t0}\nv_add_u32 v{vSR}, s{s_tmp}, v{t0}')
    for j in range(1, 4): p(f'v_xor_b32 v{vSR+j}, {32*j}, v{vSR}')
    p(f'v_lshl_add_u32 v{t2}, v{NH}, 1, v{t3}\nv_lshlrev_b32 v{t2}, 3, v{t2}\nv_lshl_add_u32 v{t2}, v{t1}, 9, v{t2}')
    p(f'v_lshl_add_u32 v{t0}, v{H_}, 2, v{R_}\nv_lshl_add_u32 v{t2}, v{t0}, 5, v{t2}')
    p(f's_add_u32 s{s_tmp}, s{s_m0b}, {RA+28672}\nv_add_u32 v{t5}, s{s_tmp}, v{t2}')
    p(f's_mov_b32 s{s_c}, {hex(LOG2E)}\ns_and_b32 s{s_F}, s{s_w}, 1\ns_lshr_b32 s{s_H}, s{s_w}, 1')
    u0, u1, u2, u3, u4 = P+4, P+5, P+6, P+7, P+8
    kfill = []
    kfill += L_(f'''v_bfe_u32 v{u0}, v0, 1, 2
v_lshlrev_b32 v{a0}, 4, v{u0}
v_lshl_add_u32 v{a0}, v{t4}, 6, v{a0}
v_lshl_add_u32 v{a0}, v{H_}, 11, v{a0}
s_add_u32 s{s_tmp}, s{s_st}, {ST}
v_add_u32 v{a0}, s{s_tmp}, v{a0}
v_bfe_u32 v{u0}, v0, 2, 1
v_lshlrev_b32 v{b0}, 4, v{u0}
v_lshl_add_u32 v{b0}, v{t4}, 5, v{b0}
v_lshl_add_u32 v{b0}, v{H_}, 10, v{b0}
s_add_u32 s{s_tmp}, s{s_st}, {RB}
v_add_u32 v{b0}, s{s_tmp}, v{b0}''')
    kfill += L_(f'''v_lshrrev_b32 v{u0}, 1, v{R_}
v_lshl_add_u32 v{u0}, v{NH}, 1, v{u0}
s_lshl_b32 s{s_tmp2}, s{s_F}, 1
v_or_b32 v{u1}, s{s_tmp2}, v{t3}
v_xor_b32 v{u1}, v{u1}, v{u0}
v_bfe_u32 v{u2}, v0, 2, 4
v_lshlrev_b32 v{u3}, 3, v{t1}
v_lshl_add_u32 v{pa}, v{u1}, 4, v{u3}
v_lshl_add_u32 v{pa}, v{u2}, 6, v{pa}
s_lshl_b32 s{s_tmp}, s{s_H}, 11
s_add_u32 s{s_tmp}, s{s_tmp}, {ST}
v_add_u32 v{pa}, s{s_tmp}, v{pa}
v_xor_b32 v{u1}, v{t3}, v{NH}
v_lshl_add_u32 v{va}, v{u1}, 4, v{u3}
v_lshl_add_u32 v{va}, v{u2}, 5, v{va}
s_lshl_b32 s{s_tmp}, s{s_H}, 10
s_add_u32 s{s_tmp}, s{s_tmp}, {RB}
v_add_u32 v{va}, s{s_tmp}, v{va}''')
    kfill += L_(f'''v_lshlrev_b32 v{u0}, 5, v{CQ}
v_lshl_add_u32 v{u0}, v{NH}, 4, v{u0}
v_add_u32 v{u0}, 512, v{u0}
s_mov_b32 s{s_msk}, 0
s_mov_b32 s{s_msk+1}, -1
v_cndmask_b32 v{sa}, v{vL16}, v{u0}, s[{s_msk}:{s_msk+1}]
s_mul_i32 s{s_tmp}, s{s_hp}, {16*KVP_SZ}
s_mul_i32 s{s_tmp2}, s{s_w}, 640
s_add_u32 s{s_tmp}, s{s_tmp}, s{s_tmp2}
s_add_u32 s{s_so}, s{s_tmp}, {WS_KVP}
s_mul_i32 s{s_tmp}, s{s_rb}, {KVP_SZ}
s_add_u32 s{s_p1}, s{s_so}, s{s_tmp}
s_add_u32 s{s_so+1}, s{s_so}, {4*KVP_SZ}
s_add_u32 s{s_so+2}, s{s_so}, {8*KVP_SZ}
s_add_u32 s{s_so+3}, s{s_so}, {12*KVP_SZ}
v_mov_b32 v{vMask}, 0xfffefffe
v_bfe_u32 v{u0}, v0, 4, 2
v_mul_u32_u24 v{hA}, {KVP_SZ}, v{u0}
v_and_b32 v{u1}, 15, v0
v_lshl_add_u32 v{hA}, v{u1}, 4, v{hA}
v_bfe_u32 v{u1}, v0, 1, 2
v_lshl_add_u32 v{u1}, v{u1}, 2, v{u0}
v_mul_u32_u24 v{hZ}, {KVP_SZ}, v{u1}
v_and_b32 v{u1}, 1, v0
v_lshl_add_u32 v{hZ}, v{u1}, 4, v{hZ}
v_add_u32 v{hZ}, 512, v{hZ}
s_lshl2_add_u32 s{s_tmp}, s{s_rb}, s{s_w}
s_lshl4_add_u32 s{s_tmp}, s{s_tmp}, s{s_hp}
s_lshl_b32 s{s_tmp}, s{s_tmp}, 11
s_add_u32 s{s_p2}, s{s_tmp}, {WS_OX}
s_and_b32 s{s_tmp}, s{s_loc}, 3
s_lshl2_add_u32 s{s_rt}, s{s_xcd}, s{s_tmp}
s_lshr_b32 s{s_ct}, s{s_loc}, 2''')
    tagfill = [f'v_readfirstlane_b32 s{s_E1}, v{vEp}', 's_nop 0', f's_add_u32 s{s_E1}, s{s_E1}, 1']
    for j in range(4):
        tagfill += L_(f's_lshr_b32 s{s_tmp}, s{s_E1}, {2*j}\ns_and_b32 s{s_tmp2}, s{s_tmp}, 1\ns_and_b32 s{s_tmp}, s{s_tmp}, 2\ns_lshl_b32 s{s_tmp}, s{s_tmp}, 15\ns_or_b32 s{s_t+j}, s{s_tmp}, s{s_tmp2}')
    if opt.get('late12', 0): ext2(issue_k(1))
    p.ext(kfill)
    if opt.get('late12', 0): ext2(issue_k(2))
    def trpair(dst, addr, off, d2=256):
        return [f'ds_read_b64_tr_b16 {vr(dst,2)}, v{addr} offset:{off}', f'ds_read_b64_tr_b16 {vr(dst+2,2)}, v{addr} offset:{off+d2}']
    for c in range(8):
        p.wait_tok(f'wk{c}')
        if c == 0: stamp()
        stamp('k')
        for j in range(4): p(f'ds_read_b128 {vr(X+16*c+4*j,4)}, v{vSR+j} offset:{xslot(c)-RB}')
        p('s_barrier')
        for j in range(4): p.ext(trpair(WF+4*j, vTR, RA+4096*c+1024*j))
        if c == 1:
            p.ext(trpair(vA1, t5, 0))
        for j in range(4):
            p(f'v_mfma_f32_32x32x16_bf16 {vr(ACC0,16)}, {vr(WF+4*j,4)}, {vr(X+16*c+4*j,4)}, {"0" if (c==0 and j==0) else vr(ACC0,16)}')
        if c == 1:
            p(f's_mov_b32 s{s_msk}, 0x0f0f0f0f\ns_mov_b32 s{s_msk+1}, 0x0f0f0f0f')
            for j in range(4): p(f'v_cndmask_b32 v{vA2+j}, v{vA1+j}, 0, s[{s_msk}:{s_msk+1}]')
            for j in range(4): p(f'v_cndmask_b32 v{vA1+j}, 0, v{vA1+j}, s[{s_msk}:{s_msk+1}]')
            p.ext(tagfill)
        if c + 3 < 8: ext2(issue_k(c + 3))
        elif c == 5 or (c == 6 and not opt.get('v47late', 1)):
            for cc in range(4*(c-5), 4*(c-5)+4): ext2(issue_v(cc))
        elif c == 7 and opt.get('v47late', 1):
            for cc in range(4, 8): ext2(issue_v(cc))
    stamp(); stamp('k'); stamp('v')
    cap[0] = 0
    if opt.get('prioB'): p(f's_setprio {opt["prioB"]}')
    def phi_head(acc):
        L = [f'v_cvt_pk_bf16_f32 v{E+j}, v{acc+2*j}, v{acc+2*j+1}' for j in range(8)]
        L.insert(4, f'v_mfma_f32_32x32x16_bf16 {vr(P,16)}, {vr(vA1,4)}, {vr(E,4)}, 0')
        L.insert(4, L.pop(5)); L.insert(5, L.pop(6))
        L.append(f'v_mfma_f32_32x32x16_bf16 {vr(P,16)}, {vr(vA2,4)}, {vr(E+4,4)}, {vr(P,16)}')
        return L
    def phi_body(dst, normalize, wr=None):
        mx, mn = vT0, vT1
        L = [f'v_max3_f32 v{mx}, v{P}, v{P+1}, v{P+2}', f'v_min3_f32 v{mn}, v{P}, v{P+1}, v{P+2}']
        for j in range(3, 15, 2):
            L += [f'v_max3_f32 v{mx}, v{mx}, v{P+j}, v{P+j+1}', f'v_min3_f32 v{mn}, v{mn}, v{P+j}, v{P+j+1}']
        L += [f'v_max_f32 v{mx}, v{mx}, v{P+15}', f'v_min_f32 v{mn}, v{mn}, v{P+15}']
        L += [f'v_mul_f32 v{mx}, 0xbfb8aa3b, v{mx}', f'v_mul_f32 v{mn}, {hex(LOG2E)}, v{mn}']
        fm = [f'v_fma_f32 v{E+j}, v{P+j}, s{s_c}, v{mx}' for j in range(16)] + [f'v_fma_f32 v{E+16+j}, v{P+j}, -s{s_c}, v{mn}' for j in range(16)]
        ex = [f'v_exp_f32 v{E+j}, v{E+j}' for j in range(32)]
        L += fm[:2]
        for j in range(32):
            if j + 2 < 32: L.append(fm[j+2])
            L.append(ex[j])
        if normalize:
            for b in range(2):
                for j in range(4): L.append(f'v_add_f32 v{P+4*b+j}, v{E+16*b+j}, v{E+16*b+4+j}')
            for k in (8, 12):
                for b in range(2):
                    for j in range(4): L.append(f'v_add_f32 v{P+4*b+j}, v{P+4*b+j}, v{E+16*b+k+j}')
            for b in range(2):
                for j in range(2): L.append(f'v_add_f32 v{P+4*b+j}, v{P+4*b+j}, v{P+4*b+2+j}')
            for b in range(2): L.append(f'v_add_f32 v{P+4*b}, v{P+4*b}, v{P+4*b+1}')
            L += [f'v_rcp_f32 v{mx}, v{P}', f'v_rcp_f32 v{mn}, v{P+4}']
            for j in range(1, 4): L.append(f'v_xor_b32 v{P+8+j}, {16*j}, v{a0}')
            for g in range(4):
                for j in range(8): L.append(f'v_mul_f32 v{E+8*g+j}, v{E+8*g+j}, v{mx if g < 2 else mn}')
                for j in range(4): L.append(f'v_cvt_pk_bf16_f32 v{dst+4*g+j}, v{E+8*g+2*j}, v{E+8*g+2*j+1}')
                L.append(f'ds_write_b128 v{a0 if g == 0 else P+8+g}, {vr(dst+4*g,4)}')
        else:
            for j in range(16): L.append(f'v_cvt_pk_bf16_f32 v{dst+j}, v{E+2*j}, v{E+2*j+1}')
        return L
    PRE = opt.get('pre', 4)
    def gemm_slots(acc, addr, offf, events={}):
        def rd(n):
            c, j = n >> 2, n & 3
            L = list(events.get(c, [])) if j == 0 else []
            return L + trpair(WF+4*(n % NSL), addr, offf(c, j))
        pro = []
        for n in range(PRE): pro += rd(n)
        slots = []
        for n in range(32):
            c, j = n >> 2, n & 3
            sl = [f'v_mfma_f32_32x32x16_bf16 {vr(acc,16)}, {vr(WF+4*(n%NSL),4)}, {vr(X+16*c+4*j,4)}, {"0" if n==0 else vr(acc,16)}']
            if n+PRE < 32: sl += rd(n+PRE)
            slots.append(sl)
        return pro, slots
    p.ext(phi_head(ACC0))
    body = phi_body(ACC0, True)
    vg = opt.get('vgrp', 2)
    ev = {c: [('waittok', f'wv{c+vg-1}'), 's_barrier'] for c in range(0, 8, vg)}
    ev[0] = [('waittok', f'wv{vg-1}'), 's_barrier', f'v_subrev_u32 v{vWg}, 1024, v{vWg}']
    pro, slots = gemm_slots(ACC1, vTRv, lambda c, j: RB + 16384*(c >> 2) + 4096*j + 1024*(c & 3), ev)
    wq = [('dma', f's_add_u32 m0, s{s_m0b}, {RA+4096*c}', f'buffer_load_dwordx4 v{vWg}, s[{sW}:{sW+3}], s{s_wo+c} offen {LD} lds', f'wq{c}') for c in range(8)]
    stamp('v')
    ext2(pro)
    nhead = opt.get('phik_head', 8)
    p.ext(body[:nhead]); rest = body[nhead:]
    stamp('v')
    pfw = []
    if opt.get('pfwo', 0):
        pfw = [f'v_and_b32 v{vEp}, 31, v0', f'v_lshlrev_b32 v{vEp}, 7, v{vEp}', f's_lshl2_add_u32 s3, s{s_loc}, s{s_w}', 's_lshl_b32 s3, s3, 12',
               f'buffer_load_dword v{vEp}, v{vEp}, s[{sO}:{sO+3}], s3 offen']
    sl = slotted(slots, [(rest, 0, opt.get('phik_last', 31)), (wq, opt.get('wq_at', 2), opt.get('wq_end', 16)), (pfw, opt.get('pfwo_at', 18), opt.get('pfwo_at', 18)+1)])
    if opt.get('stampset') == 'v':
        mi = [k for k, x in enumerate(sl) if isinstance(x, str) and x.startswith('v_mfma')]
        prev = 0
        for k in (mi[8], mi[16], mi[24]):
            ext2(sl[prev:k]); stamp('v'); prev = k
        ext2(sl[prev:])
    else: ext2(sl)
    stamp(); stamp('v')
    VB = E; ONES = P
    p(f'v_xor_b32 v{P+4}, 16, v{b0}')
    for j in range(4): p(f'v_mov_b32 v{ONES+j}, 0x3f803f80')
    for j in range(8):
        p(f'v_cvt_pk_bf16_f32 v{VB+j}, v{ACC1+2*j}, v{ACC1+2*j+1}')
        if j == 3: p(f'ds_write_b128 v{b0}, {vr(VB,4)}')
    p(f'ds_write_b128 v{P+4}, {vr(VB+4,4)}')
    p('s_waitcnt lgkmcnt(0)\ns_barrier')
    stamp('v')
    KV, Z, R0 = P+8, P+12, E+8
    FRG = ACC0
    for ks in range(4):
        p.ext(trpair(FRG+8*ks, pa, 4096*ks, 1024)); p.ext(trpair(FRG+8*ks+4, va, 4096*ks, 512))
    for ks in range(4):
        p(f'v_mfma_f32_16x16x32_bf16 {vr(Z,4)}, {vr(FRG+8*ks,4)}, {vr(ONES,4)}, {"0" if ks==0 else vr(Z,4)}')
        p(f'v_mfma_f32_16x16x32_bf16 {vr(KV,4)}, {vr(FRG+8*ks,4)}, {vr(FRG+8*ks+4,4)}, {"0" if ks==0 else vr(KV,4)}')
    p(f's_mov_b32 s{s_rdy}, 0\ns_mov_b32 s{s_sp}, 0')
    p(f'v_cvt_pk_bf16_f32 v{R0+2}, v{Z}, v{Z+1}\nv_cvt_pk_bf16_f32 v{R0+3}, v{Z+2}, v{Z+3}')
    p(f'v_cvt_pk_bf16_f32 v{R0}, v{KV}, v{KV+1}\nv_cvt_pk_bf16_f32 v{R0+1}, v{KV+2}, v{KV+3}')
    p(f'v_permlane32_swap_b32 v{R0}, v{R0+2}\nv_permlane32_swap_b32 v{R0+1}, v{R0+3}')
    for j in range(4): p(f'v_and_or_b32 v{R0+j}, v{R0+j}, v{vMask}, s{s_t+j}')
    p(f's_mov_b32 exec_hi, 0x000f000f')
    p(f'buffer_store_dwordx4 {vr(R0,4)}, v{sa}, s[{sWS}:{sWS+3}], s{s_p1} offen sc1')
    p(f's_mov_b32 exec_hi, -1')
    stamp(); stamp('v'); stamp('q')
    p.wait_tok('wq7')
    p('s_barrier')
    stamp('q')
    pro, slots = gemm_slots(ACC0, vTR, lambda c, j: RA + 4096*c + 1024*j)
    ext2(pro)
    cA, cD = E+2, E+4
    p.ext(L_(f'''s_mul_i32 s{s_tmp}, s{s_H}, 1600
s_mul_i32 s{s_tmp2}, s{s_F}, 80
s_add_u32 s{s_tmp}, s{s_tmp}, s{s_tmp2}
s_add_u32 s{s_tmp3}, s{s_tmp}, {KT+16*80}
v_bfe_u32 v{cA}, v0, 2, 4
v_mul_u32_u24 v{cA}, 160, v{cA}
v_add_u32 v{cA}, s{s_tmp3}, v{cA}
s_mov_b64 s[{s_msk}:{s_msk+1}], 0xf00
v_mov_b32 v{cD}, {ZERO}
v_cndmask_b32 v{cA}, v{cA}, v{cD}, s[{s_msk}:{s_msk+1}]
v_and_b32 v{cD}, 3, v0
v_lshl_add_u32 v{cA}, v{cD}, 4, v{cA}
s_lshl_b32 s{s_tmp2}, s{s_F}, 1
s_lshl_b32 s{s_msk}, 3, s{s_tmp2}
v_mov_b32 v{cD+1}, 0x3f803f80
v_cndmask_b32 v{cD}, 0, v{cD+1}, s[{s_msk}:{s_msk+1}]
v_mov_b32 v{cD+1}, v{cD}
v_mov_b32 v{cD+2}, v{cD}
v_mov_b32 v{cD+3}, v{cD}
s_mov_b64 exec, 0xfff
ds_write_b128 v{cA}, {vr(cD,4)}
s_mov_b64 exec, -1'''))
    SEL = ACC1
    tK, tZ, aN, aX, zc = ACC1+8, ACC1+9, ACC1+10, ACC1+11, ACC1+12
    w0, w1, w2 = ACC1+13, ACC1+14, ACC1+15
    vOg = vWg
    s_r8 = s_xo
    fill = []
    fill0 = []
    fill0 += L_(f'''v_bfe_u32 v{w0}, v0, 4, 1
v_lshlrev_b32 v{w0}, 2, v{w0}
v_and_b32 v{w1}, 7, v0
v_xor_b32 v{w0}, v{w0}, v{w1}
v_lshlrev_b32 v{w0}, 4, v{w0}
v_lshrrev_b32 v{w1}, 3, v0
v_lshl_add_u32 v{w0}, v{w1}, 10, v{w0}
s_lshl_b32 s{s_tmp2}, s{s_ct}, 7
v_add_u32 v{vOg}, s{s_tmp2}, v{w0}''')
    for n in range(8): fill0 += L_(f's_add_u32 s{s_r8+n}, s{s_ct}, {n}\ns_and_b32 s{s_r8+n}, s{s_r8+n}, 7')
    fill = L_(f'''v_and_b32 v{w0}, 1, v0
v_lshlrev_b32 v{w0}, 4, v{w0}
v_mov_b32 v{w1}, 0x3f80
v_lshlrev_b32 v{w0}, v{w0}, v{w1}
v_bfe_u32 v{w1}, v0, 1, 3''')
    mk = [(s_msk, s_msk+1), (6, 7)]
    for j in range(0, 8, 2):
        fill += [f'v_cmp_eq_u32 s[{mk[0][0]}:{mk[0][1]}], {j}, v{w1}', f'v_cmp_eq_u32 s[{mk[1][0]}:{mk[1][1]}], {j+1}, v{w1}', f's_nop 0',
                 f'v_cndmask_b32 v{SEL+j}, 0, v{w0}, s[{mk[0][0]}:{mk[0][1]}]', f'v_cndmask_b32 v{SEL+j+1}, 0, v{w0}, s[{mk[1][0]}:{mk[1][1]}]']
    fill += L_(f'''v_bfe_u32 v{w0}, v0, 4, 1
v_bfe_u32 v{w1}, v0, 5, 1
v_lshl_add_u32 v{w2}, v{w0}, 1, v{w1}
v_and_b32 v{tK}, 15, v0
v_mul_u32_u24 v{tK}, 80, v{tK}
v_lshl_add_u32 v{tK}, v{w2}, 3, v{tK}
s_lshl_b32 s{s_tmp2}, s{s_F}, 5
s_add_u32 s{s_tmp}, s{s_tmp}, s{s_tmp2}
s_add_u32 s{s_tmp3}, s{s_tmp}, {KT+18*80}
v_and_b32 v{w2}, 1, v0
v_lshl_add_u32 v{w2}, v{w0}, 1, v{w2}
v_lshlrev_b32 v{tZ}, 3, v{w2}
v_add_u32 v{tZ}, s{s_tmp3}, v{tZ}
s_mul_i32 s{s_tmp2}, s{s_F}, 80
s_sub_u32 s{s_tmp}, s{s_tmp}, s{s_tmp2}
s_add_u32 s{s_tmp}, s{s_tmp}, {KT}
v_add_u32 v{tK}, s{s_tmp}, v{tK}
v_bfe_u32 v{w0}, v0, 3, 2
v_and_b32 v{w2}, 3, v0
v_lshl_add_u32 v{w0}, v{w0}, 2, v{w2}
v_mul_u32_u24 v{aN}, 80, v{w0}
v_mul_u32_u24 v{w1}, 1600, v{w1}
v_add_u32 v{w1}, {KT}, v{w1}
v_add_u32 v{aN}, v{aN}, v{w1}
v_mul_u32_u24 v{aX}, 80, v{w2}
v_add_u32 v{aX}, v{aX}, v{w1}
v_add_u32 v{aX}, {16*80}, v{aX}
v_mov_b32 v{w0}, {ZERO}
s_mov_b32 s{s_msk}, 0x0f0f0f0f
s_mov_b32 s{s_msk+1}, 0xf0f0f0f0
v_cndmask_b32 v{aN}, v{w0}, v{aN}, s[{s_msk}:{s_msk+1}]
s_mov_b32 s{s_msk}, 0x0000000f
s_mov_b32 s{s_msk+1}, 0x000000f0
v_cndmask_b32 v{aX}, v{w0}, v{aX}, s[{s_msk}:{s_msk+1}]''')
    def wo_dma(half):
        return [('dma', f's_lshl_b32 s3, s{s_r8+n}, 15\n' + (f's_add_u32 s3, s3, 0x40000\n' if half else '') + f's_add_u32 m0, s{s_m0b}, {(RB if half==0 else RA)+4096*n}',
                 f'buffer_load_dwordx4 v{vOg}, s[{sO}:{sO+3}], s3 offen lds', f'wo{half}_{n}') for n in range(8)]
    HZ, HK = E+12, X
    HZ = X + 32
    def z_load(): return f'buffer_load_dwordx4 {vr(HZ,4)}, v{hZ}, s[{sWS}:{sWS+3}], s{s_so} offen sc1'
    def kv_list():
        return [f'buffer_load_dwordx4 {vr(HK+8*m+4*st,4)}, v{hA}, s[{sWS}:{sWS+3}], s{s_so+m} offen offset:{256*st} sc1' for m in range(4) for st in range(2)]
    def z_check():
        return [f'v_xor_b32 v{zc}, s{s_t}, v{HZ}'] + [f'v_bitop3_b32 v{zc}, v{zc}, v{HZ+j}, s{s_t+j} bitop3:0xf6' for j in range(1, 4)] + [f'v_and_b32 v{zc}, 0x00010001, v{zc}', f'v_cmp_ne_u32 vcc, 0, v{zc}']
    zat = opt.get('z_at', 10); h1 = opt.get('h1_at', 30)
    assert zat >= 9
    def go_block():
        L = kv_list() + [f's_mov_b32 s{s_rdy}, 1']
        return L
    cpn = [0]
    def checkpoint(first=False):
        k = cpn[0]; cpn[0] += 1
        if not first: p(f's_cmp_lg_u32 s{s_rdy}, 0\ns_cbranch_scc1 B_CP{k}\ns_waitcnt vmcnt(0)')
        p.ext(z_check())
        p(f's_cbranch_vccz B_CPGO{k}')
        p(z_load(), tok='nocount')
        p(f'B_CP{k}:')
    stamp('q')
    WOP = opt.get('woplan', 0)
    if WOP == 1:
        sq = slotted(slots[:h1], [(fill0, 0, 1), (wo_dma(0), 2, zat-1), (fill, 2, h1-1), ([z_load()], zat, zat)])
    else:
        sq = slotted(slots[:h1], [(fill0 + fill, 0, h1-1), ([z_load()], zat, zat)])
    ext2(sq)
    stamp('q')
    checkpoint(True)
    stamp('q')
    ext2(slotted(slots[h1:], []))
    stamp(); stamp('q')
    EQ = X + 48
    hd = phi_head(ACC0); bd = phi_body(EQ, False)
    if WOP == 1: p('s_barrier')
    ext2(hd)
    nw1 = opt.get('wo1_early', 4) if WOP == 1 else 0
    cps = [int(x) for x in str(opt.get('cps', '60')).split('-') if x != '']
    prev = 0
    for c in cps:
        ext2(bd[prev:c]); checkpoint(); prev = c
    ext2(interleave(bd[prev:], wo_dma(1)[:nw1]) if nw1 else bd[prev:])
    stamp(); stamp('q')
    chk = zc
    DZ, DK = P, P+4
    p(f's_cmp_eq_u32 s{s_rdy}, 0\ns_cbranch_scc1 B_H1_POLL')
    p('B_H1_CHK:')
    p.assume_clean()
    p.pretend(kv_list(), [None]*8)
    if WOP == 1:
        wo0 = wo_dma(1)[nw1:] + [None]*8
    else: wo0 = wo_dma(0)
    p(f'v_mfma_f32_16x16x32_bf16 {vr(DZ,4)}, {vr(SEL,4)}, {vr(HZ,4)}, 0')
    for n in range(8):
        p(f'v_mfma_f32_16x16x32_bf16 {vr(DK,4)}, {vr(SEL+4*(n&1),4)}, {vr(HK+4*n,4)}, {"0" if n==0 else vr(DK,4)}')
        for j in range(4):
            if n == 0 and j == 0: p(f'v_xor_b32 v{chk}, s{s_t}, v{HK}')
            else: p(f'v_bitop3_b32 v{chk}, v{chk}, v{HK+4*n+j}, s{s_t+j} bitop3:0xf6')
        if wo0[n]: ext2([wo0[n]])
        if n == 1:
            for j in range(4): p(f'v_add_f32_dpp v{DZ+j}, v{DZ+j}, v{DZ+j} row_ror:2 row_mask:0xf bank_mask:0xf')
        if n == 2:
            for j in range(4): p(f'v_add_f32_dpp v{DZ+j}, v{DZ+j}, v{DZ+j} row_ror:4 row_mask:0xf bank_mask:0xf')
        if n == 3:
            p(f'v_cvt_pk_bf16_f32 v{DZ}, v{DZ}, v{DZ+1}\nv_cvt_pk_bf16_f32 v{DZ+1}, v{DZ+2}, v{DZ+3}')
            p('s_mov_b64 exec, 0x00030003')
            p(f'ds_write_b64 v{tZ}, {vr(DZ,2)}')
            p('s_mov_b64 exec, -1')
    p(f'v_and_b32 v{chk}, 0x00010001, v{chk}')
    p(f'v_cmp_ne_u32 vcc, 0, v{chk}')
    p('s_cbranch_vccnz B_H1_RETRY')
    p('B_H1_OK:')
    stamp('q')
    p(f'v_cvt_pk_bf16_f32 v{DK}, v{DK}, v{DK+1}\nv_cvt_pk_bf16_f32 v{DK+1}, v{DK+2}, v{DK+3}')
    p(f'ds_write_b64 v{tK}, {vr(DK,2)}')
    p('s_waitcnt lgkmcnt(0)\ns_barrier')
    stamp(); stamp('q'); stamp('g')
    OFR = X
    for j in range(4): p(f'ds_read_b128 {vr(OFR+4*j,4)}, v{aX} offset:{16*j}')
    for j in range(4): p(f'ds_read_b128 {vr(OFR+16+4*j,4)}, v{aN} offset:{16*j}')
    AUX, NP, NM = P, ACC0, ACC1
    for j in range(4): p(f'v_mfma_f32_32x32x16_bf16 {vr(AUX,16)}, {vr(OFR+4*j,4)}, {vr(EQ+4*j,4)}, {"0" if j==0 else vr(AUX,16)}')
    for j in range(2): p(f'v_mfma_f32_32x32x16_bf16 {vr(NP,16)}, {vr(OFR+16+4*j,4)}, {vr(EQ+4*j,4)}, {"0" if j==0 else vr(NP,16)}')
    for j in range(2, 4): p(f'v_mfma_f32_32x32x16_bf16 {vr(NM,16)}, {vr(OFR+16+4*j,4)}, {vr(EQ+4*j,4)}, {"0" if j==2 else vr(NM,16)}')
    c0 = E
    p(f'v_rcp_f32 v{c0}, v{AUX}\nv_rcp_f32 v{c0+1}, v{AUX+1}')
    p(f'v_mul_f32 v{c0+2}, v{AUX+2}, v{c0}\nv_fma_f32 v{c0+2}, v{AUX+3}, v{c0+1}, v{c0+2}\nv_add_f32 v{c0+2}, 0x358637bd, v{c0+2}')
    p(f'v_rcp_f32 v{c0+2}, v{c0+2}')
    p(f'v_mul_f32 v{c0}, v{c0}, v{c0+2}\nv_mul_f32 v{c0+1}, v{c0+1}, v{c0+2}')
    OB = E+16
    for hh in range(2):
        for j in range(8*hh, 8*hh+8): p(f'v_mul_f32 v{NP+j}, v{NP+j}, v{c0}')
        for j in range(8*hh, 8*hh+8): p(f'v_fmac_f32 v{NP+j}, v{NM+j}, v{c0+1}')
        for j in range(4*hh, 4*hh+4): p(f'v_cvt_pk_bf16_f32 v{OB+j}, v{NP+2*j}, v{NP+2*j+1}')
        for j in range(4*hh, 4*hh+4): p(f'v_and_or_b32 v{OB+j}, v{OB+j}, v{vMask}, s{s_t+(j&3)}')
        p(f'buffer_store_dwordx4 {vr(OB+4*hh,4)}, v{vL16}, s[{sWS}:{sWS+3}], s{s_p2} offen offset:{1024*hh} sc1')
    stamp(); stamp('g')
    setup = L_(f'''s_lshl2_add_u32 s{s_tmp}, s{s_rt}, s{s_w}
s_lshl_b32 s{s_tmp}, s{s_tmp}, 14
s_add_u32 s{s_so}, s{s_tmp}, {WS_OX}''')
    wa, wb, pl, oa, xw, xr = E, E+1, E+2, E+3, E+6, E+7
    chk = E+8
    setup += L_(f'''v_bfe_u32 v{E+4}, v0, 2, 2
v_bfe_u32 v{E+5}, v0, 5, 1
v_lshl_add_u32 v{E+9}, v{E+5}, 4, v{E+4}
v_lshlrev_b32 v{wa}, 7, v{E+9}
v_lshrrev_b32 v{E+4}, 1, v{E+4}
v_xor_b32 v{E+4}, s{s_F}, v{E+4}
v_lshl_add_u32 v{wa}, v{E+4}, 6, v{wa}
v_and_b32 v{E+4}, 63, v{vTRv}
v_add_u32 v{wa}, v{wa}, v{E+4}
s_xor_b32 s{s_tmp3}, s{s_F}, 1
s_lshl_b32 s{s_tmp3}, s{s_tmp3}, 15
v_add_u32 v{wa}, s{s_tmp3}, v{wa}
v_xor_b32 v{wb}, 64, v{wa}
v_and_b32 v{pl}, 7, v0
v_lshlrev_b32 v{pl}, 11, v{pl}
v_add_u32 v{pl}, 2032, v{pl}
v_and_b32 v{E+4}, 31, v0
v_lshlrev_b32 v{E+5}, 5, v{E+5}
v_lshl_add_u32 v{oa}, v{E+4}, 11, v{E+5}
s_lshl1_add_u32 s{s_tmp}, s{s_rt}, s{s_H}
s_lshl_b32 s{s_tmp}, s{s_tmp}, 16
s_lshl1_add_u32 s{s_tmp3}, s{s_ct}, s{s_F}
s_lshl_b32 s{s_tmp3}, s{s_tmp3}, 6
s_add_u32 s{s_oo}, s{s_tmp}, s{s_tmp3}
s_add_u32 s{s_oo}, s{s_oo}, 1024
s_add_u32 s{s_tmp}, s{s_st}, {ST}
s_xor_b32 s{s_tmp3}, s{s_st}, 4096
s_add_u32 s{s_tmp3}, s{s_tmp3}, {ST}
v_add_u32 v{xw}, s{s_tmp}, v{vL16}
v_add_u32 v{xr}, s{s_tmp3}, v{vL16}''')
    e2w, e2r = E+10, E+12
    if opt.get('e2'):
        setup += L_(f"""v_and_b32 v{E+4}, 31, v0
v_bfe_u32 v{E+5}, v0, 5, 1
s_lshl_b32 s{s_tmp}, s{s_F}, 2
v_lshl_add_u32 v{E+5}, v{E+5}, 1, s{s_tmp}
v_and_b32 v{E+9}, 7, v0
v_xor_b32 v{E+5}, v{E+5}, v{E+9}
v_lshlrev_b32 v{E+5}, 4, v{E+5}
v_lshl_add_u32 v{E+5}, v{E+4}, 7, v{E+5}
s_lshl_b32 s{s_tmp}, s{s_H}, 12
v_add_u32 v{e2w}, s{s_tmp}, v{E+5}
v_xor_b32 v{e2w+1}, 16, v{e2w}
v_lshlrev_b32 v{e2r}, 4, v0
v_bfe_u32 v{E+4}, v0, 3, 3
v_xor_b32 v{E+4}, v{E+4}, v{E+9}
v_lshlrev_b32 v{E+4}, 4, v{E+4}
v_lshrrev_b32 v{E+5}, 3, v0
v_lshl_add_u32 v{oa}, v{E+5}, 11, v{E+4}
s_lshl_b32 s{s_tmp}, s{s_rt}, 17
s_lshl_b32 s{s_tmp3}, s{s_ct}, 7
s_add_u32 s{s_oo}, s{s_tmp}, s{s_tmp3}
s_add_u32 s{s_oo}, s{s_oo}, 1024
s_add_u32 s{s_tmp2}, s{s_oo}, 65536""")
    ext2(setup if WOP == 1 else interleave(setup, wo_dma(1)))
    if opt.get('pollwait'): p('s_waitcnt vmcnt(0)')
    for n in range(8): p(f's_lshl_b32 s{s_r8+n}, s{s_r8+n}, 11\ns_add_u32 s{s_r8+n}, s{s_r8+n}, s{s_so}')
    OF = X
    stamp('g')
    if not opt.get('nopoll2'):
        p('B_H2_POLL:')
        p(f'buffer_load_dwordx4 {vr(OF,4)}, v{pl}, s[{sWS}:{sWS+3}], s{s_so} offen sc1')
        p(f's_add_u32 s{s_sp}, s{s_sp}, 1\ns_cmp_gt_u32 s{s_sp}, {SPIN_MAX}\ns_cbranch_scc1 B_H2_FIRST')
        p(f'v_xor_b32 v{chk}, s{s_t}, v{OF}')
        for j in range(1, 4): p(f'v_bitop3_b32 v{chk}, v{chk}, v{OF+j}, s{s_t+j} bitop3:0xf6')
        p(f'v_and_b32 v{chk}, 0x00010001, v{chk}')
        p(f'v_cmp_ne_u32 vcc, 0, v{chk}')
        p('s_cbranch_vccnz B_H2_POLL')
    p('B_H2_FIRST:')
    stamp(); stamp('g')
    def o_loads():
        for n in range(16):
            p(f'buffer_load_dwordx4 {vr(OF+4*n,4)}, v{vL16}, s[{sWS}:{sWS+3}], s{s_r8+(n>>1)} offen offset:{1024*(n&1)} sc1')
    o_loads()
    p('s_waitcnt vmcnt(16)\ns_barrier')
    stamp('g')
    p('B_H2_GO:')
    AK, AS = ACC0, P
    W2 = X + 64
    def wofr(n, slot):
        off = 128*(32*(n >> 1) + 8*(n & 1))
        return trpair(W2+8*slot+4, wb, off, 512) + trpair(W2+8*slot, wa, off, 512)
    NS2 = 5
    for n in range(3): p.ext(wofr(n, n))
    for n in range(16):
        p(f'v_mfma_f32_32x32x16_bf16 {vr(AS,16)}, {vr(W2+8*(n%NS2)+4,4)}, {vr(OF+4*n,4)}, {"0" if n==0 else vr(AS,16)}')
        if n+3 < 16: p.ext(wofr(n+3, (n+3) % NS2)[:2])
        for j in range(2):
            if n == 0 and j == 0: p(f'v_xor_b32 v{chk}, s{s_t}, v{OF}')
            else: p(f'v_bitop3_b32 v{chk}, v{chk}, v{OF+4*n+j}, s{s_t+j} bitop3:0xf6')
        p(f'v_mfma_f32_32x32x16_bf16 {vr(AK,16)}, {vr(W2+8*(n%NS2),4)}, {vr(OF+4*n,4)}, {"0" if n==0 else vr(AK,16)}')
        if n+3 < 16: p.ext(wofr(n+3, (n+3) % NS2)[2:])
        for j in range(2, 4): p(f'v_bitop3_b32 v{chk}, v{chk}, v{OF+4*n+j}, s{s_t+j} bitop3:0xf6')
    p(f'v_and_b32 v{chk}, 0x00010001, v{chk}')
    p(f'v_cmp_ne_u32 vcc, 0, v{chk}')
    p('s_cbranch_vccnz B_H2_RETRY')
    p('B_H2_OK:')
    stamp('g')
    for j in range(4): p(f'ds_write_b128 v{xw}, {vr(AS+4*j,4)} offset:{1024*j}')
    p('s_waitcnt lgkmcnt(0)\ns_barrier')
    stamp('g')
    for j in range(4): p(f'ds_read_b128 {vr(AS+4*j,4)}, v{xr} offset:{1024*j}')
    STF = opt.get('outflag', '')
    if not opt.get('e2'):
        for hh in range(2):
            for j in range(8): p(f'v_add_f32 v{AK+8*hh+j}, v{AK+8*hh+j}, v{AS+8*hh+j}')
            for j in range(4): p(f'v_cvt_pk_bf16_f32 v{OB+4*hh+j}, v{AK+8*hh+2*j}, v{AK+8*hh+2*j+1}')
            p(f'buffer_store_dwordx4 {vr(OB+4*hh,4)}, v{oa}, s[{sOUT}:{sOUT+3}], s{s_oo} offen offset:{16*hh} {STF}')
    else:
        for hh in range(2):
            for j in range(8): p(f'v_add_f32 v{AK+8*hh+j}, v{AK+8*hh+j}, v{AS+8*hh+j}')
            for j in range(4): p(f'v_cvt_pk_bf16_f32 v{OB+4*hh+j}, v{AK+8*hh+2*j}, v{AK+8*hh+2*j+1}')
            p(f'ds_write_b128 v{e2w+hh}, {vr(OB+4*hh,4)}')
        p('s_waitcnt lgkmcnt(0)\ns_barrier')
        p(f'ds_read_b128 {vr(AS,4)}, v{e2r}\nds_read_b128 {vr(AS+4,4)}, v{e2r} offset:4096')
        p(f'buffer_store_dwordx4 {vr(AS,4)}, v{oa}, s[{sOUT}:{sOUT+3}], s{s_oo} offen {STF}')
        p(f'buffer_store_dwordx4 {vr(AS+4,4)}, v{oa}, s[{sOUT}:{sOUT+3}], s{s_tmp2} offen {STF}')
    stamp('g')
    p(f's_or_b32 s{s_tmp}, s2, s{s_w}\ns_cmp_lg_u32 s{s_tmp}, 0\ns_cbranch_scc1 B_END')
    p(f'v_mov_b32 v{E}, s{s_E1}\nv_mov_b32 v{E+1}, 0\ns_mov_b64 exec, 1')
    p(f'buffer_store_dword v{E}, v{E+1}, s[{sWS}:{sWS+3}], 0 offen offset:{WS_EB} sc1')
    if opt.get('probe'):
        p('s_mul_i32 s98, s98, 100\ns_memtime s[90:91]\ns_waitcnt lgkmcnt(0)\nB_PRB:\ns_memtime s[94:95]\ns_waitcnt lgkmcnt(0)\ns_sub_u32 s94, s94, s90\ns_cmp_lt_u32 s94, s98\ns_cbranch_scc1 B_PRB')
    if opt.get('amp'):
        p('s_waitcnt vmcnt(0)\ns_memrealtime s[90:91]\ns_waitcnt lgkmcnt(0)')
        if opt.get('amp_at', -1) < 0: p('s_mov_b32 s99, s90')
        p(f's_sub_u32 s92, s99, s78\ns_mul_i32 s92, s92, {opt["amp"]}\nB_AMP:\ns_memrealtime s[94:95]\ns_waitcnt lgkmcnt(0)\ns_sub_u32 s94, s94, s90\ns_cmp_lt_u32 s94, s92\ns_cbranch_scc1 B_AMP')
    p('B_END:')
    if opt.get('stamps'):
        p('s_mov_b64 exec, -1')
        p('s_waitcnt vmcnt(0)')
        p('s_memtime s[100:101]\ns_memrealtime s[76:77]\ns_waitcnt lgkmcnt(0)')
        for k in range(11): p(f'v_mov_b32 v{16+k}, s{80+2*k}')
        p('v_mov_b32 v27, s78\nv_mov_b32 v28, s76\n' + f'v_mov_b32 v29, s{s_sp}\nv_mov_b32 v30, s{s_rdy}')
        p(f's_lshl_b32 s{s_tmp}, s2, 8\ns_lshl_b32 s{s_tmp2}, s{s_w}, 6\ns_add_u32 s{s_tmp}, s{s_tmp}, s{s_tmp2}\ns_add_u32 s{s_tmp}, s{s_tmp}, {WS_STAMP}')
        p('v_mov_b32 v0, 0\ns_mov_b64 exec, 1')
        for k in range(4): p(f'buffer_store_dwordx4 v[{16+4*k}:{19+4*k}], v0, s[{sWS}:{sWS+3}], s{s_tmp} offen offset:{16*k}')
    p('s_endpgm')
    p.assume_clean()
    for k in range(cpn[0]):
        p(f'B_CPGO{k}:')
        ext2(go_block())
        p(f's_branch B_CP{k}')
        p.assume_clean()
    p('B_H1_POLL:')
    p('s_waitcnt vmcnt(0)')
    p.ext(z_check())
    p(f's_add_u32 s{s_sp}, s{s_sp}, 1\ns_cmp_gt_u32 s{s_sp}, {SPIN_MAX}\ns_cbranch_scc1 B_H1_GO')
    p('s_cbranch_vccz B_H1_GO')
    p(z_load())
    p('s_branch B_H1_POLL')
    p('B_H1_GO:')
    ext2(go_block())
    p('s_branch B_H1_CHK')
    p.assume_clean()
    p('B_H1_RETRY:')
    p(f's_add_u32 s{s_sp}, s{s_sp}, 1\ns_cmp_gt_u32 s{s_sp}, {SPIN_MAX}\ns_cbranch_scc1 B_H1_OK')
    p('s_sleep 2')
    p.ext(kv_list())
    p('s_waitcnt vmcnt(0)\ns_branch B_H1_CHK')
    p.assume_clean()
    p('B_H2_RETRY:')
    p(f's_add_u32 s{s_sp}, s{s_sp}, 1\ns_cmp_gt_u32 s{s_sp}, {SPIN_MAX}\ns_cbranch_scc1 B_H2_OK')
    p('s_sleep 2')
    o_loads()
    p('s_branch B_H2_GO')
    p.assume_clean()
```

```python
import sys, json
from asmdsl import Prog
from common import *
import genB
NAME = 'concat_heads__ssm_conv_s4__linear_kernel_hedgehog__prompt'
def build(opt):
    hdr = open(f'cdna_kernels/{NAME}.s.ref').read().split('\n')
    head = [l for l in hdr if l.startswith(';') and '@launch' not in l and 'Override' not in l and 'grid=ceil' not in l]
    head = head[:17]
    p = Prog()
    p('s_cmp_ge_u32 s2, 512\ns_cbranch_scc1 K_EXIT')
    if opt.get('pf', 1):
        p('s_getpc_b64 s[4:5]')
        p('s_bfe_u32 s3, s2, 0x50003\ns_lshl_b32 s3, s3, 10')
        p('v_lshl_add_u32 v255, v0, 7, s3')
        p('v_cmp_gt_u32 vcc, 8, v0\ns_and_saveexec_b64 s[6:7], vcc\ns_cbranch_execz K_NOPF')
        p('global_load_dword v254, v255, s[4:5]')
        p('K_NOPF:\ns_mov_b64 exec, s[6:7]')
        p.assume_clean()
    if opt.get('probe'):
        off = {'wo': 96, 'x': 72, 'ws': 120, 'out': 104, 'u': 0}.get(opt['probe'], None)
        p('s_cmp_lg_u32 s2, 0\ns_cbranch_scc1 K_NOPROBE')
        if off is not None:
            p(f's_load_dwordx2 s[8:9], s[0:1], {off}\nv_mov_b32 v1, {opt.get("probe_off", 4096)}\ns_waitcnt lgkmcnt(0)\ns_memtime s[10:11]\ns_waitcnt lgkmcnt(0)')
            p('global_load_dword v2, v1, s[8:9]\ns_waitcnt vmcnt(0)\ns_memtime s[12:13]\ns_waitcnt lgkmcnt(0)\ns_sub_u32 s98, s12, s10')
        else:
            p('s_mov_b32 s98, 1000')
        p('K_NOPROBE:')
    if opt.get('noA'):
        p('s_cmp_ge_u32 s2, 256\ns_cbranch_scc1 K_EXIT')
        genB.genB(p, opt)
    else:
        import genA
        p('s_cmp_lt_u32 s2, 256\ns_cbranch_scc1 B_ROLE')
        ga = genA.genA(p, opt)
        next(ga)
        saved = p.save_state()
        p('s_branch A_REST')
        genB.genB(p, opt)
        p.assume_clean()
        p('A_REST:')
        p.restore_state(saved)
        for _ in ga: pass
    p('K_EXIT:\ns_endpgm')
    if opt.get('pf', 1): p(f'.fill ({NAME}_kernel + 33024 - .) / 4, 4, 0xbf810000')
    body = p.finalize()
    txt = '\n'.join(head) + f"""
; Generated by gen/gen.py (hand-written generator). One launch, 512 workgroups: ids <256 attention part, ids 256..511 SSM part.
; @launch grid=(512,1,1) block=(256,1,1) lds=81920
.amdgcn_target "amdgcn-amd-amdhsa--gfx950"
.text
.globl {NAME}_kernel
.p2align 8
.type {NAME}_kernel,@function
{NAME}_kernel:
{body}
.section .rodata,"a"
.p2align 6
.amdhsa_kernel {NAME}_kernel
  .amdhsa_next_free_vgpr 256
  .amdhsa_next_free_sgpr 102
  .amdhsa_accum_offset 256
  .amdhsa_group_segment_fixed_size 0
  .amdhsa_kernarg_size 128
  .amdhsa_user_sgpr_count 2
  .amdhsa_user_sgpr_kernarg_segment_ptr 1
  .amdhsa_system_sgpr_workgroup_id_x 1
.end_amdhsa_kernel
"""
    return txt
if __name__ == '__main__':
    out = sys.argv[1]
    opt = {}
    for a in sys.argv[2:]:
        k, _, v = a.partition('=')
        try: v = int(v)
        except ValueError: v = v if v else 1
        opt[k] = v
    open(out, 'w').write(build(opt))
```

```python
from asmdsl import Prog, interleave, slotted
from common import *

RA, RB, ST = 0, 32768, 65536
KT = ST
ZERO = ST + 3200

def vr(a, n): return f'v[{a}:{a+n-1}]'
def L_(txt): return [x for x in txt.split('\n') if x.strip()]

def genB(p, opt):
    stamp_n = [0]
    def stamp(kind='main'):
        if kind != opt.get('stampset', 'main') and not (kind == 'main' and stamp_n[0] == 0): return
        if opt.get('amp') and stamp_n[0] == opt.get('amp_at', -1): p('s_memrealtime s[76:77]\ns_waitcnt lgkmcnt(0)\ns_mov_b32 s99, s76')
        if opt.get('amp'): stamp_n[0] += 1
        if opt.get('stamps'):
            k = stamp_n[0]; stamp_n[0] += 1
            p(f's_memtime s[{80+2*k}:{81+2*k}]') if k < 10 else None
    cap = [opt.get('vmcap', 0)]
    def ext2(L):
        for x in L:
            if isinstance(x, tuple) and x[0] == 'dma':
                p(x[1])
                if cap[0]: p(f's_waitcnt vmcnt({cap[0]})')
                p(x[2], tok=x[3])
            else: p.ext([x])
    sX, sW, sP, sO, sOUT, sWS = 8, 12, 16, 20, 24, 28
    s_rb, s_hp, s_w, s_loc, s_xcd = 32, 33, 34, 35, 36
    s_m0b, s_st = 37, 38
    s_p1 = 39
    s_xo = 40
    s_wo = 48
    s_t = 56
    s_E1 = 60
    s_tmp, s_tmp2, s_tmp3 = 61, 62, 63
    s_c = 64
    s_p2 = 65
    s_msk = 66
    s_sp, s_rdy = 68, 69
    s_so = 70
    s_rt, s_ct, s_oo = 74, 75, 76
    s_F, s_H = 4, 5
    ACC0, ACC1, P, WF, PA, E, X = 16, 32, 48, 64, 88, 96, 128
    NSL = 6
    vA1, vA2 = 8, 12
    vTR, vTRv, vWg, vL16, vEp = 1, 2, 3, 4, 5
    vT0, vT1 = 6, 7
    a0, b0, pa, va, sa, vMask, hA, hZ = PA, PA+1, PA+2, PA+3, PA+4, PA+5, PA+6, PA+7
    vXg = E; vSR = E + 4
    t0, t1, t2, t3, t4, t5 = E + 8, E + 9, E + 10, E + 11, E + 12, E + 13
    LD = opt.get('ldflag', '')

    p('B_ROLE:')
    p(f's_load_dwordx4 s[{sX}:{sX+3}], s[0:1], 72')
    p(f's_load_dwordx2 s[{sP}:{sP+1}], s[0:1], 88')
    p(f's_load_dwordx2 s[{sO}:{sO+1}], s[0:1], 96')
    p(f's_load_dwordx2 s[{sOUT}:{sOUT+1}], s[0:1], 104')
    p(f's_load_dwordx2 s[{sWS}:{sWS+1}], s[0:1], 120')
    if opt.get('stamps') or opt.get('amp') or opt.get('skew'): p('s_memrealtime s[78:79]')
    stamp()
    if opt.get('prioB0'): p(f's_setprio {opt["prioB0"]}')
    p(f'v_lshrrev_b32 v{t0}, 6, v0')
    p(f's_and_b32 s{s_xcd}, s2, 7\ns_lshr_b32 s{s_loc}, s2, 3')
    p(f'v_readfirstlane_b32 s{s_w}, v{t0}')
    if opt.get('map', '4x8') == '8x4':
        p(f's_and_b32 s{s_tmp}, s{s_xcd}, 1\ns_lshl_b32 s{s_tmp}, s{s_tmp}, 3\ns_and_b32 s{s_tmp2}, s{s_loc}, 7\ns_add_u32 s{s_rb}, s{s_tmp}, s{s_tmp2}')
        p(f's_lshr_b32 s{s_tmp}, s{s_xcd}, 1\ns_lshl_b32 s{s_tmp}, s{s_tmp}, 2\ns_lshr_b32 s{s_tmp3}, s{s_loc}, 3\ns_add_u32 s{s_hp}, s{s_tmp}, s{s_tmp3}')
        p(f's_lshl_b32 s{s_tmp3}, s{s_tmp3}, 1\ns_add_u32 s{s_tmp}, s{s_tmp2}, s{s_tmp3}\ns_and_b32 s{s_tmp}, s{s_tmp}, 7')
    else:
        p(f's_and_b32 s{s_tmp}, s{s_xcd}, 3\ns_and_b32 s{s_tmp2}, s{s_loc}, 3\ns_lshl2_add_u32 s{s_rb}, s{s_tmp}, s{s_tmp2}')
        p(f's_lshr_b32 s{s_tmp}, s{s_xcd}, 2\ns_lshr_b32 s{s_tmp3}, s{s_loc}, 2\ns_lshl3_add_u32 s{s_hp}, s{s_tmp}, s{s_tmp3}')
        p(f's_lshl1_add_u32 s{s_tmp}, s{s_tmp2}, s{s_tmp3}\ns_and_b32 s{s_tmp}, s{s_tmp}, 7')
    p(f's_lshl_b32 s{s_xo}, s{s_tmp}, 7\ns_mul_i32 s{s_wo}, s{s_xo}, 1536')
    p(f'v_bfe_u32 v{t1}, v0, 3, 3\nv_lshl_add_u32 v{t1}, v{t0}, 5, v{t1}')
    p(f'v_and_b32 v{t2}, 7, v0\nv_bfe_u32 v{t3}, v0, 4, 2\nv_xor_b32 v{t2}, v{t2}, v{t3}\nv_lshlrev_b32 v{t2}, 4, v{t2}')
    p(f's_lshl_b32 s{s_tmp}, s{s_rb}, 17')
    p(f'v_lshl_add_u32 v{t1}, v{t1}, 10, v{t2}\nv_add_u32 v{vXg}, s{s_tmp}, v{t1}')
    p(f'v_xor_b32 v{vXg+1}, 64, v{vXg}\nv_add_u32 v{vXg+2}, 16384, v{vXg}\nv_add_u32 v{vXg+1}, 8192, v{vXg+1}\nv_add_u32 v{vXg+3}, 16384, v{vXg+1}')
    p(f'v_lshrrev_b32 v{t1}, 2, v0\nv_mul_u32_u24 v{t1}, 3072, v{t1}\nv_and_b32 v{t2}, 3, v0\nv_lshl_add_u32 v{t1}, v{t2}, 4, v{t1}')
    p(f's_lshl_b32 s{s_tmp}, s{s_hp}, 6\ns_add_u32 s{s_tmp}, s{s_tmp}, 1024')
    p(f'v_add_u32 v{vWg}, s{s_tmp}, v{t1}')
    p(f's_lshl_b32 s{s_m0b}, s{s_w}, 10\ns_lshl_b32 s{s_st}, s{s_w}, 12')
    p(f's_mov_b32 s{sW+2}, 0x180000\ns_mov_b32 s{sW+3}, 0x20000')
    p('s_waitcnt lgkmcnt(0)')
    p(f's_mov_b32 s{sW}, s{sX+2}\ns_mov_b32 s{sW+1}, s{sX+3}\ns_mov_b32 s{sX+2}, 0x200000\ns_mov_b32 s{sX+3}, 0x20000')
    def xslot(c): return RB + 16384*((c+1) % 3)
    def issue_k(c):
        L = []
        for i in range(4):
            L.append(('dma', f's_add_u32 m0, s{s_st}, {xslot(c)+1024*i}', f'buffer_load_dwordx4 v{vXg+i}, s[{sX}:{sX+3}], s{s_xo+c} offen {opt.get("ldflagx", LD)} lds', None))
        L.append(('dma', f's_add_u32 m0, s{s_m0b}, {RA+4096*c}', f'buffer_load_dwordx4 v{vWg}, s[{sW}:{sW+3}], s{s_wo+c} offen {LD} lds', f'wk{c}'))
        return L
    def issue_v(c):
        return [('dma', f's_add_u32 m0, s{s_st}, {RB+16384*(c>>2)+1024*(c&3)-1024}', f'buffer_load_dwordx4 v{vWg}, s[{sW}:{sW+3}], s{s_wo+c} offen offset:1024 {LD} lds', f'wv{c}')]
    def nextoff(c): p(f's_add_u32 s{s_xo+c}, s{s_xo+c-1}, 128\ns_and_b32 s{s_xo+c}, s{s_xo+c}, 1023\ns_mul_i32 s{s_wo+c}, s{s_xo+c}, 1536')
    ext2(issue_k(0))
    p(f'v_and_b32 v{vL16}, 63, v0\nv_lshlrev_b32 v{vL16}, 4, v{vL16}\nv_mov_b32 v{vEp}, 0')
    for s, n in ((sP, 0x4000), (sWS, 0x10000000 - WS_BASE)): p(f's_mov_b32 s{s+2}, {hex(n)}\ns_mov_b32 s{s+3}, 0x20000')
    if WS_BASE: p(f's_add_u32 s{sWS}, s{sWS}, {hex(WS_BASE)}\ns_addc_u32 s{sWS+1}, s{sWS+1}, 0')
    p(f's_lshl_b32 s{s_tmp2}, s{s_hp}, 10\ns_add_u32 m0, s{s_m0b}, {RA+28672}')
    nextoff(1)
    p(f'buffer_load_dwordx4 v{vL16}, s[{sP}:{sP+3}], s{s_tmp2} offen lds', tok='wphi')
    p(f'buffer_load_dword v{vEp}, v{vEp}, s[{sWS}:{sWS+3}], 0 offen offset:{WS_EB} sc1')
    for c in range(2, 8): nextoff(c)
    if not opt.get('late12', 0): ext2(issue_k(1)); ext2(issue_k(2))
    for s, n in ((sO, 0x80000), (sOUT, 0x400000)): p(f's_mov_b32 s{s+2}, {hex(n)}\ns_mov_b32 s{s+3}, 0x20000')
    R_, CQ, NH, H_ = P, P+1, P+2, P+3
    p(f'v_bfe_u32 v{R_}, v0, 2, 2\nv_and_b32 v{CQ}, 3, v0\nv_bfe_u32 v{NH}, v0, 4, 1\nv_bfe_u32 v{H_}, v0, 5, 1')
    p(f'v_lshl_add_u32 v{t0}, v{H_}, 3, v{R_}\nv_lshlrev_b32 v{t0}, 6, v{t0}')
    p(f'v_lshl_add_u32 v{t1}, v{NH}, 2, v{CQ}\nv_lshl_add_u32 v{vTR}, v{t1}, 3, v{t0}')
    p(f'v_and_b32 v{t1}, 1, v{CQ}\nv_lshl_add_u32 v{t2}, v{t1}, 1, v{NH}')
    p(f'v_lshrrev_b32 v{t3}, 1, v{CQ}\nv_lshl_add_u32 v{t2}, v{t2}, 1, v{t3}')
    p(f'v_lshl_add_u32 v{vTRv}, v{t2}, 3, v{t0}')
    p(f's_add_u32 s{s_tmp}, s{s_st}, {RB}')
    p(f'v_bfe_u32 v{t0}, v0, 1, 3\nv_xor_b32 v{t0}, v{t0}, v{H_}\nv_lshlrev_b32 v{t0}, 4, v{t0}')
    p(f'v_and_b32 v{t4}, 31, v0\nv_lshl_add_u32 v{t0}, v{t4}, 7, v{t0}\nv_add_u32 v{vSR}, s{s_tmp}, v{t0}')
    for j in range(1, 4): p(f'v_xor_b32 v{vSR+j}, {32*j}, v{vSR}')
    p(f'v_lshl_add_u32 v{t2}, v{NH}, 1, v{t3}\nv_lshlrev_b32 v{t2}, 3, v{t2}\nv_lshl_add_u32 v{t2}, v{t1}, 9, v{t2}')
    p(f'v_lshl_add_u32 v{t0}, v{H_}, 2, v{R_}\nv_lshl_add_u32 v{t2}, v{t0}, 5, v{t2}')
    p(f's_add_u32 s{s_tmp}, s{s_m0b}, {RA+28672}\nv_add_u32 v{t5}, s{s_tmp}, v{t2}')
    p(f's_mov_b32 s{s_c}, {hex(LOG2E)}\ns_and_b32 s{s_F}, s{s_w}, 1\ns_lshr_b32 s{s_H}, s{s_w}, 1')
    u0, u1, u2, u3, u4 = P+4, P+5, P+6, P+7, P+8
    kfill = []
    kfill += L_(f'''v_bfe_u32 v{u0}, v0, 1, 2
v_lshlrev_b32 v{a0}, 4, v{u0}
v_lshl_add_u32 v{a0}, v{t4}, 6, v{a0}
v_lshl_add_u32 v{a0}, v{H_}, 11, v{a0}
s_add_u32 s{s_tmp}, s{s_st}, {ST}
v_add_u32 v{a0}, s{s_tmp}, v{a0}
v_bfe_u32 v{u0}, v0, 2, 1
v_lshlrev_b32 v{b0}, 4, v{u0}
v_lshl_add_u32 v{b0}, v{t4}, 5, v{b0}
v_lshl_add_u32 v{b0}, v{H_}, 10, v{b0}
s_add_u32 s{s_tmp}, s{s_st}, {RB}
v_add_u32 v{b0}, s{s_tmp}, v{b0}''')
    kfill += L_(f'''v_lshrrev_b32 v{u0}, 1, v{R_}
v_lshl_add_u32 v{u0}, v{NH}, 1, v{u0}
s_lshl_b32 s{s_tmp2}, s{s_F}, 1
v_or_b32 v{u1}, s{s_tmp2}, v{t3}
v_xor_b32 v{u1}, v{u1}, v{u0}
v_bfe_u32 v{u2}, v0, 2, 4
v_lshlrev_b32 v{u3}, 3, v{t1}
v_lshl_add_u32 v{pa}, v{u1}, 4, v{u3}
v_lshl_add_u32 v{pa}, v{u2}, 6, v{pa}
s_lshl_b32 s{s_tmp}, s{s_H}, 11
s_add_u32 s{s_tmp}, s{s_tmp}, {ST}
v_add_u32 v{pa}, s{s_tmp}, v{pa}
v_xor_b32 v{u1}, v{t3}, v{NH}
v_lshl_add_u32 v{va}, v{u1}, 4, v{u3}
v_lshl_add_u32 v{va}, v{u2}, 5, v{va}
s_lshl_b32 s{s_tmp}, s{s_H}, 10
s_add_u32 s{s_tmp}, s{s_tmp}, {RB}
v_add_u32 v{va}, s{s_tmp}, v{va}''')
    kfill += L_(f'''v_lshlrev_b32 v{u0}, 5, v{CQ}
v_lshl_add_u32 v{u0}, v{NH}, 4, v{u0}
v_add_u32 v{u0}, 512, v{u0}
s_mov_b32 s{s_msk}, 0
s_mov_b32 s{s_msk+1}, -1
v_cndmask_b32 v{sa}, v{vL16}, v{u0}, s[{s_msk}:{s_msk+1}]
s_mul_i32 s{s_tmp}, s{s_hp}, {16*KVP_SZ}
s_mul_i32 s{s_tmp2}, s{s_w}, 640
s_add_u32 s{s_tmp}, s{s_tmp}, s{s_tmp2}
s_add_u32 s{s_so}, s{s_tmp}, {WS_KVP}
s_mul_i32 s{s_tmp}, s{s_rb}, {KVP_SZ}
s_add_u32 s{s_p1}, s{s_so}, s{s_tmp}
s_add_u32 s{s_so+1}, s{s_so}, {4*KVP_SZ}
s_add_u32 s{s_so+2}, s{s_so}, {8*KVP_SZ}
s_add_u32 s{s_so+3}, s{s_so}, {12*KVP_SZ}
v_mov_b32 v{vMask}, 0xfffefffe
v_bfe_u32 v{u0}, v0, 4, 2
v_mul_u32_u24 v{hA}, {KVP_SZ}, v{u0}
v_and_b32 v{u1}, 15, v0
v_lshl_add_u32 v{hA}, v{u1}, 4, v{hA}
v_bfe_u32 v{u1}, v0, 1, 2
v_lshl_add_u32 v{u1}, v{u1}, 2, v{u0}
v_mul_u32_u24 v{hZ}, {KVP_SZ}, v{u1}
v_and_b32 v{u1}, 1, v0
v_lshl_add_u32 v{hZ}, v{u1}, 4, v{hZ}
v_add_u32 v{hZ}, 512, v{hZ}
s_lshl2_add_u32 s{s_tmp}, s{s_rb}, s{s_w}
s_lshl4_add_u32 s{s_tmp}, s{s_tmp}, s{s_hp}
s_lshl_b32 s{s_tmp}, s{s_tmp}, 11
s_add_u32 s{s_p2}, s{s_tmp}, {WS_OX}
s_and_b32 s{s_tmp}, s{s_loc}, 3
s_lshl2_add_u32 s{s_rt}, s{s_xcd}, s{s_tmp}
s_lshr_b32 s{s_ct}, s{s_loc}, 2''')
    tagfill = [f'v_readfirstlane_b32 s{s_E1}, v{vEp}', 's_nop 0', f's_add_u32 s{s_E1}, s{s_E1}, 1']
    for j in range(4):
        tagfill += L_(f's_lshr_b32 s{s_tmp}, s{s_E1}, {2*j}\ns_and_b32 s{s_tmp2}, s{s_tmp}, 1\ns_and_b32 s{s_tmp}, s{s_tmp}, 2\ns_lshl_b32 s{s_tmp}, s{s_tmp}, 15\ns_or_b32 s{s_t+j}, s{s_tmp}, s{s_tmp2}')
    if opt.get('late12', 0): ext2(issue_k(1))
    p.ext(kfill)
    if opt.get('late12', 0): ext2(issue_k(2))
    def trpair(dst, addr, off, d2=256):
        return [f'ds_read_b64_tr_b16 {vr(dst,2)}, v{addr} offset:{off}', f'ds_read_b64_tr_b16 {vr(dst+2,2)}, v{addr} offset:{off+d2}']
    for c in range(8):
        p.wait_tok(f'wk{c}')
        if c == 0: stamp()
        stamp('k')
        for j in range(4): p(f'ds_read_b128 {vr(X+16*c+4*j,4)}, v{vSR+j} offset:{xslot(c)-RB}')
        p('s_barrier')
        for j in range(4): p.ext(trpair(WF+4*j, vTR, RA+4096*c+1024*j))
        if c == 1:
            p.ext(trpair(vA1, t5, 0))
        for j in range(4):
            p(f'v_mfma_f32_32x32x16_bf16 {vr(ACC0,16)}, {vr(WF+4*j,4)}, {vr(X+16*c+4*j,4)}, {"0" if (c==0 and j==0) else vr(ACC0,16)}')
        if c == 1:
            p(f's_mov_b32 s{s_msk}, 0x0f0f0f0f\ns_mov_b32 s{s_msk+1}, 0x0f0f0f0f')
            for j in range(4): p(f'v_cndmask_b32 v{vA2+j}, v{vA1+j}, 0, s[{s_msk}:{s_msk+1}]')
            for j in range(4): p(f'v_cndmask_b32 v{vA1+j}, 0, v{vA1+j}, s[{s_msk}:{s_msk+1}]')
            p.ext(tagfill)
        if c + 3 < 8: ext2(issue_k(c + 3))
        elif c == 5 or (c == 6 and not opt.get('v47late', 1)):
            for cc in range(4*(c-5), 4*(c-5)+4): ext2(issue_v(cc))
        elif c == 7 and opt.get('v47late', 1):
            for cc in range(4, 8): ext2(issue_v(cc))
    stamp(); stamp('k'); stamp('v')
    cap[0] = 0
    if opt.get('prioB'): p(f's_setprio {opt["prioB"]}')
    def phi_head(acc):
        L = [f'v_cvt_pk_bf16_f32 v{E+j}, v{acc+2*j}, v{acc+2*j+1}' for j in range(8)]
        L.insert(4, f'v_mfma_f32_32x32x16_bf16 {vr(P,16)}, {vr(vA1,4)}, {vr(E,4)}, 0')
        L.insert(4, L.pop(5)); L.insert(5, L.pop(6))
        L.append(f'v_mfma_f32_32x32x16_bf16 {vr(P,16)}, {vr(vA2,4)}, {vr(E+4,4)}, {vr(P,16)}')
        return L
    def phi_body(dst, normalize, wr=None):
        mx, mn = vT0, vT1
        L = [f'v_max3_f32 v{mx}, v{P}, v{P+1}, v{P+2}', f'v_min3_f32 v{mn}, v{P}, v{P+1}, v{P+2}']
        for j in range(3, 15, 2):
            L += [f'v_max3_f32 v{mx}, v{mx}, v{P+j}, v{P+j+1}', f'v_min3_f32 v{mn}, v{mn}, v{P+j}, v{P+j+1}']
        L += [f'v_max_f32 v{mx}, v{mx}, v{P+15}', f'v_min_f32 v{mn}, v{mn}, v{P+15}']
        L += [f'v_mul_f32 v{mx}, 0xbfb8aa3b, v{mx}', f'v_mul_f32 v{mn}, {hex(LOG2E)}, v{mn}']
        fm = [f'v_fma_f32 v{E+j}, v{P+j}, s{s_c}, v{mx}' for j in range(16)] + [f'v_fma_f32 v{E+16+j}, v{P+j}, -s{s_c}, v{mn}' for j in range(16)]
        ex = [f'v_exp_f32 v{E+j}, v{E+j}' for j in range(32)]
        L += fm[:2]
        for j in range(32):
            if j + 2 < 32: L.append(fm[j+2])
            L.append(ex[j])
        if normalize:
            for b in range(2):
                for j in range(4): L.append(f'v_add_f32 v{P+4*b+j}, v{E+16*b+j}, v{E+16*b+4+j}')
            for k in (8, 12):
                for b in range(2):
                    for j in range(4): L.append(f'v_add_f32 v{P+4*b+j}, v{P+4*b+j}, v{E+16*b+k+j}')
            for b in range(2):
                for j in range(2): L.append(f'v_add_f32 v{P+4*b+j}, v{P+4*b+j}, v{P+4*b+2+j}')
            for b in range(2): L.append(f'v_add_f32 v{P+4*b}, v{P+4*b}, v{P+4*b+1}')
            L += [f'v_rcp_f32 v{mx}, v{P}', f'v_rcp_f32 v{mn}, v{P+4}']
            for j in range(1, 4): L.append(f'v_xor_b32 v{P+8+j}, {16*j}, v{a0}')
            for g in range(4):
                for j in range(8): L.append(f'v_mul_f32 v{E+8*g+j}, v{E+8*g+j}, v{mx if g < 2 else mn}')
                for j in range(4): L.append(f'v_cvt_pk_bf16_f32 v{dst+4*g+j}, v{E+8*g+2*j}, v{E+8*g+2*j+1}')
                L.append(f'ds_write_b128 v{a0 if g == 0 else P+8+g}, {vr(dst+4*g,4)}')
        else:
            for j in range(16): L.append(f'v_cvt_pk_bf16_f32 v{dst+j}, v{E+2*j}, v{E+2*j+1}')
        return L
    PRE = opt.get('pre', 4)
    def gemm_slots(acc, addr, offf, events={}):
        def rd(n):
            c, j = n >> 2, n & 3
            L = list(events.get(c, [])) if j == 0 else []
            return L + trpair(WF+4*(n % NSL), addr, offf(c, j))
        pro = []
        for n in range(PRE): pro += rd(n)
        slots = []
        for n in range(32):
            c, j = n >> 2, n & 3
            sl = [f'v_mfma_f32_32x32x16_bf16 {vr(acc,16)}, {vr(WF+4*(n%NSL),4)}, {vr(X+16*c+4*j,4)}, {"0" if n==0 else vr(acc,16)}']
            if n+PRE < 32: sl += rd(n+PRE)
            slots.append(sl)
        return pro, slots
    p.ext(phi_head(ACC0))
    body = phi_body(ACC0, True)
    vg = opt.get('vgrp', 2)
    ev = {c: [('waittok', f'wv{c+vg-1}'), 's_barrier'] for c in range(0, 8, vg)}
    ev[0] = [('waittok', f'wv{vg-1}'), 's_barrier', f'v_subrev_u32 v{vWg}, 1024, v{vWg}']
    pro, slots = gemm_slots(ACC1, vTRv, lambda c, j: RB + 16384*(c >> 2) + 4096*j + 1024*(c & 3), ev)
    wq = [('dma', f's_add_u32 m0, s{s_m0b}, {RA+4096*c}', f'buffer_load_dwordx4 v{vWg}, s[{sW}:{sW+3}], s{s_wo+c} offen {LD} lds', f'wq{c}') for c in range(8)]
    stamp('v')
    ext2(pro)
    nhead = opt.get('phik_head', 8)
    p.ext(body[:nhead]); rest = body[nhead:]
    stamp('v')
    pfw = []
    if opt.get('pfwo', 0):
        pfw = [f'v_and_b32 v{vEp}, 31, v0', f'v_lshlrev_b32 v{vEp}, 7, v{vEp}', f's_lshl2_add_u32 s3, s{s_loc}, s{s_w}', 's_lshl_b32 s3, s3, 12',
               f'buffer_load_dword v{vEp}, v{vEp}, s[{sO}:{sO+3}], s3 offen']
    sl = slotted(slots, [(rest, 0, opt.get('phik_last', 31)), (wq, opt.get('wq_at', 2), opt.get('wq_end', 16)), (pfw, opt.get('pfwo_at', 18), opt.get('pfwo_at', 18)+1)])
    if opt.get('stampset') == 'v':
        mi = [k for k, x in enumerate(sl) if isinstance(x, str) and x.startswith('v_mfma')]
        prev = 0
        for k in (mi[8], mi[16], mi[24]):
            ext2(sl[prev:k]); stamp('v'); prev = k
        ext2(sl[prev:])
    else: ext2(sl)
    stamp(); stamp('v')
    VB = E; ONES = P
    p(f'v_xor_b32 v{P+4}, 16, v{b0}')
    for j in range(4): p(f'v_mov_b32 v{ONES+j}, 0x3f803f80')
    for j in range(8):
        p(f'v_cvt_pk_bf16_f32 v{VB+j}, v{ACC1+2*j}, v{ACC1+2*j+1}')
        if j == 3: p(f'ds_write_b128 v{b0}, {vr(VB,4)}')
    p(f'ds_write_b128 v{P+4}, {vr(VB+4,4)}')
    p('s_waitcnt lgkmcnt(0)\ns_barrier')
    stamp('v')
    KV, Z, R0 = P+8, P+12, E+8
    FRG = ACC0
    for ks in range(4):
        p.ext(trpair(FRG+8*ks, pa, 4096*ks, 1024)); p.ext(trpair(FRG+8*ks+4, va, 4096*ks, 512))
    for ks in range(4):
        p(f'v_mfma_f32_16x16x32_bf16 {vr(Z,4)}, {vr(FRG+8*ks,4)}, {vr(ONES,4)}, {"0" if ks==0 else vr(Z,4)}')
        p(f'v_mfma_f32_16x16x32_bf16 {vr(KV,4)}, {vr(FRG+8*ks,4)}, {vr(FRG+8*ks+4,4)}, {"0" if ks==0 else vr(KV,4)}')
    p(f's_mov_b32 s{s_rdy}, 0\ns_mov_b32 s{s_sp}, 0')
    p(f'v_cvt_pk_bf16_f32 v{R0+2}, v{Z}, v{Z+1}\nv_cvt_pk_bf16_f32 v{R0+3}, v{Z+2}, v{Z+3}')
    p(f'v_cvt_pk_bf16_f32 v{R0}, v{KV}, v{KV+1}\nv_cvt_pk_bf16_f32 v{R0+1}, v{KV+2}, v{KV+3}')
    p(f'v_permlane32_swap_b32 v{R0}, v{R0+2}\nv_permlane32_swap_b32 v{R0+1}, v{R0+3}')
    for j in range(4): p(f'v_and_or_b32 v{R0+j}, v{R0+j}, v{vMask}, s{s_t+j}')
    p(f's_mov_b32 exec_hi, 0x000f000f')
    p(f'buffer_store_dwordx4 {vr(R0,4)}, v{sa}, s[{sWS}:{sWS+3}], s{s_p1} offen sc1')
    p(f's_mov_b32 exec_hi, -1')
    stamp(); stamp('v'); stamp('q')
    if opt.get('skew'):
        if opt['skew'] == 'pub1': p('s_memrealtime s[78:79]\ns_waitcnt lgkmcnt(0)')
        p(f'v_mov_b32 v{E+20}, s78\ns_lshl_b32 s98, s2, 2\nv_mov_b32 v{E+21}, s98\ns_mov_b32 s98, {WS_STAMP}')
        p(f'buffer_store_dword v{E+20}, v{E+21}, s[{sWS}:{sWS+3}], s98 offen sc1')
    p.wait_tok('wq7')
    p('s_barrier')
    stamp('q')
    pro, slots = gemm_slots(ACC0, vTR, lambda c, j: RA + 4096*c + 1024*j)
    ext2(pro)
    cA, cD = E+2, E+4
    p.ext(L_(f'''s_mul_i32 s{s_tmp}, s{s_H}, 1600
s_mul_i32 s{s_tmp2}, s{s_F}, 80
s_add_u32 s{s_tmp}, s{s_tmp}, s{s_tmp2}
s_add_u32 s{s_tmp3}, s{s_tmp}, {KT+16*80}
v_bfe_u32 v{cA}, v0, 2, 4
v_mul_u32_u24 v{cA}, 160, v{cA}
v_add_u32 v{cA}, s{s_tmp3}, v{cA}
s_mov_b64 s[{s_msk}:{s_msk+1}], 0xf00
v_mov_b32 v{cD}, {ZERO}
v_cndmask_b32 v{cA}, v{cA}, v{cD}, s[{s_msk}:{s_msk+1}]
v_and_b32 v{cD}, 3, v0
v_lshl_add_u32 v{cA}, v{cD}, 4, v{cA}
s_lshl_b32 s{s_tmp2}, s{s_F}, 1
s_lshl_b32 s{s_msk}, 3, s{s_tmp2}
v_mov_b32 v{cD+1}, 0x3f803f80
v_cndmask_b32 v{cD}, 0, v{cD+1}, s[{s_msk}:{s_msk+1}]
v_mov_b32 v{cD+1}, v{cD}
v_mov_b32 v{cD+2}, v{cD}
v_mov_b32 v{cD+3}, v{cD}
s_mov_b64 exec, 0xfff
ds_write_b128 v{cA}, {vr(cD,4)}
s_mov_b64 exec, -1'''))
    SEL = ACC1
    tK, tZ, aN, aX, zc = ACC1+8, ACC1+9, ACC1+10, ACC1+11, ACC1+12
    w0, w1, w2 = ACC1+13, ACC1+14, ACC1+15
    vOg = vWg
    s_r8 = s_xo
    fill = []
    fill0 = []
    fill0 += L_(f'''v_bfe_u32 v{w0}, v0, 4, 1
v_lshlrev_b32 v{w0}, 2, v{w0}
v_and_b32 v{w1}, 7, v0
v_xor_b32 v{w0}, v{w0}, v{w1}
v_lshlrev_b32 v{w0}, 4, v{w0}
v_lshrrev_b32 v{w1}, 3, v0
v_lshl_add_u32 v{w0}, v{w1}, 10, v{w0}
s_lshl_b32 s{s_tmp2}, s{s_ct}, 7
v_add_u32 v{vOg}, s{s_tmp2}, v{w0}''')
    for n in range(8): fill0 += L_(f's_add_u32 s{s_r8+n}, s{s_ct}, {n}\ns_and_b32 s{s_r8+n}, s{s_r8+n}, 7')
    fill = L_(f'''v_and_b32 v{w0}, 1, v0
v_lshlrev_b32 v{w0}, 4, v{w0}
v_mov_b32 v{w1}, 0x3f80
v_lshlrev_b32 v{w0}, v{w0}, v{w1}
v_bfe_u32 v{w1}, v0, 1, 3''')
    mk = [(s_msk, s_msk+1), (6, 7)]
    for j in range(0, 8, 2):
        fill += [f'v_cmp_eq_u32 s[{mk[0][0]}:{mk[0][1]}], {j}, v{w1}', f'v_cmp_eq_u32 s[{mk[1][0]}:{mk[1][1]}], {j+1}, v{w1}', f's_nop 0',
                 f'v_cndmask_b32 v{SEL+j}, 0, v{w0}, s[{mk[0][0]}:{mk[0][1]}]', f'v_cndmask_b32 v{SEL+j+1}, 0, v{w0}, s[{mk[1][0]}:{mk[1][1]}]']
    fill += L_(f'''v_bfe_u32 v{w0}, v0, 4, 1
v_bfe_u32 v{w1}, v0, 5, 1
v_lshl_add_u32 v{w2}, v{w0}, 1, v{w1}
v_and_b32 v{tK}, 15, v0
v_mul_u32_u24 v{tK}, 80, v{tK}
v_lshl_add_u32 v{tK}, v{w2}, 3, v{tK}
s_lshl_b32 s{s_tmp2}, s{s_F}, 5
s_add_u32 s{s_tmp}, s{s_tmp}, s{s_tmp2}
s_add_u32 s{s_tmp3}, s{s_tmp}, {KT+18*80}
v_and_b32 v{w2}, 1, v0
v_lshl_add_u32 v{w2}, v{w0}, 1, v{w2}
v_lshlrev_b32 v{tZ}, 3, v{w2}
v_add_u32 v{tZ}, s{s_tmp3}, v{tZ}
s_mul_i32 s{s_tmp2}, s{s_F}, 80
s_sub_u32 s{s_tmp}, s{s_tmp}, s{s_tmp2}
s_add_u32 s{s_tmp}, s{s_tmp}, {KT}
v_add_u32 v{tK}, s{s_tmp}, v{tK}
v_bfe_u32 v{w0}, v0, 3, 2
v_and_b32 v{w2}, 3, v0
v_lshl_add_u32 v{w0}, v{w0}, 2, v{w2}
v_mul_u32_u24 v{aN}, 80, v{w0}
v_mul_u32_u24 v{w1}, 1600, v{w1}
v_add_u32 v{w1}, {KT}, v{w1}
v_add_u32 v{aN}, v{aN}, v{w1}
v_mul_u32_u24 v{aX}, 80, v{w2}
v_add_u32 v{aX}, v{aX}, v{w1}
v_add_u32 v{aX}, {16*80}, v{aX}
v_mov_b32 v{w0}, {ZERO}
s_mov_b32 s{s_msk}, 0x0f0f0f0f
s_mov_b32 s{s_msk+1}, 0xf0f0f0f0
v_cndmask_b32 v{aN}, v{w0}, v{aN}, s[{s_msk}:{s_msk+1}]
s_mov_b32 s{s_msk}, 0x0000000f
s_mov_b32 s{s_msk+1}, 0x000000f0
v_cndmask_b32 v{aX}, v{w0}, v{aX}, s[{s_msk}:{s_msk+1}]''')
    def wo_dma(half):
        return [('dma', f's_lshl_b32 s3, s{s_r8+n}, 15\n' + (f's_add_u32 s3, s3, 0x40000\n' if half else '') + f's_add_u32 m0, s{s_m0b}, {(RB if half==0 else RA)+4096*n}',
                 f'buffer_load_dwordx4 v{vOg}, s[{sO}:{sO+3}], s3 offen lds', f'wo{half}_{n}') for n in range(8)]
    HZ, HK = E+12, X
    HZ = X + 32
    def z_load(): return f'buffer_load_dwordx4 {vr(HZ,4)}, v{hZ}, s[{sWS}:{sWS+3}], s{s_so} offen sc1'
    def kv_list():
        return [f'buffer_load_dwordx4 {vr(HK+8*m+4*st,4)}, v{hA}, s[{sWS}:{sWS+3}], s{s_so+m} offen offset:{256*st} sc1' for m in range(4) for st in range(2)]
    def z_check():
        return [f'v_xor_b32 v{zc}, s{s_t}, v{HZ}'] + [f'v_bitop3_b32 v{zc}, v{zc}, v{HZ+j}, s{s_t+j} bitop3:0xf6' for j in range(1, 4)] + [f'v_and_b32 v{zc}, 0x00010001, v{zc}', f'v_cmp_ne_u32 vcc, 0, v{zc}']
    zat = opt.get('z_at', 10); h1 = opt.get('h1_at', 30)
    assert zat >= 9
    def go_block():
        L = kv_list() + [f's_mov_b32 s{s_rdy}, 1']
        return L
    cpn = [0]
    def checkpoint(first=False):
        k = cpn[0]; cpn[0] += 1
        if not first: p(f's_cmp_lg_u32 s{s_rdy}, 0\ns_cbranch_scc1 B_CP{k}\ns_waitcnt vmcnt(0)')
        p.ext(z_check())
        p(f's_cbranch_vccz B_CPGO{k}')
        p(z_load(), tok='nocount')
        p(f'B_CP{k}:')
    stamp('q')
    WOP = opt.get('woplan', 0)
    if WOP == 1:
        sq = slotted(slots[:h1], [(fill0, 0, 1), (wo_dma(0), 2, zat-1), (fill, 2, h1-1), ([z_load()], zat, zat)])
    else:
        sq = slotted(slots[:h1], [(fill0 + fill, 0, h1-1), ([z_load()], zat, zat)])
    ext2(sq)
    stamp('q')
    checkpoint(True)
    stamp('q')
    ext2(slotted(slots[h1:], []))
    stamp(); stamp('q')
    EQ = X + 48
    hd = phi_head(ACC0); bd = phi_body(EQ, False)
    if WOP == 1: p('s_barrier')
    ext2(hd)
    nw1 = opt.get('wo1_early', 4) if WOP == 1 else 0
    cps = [int(x) for x in str(opt.get('cps', '60')).split('-') if x != '']
    prev = 0
    for c in cps:
        ext2(bd[prev:c]); checkpoint(); prev = c
    ext2(interleave(bd[prev:], wo_dma(1)[:nw1]) if nw1 else bd[prev:])
    stamp(); stamp('q')
    chk = zc
    DZ, DK = P, P+4
    p(f's_cmp_eq_u32 s{s_rdy}, 0\ns_cbranch_scc1 B_H1_POLL')
    p('B_H1_CHK:')
    p.assume_clean()
    p.pretend(kv_list(), [None]*8)
    if WOP == 1:
        wo0 = wo_dma(1)[nw1:] + [None]*8
    else: wo0 = wo_dma(0)
    p(f'v_mfma_f32_16x16x32_bf16 {vr(DZ,4)}, {vr(SEL,4)}, {vr(HZ,4)}, 0')
    for n in range(8):
        p(f'v_mfma_f32_16x16x32_bf16 {vr(DK,4)}, {vr(SEL+4*(n&1),4)}, {vr(HK+4*n,4)}, {"0" if n==0 else vr(DK,4)}')
        for j in range(4):
            if n == 0 and j == 0: p(f'v_xor_b32 v{chk}, s{s_t}, v{HK}')
            else: p(f'v_bitop3_b32 v{chk}, v{chk}, v{HK+4*n+j}, s{s_t+j} bitop3:0xf6')
        if wo0[n]: ext2([wo0[n]])
        if n == 1:
            for j in range(4): p(f'v_add_f32_dpp v{DZ+j}, v{DZ+j}, v{DZ+j} row_ror:2 row_mask:0xf bank_mask:0xf')
        if n == 2:
            for j in range(4): p(f'v_add_f32_dpp v{DZ+j}, v{DZ+j}, v{DZ+j} row_ror:4 row_mask:0xf bank_mask:0xf')
        if n == 3:
            p(f'v_cvt_pk_bf16_f32 v{DZ}, v{DZ}, v{DZ+1}\nv_cvt_pk_bf16_f32 v{DZ+1}, v{DZ+2}, v{DZ+3}')
            p('s_mov_b64 exec, 0x00030003')
            p(f'ds_write_b64 v{tZ}, {vr(DZ,2)}')
            p('s_mov_b64 exec, -1')
    p(f'v_and_b32 v{chk}, 0x00010001, v{chk}')
    p(f'v_cmp_ne_u32 vcc, 0, v{chk}')
    p('s_cbranch_vccnz B_H1_RETRY')
    p('B_H1_OK:')
    stamp('q')
    p(f'v_cvt_pk_bf16_f32 v{DK}, v{DK}, v{DK+1}\nv_cvt_pk_bf16_f32 v{DK+1}, v{DK+2}, v{DK+3}')
    p(f'ds_write_b64 v{tK}, {vr(DK,2)}')
    p('s_waitcnt lgkmcnt(0)\ns_barrier')
    stamp(); stamp('q'); stamp('g')
    OFR = X
    for j in range(4): p(f'ds_read_b128 {vr(OFR+4*j,4)}, v{aX} offset:{16*j}')
    for j in range(4): p(f'ds_read_b128 {vr(OFR+16+4*j,4)}, v{aN} offset:{16*j}')
    AUX, NP, NM = P, ACC0, ACC1
    for j in range(4): p(f'v_mfma_f32_32x32x16_bf16 {vr(AUX,16)}, {vr(OFR+4*j,4)}, {vr(EQ+4*j,4)}, {"0" if j==0 else vr(AUX,16)}')
    for j in range(2): p(f'v_mfma_f32_32x32x16_bf16 {vr(NP,16)}, {vr(OFR+16+4*j,4)}, {vr(EQ+4*j,4)}, {"0" if j==0 else vr(NP,16)}')
    for j in range(2, 4): p(f'v_mfma_f32_32x32x16_bf16 {vr(NM,16)}, {vr(OFR+16+4*j,4)}, {vr(EQ+4*j,4)}, {"0" if j==2 else vr(NM,16)}')
    c0 = E
    p(f'v_rcp_f32 v{c0}, v{AUX}\nv_rcp_f32 v{c0+1}, v{AUX+1}')
    p(f'v_mul_f32 v{c0+2}, v{AUX+2}, v{c0}\nv_fma_f32 v{c0+2}, v{AUX+3}, v{c0+1}, v{c0+2}\nv_add_f32 v{c0+2}, 0x358637bd, v{c0+2}')
    p(f'v_rcp_f32 v{c0+2}, v{c0+2}')
    p(f'v_mul_f32 v{c0}, v{c0}, v{c0+2}\nv_mul_f32 v{c0+1}, v{c0+1}, v{c0+2}')
    OB = E+16
    for hh in range(2):
        for j in range(8*hh, 8*hh+8): p(f'v_mul_f32 v{NP+j}, v{NP+j}, v{c0}')
        for j in range(8*hh, 8*hh+8): p(f'v_fmac_f32 v{NP+j}, v{NM+j}, v{c0+1}')
        for j in range(4*hh, 4*hh+4): p(f'v_cvt_pk_bf16_f32 v{OB+j}, v{NP+2*j}, v{NP+2*j+1}')
        for j in range(4*hh, 4*hh+4): p(f'v_and_or_b32 v{OB+j}, v{OB+j}, v{vMask}, s{s_t+(j&3)}')
        p(f'buffer_store_dwordx4 {vr(OB+4*hh,4)}, v{vL16}, s[{sWS}:{sWS+3}], s{s_p2} offen offset:{1024*hh} sc1')
    stamp(); stamp('g')
    setup = L_(f'''s_lshl2_add_u32 s{s_tmp}, s{s_rt}, s{s_w}
s_lshl_b32 s{s_tmp}, s{s_tmp}, 14
s_add_u32 s{s_so}, s{s_tmp}, {WS_OX}''')
    wa, wb, pl, oa, xw, xr = E, E+1, E+2, E+3, E+6, E+7
    chk = E+8
    setup += L_(f'''v_bfe_u32 v{E+4}, v0, 2, 2
v_bfe_u32 v{E+5}, v0, 5, 1
v_lshl_add_u32 v{E+9}, v{E+5}, 4, v{E+4}
v_lshlrev_b32 v{wa}, 7, v{E+9}
v_lshrrev_b32 v{E+4}, 1, v{E+4}
v_xor_b32 v{E+4}, s{s_F}, v{E+4}
v_lshl_add_u32 v{wa}, v{E+4}, 6, v{wa}
v_and_b32 v{E+4}, 63, v{vTRv}
v_add_u32 v{wa}, v{wa}, v{E+4}
s_xor_b32 s{s_tmp3}, s{s_F}, 1
s_lshl_b32 s{s_tmp3}, s{s_tmp3}, 15
v_add_u32 v{wa}, s{s_tmp3}, v{wa}
v_xor_b32 v{wb}, 64, v{wa}
v_and_b32 v{pl}, 7, v0
v_lshlrev_b32 v{pl}, 11, v{pl}
v_add_u32 v{pl}, 2032, v{pl}
v_and_b32 v{E+4}, 31, v0
v_lshlrev_b32 v{E+5}, 5, v{E+5}
v_lshl_add_u32 v{oa}, v{E+4}, 11, v{E+5}
s_lshl1_add_u32 s{s_tmp}, s{s_rt}, s{s_H}
s_lshl_b32 s{s_tmp}, s{s_tmp}, 16
s_lshl1_add_u32 s{s_tmp3}, s{s_ct}, s{s_F}
s_lshl_b32 s{s_tmp3}, s{s_tmp3}, 6
s_add_u32 s{s_oo}, s{s_tmp}, s{s_tmp3}
s_add_u32 s{s_oo}, s{s_oo}, 1024
s_add_u32 s{s_tmp}, s{s_st}, {ST}
s_xor_b32 s{s_tmp3}, s{s_st}, 4096
s_add_u32 s{s_tmp3}, s{s_tmp3}, {ST}
v_add_u32 v{xw}, s{s_tmp}, v{vL16}
v_add_u32 v{xr}, s{s_tmp3}, v{vL16}''')
    e2w, e2r = E+10, E+12
    if opt.get('e2'):
        setup += L_(f"""v_and_b32 v{E+4}, 31, v0
v_bfe_u32 v{E+5}, v0, 5, 1
s_lshl_b32 s{s_tmp}, s{s_F}, 2
v_lshl_add_u32 v{E+5}, v{E+5}, 1, s{s_tmp}
v_and_b32 v{E+9}, 7, v0
v_xor_b32 v{E+5}, v{E+5}, v{E+9}
v_lshlrev_b32 v{E+5}, 4, v{E+5}
v_lshl_add_u32 v{E+5}, v{E+4}, 7, v{E+5}
s_lshl_b32 s{s_tmp}, s{s_H}, 12
v_add_u32 v{e2w}, s{s_tmp}, v{E+5}
v_xor_b32 v{e2w+1}, 16, v{e2w}
v_lshlrev_b32 v{e2r}, 4, v0
v_bfe_u32 v{E+4}, v0, 3, 3
v_xor_b32 v{E+4}, v{E+4}, v{E+9}
v_lshlrev_b32 v{E+4}, 4, v{E+4}
v_lshrrev_b32 v{E+5}, 3, v0
v_lshl_add_u32 v{oa}, v{E+5}, 11, v{E+4}
s_lshl_b32 s{s_tmp}, s{s_rt}, 17
s_lshl_b32 s{s_tmp3}, s{s_ct}, 7
s_add_u32 s{s_oo}, s{s_tmp}, s{s_tmp3}
s_add_u32 s{s_oo}, s{s_oo}, 1024
s_add_u32 s{s_tmp2}, s{s_oo}, 65536""")
    ext2(setup if WOP == 1 else interleave(setup, wo_dma(1)))
    if opt.get('pollwait'): p('s_waitcnt vmcnt(0)')
    for n in range(8): p(f's_lshl_b32 s{s_r8+n}, s{s_r8+n}, 11\ns_add_u32 s{s_r8+n}, s{s_r8+n}, s{s_so}')
    OF = X
    stamp('g')
    if not opt.get('nopoll2'):
        p('B_H2_POLL:')
        p(f'buffer_load_dwordx4 {vr(OF,4)}, v{pl}, s[{sWS}:{sWS+3}], s{s_so} offen sc1')
        p(f's_add_u32 s{s_sp}, s{s_sp}, 1\ns_cmp_gt_u32 s{s_sp}, {SPIN_MAX}\ns_cbranch_scc1 B_H2_FIRST')
        p(f'v_xor_b32 v{chk}, s{s_t}, v{OF}')
        for j in range(1, 4): p(f'v_bitop3_b32 v{chk}, v{chk}, v{OF+j}, s{s_t+j} bitop3:0xf6')
        p(f'v_and_b32 v{chk}, 0x00010001, v{chk}')
        p(f'v_cmp_ne_u32 vcc, 0, v{chk}')
        p('s_cbranch_vccnz B_H2_POLL')
    p('B_H2_FIRST:')
    stamp(); stamp('g')
    def o_loads():
        for n in range(16):
            p(f'buffer_load_dwordx4 {vr(OF+4*n,4)}, v{vL16}, s[{sWS}:{sWS+3}], s{s_r8+(n>>1)} offen offset:{1024*(n&1)} sc1')
    o_loads()
    p('s_waitcnt vmcnt(16)\ns_barrier')
    stamp('g')
    p('B_H2_GO:')
    AK, AS = ACC0, P
    W2 = X + 64
    def wofr(n, slot):
        off = 128*(32*(n >> 1) + 8*(n & 1))
        return trpair(W2+8*slot+4, wb, off, 512) + trpair(W2+8*slot, wa, off, 512)
    NS2 = 5
    for n in range(3): p.ext(wofr(n, n))
    for n in range(16):
        p(f'v_mfma_f32_32x32x16_bf16 {vr(AS,16)}, {vr(W2+8*(n%NS2)+4,4)}, {vr(OF+4*n,4)}, {"0" if n==0 else vr(AS,16)}')
        if n+3 < 16: p.ext(wofr(n+3, (n+3) % NS2)[:2])
        for j in range(2):
            if n == 0 and j == 0: p(f'v_xor_b32 v{chk}, s{s_t}, v{OF}')
            else: p(f'v_bitop3_b32 v{chk}, v{chk}, v{OF+4*n+j}, s{s_t+j} bitop3:0xf6')
        p(f'v_mfma_f32_32x32x16_bf16 {vr(AK,16)}, {vr(W2+8*(n%NS2),4)}, {vr(OF+4*n,4)}, {"0" if n==0 else vr(AK,16)}')
        if n+3 < 16: p.ext(wofr(n+3, (n+3) % NS2)[2:])
        for j in range(2, 4): p(f'v_bitop3_b32 v{chk}, v{chk}, v{OF+4*n+j}, s{s_t+j} bitop3:0xf6')
    p(f'v_and_b32 v{chk}, 0x00010001, v{chk}')
    p(f'v_cmp_ne_u32 vcc, 0, v{chk}')
    p('s_cbranch_vccnz B_H2_RETRY')
    p('B_H2_OK:')
    stamp('g')
    for j in range(4): p(f'ds_write_b128 v{xw}, {vr(AS+4*j,4)} offset:{1024*j}')
    p('s_waitcnt lgkmcnt(0)\ns_barrier')
    stamp('g')
    for j in range(4): p(f'ds_read_b128 {vr(AS+4*j,4)}, v{xr} offset:{1024*j}')
    STF = opt.get('outflag', '')
    if not opt.get('e2'):
        for hh in range(2):
            for j in range(8): p(f'v_add_f32 v{AK+8*hh+j}, v{AK+8*hh+j}, v{AS+8*hh+j}')
            for j in range(4): p(f'v_cvt_pk_bf16_f32 v{OB+4*hh+j}, v{AK+8*hh+2*j}, v{AK+8*hh+2*j+1}')
            p(f'buffer_store_dwordx4 {vr(OB+4*hh,4)}, v{oa}, s[{sOUT}:{sOUT+3}], s{s_oo} offen offset:{16*hh} {STF}')
    else:
        for hh in range(2):
            for j in range(8): p(f'v_add_f32 v{AK+8*hh+j}, v{AK+8*hh+j}, v{AS+8*hh+j}')
            for j in range(4): p(f'v_cvt_pk_bf16_f32 v{OB+4*hh+j}, v{AK+8*hh+2*j}, v{AK+8*hh+2*j+1}')
            p(f'ds_write_b128 v{e2w+hh}, {vr(OB+4*hh,4)}')
        p('s_waitcnt lgkmcnt(0)\ns_barrier')
        p(f'ds_read_b128 {vr(AS,4)}, v{e2r}\nds_read_b128 {vr(AS+4,4)}, v{e2r} offset:4096')
        p(f'buffer_store_dwordx4 {vr(AS,4)}, v{oa}, s[{sOUT}:{sOUT+3}], s{s_oo} offen {STF}')
        p(f'buffer_store_dwordx4 {vr(AS+4,4)}, v{oa}, s[{sOUT}:{sOUT+3}], s{s_tmp2} offen {STF}')
    stamp('g')
    p(f's_or_b32 s{s_tmp}, s2, s{s_w}\ns_cmp_lg_u32 s{s_tmp}, 0\ns_cbranch_scc1 B_END')
    p(f'v_mov_b32 v{E}, s{s_E1}\nv_mov_b32 v{E+1}, 0\ns_mov_b64 exec, 1')
    p(f'buffer_store_dword v{E}, v{E+1}, s[{sWS}:{sWS+3}], 0 offen offset:{WS_EB} sc1')
    if opt.get('probe'):
        p('s_mul_i32 s98, s98, 100\ns_memtime s[90:91]\ns_waitcnt lgkmcnt(0)\nB_PRB:\ns_memtime s[94:95]\ns_waitcnt lgkmcnt(0)\ns_sub_u32 s94, s94, s90\ns_cmp_lt_u32 s94, s98\ns_cbranch_scc1 B_PRB')
    if opt.get('skew'):
        p(f's_mov_b64 exec, -1\ns_mov_b32 s98, {WS_STAMP}\nbuffer_load_dwordx4 v[20:23], v{vL16}, s[{sWS}:{sWS+3}], s98 offen sc1\ns_waitcnt vmcnt(0)')
        for j in range(4): p(f'v_subrev_u32 v{20+j}, s78, v{20+j}')
        if opt.get('skewmode') == 'late':
            p('v_max3_i32 v24, v20, v21, v22\nv_max_i32 v24, v24, v23\ns_mov_b32 s92, 0')
            for l in range(64): p(f'v_readlane_b32 s93, v24, {l}\ns_max_i32 s92, s92, s93')
        else:
            p('v_min3_i32 v24, v20, v21, v22\nv_min_i32 v24, v24, v23\ns_mov_b32 s92, 0')
            for l in range(64): p(f'v_readlane_b32 s93, v24, {l}\ns_min_i32 s92, s92, s93')
            p('s_sub_u32 s92, 0, s92')
        p('s_mul_i32 s92, s92, 20\ns_memrealtime s[90:91]\ns_waitcnt lgkmcnt(0)\nB_SKW:\ns_memrealtime s[94:95]\ns_waitcnt lgkmcnt(0)\ns_sub_u32 s94, s94, s90\ns_cmp_lt_u32 s94, s92\ns_cbranch_scc1 B_SKW')
    if opt.get('amp'):
        p('s_waitcnt vmcnt(0)\ns_memrealtime s[90:91]\ns_waitcnt lgkmcnt(0)')
        if opt.get('amp_at', -1) < 0: p('s_mov_b32 s99, s90')
        p(f's_sub_u32 s92, s99, s78\ns_mul_i32 s92, s92, {opt["amp"]}\nB_AMP:\ns_memrealtime s[94:95]\ns_waitcnt lgkmcnt(0)\ns_sub_u32 s94, s94, s90\ns_cmp_lt_u32 s94, s92\ns_cbranch_scc1 B_AMP')
    p('B_END:')
    if opt.get('stamps'):
        p('s_mov_b64 exec, -1')
        p('s_waitcnt vmcnt(0)')
        p('s_memtime s[100:101]\ns_memrealtime s[76:77]\ns_waitcnt lgkmcnt(0)')
        for k in range(11): p(f'v_mov_b32 v{16+k}, s{80+2*k}')
        p('v_mov_b32 v27, s78\nv_mov_b32 v28, s76\n' + f'v_mov_b32 v29, s{s_sp}\nv_mov_b32 v30, s{s_rdy}')
        p(f's_lshl_b32 s{s_tmp}, s2, 8\ns_lshl_b32 s{s_tmp2}, s{s_w}, 6\ns_add_u32 s{s_tmp}, s{s_tmp}, s{s_tmp2}\ns_add_u32 s{s_tmp}, s{s_tmp}, {WS_STAMP}')
        p('v_mov_b32 v0, 0\ns_mov_b64 exec, 1')
        for k in range(4): p(f'buffer_store_dwordx4 v[{16+4*k}:{19+4*k}], v0, s[{sWS}:{sWS+3}], s{s_tmp} offen offset:{16*k}')
    p('s_endpgm')
    p.assume_clean()
    for k in range(cpn[0]):
        p(f'B_CPGO{k}:')
        ext2(go_block())
        p(f's_branch B_CP{k}')
        p.assume_clean()
    p('B_H1_POLL:')
    p('s_waitcnt vmcnt(0)')
    p.ext(z_check())
    p(f's_add_u32 s{s_sp}, s{s_sp}, 1\ns_cmp_gt_u32 s{s_sp}, {SPIN_MAX}\ns_cbranch_scc1 B_H1_GO')
    p('s_cbranch_vccz B_H1_GO')
    p(z_load())
    p('s_branch B_H1_POLL')
    p('B_H1_GO:')
    ext2(go_block())
    p('s_branch B_H1_CHK')
    p.assume_clean()
    p('B_H1_RETRY:')
    p(f's_add_u32 s{s_sp}, s{s_sp}, 1\ns_cmp_gt_u32 s{s_sp}, {SPIN_MAX}\ns_cbranch_scc1 B_H1_OK')
    p('s_sleep 2')
    p.ext(kv_list())
    p('s_waitcnt vmcnt(0)\ns_branch B_H1_CHK')
    p.assume_clean()
    p('B_H2_RETRY:')
    p(f's_add_u32 s{s_sp}, s{s_sp}, 1\ns_cmp_gt_u32 s{s_sp}, {SPIN_MAX}\ns_cbranch_scc1 B_H2_OK')
    p('s_sleep 2')
    o_loads()
    p('s_branch B_H2_GO')
    p.assume_clean()
```

```python
import os
WS_BASE = int(os.environ.get('WS_BASE','0'),0)
WS_EB   = 0x0
WS_EA   = 0x100
WS_FLAG = 0x1000
WS_STAMP= 0xD00000
WS_UT   = 0x100000
WS_YT   = 0x400000
WS_KVP  = 0x900000
WS_OX   = 0xA00000
WS_DBG  = 0x1000000
KVP_SZ = 2560
LOG2E = 0x3fb8aa3b
SPIN_MAX = 200000
WS_YF = 0x60000
WS_FLAG2 = 0x80000
WS_BF = 0xA0000
WS_AX = 0xB0000
WS_P2F = 0xC0000
WS_DNF = 0xC8000
```

```python
from asmdsl import Prog, interleave, slotted
from common import *

def vr(a, n): return f'v[{a}:{a+n-1}]'

PITCH = 544
KTCH = 57 * PITCH
T1 = 2 * KTCH
T2 = T1 + 8192
CT = T1; CTS = 3328
KR0, KR1, G4B, G8B, F1K = 0, 1216, 2368, 2880, 3200
UT0 = T2; UTS = 4640; UPAD = 528
XCH = 0
A3S = 16384

def genA(p, opt):
    stamp_n = [0]
    def stamp(kind='main'):
        if kind != opt.get('stampsetA', 'main') and not (kind == 'main' and stamp_n[0] == 0): return
        if opt.get('stamps'):
            k = stamp_n[0]; stamp_n[0] += 1
            if k < 10: p(f's_memtime s[{80+2*k}:{81+2*k}]')
    PK = opt.get('pkA', 0)
    sU, sPar, sOUT, sWS = 8, 12, 36, 40
    s_g, s_m, s_w, s_ch, s_nh = 44, 45, 46, 47, 48
    s_tmp, s_tmp2, s_tmp3 = 49, 50, 51
    s_ldt, s_dsk = 52, 54
    s_ldv, s_dsv = 56, 57
    s_E1, s_tag = 58, 59
    s_msk = 60
    s_sp = 68
    s_so = 62
    s_ctb, s_utb = 66, 67
    vEp, vLane = 1, 2
    BAND = 224
    FIXM = 248
    O2 = opt.get('u_at', 0)
    ST1 = T1 if not O2 else UT0
    ST2 = T2 if not O2 else 24576
    FS = opt.get('fs', 4); FX_ = '0xff' if FS == 7 else '1'; SLP = opt.get('slp', 4)
    XE = opt.get('xearly', 0)
    p('A_ROLE:')
    p(f's_load_dwordx2 s[{sU}:{sU+1}], s[0:1], 0')
    for i in range(6): p(f's_load_dwordx2 s[{sPar+4*i}:{sPar+4*i+1}], s[0:1], {8+8*i}')
    p(f's_load_dwordx4 s[{s_ldt}:{s_ldt+3}], s[0:1], 56')
    if opt.get('touch_pre'): p('s_load_dwordx2 s[72:73], s[0:1], 96\ns_load_dwordx2 s[76:77], s[0:1], 80')
    p(f's_load_dwordx2 s[{sOUT}:{sOUT+1}], s[0:1], 104')
    p(f's_load_dwordx2 s[{sWS}:{sWS+1}], s[0:1], 120')
    if opt.get('stamps'): p('s_memrealtime s[78:79]')
    stamp()
    if opt.get('prioA0'): p(f's_setprio {opt["prioA0"]}')
    t0, t1, t2, t3, t4, t5 = 3, 4, 5, 6, 7, 8
    p(f'v_lshrrev_b32 v{t0}, 6, v0\nv_and_b32 v{vLane}, 63, v0\nv_readfirstlane_b32 s{s_w}, v{t0}')
    p(f's_and_b32 s{s_g}, s2, 7\ns_bfe_u32 s{s_m}, s2, 0x50003')
    p(f's_lshr_b32 s{s_ch}, s{s_w}, 1\ns_and_b32 s{s_nh}, s{s_w}, 1')
    vUg = 19
    p(f'v_bfe_u32 v{t1}, v0, 4, 1\nv_lshlrev_b32 v{t1}, 2, v{t1}\nv_and_b32 v{t2}, 7, v0\nv_xor_b32 v{t1}, v{t1}, v{t2}\nv_lshlrev_b32 v{t1}, 4, v{t1}')
    p(f'v_lshrrev_b32 v{t2}, 3, v0\nv_lshl_add_u32 v{vUg}, v{t2}, 10, v{t1}')
    p(f's_lshl_b32 s{s_tmp}, s{s_m}, 16\ns_lshl_b32 s{s_tmp2}, s{s_g}, 7\ns_add_u32 s{s_so}, s{s_tmp}, s{s_tmp2}\ns_add_u32 s{s_so+1}, s{s_so}, 32768')
    vPg = 10
    p(f's_lshl_b32 s{s_tmp}, s{s_g}, 5\ns_add_u32 s{s_tmp}, s{s_tmp}, s{s_m}')
    p(f's_lshl_b32 s{s_tmp3}, s{s_tmp}, 2')
    p(f's_add_u32 s{s_tmp2}, s{s_tmp3}, s{s_w}\ns_lshl_b32 s{s_so+2}, s{s_tmp2}, 7')
    p(f'v_lshlrev_b32 v{vPg}, 1, v{vLane}')
    p(f'v_mov_b32 v{vEp}, 0')
    p(f's_lshl_b32 s{s_so+3}, s{s_g}, 8')
    p(f's_mov_b32 s{sU+2}, 0x200000\ns_mov_b32 s{sU+3}, 0x20000')
    for i in range(6): p(f's_mov_b32 s{sPar+4*i+2}, 0x20000\ns_mov_b32 s{sPar+4*i+3}, 0x20000')
    p(f's_mov_b32 s{sOUT+2}, 0x400000\ns_mov_b32 s{sOUT+3}, 0x20000\ns_mov_b32 s{sWS+2}, 0x10000000\ns_mov_b32 s{sWS+3}, 0x20000')
    s_xcc, s_mode = 69, 70
    PRE_ = opt.get('touch_pre', 0)
    if PRE_:
        vPT = 86
        p(f's_cmp_lt_u32 s{s_w}, 2\ns_cbranch_scc1 A_NOPRE')
        p(f's_lshl_b32 s{s_tmp}, s{s_g}, 5\ns_add_u32 s{s_tmp}, s{s_tmp}, s{s_m}\ns_lshl_b32 s{s_tmp2}, s{s_tmp}, 2')
        p(f'v_and_b32 v{t0}, 3, v0\nv_add_u32 v{t0}, s{s_tmp2}, v{t0}')
        p(f'v_mul_u32_u24 v{t1}, 640, v{t0}\nv_add_u32 v{vPT}, {WS_KVP+512}, v{t1}')
        p(f'v_lshlrev_b32 v{t1}, 11, v{t0}\nv_add_u32 v{t1}, {WS_OX+1920}, v{t1}\ns_mov_b64 s[{s_msk}:{s_msk+1}], 0xf0\nv_cndmask_b32 v{vPT}, v{vPT}, v{t1}, s[{s_msk}:{s_msk+1}]')
        p(f'v_lshlrev_b32 v{t1}, {FS}, v{t0}\nv_add_u32 v{t1}, {WS_YF}, v{t1}\ns_mov_b64 s[{s_msk}:{s_msk+1}], 0xf00\nv_cndmask_b32 v{vPT}, v{vPT}, v{t1}, s[{s_msk}:{s_msk+1}]')
        p(f's_lshl_b32 s{s_tmp}, s{s_tmp}, {FS}\ns_add_u32 s{s_tmp}, s{s_tmp}, {WS_FLAG}\nv_mov_b32 v{t1}, s{s_tmp}\ns_mov_b64 s[{s_msk}:{s_msk+1}], 0xf000\nv_cndmask_b32 v{vPT}, v{vPT}, v{t1}, s[{s_msk}:{s_msk+1}]')
        if opt.get('touchkv', 0):
            p(f's_lshr_b32 s{s_tmp2}, s{s_tmp2}, 2\ns_mul_i32 s{s_tmp2}, s{s_tmp2}, {KVP_SZ}\ns_add_u32 s{s_tmp2}, s{s_tmp2}, {WS_KVP}')
            p(f'v_bfe_u32 v{t1}, v0, 2, 2\nv_mul_u32_u24 v{t1}, 640, v{t1}\nv_and_b32 v{t2}, 3, v0\nv_lshl_add_u32 v{t1}, v{t2}, 7, v{t1}\nv_add_u32 v{t1}, s{s_tmp2}, v{t1}')
            p(f's_mov_b32 s{s_msk}, 0xffff0000\nv_cndmask_b32 v{vPT}, v{vPT}, v{t1}, s[{s_msk}:{s_msk+1}]')
            p('s_mov_b32 exec_lo, 0xffff1f0f\ns_mov_b32 exec_hi, 0')
        else:
            if opt.get('local2'):
                p(f's_and_b32 s{s_tmp}, s{s_m}, 3\ns_lshl2_add_u32 s{s_tmp}, s{s_g}, s{s_tmp}\ns_lshl_b32 s{s_tmp}, s{s_tmp}, 7\ns_add_u32 s{s_tmp}, s{s_tmp}, {WS_BF}\nv_mov_b32 v{t1}, s{s_tmp}\ns_mov_b64 s[{s_msk}:{s_msk+1}], 0x2000\nv_cndmask_b32 v{vPT}, v{vPT}, v{t1}, s[{s_msk}:{s_msk+1}]')
                if opt.get('inplace'):
                    p(f's_and_b32 s{s_tmp}, s{s_m}, 15\ns_lshl4_add_u32 s{s_tmp}, s{s_g}, s{s_tmp}\ns_lshl_b32 s{s_tmp}, s{s_tmp}, 7\ns_lshr_b32 s{s_tmp2}, s{s_m}, 4\ns_mul_i32 s{s_tmp2}, s{s_tmp2}, {WS_DNF-WS_P2F}\ns_add_u32 s{s_tmp}, s{s_tmp}, s{s_tmp2}\ns_add_u32 s{s_tmp}, s{s_tmp}, {WS_P2F}')
                    p(f'v_mov_b32 v{t1}, s{s_tmp}\ns_mov_b64 s[{s_msk}:{s_msk+1}], 0x4000\nv_cndmask_b32 v{vPT}, v{vPT}, v{t1}, s[{s_msk}:{s_msk+1}]')
                p('s_mov_b64 s[4:5], ' + str(opt.get('touchmask', '0x7f0f' if opt.get('inplace') else '0x3fff')))
            else: p('s_mov_b64 s[4:5], 0x1fff')
        p(f's_lshl_b32 s{s_tmp}, s{s_g}, 5\ns_add_u32 s{s_tmp}, s{s_tmp}, s{s_m}')
        p(f's_lshl_b32 s6, s{s_tmp}, 11\ns_mul_i32 s7, s{s_tmp}, 6144')
        p(f'v_lshlrev_b32 v88, 7, v{vLane}')
        p(f'v_bfe_u32 v{t1}, v0, 3, 1\nv_mul_u32_u24 v{t1}, 3072, v{t1}\nv_and_b32 v{t2}, 7, v0\nv_lshl_add_u32 v{t1}, v{t2}, 7, v{t1}')
        p(f'v_bfe_u32 v{t2}, v0, 4, 1\nv_xor_b32 v{t2}, 1, v{t2}\nv_lshl_add_u32 v89, v{t2}, 11, v{t1}')
        p('s_mov_b32 s74, 0x80000\ns_mov_b32 s75, 0x20000')
        p('A_NOPRE:')
    p('s_waitcnt lgkmcnt(0)')
    if WS_BASE: p(f's_add_u32 s{sWS}, s{sWS}, {hex(WS_BASE)}\ns_addc_u32 s{sWS+1}, s{sWS+1}, 0\ns_mov_b32 s{sWS+2}, {hex(0x10000000-WS_BASE)}')
    stamp('a')
    LD = opt.get('ldflagA', '')
    PAR = 12
    p(f'buffer_load_dword v{vEp}, v{vEp}, s[{sWS}:{sWS+3}], s{s_so+3} offen offset:{WS_EA} sc1')
    for i in range(6): p(f'buffer_load_ushort v{PAR+i}, v{vPg}, s[{sPar+4*i}:{sPar+4*i+3}], s{s_so+2} offen {LD}')
    p(f's_load_dword s{s_ldv}, s[{s_ldt}:{s_ldt+1}], s{s_tmp3}')
    p(f's_load_dword s{s_dsv}, s[{s_dsk}:{s_dsk+1}], s{s_tmp3}')
    def u_issue():
        p(f's_lshl_b32 s3, s{s_w}, 10\ns_add_u32 m0, s3, {ST1}\ns_nop 0')
        p(f'buffer_load_dwordx4 v{vUg}, s[{sU}:{sU+3}], s{s_so} offen {LD} lds')
        p(f's_add_u32 m0, s3, {ST1+4096}')
        p(f'buffer_load_dwordx4 v{vUg}, s[{sU}:{sU+3}], s{s_so+1} offen {LD} lds', tok='utile')
    O3 = opt.get('kfirst', 0)
    if O3: p(f's_setprio {opt.get("prioAu", 0)}')
    UD = opt.get('udel', 0)
    if not O2 and not UD: u_issue()
    if opt.get('outtouch'):
        p(f'v_and_b32 v11, 15, v0\nv_lshlrev_b32 v11, 11, v11\ns_lshl2_add_u32 s3, s{s_m}, s{s_w}\ns_lshl_b32 s3, s3, 15\ns_lshl_b32 s{s_tmp}, s{s_g}, 7\ns_add_u32 s3, s3, s{s_tmp}')
        p(f'buffer_load_dword v11, v11, s[{sOUT}:{sOUT+3}], s3 offen')
    if PRE_:
        mp = str(opt.get('mallpf', '')).replace('none', '')
        p(f's_cmp_lt_u32 s{s_w}, 2\ns_cbranch_scc1 A_NOTOUCH\ns_cmp_eq_u32 s{s_w}, 2\ns_cbranch_scc1 A_MP')
        p('s_mov_b64 exec, s[4:5]')
        p(f'buffer_load_dword v{vPT+1}, v{vPT}, s[{sWS}:{sWS+3}], 0 offen', tok='nocount')
        p('s_mov_b64 exec, -1\ns_branch A_NOTOUCH\nA_MP:\ns_mov_b64 exec, 0xffff')
        if 'o' in mp: p('buffer_load_dword v88, v88, s[72:75], s6 offen', tok='nocount')
        if 'v' in mp:
            p('s_mov_b32 s72, s76\ns_mov_b32 s73, s77\ns_mov_b32 s74, 0x180000')
            if 'q' in mp: p('s_mov_b32 exec_lo, -1')
            p('buffer_load_dword v89, v89, s[72:75], s7 offen', tok='nocount')
        p('s_mov_b64 exec, -1\nA_NOTOUCH:')
    if not opt.get('touch_early'):
        if opt.get('prioA0'): p(f's_setprio {opt.get("prioA1", 0)}')
        stamp('a')
        yield
        stamp('a')
    p(f's_getreg_b32 s{s_xcc}, hwreg(HW_REG_XCC_ID, 0, 4)')
    if opt.get('touch', 1) and not PRE_:
        vPT = 86
        p(f's_cmp_lg_u32 s{s_w}, 3\ns_cbranch_scc1 A_NOTOUCH')
        p(f's_lshl_b32 s{s_tmp}, s{s_g}, 5\ns_add_u32 s{s_tmp}, s{s_tmp}, s{s_m}\ns_lshl_b32 s{s_tmp2}, s{s_tmp}, 2')
        p(f'v_and_b32 v{t0}, 3, v0\nv_add_u32 v{t0}, s{s_tmp2}, v{t0}')
        p(f'v_mul_u32_u24 v{t1}, 640, v{t0}\nv_add_u32 v{vPT}, {WS_KVP+512}, v{t1}')
        p(f'v_lshlrev_b32 v{t1}, 11, v{t0}\nv_add_u32 v{t1}, {WS_OX+1920}, v{t1}\ns_mov_b64 s[{s_msk}:{s_msk+1}], 0xf0\nv_cndmask_b32 v{vPT}, v{vPT}, v{t1}, s[{s_msk}:{s_msk+1}]')
        p(f'v_lshlrev_b32 v{t1}, {FS}, v{t0}\nv_add_u32 v{t1}, {WS_YF}, v{t1}\ns_mov_b64 s[{s_msk}:{s_msk+1}], 0xf00\nv_cndmask_b32 v{vPT}, v{vPT}, v{t1}, s[{s_msk}:{s_msk+1}]')
        p(f's_lshl_b32 s{s_tmp}, s{s_tmp}, {FS}\ns_add_u32 s{s_tmp}, s{s_tmp}, {WS_FLAG}\nv_mov_b32 v{t1}, s{s_tmp}\ns_mov_b64 s[{s_msk}:{s_msk+1}], 0xf000\nv_cndmask_b32 v{vPT}, v{vPT}, v{t1}, s[{s_msk}:{s_msk+1}]')
        if opt.get('touchkv', 0):
            p(f's_lshr_b32 s{s_tmp2}, s{s_tmp2}, 2\ns_mul_i32 s{s_tmp2}, s{s_tmp2}, {KVP_SZ}\ns_add_u32 s{s_tmp2}, s{s_tmp2}, {WS_KVP}')
            p(f'v_bfe_u32 v{t1}, v0, 2, 2\nv_mul_u32_u24 v{t1}, 640, v{t1}\nv_and_b32 v{t2}, 3, v0\nv_lshl_add_u32 v{t1}, v{t2}, 7, v{t1}\nv_add_u32 v{t1}, s{s_tmp2}, v{t1}')
            p(f's_mov_b32 s{s_msk}, 0xffff0000\nv_cndmask_b32 v{vPT}, v{vPT}, v{t1}, s[{s_msk}:{s_msk+1}]')
            p('s_mov_b32 exec_lo, 0xffff1f0f\ns_mov_b32 exec_hi, 0')
        else:
            if opt.get('local2'):
                p(f's_and_b32 s{s_tmp}, s{s_m}, 3\ns_lshl2_add_u32 s{s_tmp}, s{s_g}, s{s_tmp}\ns_lshl_b32 s{s_tmp}, s{s_tmp}, 7\ns_add_u32 s{s_tmp}, s{s_tmp}, {WS_BF}\nv_mov_b32 v{t1}, s{s_tmp}\ns_mov_b64 s[{s_msk}:{s_msk+1}], 0x2000\nv_cndmask_b32 v{vPT}, v{vPT}, v{t1}, s[{s_msk}:{s_msk+1}]')
                if opt.get('inplace'):
                    p(f's_and_b32 s{s_tmp}, s{s_m}, 15\ns_lshl4_add_u32 s{s_tmp}, s{s_g}, s{s_tmp}\ns_lshl_b32 s{s_tmp}, s{s_tmp}, 7\ns_lshr_b32 s{s_tmp2}, s{s_m}, 4\ns_mul_i32 s{s_tmp2}, s{s_tmp2}, {WS_DNF-WS_P2F}\ns_add_u32 s{s_tmp}, s{s_tmp}, s{s_tmp2}\ns_add_u32 s{s_tmp}, s{s_tmp}, {WS_P2F}')
                    p(f'v_mov_b32 v{t1}, s{s_tmp}\ns_mov_b64 s[{s_msk}:{s_msk+1}], 0x4000\nv_cndmask_b32 v{vPT}, v{vPT}, v{t1}, s[{s_msk}:{s_msk+1}]')
                p('s_mov_b64 exec, ' + str(opt.get('touchmask', '0x7f0f' if opt.get('inplace') else '0x3fff')))
            else: p('s_mov_b64 exec, 0x1fff')
        p(f'buffer_load_dword v{vPT+1}, v{vPT}, s[{sWS}:{sWS+3}], 0 offen', tok='nocount')
        p('s_mov_b64 exec, -1')
        p('A_NOTOUCH:')
    mp = str(opt.get('mallpf', '')).replace('none', '')
    if mp and not PRE_:
        p(f's_cmp_lg_u32 s{s_w}, 2\ns_cbranch_scc1 A_NOMP')
        p('s_load_dwordx2 s[72:73], s[0:1], 96\ns_load_dwordx2 s[76:77], s[0:1], 80')
        p(f's_lshl_b32 s{s_tmp}, s{s_g}, 5\ns_add_u32 s{s_tmp}, s{s_tmp}, s{s_m}')
        p(f's_lshl_b32 s{s_tmp2}, s{s_tmp}, 11\ns_mul_i32 s{s_tmp}, s{s_tmp}, 6144')
        p(f'v_lshlrev_b32 v{t0}, 7, v{vLane}')
        p(f'v_bfe_u32 v{t1}, v0, 3, 1\nv_mul_u32_u24 v{t1}, 3072, v{t1}\nv_and_b32 v{t2}, 7, v0\nv_lshl_add_u32 v{t1}, v{t2}, 7, v{t1}')
        p(f'v_bfe_u32 v{t2}, v0, 4, 1\nv_xor_b32 v{t2}, 1, v{t2}\nv_lshl_add_u32 v{t1}, v{t2}, 11, v{t1}')
        p('s_mov_b32 s74, 0x80000\ns_mov_b32 s75, 0x20000\ns_waitcnt lgkmcnt(0)')
        if 'o' in mp:
            p('s_mov_b64 exec, 0xffff')
            p(f'buffer_load_dword v88, v{t0}, s[72:75], s{s_tmp2} offen', tok='nocount')
        if 'v' in mp or 'q' in mp:
            p('s_mov_b32 s72, s76\ns_mov_b32 s73, s77\ns_mov_b32 s74, 0x180000')
            p('s_mov_b64 exec, ' + ('0xffff' if 'q' not in mp else '0x7fffffff'))
            if 'q' in mp: p('s_mov_b32 exec_lo, -1')
            p(f'buffer_load_dword v89, v{t1}, s[72:75], s{s_tmp} offen', tok='nocount')
        p('s_mov_b64 exec, -1')
        p('A_NOMP:')
    if opt.get('touch_early'):
        if opt.get('prioA0'): p(f's_setprio {opt.get("prioA1", 0)}')
        stamp('a')
        yield
        stamp('a')
    stamp('a')
    def bands_code():
        vD = 20
        p(f'v_bfe_u32 v{t0}, v0, 4, 2\nv_and_b32 v{t1}, 15, v0\nv_lshlrev_b32 v{t0}, 3, v{t0}\nv_sub_u32 v{vD}, v{t0}, v{t1}\nv_add_u32 v{vD}, 16, v{vD}')
        bands = [(11, 13), (6, 10), (3, 5), (6, 10), (5, 11), (4, 12), (4, 10)]
        p(f's_mov_b32 s{s_tmp}, 0x10001')
        for n, (lo, hi) in enumerate(bands):
            if n == 3: continue
            bits = ((1 << (hi-lo+1)) - 1) << (lo+16)
            dst = BAND + 4*n
            mul = 0x3f80 if n < 6 else 0xffff
            p(f's_mov_b32 s{s_msk}, {hex(bits)}\ns_mov_b32 s{s_msk+1}, 0')
            p(f'v_lshrrev_b64 v[{t1}:{t2}], v{vD}, s[{s_msk}:{s_msk+1}]')
            p(f'v_and_b32 v{t3}, 0xaa, v{t1}\nv_and_b32 v{t1}, 0x55, v{t1}\nv_lshl_or_b32 v{t1}, v{t3}, 15, v{t1}')
            for j in range(4):
                if j: p(f'v_lshrrev_b32 v{t3}, {2*j}, v{t1}\nv_and_b32 v{t3}, s{s_tmp}, v{t3}')
                else: p(f'v_and_b32 v{t3}, s{s_tmp}, v{t1}')
                p(f'v_mul_u32_u24 v{dst+j}, {hex(mul)}, v{t3}')
    UF1 = opt.get('ufirst', 0)
    assert not UF1 or (XE and not O3)
    if not O3 and not UF1: bands_code()
    BC = [BAND, BAND+4, BAND+8, BAND+4]; B7, B9 = BAND+16, BAND+20
    stamp('a')
    def prefetch(*a, **k): pass
    trA, wT2, rT2, gUT = 21, 22, 24, 25
    p(f'v_bfe_u32 v{t0}, v0, 2, 2\nv_bfe_u32 v{t1}, v0, 5, 1\nv_lshrrev_b32 v{t2}, 1, v{t0}\nv_xor_b32 v{t1}, v{t1}, v{t2}')
    p(f'v_lshlrev_b32 v{t0}, 7, v{t0}\nv_lshl_add_u32 v{t0}, v{t1}, 6, v{t0}')
    p(f'v_bfe_u32 v{t1}, v0, 4, 1\nv_lshl_add_u32 v{t0}, v{t1}, 5, v{t0}\nv_and_b32 v{t1}, 3, v0\nv_lshl_add_u32 v{t0}, v{t1}, 3, v{t0}')
    p(f's_lshl_b32 s{s_tmp}, s{s_w}, 11\ns_add_u32 s{s_tmp}, s{s_tmp}, {ST1}')
    p(f'v_add_u32 v{trA}, s{s_tmp}, v{t0}')
    p(f's_lshl_b32 s{s_tmp}, s{s_w}, 1')
    p(f'v_and_b32 v{t0}, 7, v0\nv_xor_b32 v{t0}, s{s_tmp}, v{t0}\nv_lshlrev_b32 v{t0}, 4, v{t0}\nv_lshl_add_u32 v{t0}, v{vLane}, 7, v{t0}')
    p(f'v_add_u32 v{wT2}, {ST2}, v{t0}\nv_xor_b32 v{t0}, 16, v{t0}\nv_add_u32 v{wT2+1}, {ST2}, v{t0}')
    p(f'v_lshlrev_b32 v{rT2}, 4, v0\nv_add_u32 v{rT2}, {T1}, v{rT2}')
    vL16 = 27
    p(f'v_lshlrev_b32 v{vL16}, 4, v{vLane}')
    p(f'v_bfe_u32 v{t0}, v0, 3, 3\nv_and_b32 v{t1}, 7, v0\nv_xor_b32 v{t0}, v{t0}, v{t1}\nv_lshlrev_b32 v{t0}, 4, v{t0}')
    p(f'v_lshrrev_b32 v{t1}, 3, v0\nv_lshl_add_u32 v{gUT}, v{t1}, 11, v{t0}')
    s_ob = 71
    p(f's_lshl_b32 s{s_tmp}, s{s_m}, 17\ns_lshl_b32 s{s_tmp2}, s{s_g}, 7\ns_add_u32 s{s_ob}, s{s_tmp}, s{s_tmp2}\ns_add_u32 s{s_ob+1}, s{s_ob}, 65536')
    p(f's_mul_i32 s{s_ctb}, s{s_ch}, {CTS}\ns_add_u32 s{s_ctb}, s{s_ctb}, {CT}\ns_mul_i32 s{s_utb}, s{s_ch}, {UTS}\ns_add_u32 s{s_utb}, s{s_utb}, {UT0}')
    stamp('a')
    stn = [0]
    def two_mode(instrs):
        k = stn[0]; stn[0] += 1
        L = [f's_cmp_eq_u32 s{s_mode}, 0', f's_cbranch_scc0 A_SM{k}a'] + instrs + [f's_branch A_SM{k}b', f'A_SM{k}a:'] + [x + ' sc1' for x in instrs] + [f'A_SM{k}b:']
        return L
    XW = 104
    def x_publish():
        p(f'v_readfirstlane_b32 s{s_E1}, v{vEp}')
        p(f's_add_u32 s{s_E1}, s{s_E1}, 1')
        p(f's_cmp_lg_u32 s{s_w}, 0\ns_cbranch_scc1 A_NOXP')
        for j in range(4): p(f'v_mov_b32 v{XW+j}, s{s_xcc if j == 1 else s_E1}')
        p(f's_lshl_b32 s{s_tmp}, s{s_g}, 5\ns_add_u32 s{s_tmp}, s{s_tmp}, s{s_m}\ns_lshl_b32 s{s_tmp}, s{s_tmp}, 7\ns_add_u32 s{s_tmp}, s{s_tmp}, {WS_AX}')
        p('s_mov_b64 exec, 0xff')
        p(f'buffer_store_dwordx4 {vr(XW,4)}, v{vL16}, s[{sWS}:{sWS+3}], s{s_tmp} offen sc1', tok='nocount')
        p('s_mov_b64 exec, -1\nA_NOXP:')
    def x_issue():
        p(f'v_and_b32 v{XW+4}, 31, v0\nv_lshlrev_b32 v{XW+4}, 7, v{XW+4}\ns_lshl_b32 s73, s{s_g}, 12\ns_add_u32 s73, s73, {WS_AX}\ns_mov_b32 s{s_sp}, 0')
        p(f'buffer_load_dwordx2 {vr(XW+6,2)}, v{XW+4}, s[{sWS}:{sWS+3}], s73 offen sc1')
    def x_check():
        p('A_X_CHK:')
        p(f'v_cmp_ne_u32 vcc, s{s_E1}, v{XW+6}')
        p('s_cbranch_vccnz A_X_AGAIN')
        p('A_X_OK:')
        p(f'v_cmp_ne_u32 vcc, s{s_xcc}, v{XW+7}')
        p(f's_or_b32 s{s_mode}, vcc_lo, vcc_hi')
        if opt.get('slowA'): p(f's_mov_b32 s{s_mode}, 1')
    if UD == 1:
        p('s_setprio 3'); u_issue(); p(f's_setprio {opt.get("prioA1", 0)}')
    UB = 96
    ZR = 92
    def tr_a():
        p.wait_tok('utile')
        if XE and not O3 and not UF1: x_publish()
        if XE and (O3 or UF1): x_issue()
        stamp('a')
        p('s_waitcnt lgkmcnt(0)\ns_barrier')
        stamp('a')
        stamp()
        for rd in range(4): p(f'ds_read_b64_tr_b16 {vr(UB+2*rd,2)}, v{trA} offset:{512*rd}')
        p('s_waitcnt lgkmcnt(0)')
        p(f'ds_write_b128 v{wT2}, {vr(UB,4)}\nds_write_b128 v{wT2+1}, {vr(UB+4,4)}')
    def zero_ct():
        for j in range(4): p(f'v_mov_b32 v{ZR+j}, 0')
        p(f'ds_write_b128 v{rT2}, {vr(ZR,4)}\nds_write_b128 v{rT2}, {vr(ZR,4)} offset:4096')
    def tr_b():
        p('s_waitcnt lgkmcnt(0)\ns_barrier')
        if O2:
            p(f'v_lshlrev_b32 v{rT2}, 4, v0')
            p(f'ds_read_b128 {vr(UB,4)}, v{rT2} offset:{ST2}\nds_read_b128 {vr(UB+4,4)}, v{rT2} offset:{ST2+4096}')
            upad()
        else:
            p(f'ds_read_b128 {vr(UB,4)}, v{rT2} offset:{T2-T1}\nds_read_b128 {vr(UB+4,4)}, v{rT2} offset:{T2-T1+4096}')
            zero_ct()
        ust = [f'buffer_store_dwordx4 {vr(UB,4)}, v{gUT}, s[{sOUT}:{sOUT+3}], s{s_ob} offen', f'buffer_store_dwordx4 {vr(UB+4,4)}, v{gUT}, s[{sOUT}:{sOUT+3}], s{s_ob+1} offen']
        if XE:
            x_check(); p('s_waitcnt lgkmcnt(2)' if not O2 else 's_waitcnt lgkmcnt(1)'); p.ext(two_mode(ust))
        else:
            for x in ust: p(x + (' sc1' if opt.get('ut_sc1') else ''))
        stamp()
    def upad():
        p(f'v_mov_b32 v17, {UPAD+4096}\ns_mov_b32 s{s_msk}, 0\ns_mov_b32 s{s_msk+1}, 2')
        p(f'v_cndmask_b32 v16, v{vL16}, v17, s[{s_msk}:{s_msk+1}]\nv_add_u32 v16, s{s_utb}, v16')
        p('s_mov_b32 exec_hi, 3')
        p(f'ds_write_b128 v16, {vr(ZR,4)}')
        p('s_mov_b32 exec_hi, -1')
    if UF1:
        x_publish()
        if opt.get('ubands', 1): bands_code()
        tr_a(); tr_b()
    elif O3:
        p('s_waitcnt lgkmcnt(0)')
        if XE: x_publish()
    elif not O2: tr_a()
    else: zero_ct(); p('s_waitcnt lgkmcnt(0)')
    p(f's_cmp_eq_u32 s{s_ch}, 0')
    p(f's_cselect_b32 s{s_tmp}, 16, 0')
    p(f's_lshl_b32 s{s_ldv}, s{s_ldv}, s{s_tmp}\ns_and_b32 s{s_ldv}, s{s_ldv}, 0xffff0000\ns_lshl_b32 s{s_dsv}, s{s_dsv}, s{s_tmp}\ns_and_b32 s{s_dsv}, s{s_dsv}, 0xffff0000')
    DT = 36
    p(f'v_mov_b32 v{t0}, s{s_ldv}\nv_mov_b32 v{t4}, {hex(LOG2E)}\nv_mul_f32 v{t1}, v{t4}, v{t0}')
    p(f'v_fma_f32 v{t2}, v{t0}, v{t4}, -v{t1}\nv_fmac_f32 v{t2}, 0x32a57060, v{t0}')
    p(f'v_exp_f32 v{t1}, v{t1}\nv_mul_f32 v{t2}, 0x3f317218, v{t2}\nv_fmac_f32 v{t1}, v{t1}, v{t2}')
    p(f'v_cvt_pk_bf16_f32 v{t1}, v{t1}, v{t1}\nv_and_b32 v{DT}, 0xffff0000, v{t1}')
    for i in range(6): p(f'v_lshlrev_b32 v{PAR+i}, 16, v{PAR+i}')
    for i in range(4): p(f'v_mul_f32 v{PAR+i}, v{PAR+i}, v{DT}')
    Xr = 40
    S = [40+2*i for i in range(8)]
    P1, P8, P128, Y, Y2, P16, TMP = 56, 58, 60, 62, 64, 66, 68
    p(f'v_mul_f32 v{S[0]}, v{PAR+4}, v{PAR+2}\nv_mul_f32 v{S[0]+1}, v{PAR+4}, v{PAR+3}')
    p(f'v_fma_f32 v{S[0]}, -v{PAR+5}, v{PAR+3}, v{S[0]}\nv_fmac_f32 v{S[0]+1}, v{PAR+5}, v{PAR+2}')
    p(f'v_mul_f32 v{PAR}, {hex(LOG2E)}, v{PAR}\nv_mul_f32 v{PAR+1}, 0.15915494, v{PAR+1}')
    for dst, L in ((P1, 1), (P8, 8), (P128, 128)):
        if L == 1: p(f'v_exp_f32 v{t0}, v{PAR}\nv_fract_f32 v{t1}, v{PAR+1}')
        else:
            import struct
            lf = hex(struct.unpack('<I', struct.pack('<f', float(L)))[0])
            p(f'v_mul_f32 v{t0}, {lf}, v{PAR}\nv_mul_f32 v{t1}, {lf}, v{PAR+1}\nv_exp_f32 v{t0}, v{t0}\nv_fract_f32 v{t1}, v{t1}')
        p(f'v_cos_f32 v{t2}, v{t1}\nv_sin_f32 v{t3}, v{t1}\nv_mul_f32 v{dst}, v{t0}, v{t2}\nv_mul_f32 v{dst+1}, v{t0}, v{t3}')
    if UD == 2:
        p('s_setprio 3'); u_issue(); p(f's_setprio {opt.get("prioA1", 0)}')
    vW = 26
    p(f's_mul_i32 s{s_tmp}, s{s_ch}, {KTCH}\ns_lshl_b32 s{s_tmp2}, s{s_nh}, 8\ns_add_u32 s{s_tmp}, s{s_tmp}, s{s_tmp2}')
    p(f'v_lshl_add_u32 v{vW}, v{vLane}, 2, s{s_tmp}\ns_mov_b32 m0, s{s_tmp}')
    XL = XE and not O3 and not UF1
    if not O2 and not O3 and not XL and not UF1: tr_b()
    EARLY = opt.get('earlyA', 0) or UF1; EF = opt.get('earlyflag', 0)
    def flag_block():
        if not XE:
            p(f'v_readfirstlane_b32 s{s_E1}, v{vEp}')
            p(f's_add_u32 s{s_E1}, s{s_E1}, 1')
        p(f's_cmp_lg_u32 s{s_w}, 0\ns_cbranch_scc1 A_NOFLAG')
        for j in range(4): p(f'v_mov_b32 v{12+j}, s{s_xcc if j == 1 else s_E1}')
        p(f's_lshl_b32 s{s_tmp}, s{s_g}, 5\ns_add_u32 s{s_tmp}, s{s_tmp}, s{s_m}\ns_lshl_b32 s{s_tmp}, s{s_tmp}, {FS}\ns_add_u32 s{s_tmp}, s{s_tmp}, {WS_FLAG}')
        p(f's_mov_b64 exec, {FX_}')
        fst = f'buffer_store_dwordx4 v[12:15], v{vL16}, s[{sWS}:{sWS+3}], s{s_tmp} offen'
        if XE: p.ext(two_mode([fst]))
        else: p(fst + ' sc1')
        p('s_mov_b64 exec, -1')
        p('A_NOFLAG:')

    def poll_block():
        p(f'v_and_b32 v16, 31, v0\nv_lshlrev_b32 v16, {FS}, v16')
        p(f's_lshl_b32 s{s_tmp}, s{s_g}, {5+FS}\ns_add_u32 s{s_tmp}, s{s_tmp}, {WS_FLAG}\ns_mov_b32 s{s_sp}, 0')
        p(f's_lshl1_add_u32 s{s_tmp2}, s{s_m}, s{s_ch}\ns_lshl_b32 s{s_tmp2}, s{s_tmp2}, 11\ns_lshl_b32 s{s_tmp3}, s{s_g}, 7\ns_add_u32 s{s_so+2}, s{s_tmp2}, s{s_tmp3}')
        p(f's_lshl_b32 s{s_tmp2}, s{s_nh}, 21\ns_add_u32 s{s_tmp2}, s{s_tmp2}, s{s_so+2}\ns_add_u32 s{s_so+3}, s{s_tmp2}, 0x100000')
        p(f'v_lshrrev_b32 v14, 3, v{vLane}\nv_lshlrev_b32 v14, 17, v14\nv_and_b32 v15, 7, v0\nv_lshl_add_u32 v14, v15, 4, v14')
        p(f's_lshl_b32 s{s_tmp3}, s{s_nh}, 11\ns_add_u32 s{s_tmp3}, s{s_tmp3}, s{s_utb}\ns_add_u32 m0, s{s_tmp3}, {UPAD}')
        p('A_F_POLL:')
        p(f'buffer_load_dwordx2 v[12:13], v16, s[{sWS}:{sWS+3}], s{s_tmp} offen sc1')
        p(f's_add_u32 s{s_sp}, s{s_sp}, 1\ns_cmp_gt_u32 s{s_sp}, {SPIN_MAX}\ns_cbranch_scc1 A_F_GO')
        p(f'v_cmp_ne_u32 vcc, s{s_E1}, v12')
        p(f's_cbranch_vccz A_F_GO\ns_sleep {SLP}\ns_branch A_F_POLL')
        p('A_F_GO:')
        if not XE:
            p(f'v_cmp_ne_u32 vcc, s{s_xcc}, v13')
            p(f's_or_b32 s{s_mode}, vcc_lo, vcc_hi')
            if opt.get('slowA'): p(f's_mov_b32 s{s_mode}, 1')
            if not opt.get('ut_sc1'):
                p(f's_cmp_lg_u32 s{s_mode}, 0\ns_cbranch_scc1 A_F_SLOW')
        p('A_F_DMA:')
        p(f'buffer_load_dwordx4 v14, s[{sOUT}:{sOUT+3}], s{s_tmp2} offen sc1 lds')
        p(f's_add_u32 m0, s{s_tmp3}, {UPAD+1024}')
        p(f'buffer_load_dwordx4 v14, s[{sOUT}:{sOUT+3}], s{s_so+3} offen sc1 lds')

    stamp('a')
    cv = [76, 77, 78, 79]; cvn = [0]
    def cmul(dst, a, b, conj=False):
        if PK:
            if dst == a:
                L = [f'v_pk_mul_f32 {vr(TMP,2)}, {vr(a,2)}, {vr(b,2)} op_sel:[0,0] op_sel_hi:[1,0]']; acc = TMP
            else:
                L = [f'v_pk_mul_f32 {vr(dst,2)}, {vr(a,2)}, {vr(b,2)} op_sel:[0,0] op_sel_hi:[1,0]']; acc = dst
            neg = 'neg_hi:[0,1,0]' if conj else 'neg_lo:[0,1,0]'
            L.append(f'v_pk_fma_f32 {vr(dst,2)}, {vr(a,2)}, {vr(b,2)}, {vr(acc,2)} op_sel:[1,1,0] op_sel_hi:[0,1,1] {neg}')
            return L
        T = TMP + 2*(cvn[0] & 1)
        s1, s2 = ('', '-') if conj else ('-', '')
        return [f'v_mul_f32 v{T}, v{a+1}, v{b+1}', f'v_mul_f32 v{T+1}, v{a}, v{b+1}',
                f'v_fma_f32 v{dst}, v{a}, v{b}, {s1}v{T}', f'v_fma_f32 v{dst+1}, v{a+1}, v{b}, {s2}v{T+1}']
    def tabw(c, e):
        if opt.get('addtid', 1): return f'ds_write_addtid_b32 v{c} offset:{e*PITCH}'
        return f'ds_write_b32 v{vW}, v{c} offset:{e*PITCH}'
    def put(reg, e):
        c = cv[cvn[0] & 3]; cvn[0] += 1
        return [f'v_cvt_pk_bf16_f32 v{c}, v{reg}, v{reg+1}', tabw(c, e)]
    xs = []
    xs.append(put(S[0], 0))
    for o in range(1, 8): xs.append(cmul(S[o], S[o-1], P1) + put(S[o], o))
    for o in range(8): xs.append(cmul(S[o], S[o], P128) + put(S[o], 8+o))
    for k, o in enumerate((0, 2, 4, 6)): xs.append(cmul(S[o], S[o], P128) + put(S[o], 16+k))
    for k, o in enumerate((0, 2, 4, 6)): xs.append(cmul(S[o], S[o], P128) + put(S[o], 20+k))
    xs.append(cmul(S[0], S[0], P128) + put(S[0], 40))
    xs.append(cmul(S[4], S[4], P128) + put(S[4], 24))
    xs.append(cmul(S[0], S[0], P8) + put(S[0], 25))
    for i in range(1, 4):
        xs.append(cmul(S[4], S[4], P128) + put(S[4], 24+2*i))
        xs.append(cmul(S[0], S[0], P128) + put(S[0], 25+2*i))
    for i in range(8): xs.append(cmul(S[0], S[0], P128) + put(S[0], 32+i))
    ys = []
    ys.append([f'v_mov_b32 v{cv[0]}, 0x3f80', tabw(cv[0], 41)])
    ys.append([f'v_mov_b32 v{Y}, v{P8}', f'v_xor_b32 v{Y+1}, 0x80000000, v{P8+1}'] + put(Y, 42))
    for j in range(2, 16): ys.append(cmul(Y, Y, P8, conj=True) + put(Y, 41+j))
    def zipops(a, b):
        out = []
        for i in range(max(len(a), len(b))):
            if i < len(a): out.append(a[i])
            if i < len(b): out.append(b[i])
        return out
    yi = 0
    if not PK:
        def retmp(L, new): return [x.replace(f'v{TMP+3}', f'v{new+1}').replace(f'v{TMP+2}', f'v{new}').replace(f'v{TMP+1}', f'v{new+1}').replace(f'v{TMP}', f'v{new}') for x in L]
        ys = [retmp(y, 80) for y in ys]
    else:
        ys = [[x.replace(vr(TMP, 2), vr(80, 2)) for x in y] for y in ys]
    ys = [[x.replace(f'v{cv[0]}', 'v84').replace(f'v{cv[1]}', 'v85').replace(f'v{cv[2]}', 'v84').replace(f'v{cv[3]}', 'v85') for x in y] for y in ys]
    n = 0
    fl_at, po_at = opt.get('flag_at', 6), opt.get('poll_at', 27)
    while n < len(xs):
        if XL and n == opt.get('xi_at', 8): x_issue()
        if XL and n == opt.get('trb_at', 20): tr_b()
        if (EARLY or EF) and n == fl_at:
            p('s_waitcnt vmcnt(0)\ns_barrier')
            flag_block()
        if EARLY and n == po_at:
            upad(); poll_block()
            p(f's_mul_i32 s3, s{s_ch}, {KTCH}\ns_lshl_b32 s{s_tmp}, s{s_nh}, 8\ns_add_u32 m0, s3, s{s_tmp}')
        if n < 8 or n >= len(xs) - 8:
            p.ext(zipops(xs[n], ys[yi])); yi += 1; n += 1
        elif n in (24,):
            p.ext(zipops(xs[n], xs[n+1])); n += 2
        elif n == 26:
            p.ext(xs[n]); n += 1
        else:
            p.ext(zipops(xs[n], xs[n+1])); n += 2
    assert yi == 16
    if O3:
        stamp('a')
        p(f's_setprio {opt.get("prioA3", 0)}')
        if opt.get('bands_first', 1): bands_code()
        tr_a(); tr_b()
        if not opt.get('bands_first', 1): bands_code()
    if UF1:
        p(f's_setprio {opt.get("prioA3", 0)}')
        if not opt.get('ubands', 1): bands_code()
    vR = 3
    p(f'v_and_b32 v{t1}, 15, v0\nv_mul_u32_u24 v{vR}, {PITCH}, v{t1}\nv_bfe_u32 v{t2}, v0, 4, 2\nv_lshl_add_u32 v{vR}, v{t2}, 4, v{vR}')
    p(f's_mul_i32 s{s_tmp}, s{s_ch}, {KTCH}\nv_add_u32 v{vR}, s{s_tmp}, v{vR}')
    if O2 == 1: u_issue()
    p(('s_waitcnt lgkmcnt(0)' if (EARLY or O2 or EF) else 's_waitcnt vmcnt(0) lgkmcnt(0)') + '\ns_barrier')
    kg_state = p.save_state(); p.restore_state(kg_state)
    stamp()
    if not EARLY and not O2 and not EF: flag_block()
    FR = 44
    D0, D1 = 28, 32
    j_, q_ = t1, t2
    p(f's_cmp_lg_u32 s{s_nh}, 0\ns_cbranch_scc1 A_KG1')
    def rdk(dst, e0, ks): return f'ds_read_b128 {vr(dst,4)}, v{vR} offset:{e0*PITCH+64*ks}'
    for ks in range(4):
        p(rdk(FR+12*ks, 41, ks)); p(rdk(FR+12*ks+4, 16, ks)); p(rdk(FR+12*ks+8, 0, ks))
    aW0, aW1, aG4, vDs = 6, 7, 8, 9
    p(f'v_lshrrev_b32 v{aW0}, 1, v{q_}\nv_lshlrev_b32 v{aW0}, 5, v{aW0}\nv_and_b32 v{aW1}, 1, v{q_}\nv_add_u32 v{aW0}, v{aW0}, v{aW1}')
    p(f'v_lshl_add_u32 v{aW0}, v{j_}, 1, v{aW0}\nv_lshlrev_b32 v{aW0}, 3, v{aW0}')
    p(f's_add_u32 s{s_tmp}, s{s_ctb}, {KR0+1064}\nv_sub_u32 v{aW0}, s{s_tmp}, v{aW0}')
    p(f'v_lshlrev_b32 v{aW1}, 4, v{q_}\nv_add_u32 v{aW1}, v{aW1}, v{j_}\nv_lshlrev_b32 v{aW1}, 4, v{aW1}')
    p(f's_add_u32 s{s_tmp}, s{s_ctb}, {KR0+1056-512}\nv_sub_u32 v{aW1}, s{s_tmp}, v{aW1}')
    p(f'v_lshlrev_b32 v{aG4}, 5, v{q_}\nv_add_u32 v{aG4}, v{aG4}, v{j_}\nv_lshlrev_b32 v{aG4}, 2, v{aG4}')
    p(f's_add_u32 s{s_tmp}, s{s_ctb}, {G4B+128-256}\nv_add_u32 v{aG4}, s{s_tmp}, v{aG4}')
    p(f'v_mov_b32 v{vDs}, 0\nv_mov_b32 v10, s{s_dsv}\ns_mov_b64 s[{s_msk}:{s_msk+1}], 1\nv_cndmask_b32 v{vDs}, v{vDs}, v10, s[{s_msk}:{s_msk+1}]')
    for ks in range(8):
        b = FR + 12*(ks & 3)
        p(f'v_mfma_f32_16x16x32_bf16 {vr(D1,4)}, {vr(b+4,4)}, {vr(b,4)}, {"0" if ks==0 else vr(D1,4)}')
        p(f'v_mfma_f32_16x16x32_bf16 {vr(D0,4)}, {vr(b+8,4)}, {vr(b,4)}, {"0" if ks==0 else vr(D0,4)}')
        if ks < 4:
            p(rdk(b, 41, ks+4)); p(rdk(b+4, 16, ks+4)); p(rdk(b+8, 0, ks+4))
    cA, cB, cC, cD, cE, cF = 12, 13, 14, 15, 16, 17
    p(f'v_cvt_pk_bf16_f32 v{cA}, v{D1+2}, v{D1+2}')
    p(f'v_cvt_pk_bf16_f32 v{cB}, v{D1+1}, v{D1}')
    p(f'v_cvt_pk_bf16_f32 v{cC}, v{D1+2}, v{D1+1}')
    p(f'v_cvt_pk_bf16_f32 v{cD}, v{D1}, v{D1}')
    p(f'v_cvt_pk_bf16_f32 v{cE}, v{D1+3}, v{D1+2}')
    p(f'v_cvt_pk_bf16_f32 v{cF}, v{D1+3}, v{D1+3}')
    p('s_mov_b32 exec_hi, 0')
    p(f'ds_write_b16 v{aW1}, v{cE} offset:2\nds_write_b32 v{aW1}, v{cA} offset:4\nds_write_b64 v{aW1}, {vr(cC,2)} offset:8\nds_write_b16 v{aW1}, v{cD} offset:16')
    p(f'ds_write_b32 v{aW1}, v{cE} offset:{KR1+4}\nds_write_b64 v{aW1}, {vr(cA,2)} offset:{KR1+8}\nds_write_b32 v{aW1}, v{cD} offset:{KR1+16}')
    p('s_mov_b32 exec_lo, 0\ns_mov_b32 exec_hi, 0x80000000')
    p(f'v_mov_b32 v18, s{s_ctb}\nds_write_b32 v18, v{cF} offset:{F1K}\nv_mov_b32 v{D1+3}, 0')
    p('s_mov_b32 exec_hi, -1')
    p(f'v_cvt_pk_bf16_f32 v{cA}, v{D1}, v{D1+1}\nv_cvt_pk_bf16_f32 v{cB}, v{D1+2}, v{D1+3}')
    p(f'ds_write_b32 v{aG4}, v{cA}\nds_write_b32 v{aG4}, v{cB} offset:64')
    p('s_mov_b32 exec_lo, -1')
    p(f'v_add_f32 v{D0}, v{D0}, v{vDs}')
    p(f'v_cvt_pk_bf16_f32 v{cC}, v{D0+3}, v{D0+2}\nv_cvt_pk_bf16_f32 v{cD}, v{D0+1}, v{D0}\nv_cvt_pk_bf16_f32 v{cE}, v{D0+2}, v{D0+1}')
    p(f'ds_write_b64 v{aW0}, {vr(cC,2)}')
    p(f'ds_write_b16 v{aW0}, v{cC} offset:{KR1+2}\nds_write_b32 v{aW0}, v{cE} offset:{KR1+4}\nds_write_b16_d16_hi v{aW0}, v{cD} offset:{KR1+8}')
    p('s_branch A_KG2')
    p.assume_clean()
    p('A_KG1:')
    for ks in range(8):
        if ks < 6: p(rdk(FR+8*ks, 41, ks)); p(rdk(FR+8*ks+4, 32, ks))
    if not O2 and not EARLY: upad()
    p(f'v_lshlrev_b32 v8, 2, v{j_}\nv_add_u32 v8, v8, v{q_}\nv_lshlrev_b32 v8, 3, v8\ns_add_u32 s{s_tmp}, s{s_ctb}, {G8B+64}\nv_add_u32 v8, s{s_tmp}, v8')
    for ks in range(8):
        b = FR + 8*(ks % 6)
        p(f'v_mfma_f32_16x16x32_bf16 {vr(D0,4)}, {vr(b,4)}, {vr(b+4,4)}, {"0" if ks==0 else vr(D0,4)}')
        if ks < 2: p(rdk(b, 41, ks+6)); p(rdk(b+4, 32, ks+6))
    p(f'v_mov_b32 v18, s{s_ctb}')
    p(f'v_cvt_pk_bf16_f32 v{cA}, v{D0}, v{D0+1}\nv_cvt_pk_bf16_f32 v{cB}, v{D0+2}, v{D0+3}\nv_cvt_pk_bf16_f32 v{cC}, v{D0}, v{D0}\nv_cvt_pk_bf16_f32 v{cD}, v{D0}, v{D0}')
    p('s_mov_b32 exec_lo, 0x00ff00ff\ns_mov_b32 exec_hi, 0x00ff00ff')
    p(f'ds_write_b64 v8, {vr(cA,2)}')
    p('s_mov_b64 exec, 0x100')
    p(f'ds_write_b16 v18, v{cC} offset:{KR0+42}\nds_write_b32 v18, v{cC} offset:{KR0+44}\nds_write_b16 v18, v{cC} offset:{KR0+48}')
    p(f'ds_write_b32 v18, v{cC} offset:{KR1+44}\nds_write_b32 v18, v{cC} offset:{KR1+48}')
    p('s_mov_b64 exec, -1')
    p('A_KG2:')
    if opt.get('prioA0'): p(f's_setprio {opt.get("prioA2", 0)}')
    p('s_waitcnt lgkmcnt(0)')
    p.assume_clean()
    if O2: p.restore_state(kg_state); p('s_waitcnt lgkmcnt(0)')
    stamp()
    if O2 == 2: u_issue()
    if not EARLY and not O2: poll_block()
    vU, vK0, vK1, vG4, vG8 = 3, 6, 7, 8, 9
    p(f'v_lshlrev_b32 v{vU}, 1, v{j_}\nv_add_u32 v{vU}, v{vU}, v{q_}\nv_lshlrev_b32 v{vU}, 4, v{vU}\nv_add_u32 v{vU}, s{s_utb}, v{vU}')
    p(f'v_lshlrev_b32 v10, 3, v{q_}\nv_sub_u32 v10, v10, v{j_}\nv_lshlrev_b32 v10, 1, v10')
    p(f'v_and_b32 v11, 1, v0\nv_mul_u32_u24 v11, {KR1+2}, v11\nv_sub_u32 v10, v10, v11')
    p(f's_add_u32 s{s_tmp}, s{s_ctb}, {KR1+1056-512}\nv_add_u32 v{vK0}, s{s_tmp}, v10\nv_subrev_u32 v{vK1}, 512, v{vK0}')
    p(f'v_lshlrev_b32 v10, 2, v{q_}\nv_sub_u32 v10, v{j_}, v10')
    p(f's_add_u32 s{s_tmp}, s{s_ctb}, {G4B+8}\nv_lshl_add_u32 v{vG4}, v10, 3, s{s_tmp}\nv_add_u32 v{vG4}, 96, v{vG4}')
    p(f's_add_u32 s{s_tmp}, s{s_ctb}, {G8B+4}\nv_lshl_add_u32 v{vG8}, v10, 2, s{s_tmp}\nv_add_u32 v{vG8}, 48, v{vG8}')
    vY = 26
    p(f'v_and_b32 v10, 1, v{q_}\nv_lshrrev_b32 v11, 2, v{j_}\nv_lshl_add_u32 v10, v10, 2, v11\nv_lshlrev_b32 v{vY}, 17, v10')
    p(f'v_lshrrev_b32 v10, 1, v{q_}\nv_and_b32 v11, 3, v0\nv_lshl_add_u32 v10, v10, 2, v11\nv_lshl_add_u32 v{vY}, v10, 4, v{vY}')
    xw, xr = 252, 253
    p(f's_lshl_b32 s{s_tmp}, s{s_w}, 12\ns_xor_b32 s{s_tmp2}, s{s_tmp}, 4096')
    p(f'v_add_u32 v{xw}, s{s_tmp}, v{vL16}\nv_add_u32 v{xr}, s{s_tmp2}, v{vL16}')
    if O2:
        tr_a(); tr_b()
        p('s_waitcnt vmcnt(0) lgkmcnt(0)\ns_barrier')
        flag_block(); poll_block()
    p('s_waitcnt vmcnt(0)\ns_barrier')
    stamp()
    ACC = 28
    KF = 60
    UF = 128
    def acc(t): return vr(ACC+4*t, 4)
    def rdK(s):
        a, o = (vK0, 16*(8-s)) if s <= 8 else (vK1, 16*(16-s))
        return [f'ds_read2_b32 {vr(KF+4*s,2)}, v{a} offset0:{o} offset1:{o+1}', f'ds_read2_b32 {vr(KF+4*s+2,2)}, v{a} offset0:{o+2} offset1:{o+3}']
    def rdU(n, slot): return f'ds_read_b128 {vr(UF+4*slot,4)}, v{vU} offset:{64*n+512}'
    started = set()
    def mf(t, A, B):
        c = acc(t) if t in started else '0'
        started.add(t)
        return f'v_mfma_f32_16x16x32_bf16 {acc(t)}, {vr(A,4)}, {vr(B,4)}, {c}'
    YP = 12
    def ypack(t, r):
        L = [f'v_cvt_pk_bf16_f32 v{r}, v{ACC+4*t}, v{ACC+4*t+1}', f'v_cvt_pk_bf16_f32 v{r+1}, v{ACC+4*t+2}, v{ACC+4*t+3}',
             f'v_cvt_pk_bf16_f32 v{r+2}, v{ACC+4*t+4}, v{ACC+4*t+5}', f'v_cvt_pk_bf16_f32 v{r+3}, v{ACC+4*t+6}, v{ACC+4*t+7}',
             f's_add_u32 s{s_so+(t>>1&1)}, s{s_so+2}, {t << 19}',
             f'v_permlane16_swap_b32 v{r}, v{r+2}', f'v_permlane16_swap_b32 v{r+1}, v{r+3}']
        return L
    def yst(t, r): return f'buffer_store_dwordx4 {vr(r,4)}, v{vY}, s[{sOUT}:{sOUT+3}], s{s_so+(t>>1&1)} offen'
    p(f's_cmp_lg_u32 s{s_nh}, 0\ns_cbranch_scc1 A_CONV_P')
    PREU = 5
    FX = 160
    p(f'v_mov_b32 v18, s{s_ctb}\nds_read_b32 v{FX+4}, v18 offset:{F1K}')
    order = [-8] + list(range(0, 57))
    korder = list(range(16, -1, -1))
    pro = []
    kq = list(korder)
    p(rdU(order[0], 0))
    p.ext(rdK(kq.pop(0)))
    for i in range(1, PREU):
        p(rdU(order[i], i)); p.ext(rdK(kq.pop(0)))
    for j in range(4): p(f'v_and_b32 v{FX+j}, v{FIXM+j}, v{FX+4}')
    for i, n in enumerate(order):
        sl = UF + 4*(i % 8)
        ms = []
        if n >= 0:
            for t in range(2, 8):
                s = 8*t - n
                if 0 <= s <= 16: ms.append(mf(t, KF+4*s, sl))
        if n % 8 == 0 and -8 <= n <= 24: ms.append(mf((n+32)//8, FX, sl))
        nxt = []
        if i + PREU < len(order): nxt.append(rdU(order[i+PREU], (i+PREU) % 8))
        if kq: nxt += rdK(kq.pop(0))
        p(ms[0]); p.ext(nxt); p.ext(ms[1:])
    for k, t in enumerate((2, 3)): p(f'ds_write_b128 v{xw}, {acc(t)} offset:{XCH+1024*k}')
    p('s_waitcnt lgkmcnt(0)\ns_barrier')
    for k in range(4): p(f'ds_read_b128 {vr(UF+4*k,4)}, v{xr} offset:{XCH+1024*k}')
    for k, t in enumerate((4, 5, 6, 7)):
        for j in range(4): p(f'v_add_f32 v{ACC+4*t+j}, v{ACC+4*t+j}, v{UF+4*k+j}')
        if k & 1: p.ext(ypack(t-1, YP+2*(k-1)))
    p.ext(two_mode([yst(4, YP), yst(6, YP+4)]))
    p('s_branch A_CONV_END')
    p.assume_clean()
    started.clear()
    p('A_CONV_P:')
    G4F = 160
    G8F = 184
    WD = 200
    WFR = 252
    order = list(range(-8, 9))
    kneed = []
    for n in order:
        for s in ([8-n] + ([-n] if n <= 0 else [])):
            if s not in kneed: kneed.append(s)
    kq = list(kneed)
    extra = []
    for d in range(3):
        for i in range(4): extra.append(f'ds_read_b64 {vr(G4F+8*d+2*i,2)}, v{vG4} offset:{128*d+8*(3-i)}')
    for d in range(4):
        extra.append(f'ds_read2_b32 {vr(G8F+4*d,2)}, v{vG8} offset0:{16*d+3} offset1:{16*d+2}')
        extra.append(f'ds_read2_b32 {vr(G8F+4*d+2,2)}, v{vG8} offset0:{16*d+1} offset1:{16*d}')
    PP = 3
    for i in range(PP):
        p(rdU(order[i], i)); p.ext(rdK(kq.pop(0))); p.ext(rdK(kq.pop(0)))
    for i, n in enumerate(order):
        sl = UF + 4*(i % 8)
        ms = [mf(1, KF+4*(8-n), sl)]
        if n <= 0: ms.append(mf(0, KF+4*(-n), sl))
        nxt = []
        if i + PP < len(order): nxt.append(rdU(order[i+PP], (i+PP) % 8))
        for _ in range(2):
            if kq: nxt += rdK(kq.pop(0))
        if not kq:
            for _ in range(3):
                if extra: nxt.append(extra.pop(0))
        p(ms[0]); p.ext(nxt); p.ext(ms[1:])
    p.ext(extra)
    FA = [UF, UF+8, UF+16]; FB = [UF+4, UF+12, UF+20]
    def rdF(be): return [f'ds_read_b128 {vr(FA[be%3],4)}, v{vU} offset:{512*be+496}', f'ds_read_b128 {vr(FB[be%3],4)}, v{vU} offset:{512*be+480}']
    def win(be):
        fa, fb = FA[be % 3], FB[be % 3]
        L = [f'v_mfma_f32_16x16x32_bf16 {vr(WD+4*c,4)}, {vr(fa if c<3 else fb,4)}, {vr(BC[c],4)}, 0' for c in range(4)]
        if be < 4:
            L += [f'v_mfma_f32_16x16x32_bf16 {vr(WD+16,4)}, {vr(fa,4)}, {vr(B7,4)}, 0', f'v_mfma_f32_16x16x32_bf16 {vr(WD+20,4)}, {vr(fb,4)}, {vr(B9,4)}, 0']
        return L
    def wfr(be): return KF + 12*(be & 1)
    def cvts(be):
        w = wfr(be); L = []
        for i in range(4):
            L.append(f'v_cvt_pk_bf16_f32 v{w+2*i}, v{WD+i}, v{WD+4+i}')
            L.append(f'v_cvt_pk_bf16_f32 v{w+2*i+1}, v{WD+8+i}, v{WD+12+i}')
        if be < 4:
            for i in range(4): L.append(f'v_cvt_pk_bf16_f32 v{w+8+i}, v{WD+16+i}, v{WD+20+i}')
        return L
    def cons(be):
        w = wfr(be); L = []
        for d in range(3):
            if be + d <= 5:
                L.append(mf(2+be+d, w, G4F+8*d)); L.append(mf(2+be+d, w+4, G4F+8*d+4))
        if be < 4:
            for d in range(4):
                if be + d <= 3: L.append(mf(4+be+d, w+8, G8F+4*d))
        return L
    p.ext(rdF(0)); p.ext(rdF(1))
    p.ext(win(0)); p.ext(rdF(2))
    p.ext(cvts(0))
    for be in range(6):
        if be < 5:
            p.ext(win(be+1))
            if be + 3 <= 5: p.ext(rdF(be+3))
            c = cons(be); cv_ = cvts(be+1)
            k = min(3, len(c))
            p.ext(c[:k])
            if be == 0: p.ext(ypack(0, YP))
            p.ext(interleave(c[k:], cv_) if len(c) > k else cv_)
        else: p.ext(cons(be))
    for k, t in enumerate((4, 5, 6, 7)): p(f'ds_write_b128 v{xw}, {acc(t)} offset:{XCH+1024*k}')
    p('s_waitcnt lgkmcnt(0)\ns_barrier')
    for k in range(2): p(f'ds_read_b128 {vr(UF+4*k,4)}, v{xr} offset:{XCH+1024*k}')
    for k, t in enumerate((2, 3)):
        for j in range(4): p(f'v_add_f32 v{ACC+4*t+j}, v{ACC+4*t+j}, v{UF+4*k+j}')
    p.ext(ypack(2, YP+4))
    p.ext(two_mode([yst(0, YP), yst(2, YP+4)]))
    p('A_CONV_END:')
    p.assume_clean()
    stamp()
    F1, F2 = 16384, 16384 + 8192
    FV = 28
    for j in range(4): p(f'v_mov_b32 v{FV+j}, s{s_E1}')
    p(f's_lshl_b32 s{s_tmp}, s{s_g}, 5\ns_add_u32 s{s_tmp}, s{s_tmp}, s{s_m}\ns_lshl2_add_u32 s{s_tmp}, s{s_tmp}, s{s_w}\ns_lshl_b32 s{s_tmp}, s{s_tmp}, {FS}\ns_add_u32 s{s_tmp}, s{s_tmp}, {WS_YF}')
    p(f'v_and_b32 v3, 7, v0\nv_bfe_u32 v4, v0, 3, 1\nv_lshl_add_u32 v3, v4, 5, v3\nv_lshlrev_b32 v3, {FS+1}, v3')
    p(f's_cmp_lt_u32 s{s_m}, 16\ns_cselect_b32 s{s_tmp2}, {1<<FS}, 0\ns_lshl_b32 s{s_tmp3}, s{s_g}, 3\ns_add_u32 s{s_tmp3}, s{s_tmp3}, s{s_w}\ns_lshl_b32 s{s_tmp3}, s{s_tmp3}, {FS+4}\ns_add_u32 s{s_tmp2}, s{s_tmp2}, s{s_tmp3}\ns_add_u32 s{s_so}, s{s_tmp2}, {WS_YF}')
    p(f'v_bfe_u32 v4, v0, 4, 1\nv_lshlrev_b32 v4, 2, v4\nv_and_b32 v5, 7, v0\nv_xor_b32 v4, v4, v5\nv_lshlrev_b32 v4, 4, v4\nv_lshrrev_b32 v5, 3, v0\nv_lshl_add_u32 v4, v5, 11, v4')
    p(f's_lshl_b32 s{s_tmp2}, s{s_w}, 10\ns_add_u32 m0, s{s_tmp2}, {F1}')
    p('s_waitcnt vmcnt(0)')
    p(f's_mov_b64 exec, {FX_}')
    p.ext(two_mode([f'buffer_store_dwordx4 {vr(FV,4)}, v{vL16}, s[{sWS}:{sWS+3}], s{s_tmp} offen']))
    p('s_mov_b64 exec, -1')
    p(f'v_subrev_u32 v{trA}, {ST1-F1}, v{trA}')
    p(f'v_bfe_u32 v6, v0, 3, 2\nv_lshlrev_b32 v6, 4, v6\nv_bfe_u32 v7, v0, 5, 1\nv_lshl_add_u32 v6, v7, 3, v6\nv_and_b32 v7, 7, v0\nv_add_u32 v6, v6, v7')
    p(f's_lshl_b32 s{s_tmp}, s{s_w}, 1\nv_xor_b32 v7, s{s_tmp}, v7\nv_lshlrev_b32 v7, 4, v7\nv_lshl_add_u32 v6, v6, 7, v7\nv_add_u32 v6, {F2}, v6\nv_xor_b32 v7, 16, v6')
    p(f'v_lshlrev_b32 v9, 4, v0')
    p(f's_mov_b32 s{s_sp}, 0')
    p('A_Y_POLL:')
    p(f'buffer_load_dword v18, v3, s[{sWS}:{sWS+3}], s{s_so} offen sc1')
    p(f's_add_u32 s{s_sp}, s{s_sp}, 1\ns_cmp_gt_u32 s{s_sp}, {SPIN_MAX}\ns_cbranch_scc1 A_Y_LOAD')
    p(f'v_cmp_ne_u32 vcc, s{s_E1}, v18')
    p(f's_cbranch_vccz A_Y_LOAD\ns_sleep {SLP}\ns_branch A_Y_POLL')
    p('A_Y_LOAD:')
    p(f'buffer_load_dwordx4 v4, s[{sOUT}:{sOUT+3}], s{s_ob} offen sc1 lds')
    p(f's_add_u32 m0, s{s_tmp2}, {F1+4096}')
    p(f'buffer_load_dwordx4 v4, s[{sOUT}:{sOUT+3}], s{s_ob+1} offen sc1 lds')
    p('s_waitcnt vmcnt(0)\ns_barrier')
    stamp()
    for rd in range(4): p(f'ds_read_b64_tr_b16 {vr(UB+2*rd,2)}, v{trA} offset:{512*rd}')
    p(f'ds_write_b128 v6, {vr(UB,4)}\nds_write_b128 v7, {vr(UB+4,4)}')
    p('s_waitcnt lgkmcnt(0)\ns_barrier')
    p(f'ds_read_b128 v[52:55], v9 offset:{F2}\nds_read_b128 v[56:59], v9 offset:{F2+4096}')
    p('s_waitcnt lgkmcnt(0)')
    fin = [f'buffer_store_dwordx4 v[52:55], v{gUT}, s[{sOUT}:{sOUT+3}], s{s_ob} offen', f'buffer_store_dwordx4 v[56:59], v{gUT}, s[{sOUT}:{sOUT+3}], s{s_ob+1} offen']
    if opt.get('outflagA'): p.ext([x + ' ' + opt['outflagA'] for x in fin])
    else: p.ext(two_mode(fin))
    p(f's_or_b32 s{s_tmp}, s{s_m}, s{s_w}\ns_cmp_lg_u32 s{s_tmp}, 0\ns_cbranch_scc1 A_END')
    p(f'v_mov_b32 v10, s{s_E1}\nv_mov_b32 v11, 0\ns_lshl_b32 s{s_tmp}, s{s_g}, 8\ns_mov_b64 exec, 1')
    p(f'buffer_store_dword v10, v11, s[{sWS}:{sWS+3}], s{s_tmp} offen offset:{WS_EA} sc1')
    if opt.get('wbl2'): p('s_waitcnt vmcnt(0)\nbuffer_wbl2 sc1')
    p('A_END:')
    if opt.get('stamps'):
        p('s_mov_b64 exec, -1')
        p('s_waitcnt vmcnt(0)')
        p('s_memtime s[100:101]\ns_memrealtime s[76:77]\ns_waitcnt lgkmcnt(0)')
        for k in range(11): p(f'v_mov_b32 v{16+k}, s{80+2*k}')
        p('v_mov_b32 v27, s78\nv_mov_b32 v28, s76\n' + f'v_mov_b32 v29, s{s_sp}')
        p(f's_lshl_b32 s{s_tmp}, s2, 8\ns_lshl_b32 s{s_tmp2}, s{s_w}, 6\ns_add_u32 s{s_tmp}, s{s_tmp}, s{s_tmp2}\ns_add_u32 s{s_tmp}, s{s_tmp}, {WS_STAMP}')
        p('v_mov_b32 v0, 0\ns_mov_b64 exec, 1')
        for k in range(4): p(f'buffer_store_dwordx4 v[{16+4*k}:{19+4*k}], v0, s[{sWS}:{sWS+3}], s{s_tmp} offen offset:{16*k}')
    p('s_endpgm')
    p.assume_clean()
    if XE:
        p('A_X_AGAIN:')
        p(f's_add_u32 s{s_sp}, s{s_sp}, 1\ns_cmp_gt_u32 s{s_sp}, {SPIN_MAX}\ns_cbranch_scc1 A_X_OK\ns_sleep 8')
        p(f'buffer_load_dwordx2 {vr(XW+6,2)}, v{XW+4}, s[{sWS}:{sWS+3}], s73 offen sc1\ns_waitcnt vmcnt(0)\ns_branch A_X_CHK')
        p.assume_clean()
    elif not opt.get('ut_sc1'):
        p('A_F_SLOW:')
        p(f'buffer_store_dwordx4 {vr(UB,4)}, v{gUT}, s[{sOUT}:{sOUT+3}], s{s_ob} offen sc1')
        p(f'buffer_store_dwordx4 {vr(UB+4,4)}, v{gUT}, s[{sOUT}:{sOUT+3}], s{s_ob+1} offen sc1')
        for j in range(4): p(f'v_mov_b32 v{104+j}, s{s_E1}')
        p(f's_lshl_b32 s73, s{s_g}, 5\ns_add_u32 s73, s73, s{s_m}\ns_lshl2_add_u32 s73, s73, s{s_w}\ns_lshl_b32 s73, s73, 7\ns_add_u32 s73, s73, {WS_FLAG2}')
        p('s_waitcnt vmcnt(0)\ns_mov_b64 exec, 0xff')
        p(f'buffer_store_dwordx4 v[104:107], v{vL16}, s[{sWS}:{sWS+3}], s73 offen sc1')
        p('s_mov_b64 exec, -1')
        p(f's_lshl_b32 s73, s{s_g}, 14\ns_add_u32 s73, s73, {WS_FLAG2}\ns_add_u32 s74, s73, 8192\nv_lshlrev_b32 v16, 3, v{vL16}')
        p('A_F_POLL2:')
        p(f'buffer_load_dword v12, v16, s[{sWS}:{sWS+3}], s73 offen sc1')
        p(f'buffer_load_dword v13, v16, s[{sWS}:{sWS+3}], s74 offen sc1')
        p(f's_add_u32 s{s_sp}, s{s_sp}, 1\ns_cmp_gt_u32 s{s_sp}, {SPIN_MAX}\ns_cbranch_scc1 A_F_DMA')
        p(f'v_xor_b32 v12, s{s_E1}, v12\nv_xor_b32 v13, s{s_E1}, v13\nv_or_b32 v12, v12, v13\nv_cmp_ne_u32 vcc, 0, v12')
        p('s_cbranch_vccz A_F_DMA\ns_sleep 2\ns_branch A_F_POLL2')
        p.assume_clean()
```

```python
from asmdsl import Prog, interleave, slotted
from common import *

RA, RB, ST = 0, 32768, 65536
KT = ST
ZERO = ST + 3200

def vr(a, n): return f'v[{a}:{a+n-1}]'
def L_(txt): return [x for x in txt.split('\n') if x.strip()]

def genB(p, opt):
    stamp_n = [0]
    def stamp(kind='main'):
        if kind != opt.get('stampset', 'main') and not (kind == 'main' and stamp_n[0] == 0): return
        if opt.get('amp') and stamp_n[0] == opt.get('amp_at', -1): p('s_memrealtime s[76:77]\ns_waitcnt lgkmcnt(0)\ns_mov_b32 s99, s76')
        if opt.get('amp'): stamp_n[0] += 1
        if opt.get('stamps'):
            k = stamp_n[0]; stamp_n[0] += 1
            p(f's_memtime s[{80+2*k}:{81+2*k}]') if k < 10 else None
    cap = [opt.get('vmcap', 0)]
    def ext2(L):
        for x in L:
            if isinstance(x, tuple) and x[0] == 'dma':
                p(x[1])
                if cap[0]: p(f's_waitcnt vmcnt({cap[0]})')
                p(x[2], tok=x[3])
            else: p.ext([x])
    sX, sW, sP, sO, sOUT, sWS = 8, 12, 16, 20, 24, 28
    s_rb, s_hp, s_w, s_loc, s_xcd = 32, 33, 34, 35, 36
    s_m0b, s_st = 37, 38
    s_p1 = 39
    s_xo = 40
    s_wo = 48
    s_t = 56
    s_E1 = 60
    s_tmp, s_tmp2, s_tmp3 = 61, 62, 63
    s_c = 64
    s_p2 = 65
    s_msk = 66
    s_sp, s_rdy = 68, 69
    s_so = 70
    s_rt, s_ct, s_oo = 74, 75, 76
    s_pf = 16
    s_F, s_H = 4, 5
    s_xcc, s_mode = 77, 69
    GRP = opt.get('grp', 0)
    LOC2 = opt.get('local2', 0); INP = opt.get('inplace', 0)
    assert LOC2 or not INP
    ACC0, ACC1, P, WF, PA, E, X = 16, 32, 48, 64, 88, 96, 128
    NSL = 6
    vA1, vA2 = 8, 12
    vTR, vTRv, vWg, vL16, vEp = 1, 2, 3, 4, 5
    vT0, vT1 = 6, 7
    a0, b0, pa, va, sa, vMask, hA, hZ = PA, PA+1, PA+2, PA+3, PA+4, PA+5, PA+6, PA+7
    vXg = E; vSR = E + 4
    t0, t1, t2, t3, t4, t5 = E + 8, E + 9, E + 10, E + 11, E + 12, E + 13
    LD = opt.get('ldflag', '')

    p('B_ROLE:')
    p(f's_load_dwordx4 s[{sX}:{sX+3}], s[0:1], 72')
    p(f's_load_dwordx2 s[{sP}:{sP+1}], s[0:1], 88')
    p(f's_load_dwordx2 s[{sO}:{sO+1}], s[0:1], 96')
    p(f's_load_dwordx2 s[{sOUT}:{sOUT+1}], s[0:1], 104')
    p(f's_load_dwordx2 s[{sWS}:{sWS+1}], s[0:1], 120')
    if opt.get('stamps') or opt.get('amp') or opt.get('skew'): p('s_memrealtime s[78:79]')
    stamp()
    if opt.get('prioB0'): p(f's_setprio {opt["prioB0"]}')
    p(f'v_lshrrev_b32 v{t0}, 6, v0')
    p(f's_and_b32 s{s_xcd}, s2, 7\ns_lshr_b32 s{s_loc}, s2, 3')
    p(f'v_readfirstlane_b32 s{s_w}, v{t0}')
    if opt.get('map', '4x8') == '8x4':
        p(f's_and_b32 s{s_tmp}, s{s_xcd}, 1\ns_lshl_b32 s{s_tmp}, s{s_tmp}, 3\ns_and_b32 s{s_tmp2}, s{s_loc}, 7\ns_add_u32 s{s_rb}, s{s_tmp}, s{s_tmp2}')
        p(f's_lshr_b32 s{s_tmp}, s{s_xcd}, 1\ns_lshl_b32 s{s_tmp}, s{s_tmp}, 2\ns_lshr_b32 s{s_tmp3}, s{s_loc}, 3\ns_add_u32 s{s_hp}, s{s_tmp}, s{s_tmp3}')
        p(f's_lshl_b32 s{s_tmp3}, s{s_tmp3}, 1\ns_add_u32 s{s_tmp}, s{s_tmp2}, s{s_tmp3}\ns_and_b32 s{s_tmp}, s{s_tmp}, 7')
    elif opt.get('map') == '16x2':
        p(f's_and_b32 s{s_rb}, s{s_loc}, 15\ns_lshr_b32 s{s_tmp3}, s{s_loc}, 4\ns_lshl1_add_u32 s{s_hp}, s{s_xcd}, s{s_tmp3}')
        p(f's_lshl2_add_u32 s{s_tmp}, s{s_tmp3}, s{s_xcd}\ns_add_u32 s{s_tmp}, s{s_tmp}, s{s_rb}\ns_and_b32 s{s_tmp}, s{s_tmp}, 7')
    elif opt.get('map') == '8x4b':
        p(f's_and_b32 s{s_tmp}, s{s_xcd}, 1\ns_lshl_b32 s{s_tmp}, s{s_tmp}, 3\ns_and_b32 s{s_tmp2}, s{s_loc}, 7\ns_add_u32 s{s_rb}, s{s_tmp}, s{s_tmp2}')
        p(f's_lshr_b32 s{s_tmp}, s{s_xcd}, 1\ns_lshr_b32 s{s_tmp3}, s{s_loc}, 3\ns_lshl2_add_u32 s{s_hp}, s{s_tmp}, s{s_tmp3}')
        p(f's_and_b32 s{s_tmp}, s{s_tmp}, 1\ns_add_u32 s{s_tmp2}, s{s_tmp2}, s{s_tmp}\ns_lshl1_add_u32 s{s_tmp}, s{s_tmp3}, s{s_tmp2}\ns_and_b32 s{s_tmp}, s{s_tmp}, 7')
    elif opt.get('map') == '2x16':
        p(f's_and_b32 s{s_tmp2}, s{s_loc}, 1\ns_lshl1_add_u32 s{s_rb}, s{s_xcd}, s{s_tmp2}\ns_lshr_b32 s{s_hp}, s{s_loc}, 1')
        p(f's_and_b32 s{s_tmp}, s{s_hp}, 1\ns_lshl1_add_u32 s{s_tmp}, s{s_tmp}, s{s_tmp2}\ns_lshr_b32 s{s_tmp3}, s{s_hp}, 1\ns_lshl1_add_u32 s{s_tmp}, s{s_tmp}, s{s_tmp3}\ns_add_u32 s{s_tmp}, s{s_tmp}, s{s_xcd}\ns_and_b32 s{s_tmp}, s{s_tmp}, 7')
    else:
        p(f's_and_b32 s{s_tmp}, s{s_xcd}, 3\ns_and_b32 s{s_tmp2}, s{s_loc}, 3\ns_lshl2_add_u32 s{s_rb}, s{s_tmp}, s{s_tmp2}')
        p(f's_lshr_b32 s{s_tmp}, s{s_xcd}, 2\ns_lshr_b32 s{s_tmp3}, s{s_loc}, 2\ns_lshl3_add_u32 s{s_hp}, s{s_tmp}, s{s_tmp3}')
        p(f's_lshl1_add_u32 s{s_tmp}, s{s_tmp2}, s{s_tmp3}\ns_and_b32 s{s_tmp}, s{s_tmp}, 7')
    if opt.get('rotmask'): p(f's_and_b32 s{s_tmp}, s{s_tmp}, {opt["rotmask"]}')
    p(f's_lshl_b32 s{s_xo}, s{s_tmp}, 7\ns_mul_i32 s{s_wo}, s{s_xo}, 1536')
    p(f'v_bfe_u32 v{t1}, v0, 3, 3\nv_lshl_add_u32 v{t1}, v{t0}, 5, v{t1}')
    p(f'v_and_b32 v{t2}, 7, v0\nv_bfe_u32 v{t3}, v0, 4, 2\nv_xor_b32 v{t2}, v{t2}, v{t3}\nv_lshlrev_b32 v{t2}, 4, v{t2}')
    p(f's_lshl_b32 s{s_tmp}, s{s_rb}, 17')
    p(f'v_lshl_add_u32 v{t1}, v{t1}, 10, v{t2}\nv_add_u32 v{vXg}, s{s_tmp}, v{t1}')
    p(f'v_xor_b32 v{vXg+1}, 64, v{vXg}\nv_add_u32 v{vXg+2}, 16384, v{vXg}\nv_add_u32 v{vXg+1}, 8192, v{vXg+1}\nv_add_u32 v{vXg+3}, 16384, v{vXg+1}')
    p(f'v_lshrrev_b32 v{t1}, 2, v0\nv_mul_u32_u24 v{t1}, 3072, v{t1}\nv_and_b32 v{t2}, 3, v0\nv_lshl_add_u32 v{t1}, v{t2}, 4, v{t1}')
    p(f's_lshl_b32 s{s_tmp}, s{s_hp}, 6\ns_add_u32 s{s_tmp}, s{s_tmp}, 1024')
    p(f'v_add_u32 v{vWg}, s{s_tmp}, v{t1}')
    p(f's_lshl_b32 s{s_m0b}, s{s_w}, 10\ns_lshl_b32 s{s_st}, s{s_w}, 12')
    p(f's_mov_b32 s{sW+2}, 0x180000\ns_mov_b32 s{sW+3}, 0x20000')
    p('s_waitcnt lgkmcnt(0)')
    p(f's_mov_b32 s{sW}, s{sX+2}\ns_mov_b32 s{sW+1}, s{sX+3}\ns_mov_b32 s{sX+2}, 0x200000\ns_mov_b32 s{sX+3}, 0x20000')
    def xslot(c): return RB + 16384*((c+1) % 3)
    def issue_k(c):
        L = []
        for i in range(4):
            L.append(('dma', f's_add_u32 m0, s{s_st}, {xslot(c)+1024*i}', f'buffer_load_dwordx4 v{vXg+i}, s[{sX}:{sX+3}], s{s_xo+c} offen {opt.get("ldflagx", LD)} lds', None))
        L.append(('dma', f's_add_u32 m0, s{s_m0b}, {RA+4096*c}', f'buffer_load_dwordx4 v{vWg}, s[{sW}:{sW+3}], s{s_wo+c} offen {LD} lds', f'wk{c}'))
        return L
    def issue_v(c):
        return [('dma', f's_add_u32 m0, s{s_st}, {RB+16384*(c>>2)+1024*(c&3)-1024}', f'buffer_load_dwordx4 v{vWg}, s[{sW}:{sW+3}], s{s_wo+c} offen offset:1024 {LD} lds', f'wv{c}')]
    def nextoff(c): p(f's_add_u32 s{s_xo+c}, s{s_xo+c-1}, 128\ns_and_b32 s{s_xo+c}, s{s_xo+c}, 1023\ns_mul_i32 s{s_wo+c}, s{s_xo+c}, 1536')
    WF1 = opt.get('wfirst', 0)
    def retok(L, tok): return L[:-1] + [L[-1][:3] + (tok,)]
    if WF1:
        nextoff(1)
        ext2(retok(issue_k(0)[4:], None)); ext2(retok(issue_k(1)[4:], None)); ext2(retok(issue_k(0)[:4], 'wk0'))
    else: ext2(issue_k(0))
    p(f'v_and_b32 v{vL16}, 63, v0\nv_lshlrev_b32 v{vL16}, 4, v{vL16}\nv_mov_b32 v{vEp}, 0')
    for s, n in ((sP, 0x4000), (sWS, 0x10000000 - WS_BASE)): p(f's_mov_b32 s{s+2}, {hex(n)}\ns_mov_b32 s{s+3}, 0x20000')
    if WS_BASE: p(f's_add_u32 s{sWS}, s{sWS}, {hex(WS_BASE)}\ns_addc_u32 s{sWS+1}, s{sWS+1}, 0')
    p(f's_lshl_b32 s{s_tmp2}, s{s_hp}, 10\ns_add_u32 m0, s{s_m0b}, {RA+28672}')
    if not WF1: nextoff(1)
    p(f'buffer_load_dwordx4 v{vL16}, s[{sP}:{sP+3}], s{s_tmp2} offen lds', tok='wphi')
    p(f'buffer_load_dword v{vEp}, v{vEp}, s[{sWS}:{sWS+3}], 0 offen offset:{WS_EB} sc1')
    for c in range(2, 8): nextoff(c)
    k1 = retok(issue_k(1)[:4], 'wk1') if WF1 else issue_k(1)
    if not opt.get('late12', 0): ext2(k1); ext2(issue_k(2))
    yield
    for s, n in ((sO, 0x80000), (sOUT, 0x400000)): p(f's_mov_b32 s{s+2}, {hex(n)}\ns_mov_b32 s{s+3}, 0x20000')
    R_, CQ, NH, H_ = P, P+1, P+2, P+3
    p(f'v_bfe_u32 v{R_}, v0, 2, 2\nv_and_b32 v{CQ}, 3, v0\nv_bfe_u32 v{NH}, v0, 4, 1\nv_bfe_u32 v{H_}, v0, 5, 1')
    p(f'v_lshl_add_u32 v{t0}, v{H_}, 3, v{R_}\nv_lshlrev_b32 v{t0}, 6, v{t0}')
    p(f'v_lshl_add_u32 v{t1}, v{NH}, 2, v{CQ}\nv_lshl_add_u32 v{vTR}, v{t1}, 3, v{t0}')
    p(f'v_and_b32 v{t1}, 1, v{CQ}\nv_lshl_add_u32 v{t2}, v{t1}, 1, v{NH}')
    p(f'v_lshrrev_b32 v{t3}, 1, v{CQ}\nv_lshl_add_u32 v{t2}, v{t2}, 1, v{t3}')
    p(f'v_lshl_add_u32 v{vTRv}, v{t2}, 3, v{t0}')
    p(f's_add_u32 s{s_tmp}, s{s_st}, {RB}')
    p(f'v_bfe_u32 v{t0}, v0, 1, 3\nv_xor_b32 v{t0}, v{t0}, v{H_}\nv_lshlrev_b32 v{t0}, 4, v{t0}')
    p(f'v_and_b32 v{t4}, 31, v0\nv_lshl_add_u32 v{t0}, v{t4}, 7, v{t0}\nv_add_u32 v{vSR}, s{s_tmp}, v{t0}')
    for j in range(1, 4): p(f'v_xor_b32 v{vSR+j}, {32*j}, v{vSR}')
    p(f'v_lshl_add_u32 v{t2}, v{NH}, 1, v{t3}\nv_lshlrev_b32 v{t2}, 3, v{t2}\nv_lshl_add_u32 v{t2}, v{t1}, 9, v{t2}')
    p(f'v_lshl_add_u32 v{t0}, v{H_}, 2, v{R_}\nv_lshl_add_u32 v{t2}, v{t0}, 5, v{t2}')
    p(f's_add_u32 s{s_tmp}, s{s_m0b}, {RA+28672}\nv_add_u32 v{t5}, s{s_tmp}, v{t2}')
    p(f's_getreg_b32 s{s_xcc}, hwreg(HW_REG_XCC_ID, 0, 4)')
    p(f's_mov_b32 s{s_c}, {hex(LOG2E)}\ns_and_b32 s{s_F}, s{s_w}, 1\ns_lshr_b32 s{s_H}, s{s_w}, 1')
    u0, u1, u2, u3, u4 = P+4, P+5, P+6, P+7, P+8
    kfill = []
    kfill += L_(f'''v_bfe_u32 v{u0}, v0, 1, 2
v_lshlrev_b32 v{a0}, 4, v{u0}
v_lshl_add_u32 v{a0}, v{t4}, 6, v{a0}
v_lshl_add_u32 v{a0}, v{H_}, 11, v{a0}
s_add_u32 s{s_tmp}, s{s_st}, {ST}
v_add_u32 v{a0}, s{s_tmp}, v{a0}
v_bfe_u32 v{u0}, v0, 2, 1
v_lshlrev_b32 v{b0}, 4, v{u0}
v_lshl_add_u32 v{b0}, v{t4}, 5, v{b0}
v_lshl_add_u32 v{b0}, v{H_}, 10, v{b0}
s_add_u32 s{s_tmp}, s{s_st}, {RB}
v_add_u32 v{b0}, s{s_tmp}, v{b0}''')
    kfill += L_(f'''v_lshrrev_b32 v{u0}, 1, v{R_}
v_lshl_add_u32 v{u0}, v{NH}, 1, v{u0}
s_lshl_b32 s{s_tmp2}, s{s_F}, 1
v_or_b32 v{u1}, s{s_tmp2}, v{t3}
v_xor_b32 v{u1}, v{u1}, v{u0}
v_bfe_u32 v{u2}, v0, 2, 4
v_lshlrev_b32 v{u3}, 3, v{t1}
v_lshl_add_u32 v{pa}, v{u1}, 4, v{u3}
v_lshl_add_u32 v{pa}, v{u2}, 6, v{pa}
s_lshl_b32 s{s_tmp}, s{s_H}, 11
s_add_u32 s{s_tmp}, s{s_tmp}, {ST}
v_add_u32 v{pa}, s{s_tmp}, v{pa}
v_xor_b32 v{u1}, v{t3}, v{NH}
v_lshl_add_u32 v{va}, v{u1}, 4, v{u3}
v_lshl_add_u32 v{va}, v{u2}, 5, v{va}
s_lshl_b32 s{s_tmp}, s{s_H}, 10
s_add_u32 s{s_tmp}, s{s_tmp}, {RB}
v_add_u32 v{va}, s{s_tmp}, v{va}''')
    kfill += L_(f'''v_lshlrev_b32 v{u0}, 5, v{CQ}
v_lshl_add_u32 v{u0}, v{NH}, 4, v{u0}
v_add_u32 v{u0}, 512, v{u0}
s_mov_b32 s{s_msk}, 0
s_mov_b32 s{s_msk+1}, -1
v_cndmask_b32 v{sa}, v{vL16}, v{u0}, s[{s_msk}:{s_msk+1}]
s_mul_i32 s{s_tmp}, s{s_hp}, {16*KVP_SZ}
s_mul_i32 s{s_tmp2}, s{s_w}, 640
s_add_u32 s{s_tmp}, s{s_tmp}, s{s_tmp2}
s_add_u32 s{s_so}, s{s_tmp}, {WS_KVP}
s_mul_i32 s{s_tmp}, s{s_rb}, {KVP_SZ}
s_add_u32 s{s_p1}, s{s_so}, s{s_tmp}
s_add_u32 s{s_so+1}, s{s_so}, {4*KVP_SZ}
s_add_u32 s{s_so+2}, s{s_so}, {8*KVP_SZ}
s_add_u32 s{s_so+3}, s{s_so}, {12*KVP_SZ}
v_mov_b32 v{vMask}, 0xfffefffe
v_bfe_u32 v{u0}, v0, 4, 2
v_mul_u32_u24 v{hA}, {KVP_SZ}, v{u0}
v_and_b32 v{u1}, 15, v0
v_lshl_add_u32 v{hA}, v{u1}, 4, v{hA}
v_bfe_u32 v{u1}, v0, 1, 2
v_lshl_add_u32 v{u1}, v{u1}, 2, v{u0}
v_mul_u32_u24 v{hZ}, {KVP_SZ}, v{u1}
v_and_b32 v{u1}, 1, v0
v_lshl_add_u32 v{hZ}, v{u1}, 4, v{hZ}
v_add_u32 v{hZ}, 512, v{hZ}
s_lshl2_add_u32 s{s_tmp}, s{s_rb}, s{s_w}
s_lshl4_add_u32 s{s_tmp}, s{s_tmp}, s{s_hp}
s_lshl_b32 s{s_pf}, s{s_tmp}, 4
s_add_u32 s{s_pf}, s{s_pf}, {WS_P2F}
s_lshl_b32 s{s_tmp}, s{s_tmp}, {12 if INP else 11}
s_add_u32 s{s_p2}, s{s_tmp}, {1024 if INP else WS_OX}
s_and_b32 s{s_tmp}, s{s_loc}, 3
s_lshl2_add_u32 s{s_rt}, s{s_xcd}, s{s_tmp}
s_lshr_b32 s{s_ct}, s{s_loc}, 2''')
    tagfill = [f'v_readfirstlane_b32 s{s_E1}, v{vEp}', 's_nop 0', f's_add_u32 s{s_E1}, s{s_E1}, 1']
    for j in range(4):
        tagfill += L_(f's_lshr_b32 s{s_tmp}, s{s_E1}, {2*j}\ns_and_b32 s{s_tmp2}, s{s_tmp}, 1\ns_and_b32 s{s_tmp}, s{s_tmp}, 2\ns_lshl_b32 s{s_tmp}, s{s_tmp}, 15\ns_or_b32 s{s_t+j}, s{s_tmp}, s{s_tmp2}')
    if opt.get('late12', 0): ext2(k1)
    p.ext(kfill)
    if opt.get('late12', 0): ext2(issue_k(2))
    def trpair(dst, addr, off, d2=256):
        return [f'ds_read_b64_tr_b16 {vr(dst,2)}, v{addr} offset:{off}', f'ds_read_b64_tr_b16 {vr(dst+2,2)}, v{addr} offset:{off+d2}']
    for c in range(8):
        p.wait_tok(f'wk{c}')
        if c == 0: stamp()
        stamp('k')
        for j in range(4): p(f'ds_read_b128 {vr(X+16*c+4*j,4)}, v{vSR+j} offset:{xslot(c)-RB}')
        p('s_barrier')
        for j in range(4): p.ext(trpair(WF+4*j, vTR, RA+4096*c+1024*j))
        if c == 1:
            p.ext(trpair(vA1, t5, 0))
        for j in range(4):
            p(f'v_mfma_f32_32x32x16_bf16 {vr(ACC0,16)}, {vr(WF+4*j,4)}, {vr(X+16*c+4*j,4)}, {"0" if (c==0 and j==0) else vr(ACC0,16)}')
        if c == 1:
            p(f's_mov_b32 s{s_msk}, 0x0f0f0f0f\ns_mov_b32 s{s_msk+1}, 0x0f0f0f0f')
            for j in range(4): p(f'v_cndmask_b32 v{vA2+j}, v{vA1+j}, 0, s[{s_msk}:{s_msk+1}]')
            for j in range(4): p(f'v_cndmask_b32 v{vA1+j}, 0, v{vA1+j}, s[{s_msk}:{s_msk+1}]')
            p.ext(tagfill)
        if c + 3 < 8: ext2(issue_k(c + 3))
        elif c == 5 or (c == 6 and not opt.get('v47late', 1)):
            for cc in range(4*(c-5), 4*(c-5)+4): ext2(issue_v(cc))
        elif c == 7 and opt.get('v47late', 1):
            for cc in range(4, 8): ext2(issue_v(cc))
    stamp(); stamp('k'); stamp('v')
    cap[0] = 0
    if opt.get('prioB'): p(f's_setprio {opt["prioB"]}')
    def phi_head(acc):
        L = [f'v_cvt_pk_bf16_f32 v{E+j}, v{acc+2*j}, v{acc+2*j+1}' for j in range(8)]
        L.insert(4, f'v_mfma_f32_32x32x16_bf16 {vr(P,16)}, {vr(vA1,4)}, {vr(E,4)}, 0')
        L.insert(4, L.pop(5)); L.insert(5, L.pop(6))
        L.append(f'v_mfma_f32_32x32x16_bf16 {vr(P,16)}, {vr(vA2,4)}, {vr(E+4,4)}, {vr(P,16)}')
        return L
    def phi_body(dst, normalize, wr=None):
        mx, mn = vT0, vT1
        L = [f'v_max3_f32 v{mx}, v{P}, v{P+1}, v{P+2}', f'v_min3_f32 v{mn}, v{P}, v{P+1}, v{P+2}']
        for j in range(3, 15, 2):
            L += [f'v_max3_f32 v{mx}, v{mx}, v{P+j}, v{P+j+1}', f'v_min3_f32 v{mn}, v{mn}, v{P+j}, v{P+j+1}']
        L += [f'v_max_f32 v{mx}, v{mx}, v{P+15}', f'v_min_f32 v{mn}, v{mn}, v{P+15}']
        L += [f'v_mul_f32 v{mx}, 0xbfb8aa3b, v{mx}', f'v_mul_f32 v{mn}, {hex(LOG2E)}, v{mn}']
        fm = [f'v_fma_f32 v{E+j}, v{P+j}, s{s_c}, v{mx}' for j in range(16)] + [f'v_fma_f32 v{E+16+j}, v{P+j}, -s{s_c}, v{mn}' for j in range(16)]
        ex = [f'v_exp_f32 v{E+j}, v{E+j}' for j in range(32)]
        L += fm[:2]
        for j in range(32):
            if j + 2 < 32: L.append(fm[j+2])
            L.append(ex[j])
        if normalize:
            for b in range(2):
                for j in range(4): L.append(f'v_add_f32 v{P+4*b+j}, v{E+16*b+j}, v{E+16*b+4+j}')
            for k in (8, 12):
                for b in range(2):
                    for j in range(4): L.append(f'v_add_f32 v{P+4*b+j}, v{P+4*b+j}, v{E+16*b+k+j}')
            for b in range(2):
                for j in range(2): L.append(f'v_add_f32 v{P+4*b+j}, v{P+4*b+j}, v{P+4*b+2+j}')
            for b in range(2): L.append(f'v_add_f32 v{P+4*b}, v{P+4*b}, v{P+4*b+1}')
            L += [f'v_rcp_f32 v{mx}, v{P}', f'v_rcp_f32 v{mn}, v{P+4}']
            for j in range(1, 4): L.append(f'v_xor_b32 v{P+8+j}, {16*j}, v{a0}')
            for g in range(4):
                for j in range(8): L.append(f'v_mul_f32 v{E+8*g+j}, v{E+8*g+j}, v{mx if g < 2 else mn}')
                for j in range(4): L.append(f'v_cvt_pk_bf16_f32 v{dst+4*g+j}, v{E+8*g+2*j}, v{E+8*g+2*j+1}')
                L.append(f'ds_write_b128 v{a0 if g == 0 else P+8+g}, {vr(dst+4*g,4)}')
        else:
            for j in range(16): L.append(f'v_cvt_pk_bf16_f32 v{dst+j}, v{E+2*j}, v{E+2*j+1}')
        return L
    PRE = opt.get('pre', 4)
    def gemm_slots(acc, addr, offf, events={}):
        def rd(n):
            c, j = n >> 2, n & 3
            L = list(events.get(c, [])) if j == 0 else []
            return L + trpair(WF+4*(n % NSL), addr, offf(c, j))
        pro = []
        for n in range(PRE): pro += rd(n)
        slots = []
        for n in range(32):
            c, j = n >> 2, n & 3
            sl = [f'v_mfma_f32_32x32x16_bf16 {vr(acc,16)}, {vr(WF+4*(n%NSL),4)}, {vr(X+16*c+4*j,4)}, {"0" if n==0 else vr(acc,16)}']
            if n+PRE < 32: sl += rd(n+PRE)
            slots.append(sl)
        return pro, slots
    p.ext(phi_head(ACC0))
    body = phi_body(ACC0, True)
    vg = opt.get('vgrp', 2)
    ev = {c: [('waittok', f'wv{c+vg-1}'), 's_barrier'] for c in range(0, 8, vg)}
    ev[0] = [('waittok', f'wv{vg-1}'), 's_barrier', f'v_subrev_u32 v{vWg}, 1024, v{vWg}']
    pro, slots = gemm_slots(ACC1, vTRv, lambda c, j: RB + 16384*(c >> 2) + 4096*j + 1024*(c & 3), ev)
    wq = [('dma', f's_add_u32 m0, s{s_m0b}, {RA+4096*c}', f'buffer_load_dwordx4 v{vWg}, s[{sW}:{sW+3}], s{s_wo+c} offen {LD} lds', f'wq{c}') for c in range(8)]
    stamp('v')
    ext2(pro)
    nhead = opt.get('phik_head', 8)
    p.ext(body[:nhead]); rest = body[nhead:]
    stamp('v')
    pfw = []
    if opt.get('pfwo', 0):
        pfw = [f'v_and_b32 v{vEp}, 31, v0', f'v_lshlrev_b32 v{vEp}, 7, v{vEp}', f's_lshl2_add_u32 s3, s{s_loc}, s{s_w}', 's_lshl_b32 s3, s3, 12',
               f'buffer_load_dword v{vEp}, v{vEp}, s[{sO}:{sO+3}], s3 offen']
    if opt.get('oxt') not in (None, 'none'):
        if INP:
            pfw = [f'v_bfe_u32 v{vEp}, v0, 3, 1', f'v_lshlrev_b32 v{vEp}, 4, v{vEp}', f'v_and_or_b32 v{vEp}, v0, 7, v{vEp}', f'v_lshlrev_b32 v{vEp}, 7, v{vEp}',
                   f'buffer_load_dword v{vEp}, v{vEp}, s[{sOUT}:{sOUT+3}], s{s_p2} offen']
        else:
            pfw = [f'v_and_b32 v{vEp}, 15, v0', f'v_lshlrev_b32 v{vEp}, 7, v{vEp}', f'buffer_load_dword v{vEp}, v{vEp}, s[{sWS}:{sWS+3}], s{s_p2} offen']
        opt['pfwo_at'] = opt['oxt']
    sl = slotted(slots, [(rest, 0, opt.get('phik_last', 31)), (wq, opt.get('wq_at', 2), opt.get('wq_end', 16)), (pfw, opt.get('pfwo_at', 18), opt.get('pfwo_at', 18)+1)])
    if opt.get('stampset') == 'v':
        mi = [k for k, x in enumerate(sl) if isinstance(x, str) and x.startswith('v_mfma')]
        prev = 0
        for k in (mi[8], mi[16], mi[24]):
            ext2(sl[prev:k]); stamp('v'); prev = k
        ext2(sl[prev:])
    else: ext2(sl)
    stamp(); stamp('v')
    VB = E; ONES = P
    p(f'v_xor_b32 v{P+4}, 16, v{b0}')
    for j in range(4): p(f'v_mov_b32 v{ONES+j}, 0x3f803f80')
    for j in range(8):
        p(f'v_cvt_pk_bf16_f32 v{VB+j}, v{ACC1+2*j}, v{ACC1+2*j+1}')
        if j == 3: p(f'ds_write_b128 v{b0}, {vr(VB,4)}')
    p(f'ds_write_b128 v{P+4}, {vr(VB+4,4)}')
    p('s_waitcnt lgkmcnt(0)\ns_barrier')
    stamp('v')
    KV, Z, R0 = P+8, P+12, E+8
    FRG = ACC0
    for ks in range(4):
        p.ext(trpair(FRG+8*ks, pa, 4096*ks, 1024)); p.ext(trpair(FRG+8*ks+4, va, 4096*ks, 512))
    if GRP: p(f'buffer_load_dwordx4 {vr(PA,4)}, v{hZ}, s[{sWS}:{sWS+3}], s{s_so} offen sc1')
    for ks in range(4):
        p(f'v_mfma_f32_16x16x32_bf16 {vr(Z,4)}, {vr(FRG+8*ks,4)}, {vr(ONES,4)}, {"0" if ks==0 else vr(Z,4)}')
        p(f'v_mfma_f32_16x16x32_bf16 {vr(KV,4)}, {vr(FRG+8*ks,4)}, {vr(FRG+8*ks+4,4)}, {"0" if ks==0 else vr(KV,4)}')
    p(f's_mov_b32 s{s_rdy}, 0\ns_mov_b32 s{s_sp}, 0')
    p(f'v_cvt_pk_bf16_f32 v{R0+2}, v{Z}, v{Z+1}\nv_cvt_pk_bf16_f32 v{R0+3}, v{Z+2}, v{Z+3}')
    p(f'v_cvt_pk_bf16_f32 v{R0}, v{KV}, v{KV+1}\nv_cvt_pk_bf16_f32 v{R0+1}, v{KV+2}, v{KV+3}')
    p(f'v_permlane32_swap_b32 v{R0}, v{R0+2}\nv_permlane32_swap_b32 v{R0+1}, v{R0+3}')
    for j in range(4): p(f'v_and_or_b32 v{R0+j}, v{R0+j}, v{vMask}, s{s_t+j}')
    p(f's_mov_b32 exec_hi, 0x000f000f')
    p(f'buffer_store_dwordx4 {vr(R0,4)}, v{sa}, s[{sWS}:{sWS+3}], s{s_p1} offen sc1')
    p(f's_mov_b32 exec_hi, -1')
    stamp(); stamp('v'); stamp('q')
    if opt.get('skew'):
        if opt['skew'] == 'pub1': p('s_memrealtime s[78:79]\ns_waitcnt lgkmcnt(0)')
        p(f'v_mov_b32 v{E+20}, s78\ns_lshl_b32 s98, s2, 2\nv_mov_b32 v{E+21}, s98\ns_mov_b32 s98, {WS_STAMP}')
        p(f'buffer_store_dword v{E+20}, v{E+21}, s[{sWS}:{sWS+3}], s98 offen sc1')
    p.wait_tok('wq7')
    p('s_barrier')
    if LOC2:
        p(f's_cmp_lg_u32 s{s_w}, 0\ns_cbranch_scc1 B_NOBF')
        p(f'v_mov_b32 v{E+12}, s{s_E1}\nv_mov_b32 v{E+13}, s{s_xcc}\nv_mov_b32 v{E+14}, 0\ns_lshl_b32 s{s_tmp}, s{s_xcd}, 5\ns_add_u32 s{s_tmp}, s{s_tmp}, s{s_loc}\ns_lshl_b32 s{s_tmp}, s{s_tmp}, 4\ns_add_u32 s{s_tmp}, s{s_tmp}, {WS_BF}\ns_mov_b64 exec, 1')
        p(f'buffer_store_dwordx2 {vr(E+12,2)}, v{E+14}, s[{sWS}:{sWS+3}], s{s_tmp} offen sc1', tok='nocount')
        p('s_mov_b64 exec, -1\nB_NOBF:')
    stamp('q')
    pro, slots = gemm_slots(ACC0, vTR, lambda c, j: RA + 4096*c + 1024*j)
    ext2(pro)
    cA, cD = E+2, E+4
    fillc = (L_(f'''s_mul_i32 s{s_tmp}, s{s_H}, 1600
s_mul_i32 s{s_tmp2}, s{s_F}, 80
s_add_u32 s{s_tmp}, s{s_tmp}, s{s_tmp2}
s_add_u32 s{s_tmp3}, s{s_tmp}, {KT+16*80}
v_bfe_u32 v{cA}, v0, 2, 4
v_mul_u32_u24 v{cA}, 160, v{cA}
v_add_u32 v{cA}, s{s_tmp3}, v{cA}
s_mov_b64 s[{s_msk}:{s_msk+1}], 0xf00
v_mov_b32 v{cD}, {ZERO}
v_cndmask_b32 v{cA}, v{cA}, v{cD}, s[{s_msk}:{s_msk+1}]
v_and_b32 v{cD}, 3, v0
v_lshl_add_u32 v{cA}, v{cD}, 4, v{cA}
s_lshl_b32 s{s_tmp2}, s{s_F}, 1
s_lshl_b32 s{s_msk}, 3, s{s_tmp2}
v_mov_b32 v{cD+1}, 0x3f803f80
v_cndmask_b32 v{cD}, 0, v{cD+1}, s[{s_msk}:{s_msk+1}]
v_mov_b32 v{cD+1}, v{cD}
v_mov_b32 v{cD+2}, v{cD}
v_mov_b32 v{cD+3}, v{cD}
''') + [f's_mov_b64 exec, 0xfff\nds_write_b128 v{cA}, {vr(cD,4)}\ns_mov_b64 exec, -1'])
    if not opt.get('cfill'): p.ext(fillc); fillc = []
    SEL = ACC1
    tK, tZ, aN, aX, zc = ACC1+8, ACC1+9, ACC1+10, ACC1+11, ACC1+12
    w0, w1, w2 = ACC1+13, ACC1+14, ACC1+15
    vOg = vWg
    s_r8 = s_xo
    fill = []
    fill0 = []
    fill0 += L_(f'''v_bfe_u32 v{w0}, v0, 4, 1
v_lshlrev_b32 v{w0}, 2, v{w0}
v_and_b32 v{w1}, 7, v0
v_xor_b32 v{w0}, v{w0}, v{w1}
v_lshlrev_b32 v{w0}, 4, v{w0}
v_lshrrev_b32 v{w1}, 3, v0
v_lshl_add_u32 v{w0}, v{w1}, 10, v{w0}
s_lshl_b32 s{s_tmp2}, s{s_ct}, 7
v_add_u32 v{vOg}, s{s_tmp2}, v{w0}''')
    for n in range(8): fill0 += L_(f's_add_u32 s{s_r8+n}, s{s_ct}, {n}\ns_and_b32 s{s_r8+n}, s{s_r8+n}, 7')
    fill = fillc + L_(f'''v_and_b32 v{w0}, 1, v0
v_lshlrev_b32 v{w0}, 4, v{w0}
v_mov_b32 v{w1}, 0x3f80
v_lshlrev_b32 v{w0}, v{w0}, v{w1}
v_bfe_u32 v{w1}, v0, 1, 3''')
    mk = [(s_msk, s_msk+1), (6, 7)]
    for j in range(0, 8, 2):
        fill += [f'v_cmp_eq_u32 s[{mk[0][0]}:{mk[0][1]}], {j}, v{w1}', f'v_cmp_eq_u32 s[{mk[1][0]}:{mk[1][1]}], {j+1}, v{w1}', f's_nop 0',
                 f'v_cndmask_b32 v{SEL+j}, 0, v{w0}, s[{mk[0][0]}:{mk[0][1]}]', f'v_cndmask_b32 v{SEL+j+1}, 0, v{w0}, s[{mk[1][0]}:{mk[1][1]}]']
    fill += L_(f'''v_bfe_u32 v{w0}, v0, 4, 1
v_bfe_u32 v{w1}, v0, 5, 1
v_lshl_add_u32 v{w2}, v{w0}, 1, v{w1}
v_and_b32 v{tK}, 15, v0
v_mul_u32_u24 v{tK}, 80, v{tK}
v_lshl_add_u32 v{tK}, v{w2}, 3, v{tK}
s_lshl_b32 s{s_tmp2}, s{s_F}, 5
s_add_u32 s{s_tmp}, s{s_tmp}, s{s_tmp2}
s_add_u32 s{s_tmp3}, s{s_tmp}, {KT+18*80}
v_and_b32 v{w2}, 1, v0
v_lshl_add_u32 v{w2}, v{w0}, 1, v{w2}
v_lshlrev_b32 v{tZ}, 3, v{w2}
v_add_u32 v{tZ}, s{s_tmp3}, v{tZ}
s_mul_i32 s{s_tmp2}, s{s_F}, 80
s_sub_u32 s{s_tmp}, s{s_tmp}, s{s_tmp2}
s_add_u32 s{s_tmp}, s{s_tmp}, {KT}
v_add_u32 v{tK}, s{s_tmp}, v{tK}
v_bfe_u32 v{w0}, v0, 3, 2
v_and_b32 v{w2}, 3, v0
v_lshl_add_u32 v{w0}, v{w0}, 2, v{w2}
v_mul_u32_u24 v{aN}, 80, v{w0}
v_mul_u32_u24 v{w1}, 1600, v{w1}
v_add_u32 v{w1}, {KT}, v{w1}
v_add_u32 v{aN}, v{aN}, v{w1}
v_mul_u32_u24 v{aX}, 80, v{w2}
v_add_u32 v{aX}, v{aX}, v{w1}
v_add_u32 v{aX}, {16*80}, v{aX}
v_mov_b32 v{w0}, {ZERO}
s_mov_b32 s{s_msk}, 0x0f0f0f0f
s_mov_b32 s{s_msk+1}, 0xf0f0f0f0
v_cndmask_b32 v{aN}, v{w0}, v{aN}, s[{s_msk}:{s_msk+1}]
s_mov_b32 s{s_msk}, 0x0000000f
s_mov_b32 s{s_msk+1}, 0x000000f0
v_cndmask_b32 v{aX}, v{w0}, v{aX}, s[{s_msk}:{s_msk+1}]''')
    def wo_dma(half):
        return [('dma', f's_lshl_b32 s3, s{s_r8+n}, 15\n' + (f's_add_u32 s3, s3, 0x40000\n' if half else '') + f's_add_u32 m0, s{s_m0b}, {(RB if half==0 else RA)+4096*n}',
                 f'buffer_load_dwordx4 v{vOg}, s[{sO}:{sO+3}], s3 offen lds', f'wo{half}_{n}') for n in range(8)]
    HZ, HK = E+12, X
    HZ = X + 32 if not GRP else PA
    def z_load(): return f'buffer_load_dwordx4 {vr(HZ,4)}, v{hZ}, s[{sWS}:{sWS+3}], s{s_so} offen sc1'
    def kv_list():
        return [f'buffer_load_dwordx4 {vr(HK+8*m+4*st,4)}, v{hA}, s[{sWS}:{sWS+3}], s{s_so+m} offen offset:{256*st} sc1' for m in range(4) for st in range(2)]
    HF = X + 36
    def bf_load(): return f'buffer_load_dwordx2 {vr(HF,2)}, v{sa}, s[{sWS}:{sWS+3}], s{s_p1} offen sc1'
    if LOC2: fill += L_(f'v_and_b32 v{sa}, 0x1f0, v{vL16}\ns_lshl_b32 s{s_p1}, s{s_xcd}, 9\ns_add_u32 s{s_p1}, s{s_p1}, {WS_BF}')
    def z_check():
        return [f'v_xor_b32 v{zc}, s{s_t}, v{HZ}'] + [f'v_bitop3_b32 v{zc}, v{zc}, v{HZ+j}, s{s_t+j} bitop3:0xf6' for j in range(1, 4)] + [f'v_and_b32 v{zc}, 0x00010001, v{zc}', f'v_cmp_ne_u32 vcc, 0, v{zc}']
    zat = opt.get('z_at', 10); h1 = opt.get('h1_at', 30)
    assert zat >= 9
    def go_block():
        L = kv_list() + ([bf_load()] if LOC2 else []) + [f's_mov_b32 s{s_rdy}, 1']
        return L
    cpn = [0]
    gcn = [0]
    def gcheck(wait, final=False):
        k = gcn[0]; gcn[0] += 1
        p(f's_cmp_eq_u32 s{s_rdy}, 15\ns_cbranch_scc1 B_GC{k}')
        if wait: p('s_waitcnt vmcnt(0)')
        p.ext(z_check())
        p(f's_or_b32 s3, vcc_lo, vcc_hi')
        kl = kv_list()
        for g in range(4):
            p(f's_bitcmp1_b32 s{s_rdy}, {g}\ns_cbranch_scc1 B_GD{k}_{g}\ns_and_b32 s17, s3, {hex(0x03030303 << (2*g))}\ns_cbranch_scc1 B_GD{k}_{g}')
            p(kl[2*g], tok='nocount'); p(kl[2*g+1], tok='nocount')
            p(f's_bitset1_b32 s{s_rdy}, {g}\nB_GD{k}_{g}:')
        p(f's_cmp_eq_u32 s{s_rdy}, 15\ns_cbranch_scc1 B_GE{k}')
        p(z_load(), tok='nocount')
        if final:
            p(f's_add_u32 s{s_sp}, s{s_sp}, 1\ns_cmp_gt_u32 s{s_sp}, {SPIN_MAX}\ns_cbranch_scc0 B_GLOOP')
        p(f'B_GE{k}:\nB_GC{k}:')
    def checkpoint(first=False):
        if GRP: return gcheck(True)
        k = cpn[0]; cpn[0] += 1
        if not first: p(f's_cmp_lg_u32 s{s_rdy}, 0\ns_cbranch_scc1 B_CP{k}\ns_waitcnt vmcnt(0)')
        p.ext(z_check())
        p(f's_cbranch_vccz B_CPGO{k}')
        p(z_load(), tok='nocount')
        p(f'B_CP{k}:')
    stamp('q')
    WOP = opt.get('woplan', 0)
    zl = [([z_load()], zat, zat)] if not GRP else []
    DIR = opt.get('h1direct', 0)
    if DIR:
        h1 = 32; zl = [([z_load()] + go_block(), DIR, 31)]
    if WOP == 1:
        sq = slotted(slots[:h1], [(fill0, 0, 1), (wo_dma(0), 2, zat-1), (fill, 2, h1-1)] + zl)
    elif WOP == 2:
        na = opt.get('wo_a', 4)
        sq = slotted(slots[:h1], [(fill0, 0, 1), (wo_dma(0)[:na], 2, 2+na), (fill, 2, h1-1)] + zl)
    else:
        sq = slotted(slots[:h1], [(fill0 + fill, 0, h1-1)] + zl)
    if GRP:
        ga = opt.get('ga_at', 9)
        mi = [k for k, x in enumerate(sq) if isinstance(x, str) and x.startswith('v_mfma')]
        ext2(sq[:mi[ga]]); gcheck(False); ext2(sq[mi[ga]:])
    else: ext2(sq)
    stamp('q')
    if not opt.get('nocp0') and not DIR: checkpoint(True)
    stamp('q')
    ext2(slotted(slots[h1:], []))
    stamp(); stamp('q')
    EQ = X + 48
    hd = phi_head(ACC0); bd = phi_body(EQ, False)
    if WOP == 1: p('s_barrier')
    ext2(hd)
    nw1 = opt.get('wo1_early', 4) if WOP == 1 else 0
    cps = [int(x) for x in str(opt.get('cps', '60')).split('-') if x != '']
    prev = 0
    for c in ([] if DIR else cps):
        ext2(bd[prev:c]); checkpoint(); prev = c
    if GRP and LOC2: p(bf_load())
    ext2(interleave(bd[prev:], wo_dma(1)[:nw1]) if nw1 else bd[prev:])
    stamp(); stamp('q')
    chk = zc
    DZ, DK = P, P+4
    if DIR:
        p.ext(z_check()); p('s_cbranch_vccnz B_H1_POLLZ')
    elif GRP:
        p('B_GLOOP:'); gcheck(True, True); p('s_waitcnt vmcnt(0)')
    else: p(f's_cmp_eq_u32 s{s_rdy}, 0\ns_cbranch_scc1 B_H1_POLL')
    p('B_H1_CHK:')
    p.assume_clean()
    if not GRP: p.pretend(kv_list() + ([bf_load()] if LOC2 else []), [None]*9)
    if WOP == 1:
        wo0 = wo_dma(1)[nw1:] + [None]*8
    elif WOP == 2: wo0 = wo_dma(0)[na:] + [None]*8
    else: wo0 = wo_dma(0)
    p(f'v_mfma_f32_16x16x32_bf16 {vr(DZ,4)}, {vr(SEL,4)}, {vr(HZ,4)}, 0')
    for n in range(8):
        p(f'v_mfma_f32_16x16x32_bf16 {vr(DK,4)}, {vr(SEL+4*(n&1),4)}, {vr(HK+4*n,4)}, {"0" if n==0 else vr(DK,4)}')
        for j in range(4):
            if n == 0 and j == 0: p(f'v_xor_b32 v{chk}, s{s_t}, v{HK}')
            else: p(f'v_bitop3_b32 v{chk}, v{chk}, v{HK+4*n+j}, s{s_t+j} bitop3:0xf6')
        if wo0[n]: ext2([wo0[n]])
        if n == 1:
            for j in range(4): p(f'v_add_f32_dpp v{DZ+j}, v{DZ+j}, v{DZ+j} row_ror:2 row_mask:0xf bank_mask:0xf')
        if n == 2:
            for j in range(4): p(f'v_add_f32_dpp v{DZ+j}, v{DZ+j}, v{DZ+j} row_ror:4 row_mask:0xf bank_mask:0xf')
        if n == 3:
            p(f'v_cvt_pk_bf16_f32 v{DZ}, v{DZ}, v{DZ+1}\nv_cvt_pk_bf16_f32 v{DZ+1}, v{DZ+2}, v{DZ+3}')
            p('s_mov_b64 exec, 0x00030003')
            p(f'ds_write_b64 v{tZ}, {vr(DZ,2)}')
            p('s_mov_b64 exec, -1')
    p(f'v_and_b32 v{chk}, 0x00010001, v{chk}')
    p(f'v_cmp_ne_u32 vcc, 0, v{chk}')
    p('s_cbranch_vccnz B_H1_RETRY')
    p('B_H1_OK:')
    stamp('q')
    p(f'v_cvt_pk_bf16_f32 v{DK}, v{DK}, v{DK+1}\nv_cvt_pk_bf16_f32 v{DK+1}, v{DK+2}, v{DK+3}')
    p(f'ds_write_b64 v{tK}, {vr(DK,2)}')
    if LOC2:
        p(f'v_xor_b32 v{HF}, s{s_E1}, v{HF}\nv_xor_b32 v{HF+1}, s{s_xcc}, v{HF+1}\nv_or_b32 v{HF}, v{HF}, v{HF+1}\nv_cmp_ne_u32 vcc, 0, v{HF}')
        p(f's_or_b32 s{s_mode}, vcc_lo, vcc_hi')
        if opt.get('slowB'): p(f's_mov_b32 s{s_mode}, 1')
    p('s_waitcnt lgkmcnt(0)\ns_barrier')
    stamp(); stamp('q'); stamp('g')
    OFR = X
    for j in range(4): p(f'ds_read_b128 {vr(OFR+4*j,4)}, v{aX} offset:{16*j}')
    for j in range(4): p(f'ds_read_b128 {vr(OFR+16+4*j,4)}, v{aN} offset:{16*j}')
    AUX, NP, NM = P, ACC0, ACC1
    om = [f'v_mfma_f32_32x32x16_bf16 {vr(AUX,16)}, {vr(OFR+4*j,4)}, {vr(EQ+4*j,4)}, {"0" if j==0 else vr(AUX,16)}' for j in range(4)]
    om += [f'v_mfma_f32_32x32x16_bf16 {vr(NP,16)}, {vr(OFR+16+4*j,4)}, {vr(EQ+4*j,4)}, {"0" if j==0 else vr(NP,16)}' for j in range(2)]
    om += [f'v_mfma_f32_32x32x16_bf16 {vr(NM,16)}, {vr(OFR+16+4*j,4)}, {vr(EQ+4*j,4)}, {"0" if j==2 else vr(NM,16)}' for j in range(2, 4)]
    pl = WF; POL = WF + 2; FLG = WF + 6
    if INP:
        pre2 = L_(f"""s_lshl2_add_u32 s{s_tmp}, s{s_rt}, s{s_w}
s_lshl_b32 s{s_so+1}, s{s_tmp}, 7
s_add_u32 s{s_so+1}, s{s_so+1}, {WS_P2F}
s_lshl_b32 s{s_tmp}, s{s_tmp}, 15
s_add_u32 s{s_so}, s{s_tmp}, 1024
v_and_b32 v{pl}, 0x70, v{vL16}
v_mov_b32 v{pl+1}, 0
v_mov_b32 v{FLG}, s{s_E1}""")
    else:
        pre2 = L_(f"""s_lshl2_add_u32 s{s_tmp}, s{s_rt}, s{s_w}
s_lshl_b32 s{s_tmp}, s{s_tmp}, 14
s_add_u32 s{s_so}, s{s_tmp}, {WS_OX}
v_and_b32 v{pl}, 7, v0
v_lshlrev_b32 v{pl}, 11, v{pl}
v_add_u32 v{pl}, 2032, v{pl}""")
    if WOP == 2:
        w1 = wo_dma(1); ext2(w1[:1]); ext2(pre2)
        for k, m in enumerate(om):
            p(m)
            if k < 7: ext2([w1[k+1]])
    else:
        ext2(pre2); p.ext(om)
    def poll2():
        if INP: return f'buffer_load_dword v{POL}, v{pl}, s[{sWS}:{sWS+3}], s{s_so+1} offen sc1'
        return f'buffer_load_dwordx4 {vr(POL,4)}, v{pl}, s[{sWS}:{sWS+3}], s{s_so} offen sc1'
    tmn = [0]
    def two_mode(st, plain=''):
        k = tmn[0]; tmn[0] += 1
        p(f's_cmp_eq_u32 s{s_mode}, 0\ns_cbranch_scc1 B_TMa{k}')
        p(st + ' sc1', tok='nocount'); p(f's_branch B_TMb{k}\nB_TMa{k}:'); p(st + ' ' + plain); p(f'B_TMb{k}:')
    def flag_store(soff):
        p('s_mov_b64 exec, 1'); two_mode(f'buffer_store_dword v{FLG}, v{pl+1}, s[{sWS}:{sWS+3}], s{soff} offen'); p('s_mov_b64 exec, -1')
    PF = opt.get('pollfirst', 0)
    c0 = E
    p(f'v_rcp_f32 v{c0}, v{AUX}\nv_rcp_f32 v{c0+1}, v{AUX+1}')
    p(f'v_mul_f32 v{c0+2}, v{AUX+2}, v{c0}\nv_fma_f32 v{c0+2}, v{AUX+3}, v{c0+1}, v{c0+2}\nv_add_f32 v{c0+2}, 0x358637bd, v{c0+2}')
    p(f'v_rcp_f32 v{c0+2}, v{c0+2}')
    p(f'v_mul_f32 v{c0}, v{c0}, v{c0+2}\nv_mul_f32 v{c0+1}, v{c0+1}, v{c0+2}')
    OB = E+16
    for hh in range(2):
        for j in range(8*hh, 8*hh+8): p(f'v_mul_f32 v{NP+j}, v{NP+j}, v{c0}')
        for j in range(8*hh, 8*hh+8): p(f'v_fmac_f32 v{NP+j}, v{NM+j}, v{c0+1}')
        for j in range(4*hh, 4*hh+4): p(f'v_cvt_pk_bf16_f32 v{OB+j}, v{NP+2*j}, v{NP+2*j+1}')
        if not INP:
            for j in range(4*hh, 4*hh+4): p(f'v_and_or_b32 v{OB+j}, v{OB+j}, v{vMask}, s{s_t+(j&3)}')
        if PF == 1 + hh: p(poll2())
        st = f'buffer_store_dwordx4 {vr(OB+4*hh,4)}, v{vL16}, s[{sWS}:{sWS+3}], s{s_p2} offen offset:{1024*hh}'
        if INP: st = f'buffer_store_dwordx4 {vr(OB+4*hh,4)}, v{vL16}, s[{sOUT}:{sOUT+3}], s{s_p2} offen offset:{2048*hh}'
        if LOC2: two_mode(st, str(opt.get('oflag', '')))
        else: p(st + ' sc1')
        if opt.get('dupst'): p(f's_add_u32 s3, s{s_p2}, 0x400000'); p(st.replace(f's{s_p2} offen', 's3 offen'))
    stamp(); stamp('g')
    setup = []
    wa, wb, oa, xw, xr = E, E+1, E+3, E+6, E+7
    chk = E+8
    setup += L_(f'''v_bfe_u32 v{E+4}, v0, 2, 2
v_bfe_u32 v{E+5}, v0, 5, 1
v_lshl_add_u32 v{E+9}, v{E+5}, 4, v{E+4}
v_lshlrev_b32 v{wa}, 7, v{E+9}
v_lshrrev_b32 v{E+4}, 1, v{E+4}
v_xor_b32 v{E+4}, s{s_F}, v{E+4}
v_lshl_add_u32 v{wa}, v{E+4}, 6, v{wa}
v_and_b32 v{E+4}, 63, v{vTRv}
v_add_u32 v{wa}, v{wa}, v{E+4}
s_xor_b32 s{s_tmp3}, s{s_F}, 1
s_lshl_b32 s{s_tmp3}, s{s_tmp3}, 15
v_add_u32 v{wa}, s{s_tmp3}, v{wa}
v_xor_b32 v{wb}, 64, v{wa}
v_and_b32 v{E+4}, 31, v0
v_lshlrev_b32 v{E+5}, 5, v{E+5}
v_lshl_add_u32 v{oa}, v{E+4}, 11, v{E+5}
s_lshl1_add_u32 s{s_tmp}, s{s_rt}, s{s_H}
s_lshl_b32 s{s_tmp}, s{s_tmp}, 16
s_lshl1_add_u32 s{s_tmp3}, s{s_ct}, s{s_F}
s_lshl_b32 s{s_tmp3}, s{s_tmp3}, 6
s_add_u32 s{s_oo}, s{s_tmp}, s{s_tmp3}
s_add_u32 s{s_oo}, s{s_oo}, 1024
s_add_u32 s{s_tmp}, s{s_st}, {ST}
s_xor_b32 s{s_tmp3}, s{s_st}, 4096
s_add_u32 s{s_tmp3}, s{s_tmp3}, {ST}
v_add_u32 v{xw}, s{s_tmp}, v{vL16}
v_add_u32 v{xr}, s{s_tmp3}, v{vL16}''')
    e2w, e2r = E+10, E+12
    E3 = opt.get('e3', 0)
    e3k, e3s, e3r = E+12, E+16, E+20
    if E3:
        assert INP
        setup = [x for x in setup if not any(f'v{r},' in x.split(',')[0] + ',' for r in (oa, xw, xr)) and f's{s_oo},' not in x.split(',')[0] + ',']
        setup += L_(f"""v_and_b32 v{E+4}, 31, v0
v_bfe_u32 v{E+5}, v0, 5, 1
v_lshlrev_b32 v{E+5}, 2, v{E+5}
v_and_b32 v{E+9}, 7, v0
v_xor_b32 v{E+5}, v{E+5}, v{E+9}
v_lshlrev_b32 v{E+5}, 4, v{E+5}
v_lshl_add_u32 v{E+5}, v{E+4}, 7, v{E+5}
v_add_u32 v{e3k}, s{s_st}, v{E+5}
v_xor_b32 v{e3k+1}, 16, v{e3k}
v_xor_b32 v{e3k+2}, 32, v{e3k}
v_xor_b32 v{e3k+3}, 48, v{e3k}
v_add_u32 v{e3s}, {ST-RA}, v{e3k}
v_add_u32 v{e3s+1}, {ST-RA}, v{e3k+1}
v_add_u32 v{e3s+2}, {ST-RA}, v{e3k+2}
v_add_u32 v{e3s+3}, {ST-RA}, v{e3k+3}
v_lshrrev_b32 v{E+4}, 3, v0
v_and_b32 v{E+5}, 3, v0
v_lshlrev_b32 v{E+5}, 1, v{E+5}
v_bfe_u32 v{E+10}, v0, 3, 3
v_xor_b32 v{E+5}, v{E+5}, v{E+10}
v_lshlrev_b32 v{E+5}, 4, v{E+5}
v_lshl_add_u32 v{E+5}, v{E+4}, 7, v{E+5}
v_bfe_u32 v{E+10}, v0, 2, 1
v_lshl_add_u32 v{e3r}, v{E+10}, 12, v{E+5}
v_xor_b32 v{e3r+1}, 16, v{e3r}
v_xor_b32 v{e3r+2}, {4096+ST}, v{e3r}
v_xor_b32 v{e3r+3}, 16, v{e3r+2}
v_lshlrev_b32 v{E+9}, 4, v{E+9}
v_lshl_add_u32 v{oa}, v{E+4}, 11, v{E+9}
s_lshl_b32 s{s_tmp}, s{s_rt}, 17
s_lshl_b32 s{s_tmp3}, s{s_ct}, 7
s_add_u32 s{s_oo}, s{s_tmp}, s{s_tmp3}
s_add_u32 s{s_oo}, s{s_oo}, 1024
s_add_u32 s{s_tmp2}, s{s_oo}, 65536
s_lshl_b32 s{s_tmp3}, s{s_ct}, 2
s_lshl_b32 s{s_msk}, 15, s{s_tmp3}""")
    elif opt.get('e2'):
        setup += L_(f"""v_and_b32 v{E+4}, 31, v0
v_bfe_u32 v{E+5}, v0, 5, 1
s_lshl_b32 s{s_tmp}, s{s_F}, 2
v_lshl_add_u32 v{E+5}, v{E+5}, 1, s{s_tmp}
v_and_b32 v{E+9}, 7, v0
v_xor_b32 v{E+5}, v{E+5}, v{E+9}
v_lshlrev_b32 v{E+5}, 4, v{E+5}
v_lshl_add_u32 v{E+5}, v{E+4}, 7, v{E+5}
s_lshl_b32 s{s_tmp}, s{s_H}, 12
v_add_u32 v{e2w}, s{s_tmp}, v{E+5}
v_xor_b32 v{e2w+1}, 16, v{e2w}
v_lshlrev_b32 v{e2r}, 4, v0
v_bfe_u32 v{E+4}, v0, 3, 3
v_xor_b32 v{E+4}, v{E+4}, v{E+9}
v_lshlrev_b32 v{E+4}, 4, v{E+4}
v_lshrrev_b32 v{E+5}, 3, v0
v_lshl_add_u32 v{oa}, v{E+5}, 11, v{E+4}
s_lshl_b32 s{s_tmp}, s{s_rt}, 17
s_lshl_b32 s{s_tmp3}, s{s_ct}, 7
s_add_u32 s{s_oo}, s{s_tmp}, s{s_tmp3}
s_add_u32 s{s_oo}, s{s_oo}, 1024
s_add_u32 s{s_tmp2}, s{s_oo}, 65536""")
    if INP:
        ext2(setup)
        p('s_waitcnt vmcnt(0)')
        flag_store(s_pf)
        if WOP == 0: ext2(wo_dma(1))
    else:
        ext2(setup if WOP >= 1 else interleave(setup, wo_dma(1)))
    if opt.get('pollwait'): p('s_waitcnt vmcnt(0)')
    for n in range(8): p(f's_lshl_b32 s{s_r8+n}, s{s_r8+n}, {12 if INP else 11}\ns_add_u32 s{s_r8+n}, s{s_r8+n}, s{s_so}')
    if INP:
        p(f's_lshl_b32 s{s_so+3}, s{s_rt}, 9\ns_add_u32 s{s_so+3}, s{s_so+3}, {WS_DNF}\ns_lshl2_add_u32 s{s_so+2}, s{s_ct}, s{s_w}\ns_lshl_b32 s{s_so+2}, s{s_so+2}, 4\ns_add_u32 s{s_so+2}, s{s_so+2}, s{s_so+3}')
        p(f'v_and_b32 v{WF+7}, 0x1f0, v{vL16}')
    OF = X
    stamp('g')
    def pcheck():
        if INP:
            p(f'v_cmp_ne_u32 vcc, s{s_E1}, v{POL}'); return
        p(f'v_xor_b32 v{chk}, s{s_t}, v{POL}')
        for j in range(1, 4): p(f'v_bitop3_b32 v{chk}, v{chk}, v{POL+j}, s{s_t+j} bitop3:0xf6')
        p(f'v_and_b32 v{chk}, 0x00010001, v{chk}')
        p(f'v_cmp_ne_u32 vcc, 0, v{chk}')
    if PF:
        pcheck()
        p('s_cbranch_vccz B_H2_FIRST')
    p('B_H2_POLL:')
    p(poll2())
    p(f's_add_u32 s{s_sp}, s{s_sp}, 1\ns_cmp_gt_u32 s{s_sp}, {SPIN_MAX}\ns_cbranch_scc1 B_H2_FIRST')
    pcheck()
    if opt.get('slpB'): p(f's_cbranch_vccz B_H2_FIRST\ns_sleep {opt["slpB"]}\ns_branch B_H2_POLL')
    else: p('s_cbranch_vccnz B_H2_POLL')
    p('B_H2_FIRST:')
    stamp(); stamp('g')
    def o_loads():
        for n in range(16):
            p(f'buffer_load_dwordx4 {vr(OF+4*n,4)}, v{vL16}, s[{sWS}:{sWS+3}], s{s_r8+(n>>1)} offen offset:{1024*(n&1)} sc1')
    G2 = opt.get('g2pipe', 0)
    def oload(n):
        if INP: return f'buffer_load_dwordx4 {vr(OF+4*n,4)}, v{vL16}, s[{sOUT}:{sOUT+3}], s{s_r8+(n>>1)} offen offset:{2048*(n&1)} sc1'
        return f'buffer_load_dwordx4 {vr(OF+4*n,4)}, v{vL16}, s[{sWS}:{sWS+3}], s{s_r8+(n>>1)} offen offset:{1024*(n&1)} sc1'
    assert G2 or not INP
    if G2:
        for n in range(G2): p(oload(n))
        p(f's_waitcnt vmcnt({G2})\ns_barrier')
    else:
        o_loads()
        p('s_waitcnt vmcnt(16)\ns_barrier')
    stamp('g')
    p('B_H2_GO:')
    AK, AS = ACC0, P
    W2 = X + 64
    def wofr(n, slot):
        off = 128*(32*(n >> 1) + 8*(n & 1))
        return trpair(W2+8*slot+4, wb, off, 512) + trpair(W2+8*slot, wa, off, 512)
    NS2 = 5
    for n in range(3): p.ext(wofr(n, n))
    if E3:
        def mS(n): return f'v_mfma_f32_32x32x16_bf16 {vr(AS,16)}, {vr(W2+8*(n%NS2)+4,4)}, {vr(OF+4*n,4)}, {"0" if n==0 else vr(AS,16)}'
        def mK(n): return f'v_mfma_f32_32x32x16_bf16 {vr(AK,16)}, {vr(W2+8*(n%NS2),4)}, {vr(OF+4*n,4)}, {"0" if n==0 else vr(AK,16)}'
        def dn_load(): return f'buffer_load_dword v{POL}, v{WF+7}, s[{sWS}:{sWS+3}], s{s_so+3} offen sc1'
        for n in range(12):
            p(mS(n))
            if n + G2 < 16: p(oload(n+G2))
            p.ext(wofr(n+3, (n+3) % NS2)[:2])
            p(mK(n))
            p.ext(wofr(n+3, (n+3) % NS2)[2:])
            if n == 10: p('s_barrier')
        p(mS(12)); p.ext(wofr(15, 0)); p(mS(13)); p(mS(14)); p(mS(15))
        flag_store(s_so+2)
        p(mK(12)); p(mK(13))
        p(f'ds_write_b128 v{e3s}, {vr(AS,4)}'); p(mK(14)); p(f'ds_write_b128 v{e3s+1}, {vr(AS+4,4)}'); p(mK(15))
        p(f'ds_write_b128 v{e3s+2}, {vr(AS+8,4)}\nds_write_b128 v{e3s+3}, {vr(AS+12,4)}')
        p('B_H2_OK:')
        stamp('g')
        if not opt.get('dnlate'): p(dn_load())
        for j in range(4): p(f'ds_write_b128 v{e3k+j}, {vr(AK+4*j,4)}')
        if opt.get('dnlate') == 1: p(dn_load())
        p('s_waitcnt lgkmcnt(0)\ns_barrier')
        if opt.get('dnlate') == 2: p(dn_load())
        stamp('g')
        STF = opt.get('outflag', '')
        for i in range(2):
            for j in range(2):
                p(f'ds_read_b128 {vr(AK+8*i+4*j,4)}, v{e3r+j} offset:{8192*i}\nds_read_b128 {vr(AS+8*i+4*j,4)}, v{e3r+2+j} offset:{8192*i}')
        for i in range(2):
            for j in range(8): p(f'v_add_f32 v{AK+8*i+j}, v{AK+8*i+j}, v{AS+8*i+j}')
            for j in range(4): p(f'v_cvt_pk_bf16_f32 v{OF+4*i+j}, v{AK+8*i+2*j}, v{AK+8*i+2*j+1}')
            if i == 0:
                p('B_DN_CHK:')
                p(f'v_cmp_ne_u32 vcc, s{s_E1}, v{POL}')
                p(f's_andn2_b32 s3, vcc_lo, s{s_msk}')
                p('s_cbranch_scc1 B_DN_AGAIN')
                p('B_DN_OK:')
            p(f'buffer_store_dwordx4 {vr(OF+4*i,4)}, v{oa}, s[{sOUT}:{sOUT+3}], s{s_oo if i == 0 else s_tmp2} offen {STF}')
    else:
        for n in range(16):
            p(f'v_mfma_f32_32x32x16_bf16 {vr(AS,16)}, {vr(W2+8*(n%NS2)+4,4)}, {vr(OF+4*n,4)}, {"0" if n==0 else vr(AS,16)}')
            if G2 and n + G2 < 16: p(oload(n+G2))
            if n+3 < 16: p.ext(wofr(n+3, (n+3) % NS2)[:2])
            if not INP:
                for j in range(2):
                    if n == 0 and j == 0: p(f'v_xor_b32 v{chk}, s{s_t}, v{OF}')
                    else: p(f'v_bitop3_b32 v{chk}, v{chk}, v{OF+4*n+j}, s{s_t+j} bitop3:0xf6')
            elif n == 15: flag_store(s_so+2)
            p(f'v_mfma_f32_32x32x16_bf16 {vr(AK,16)}, {vr(W2+8*(n%NS2),4)}, {vr(OF+4*n,4)}, {"0" if n==0 else vr(AK,16)}')
            if n+3 < 16: p.ext(wofr(n+3, (n+3) % NS2)[2:])
            if not INP:
                for j in range(2, 4): p(f'v_bitop3_b32 v{chk}, v{chk}, v{OF+4*n+j}, s{s_t+j} bitop3:0xf6')
        if not INP:
            p(f'v_and_b32 v{chk}, 0x00010001, v{chk}')
            p(f'v_cmp_ne_u32 vcc, 0, v{chk}')
            p('s_cbranch_vccnz B_H2_RETRY')
        p('B_H2_OK:')
        stamp('g')
        for j in range(4): p(f'ds_write_b128 v{xw}, {vr(AS+4*j,4)} offset:{1024*j}')
        p('s_waitcnt lgkmcnt(0)\ns_barrier')
        stamp('g')
        for j in range(4): p(f'ds_read_b128 {vr(AS+4*j,4)}, v{xr} offset:{1024*j}')
        def dn_load(): return f'buffer_load_dword v{POL}, v{WF+7}, s[{sWS}:{sWS+3}], s{s_so+3} offen sc1'
        if INP:
            assert opt.get('e2')
            p(dn_load())
        STF = opt.get('outflag', '')
        if not opt.get('e2'):
            for hh in range(2):
                for j in range(8): p(f'v_add_f32 v{AK+8*hh+j}, v{AK+8*hh+j}, v{AS+8*hh+j}')
                for j in range(4): p(f'v_cvt_pk_bf16_f32 v{OB+4*hh+j}, v{AK+8*hh+2*j}, v{AK+8*hh+2*j+1}')
                p(f'buffer_store_dwordx4 {vr(OB+4*hh,4)}, v{oa}, s[{sOUT}:{sOUT+3}], s{s_oo} offen offset:{16*hh} {STF}')
        else:
            for hh in range(2):
                for j in range(8): p(f'v_add_f32 v{AK+8*hh+j}, v{AK+8*hh+j}, v{AS+8*hh+j}')
                for j in range(4): p(f'v_cvt_pk_bf16_f32 v{OB+4*hh+j}, v{AK+8*hh+2*j}, v{AK+8*hh+2*j+1}')
                p(f'ds_write_b128 v{e2w+hh}, {vr(OB+4*hh,4)}')
            p('s_waitcnt lgkmcnt(0)\ns_barrier')
            p(f'ds_read_b128 {vr(AS,4)}, v{e2r}\nds_read_b128 {vr(AS+4,4)}, v{e2r} offset:4096')
            if INP:
                p('B_DN_CHK:')
                p(f'v_cmp_ne_u32 vcc, s{s_E1}, v{POL}')
                p('s_cbranch_vccnz B_DN_AGAIN')
                p('B_DN_OK:')
            p(f'buffer_store_dwordx4 {vr(AS,4)}, v{oa}, s[{sOUT}:{sOUT+3}], s{s_oo} offen {STF}')
            p(f'buffer_store_dwordx4 {vr(AS+4,4)}, v{oa}, s[{sOUT}:{sOUT+3}], s{s_tmp2} offen {STF}')
    stamp('g')
    p(f's_or_b32 s{s_tmp}, s2, s{s_w}\ns_cmp_lg_u32 s{s_tmp}, 0\ns_cbranch_scc1 B_END')
    p(f'v_mov_b32 v{E}, s{s_E1}\nv_mov_b32 v{E+1}, 0\ns_mov_b64 exec, 1')
    p(f'buffer_store_dword v{E}, v{E+1}, s[{sWS}:{sWS+3}], 0 offen offset:{WS_EB} sc1')
    if opt.get('probe'):
        p('s_mul_i32 s98, s98, 100\ns_memtime s[90:91]\ns_waitcnt lgkmcnt(0)\nB_PRB:\ns_memtime s[94:95]\ns_waitcnt lgkmcnt(0)\ns_sub_u32 s94, s94, s90\ns_cmp_lt_u32 s94, s98\ns_cbranch_scc1 B_PRB')
    if opt.get('skew'):
        p(f's_mov_b64 exec, -1\ns_mov_b32 s98, {WS_STAMP}\nbuffer_load_dwordx4 v[20:23], v{vL16}, s[{sWS}:{sWS+3}], s98 offen sc1\ns_waitcnt vmcnt(0)')
        for j in range(4): p(f'v_subrev_u32 v{20+j}, s78, v{20+j}')
        if opt.get('skewmode') == 'late':
            p('v_max3_i32 v24, v20, v21, v22\nv_max_i32 v24, v24, v23\ns_mov_b32 s92, 0')
            for l in range(64): p(f'v_readlane_b32 s93, v24, {l}\ns_max_i32 s92, s92, s93')
        else:
            p('v_min3_i32 v24, v20, v21, v22\nv_min_i32 v24, v24, v23\ns_mov_b32 s92, 0')
            for l in range(64): p(f'v_readlane_b32 s93, v24, {l}\ns_min_i32 s92, s92, s93')
            p('s_sub_u32 s92, 0, s92')
        p('s_mul_i32 s92, s92, 20\ns_memrealtime s[90:91]\ns_waitcnt lgkmcnt(0)\nB_SKW:\ns_memrealtime s[94:95]\ns_waitcnt lgkmcnt(0)\ns_sub_u32 s94, s94, s90\ns_cmp_lt_u32 s94, s92\ns_cbranch_scc1 B_SKW')
    if opt.get('amp'):
        p('s_waitcnt vmcnt(0)\ns_memrealtime s[90:91]\ns_waitcnt lgkmcnt(0)')
        if opt.get('amp_at', -1) < 0: p('s_mov_b32 s99, s90')
        p(f's_sub_u32 s92, s99, s78\ns_mul_i32 s92, s92, {opt["amp"]}\nB_AMP:\ns_memrealtime s[94:95]\ns_waitcnt lgkmcnt(0)\ns_sub_u32 s94, s94, s90\ns_cmp_lt_u32 s94, s92\ns_cbranch_scc1 B_AMP')
    p('B_END:')
    if opt.get('stamps'):
        p('s_mov_b64 exec, -1')
        p('s_waitcnt vmcnt(0)')
        p('s_memtime s[100:101]\ns_memrealtime s[76:77]\ns_waitcnt lgkmcnt(0)')
        for k in range(11): p(f'v_mov_b32 v{16+k}, s{80+2*k}')
        p('v_mov_b32 v27, s78\nv_mov_b32 v28, s76\n' + f'v_mov_b32 v29, s{s_sp}\nv_mov_b32 v30, s{s_rdy}')
        p(f's_lshl_b32 s{s_tmp}, s2, 8\ns_lshl_b32 s{s_tmp2}, s{s_w}, 6\ns_add_u32 s{s_tmp}, s{s_tmp}, s{s_tmp2}\ns_add_u32 s{s_tmp}, s{s_tmp}, {WS_STAMP}')
        p('v_mov_b32 v0, 0\ns_mov_b64 exec, 1')
        for k in range(4): p(f'buffer_store_dwordx4 v[{16+4*k}:{19+4*k}], v0, s[{sWS}:{sWS+3}], s{s_tmp} offen offset:{16*k}')
    p('s_endpgm')
    p.assume_clean()
    for k in range(cpn[0]):
        p(f'B_CPGO{k}:')
        ext2(go_block())
        p(f's_branch B_CP{k}')
        p.assume_clean()
    p('B_H1_POLLZ:')
    p(z_load())
    p('B_H1_POLL:')
    p('s_waitcnt vmcnt(0)')
    p.ext(z_check())
    p(f's_add_u32 s{s_sp}, s{s_sp}, 1\ns_cmp_gt_u32 s{s_sp}, {SPIN_MAX}\ns_cbranch_scc1 B_H1_GO')
    p('s_cbranch_vccz B_H1_GO')
    p(z_load())
    p('s_branch B_H1_POLL')
    p('B_H1_GO:')
    ext2(go_block())
    p('s_branch B_H1_CHK')
    p.assume_clean()
    p('B_H1_RETRY:')
    p(f's_add_u32 s{s_sp}, s{s_sp}, 1\ns_cmp_gt_u32 s{s_sp}, {SPIN_MAX}\ns_cbranch_scc1 B_H1_OK')
    p('s_sleep 2')
    p.ext(kv_list())
    p('s_waitcnt vmcnt(0)\ns_branch B_H1_CHK')
    p.assume_clean()
    if not E3: p('B_H2_RETRY:')
    p(f's_add_u32 s{s_sp}, s{s_sp}, 1\ns_cmp_gt_u32 s{s_sp}, {SPIN_MAX}\ns_cbranch_scc1 B_H2_OK')
    p('s_sleep 2')
    for n in range(G2 or 16): p(oload(n))
    p('s_branch B_H2_GO')
    p.assume_clean()
    if INP:
        p('B_DN_AGAIN:')
        p(f's_add_u32 s{s_sp}, s{s_sp}, 1\ns_cmp_gt_u32 s{s_sp}, {SPIN_MAX}\ns_cbranch_scc1 B_DN_OK')
        p(dn_load())
        p('s_waitcnt vmcnt(0)\ns_branch B_DN_CHK')
        p.assume_clean()
```

```python
import sys, json
from asmdsl import Prog
from common import *
import genB
NAME = 'concat_heads__ssm_conv_s4__linear_kernel_hedgehog__prompt'
BEST = dict(prioB=2, prioB0=1, mallpf='ov', e2=1, outflag='nt', outflagA='nt', map='2x16', local2=1, oxt=18, layout=0, g2pipe=8,
            inplace=1, woplan=2, xearly=1, outtouch=0, kfirst=1, prioA0=3, prioAu=3, bands_first=1, prioA1=2,
            kpipe=1, yield_phi=1, cfill=1, pre=5, rotmask=6)
def build(opt):
    hdr = open(f'cdna_kernels/{NAME}.s.ref').read().split('\n')
    head = [l for l in hdr if l.startswith(';') and '@launch' not in l and 'Override' not in l and 'grid=ceil' not in l]
    head = head[:17]
    p = Prog()
    p('s_cmp_ge_u32 s2, 512\ns_cbranch_scc1 K_EXIT')
    if opt.get('pf', 1):
        p('s_getpc_b64 s[4:5]')
        p('s_bfe_u32 s3, s2, 0x50003\ns_lshl_b32 s3, s3, 10')
        p('v_lshl_add_u32 v255, v0, 7, s3')
        p('v_cmp_gt_u32 vcc, 8, v0\ns_and_saveexec_b64 s[6:7], vcc\ns_cbranch_execz K_NOPF')
        p('global_load_dword v254, v255, s[4:5]')
        p('K_NOPF:\ns_mov_b64 exec, s[6:7]')
        p.assume_clean()
    if opt.get('probe'):
        off = {'wo': 96, 'x': 72, 'ws': 120, 'out': 104, 'u': 0}.get(opt['probe'], None)
        p('s_cmp_lg_u32 s2, 0\ns_cbranch_scc1 K_NOPROBE')
        if off is not None:
            p(f's_load_dwordx2 s[8:9], s[0:1], {off}\nv_mov_b32 v1, {opt.get("probe_off", 4096)}\ns_waitcnt lgkmcnt(0)\ns_memtime s[10:11]\ns_waitcnt lgkmcnt(0)')
            p('global_load_dword v2, v1, s[8:9]\ns_waitcnt vmcnt(0)\ns_memtime s[12:13]\ns_waitcnt lgkmcnt(0)\ns_sub_u32 s98, s12, s10')
        else:
            p('s_mov_b32 s98, 1000')
        p('K_NOPROBE:')
    if opt.get('noA'):
        p('s_cmp_ge_u32 s2, 256\ns_cbranch_scc1 K_EXIT')
        for _ in genB.genB(p, opt): pass
    else:
        import genA
        lay = opt.get('layout', 1)
        ga = genA.genA(p, opt); gb = genB.genB(p, opt)
        if lay == 0:
            p('s_cmp_lt_u32 s2, 256\ns_cbranch_scc1 B_ROLE')
            next(ga)
            sa = p.save_state()
            p('s_branch A_REST')
            for _ in gb: pass
        elif lay == 1:
            p('s_cmp_ge_u32 s2, 256\ns_cbranch_scc1 A_ROLE')
            next(gb); sb = p.save_state()
            p('s_branch B_REST')
            next(ga); sa = p.save_state()
            p('s_branch A_REST')
            p('B_REST:'); p.restore_state(sb)
            for _ in gb: pass
        else:
            p('s_cmp_ge_u32 s2, 256\ns_cbranch_scc1 A_ROLE')
            for _ in gb: pass
            p.assume_clean()
            next(ga); sa = p.save_state()
        p.assume_clean()
        p('A_REST:')
        p.restore_state(sa)
        for _ in ga: pass
    p('K_EXIT:\ns_endpgm')
    if opt.get('pf', 1): p(f'.fill ({NAME}_kernel + 33024 - .) / 4, 4, 0xbf810000')
    body = p.finalize()
    txt = '\n'.join(head) + f"""
; Generated by gen/gen.py (hand-written generator). One launch, 512 workgroups: ids <256 attention part, ids 256..511 SSM part.
; @launch grid=(512,1,1) block=(256,1,1) lds=81920
.amdgcn_target "amdgcn-amd-amdhsa--gfx950"
.text
.globl {NAME}_kernel
.p2align 8
.type {NAME}_kernel,@function
{NAME}_kernel:
{body}
.section .rodata,"a"
.p2align 6
.amdhsa_kernel {NAME}_kernel
  .amdhsa_next_free_vgpr 256
  .amdhsa_next_free_sgpr 102
  .amdhsa_accum_offset 256
  .amdhsa_group_segment_fixed_size 0
  .amdhsa_kernarg_size 128
  .amdhsa_user_sgpr_count 2
  .amdhsa_user_sgpr_kernarg_segment_ptr 1
  .amdhsa_system_sgpr_workgroup_id_x 1
.end_amdhsa_kernel
"""
    return txt
if __name__ == '__main__':
    out = sys.argv[1]
    opt = dict(BEST)
    for a in sys.argv[2:]:
        k, _, v = a.partition('='); v = v.replace('+', ' ')
        try: v = int(v)
        except ValueError: v = v if v else 1
        opt[k] = v
    open(out, 'w').write(build(opt))
```

```python
from asmdsl import Prog, interleave, slotted
from common import *

def vr(a, n): return f'v[{a}:{a+n-1}]'

PITCH = 544
KTCH = 57 * PITCH
T1 = 2 * KTCH
T2 = T1 + 8192
CT = T1; CTS = 3328
KR0, KR1, G4B, G8B, F1K = 0, 1216, 2368, 2880, 3200
UT0 = T2; UTS = 4640; UPAD = 528
XCH = 0
A3S = 16384

def genA(p, opt):
    stamp_n = [0]
    def stamp(kind='main'):
        if kind != opt.get('stampsetA', 'main') and not (kind == 'main' and stamp_n[0] == 0): return
        if opt.get('stamps'):
            k = stamp_n[0]; stamp_n[0] += 1
            if k < 10: p(f's_memtime s[{80+2*k}:{81+2*k}]')
    PK = opt.get('pkA', 0)
    sU, sPar, sOUT, sWS = 8, 12, 36, 40
    s_g, s_m, s_w, s_ch, s_nh = 44, 45, 46, 47, 48
    s_tmp, s_tmp2, s_tmp3 = 49, 50, 51
    s_ldt, s_dsk = 52, 54
    s_ldv, s_dsv = 56, 57
    s_E1, s_tag = 58, 59
    s_msk = 60
    s_sp = 68
    s_so = 62
    s_ctb, s_utb = 66, 67
    vEp, vLane = 1, 2
    BAND = 224
    FIXM = 248
    O2 = opt.get('u_at', 0)
    ST1 = T1 if not O2 else UT0
    ST2 = T2 if not O2 else 24576
    FS = opt.get('fs', 4); FX_ = '0xff' if FS == 7 else '1'; SLP = opt.get('slp', 4)
    XE = opt.get('xearly', 0)
    p('A_ROLE:')
    p(f's_load_dwordx2 s[{sU}:{sU+1}], s[0:1], 0')
    for i in range(6): p(f's_load_dwordx2 s[{sPar+4*i}:{sPar+4*i+1}], s[0:1], {8+8*i}')
    p(f's_load_dwordx4 s[{s_ldt}:{s_ldt+3}], s[0:1], 56')
    if opt.get('touch_pre'): p('s_load_dwordx2 s[72:73], s[0:1], 96\ns_load_dwordx2 s[76:77], s[0:1], 80')
    p(f's_load_dwordx2 s[{sOUT}:{sOUT+1}], s[0:1], 104')
    p(f's_load_dwordx2 s[{sWS}:{sWS+1}], s[0:1], 120')
    if opt.get('stamps'): p('s_memrealtime s[78:79]')
    stamp()
    if opt.get('prioA0'): p(f's_setprio {opt["prioA0"]}')
    t0, t1, t2, t3, t4, t5 = 3, 4, 5, 6, 7, 8
    p(f'v_lshrrev_b32 v{t0}, 6, v0\nv_and_b32 v{vLane}, 63, v0\nv_readfirstlane_b32 s{s_w}, v{t0}')
    p(f's_and_b32 s{s_g}, s2, 7\ns_bfe_u32 s{s_m}, s2, 0x50003')
    p(f's_lshr_b32 s{s_ch}, s{s_w}, 1\ns_and_b32 s{s_nh}, s{s_w}, 1')
    vUg = 19
    p(f'v_bfe_u32 v{t1}, v0, 4, 1\nv_lshlrev_b32 v{t1}, 2, v{t1}\nv_and_b32 v{t2}, 7, v0\nv_xor_b32 v{t1}, v{t1}, v{t2}\nv_lshlrev_b32 v{t1}, 4, v{t1}')
    p(f'v_lshrrev_b32 v{t2}, 3, v0\nv_lshl_add_u32 v{vUg}, v{t2}, 10, v{t1}')
    p(f's_lshl_b32 s{s_tmp}, s{s_m}, 16\ns_lshl_b32 s{s_tmp2}, s{s_g}, 7\ns_add_u32 s{s_so}, s{s_tmp}, s{s_tmp2}\ns_add_u32 s{s_so+1}, s{s_so}, 32768')
    vPg = 10
    p(f's_lshl_b32 s{s_tmp}, s{s_g}, 5\ns_add_u32 s{s_tmp}, s{s_tmp}, s{s_m}')
    p(f's_lshl_b32 s{s_tmp3}, s{s_tmp}, 2')
    p(f's_add_u32 s{s_tmp2}, s{s_tmp3}, s{s_w}\ns_lshl_b32 s{s_so+2}, s{s_tmp2}, 7')
    p(f'v_lshlrev_b32 v{vPg}, 1, v{vLane}')
    p(f'v_mov_b32 v{vEp}, 0')
    p(f's_lshl_b32 s{s_so+3}, s{s_g}, 8')
    p(f's_mov_b32 s{sU+2}, 0x200000\ns_mov_b32 s{sU+3}, 0x20000')
    for i in range(6): p(f's_mov_b32 s{sPar+4*i+2}, 0x20000\ns_mov_b32 s{sPar+4*i+3}, 0x20000')
    p(f's_mov_b32 s{sOUT+2}, 0x400000\ns_mov_b32 s{sOUT+3}, 0x20000\ns_mov_b32 s{sWS+2}, 0x10000000\ns_mov_b32 s{sWS+3}, 0x20000')
    s_xcc, s_mode = 69, 70
    PRE_ = opt.get('touch_pre', 0)
    if PRE_:
        vPT = 86
        p(f's_cmp_lt_u32 s{s_w}, 2\ns_cbranch_scc1 A_NOPRE')
        p(f's_lshl_b32 s{s_tmp}, s{s_g}, 5\ns_add_u32 s{s_tmp}, s{s_tmp}, s{s_m}\ns_lshl_b32 s{s_tmp2}, s{s_tmp}, 2')
        p(f'v_and_b32 v{t0}, 3, v0\nv_add_u32 v{t0}, s{s_tmp2}, v{t0}')
        p(f'v_mul_u32_u24 v{t1}, 640, v{t0}\nv_add_u32 v{vPT}, {WS_KVP+512}, v{t1}')
        p(f'v_lshlrev_b32 v{t1}, 11, v{t0}\nv_add_u32 v{t1}, {WS_OX+1920}, v{t1}\ns_mov_b64 s[{s_msk}:{s_msk+1}], 0xf0\nv_cndmask_b32 v{vPT}, v{vPT}, v{t1}, s[{s_msk}:{s_msk+1}]')
        p(f'v_lshlrev_b32 v{t1}, {FS}, v{t0}\nv_add_u32 v{t1}, {WS_YF}, v{t1}\ns_mov_b64 s[{s_msk}:{s_msk+1}], 0xf00\nv_cndmask_b32 v{vPT}, v{vPT}, v{t1}, s[{s_msk}:{s_msk+1}]')
        p(f's_lshl_b32 s{s_tmp}, s{s_tmp}, {FS}\ns_add_u32 s{s_tmp}, s{s_tmp}, {WS_FLAG}\nv_mov_b32 v{t1}, s{s_tmp}\ns_mov_b64 s[{s_msk}:{s_msk+1}], 0xf000\nv_cndmask_b32 v{vPT}, v{vPT}, v{t1}, s[{s_msk}:{s_msk+1}]')
        if opt.get('touchkv', 0):
            p(f's_lshr_b32 s{s_tmp2}, s{s_tmp2}, 2\ns_mul_i32 s{s_tmp2}, s{s_tmp2}, {KVP_SZ}\ns_add_u32 s{s_tmp2}, s{s_tmp2}, {WS_KVP}')
            p(f'v_bfe_u32 v{t1}, v0, 2, 2\nv_mul_u32_u24 v{t1}, 640, v{t1}\nv_and_b32 v{t2}, 3, v0\nv_lshl_add_u32 v{t1}, v{t2}, 7, v{t1}\nv_add_u32 v{t1}, s{s_tmp2}, v{t1}')
            p(f's_mov_b32 s{s_msk}, 0xffff0000\nv_cndmask_b32 v{vPT}, v{vPT}, v{t1}, s[{s_msk}:{s_msk+1}]')
            p('s_mov_b32 exec_lo, 0xffff1f0f\ns_mov_b32 exec_hi, 0')
        else:
            if opt.get('local2'):
                p(f's_and_b32 s{s_tmp}, s{s_m}, 3\ns_lshl2_add_u32 s{s_tmp}, s{s_g}, s{s_tmp}\ns_lshl_b32 s{s_tmp}, s{s_tmp}, 7\ns_add_u32 s{s_tmp}, s{s_tmp}, {WS_BF}\nv_mov_b32 v{t1}, s{s_tmp}\ns_mov_b64 s[{s_msk}:{s_msk+1}], 0x2000\nv_cndmask_b32 v{vPT}, v{vPT}, v{t1}, s[{s_msk}:{s_msk+1}]')
                if opt.get('inplace'):
                    p(f's_and_b32 s{s_tmp}, s{s_m}, 15\ns_lshl4_add_u32 s{s_tmp}, s{s_g}, s{s_tmp}\ns_lshl_b32 s{s_tmp}, s{s_tmp}, 7\ns_lshr_b32 s{s_tmp2}, s{s_m}, 4\ns_mul_i32 s{s_tmp2}, s{s_tmp2}, {WS_DNF-WS_P2F}\ns_add_u32 s{s_tmp}, s{s_tmp}, s{s_tmp2}\ns_add_u32 s{s_tmp}, s{s_tmp}, {WS_P2F}')
                    p(f'v_mov_b32 v{t1}, s{s_tmp}\ns_mov_b64 s[{s_msk}:{s_msk+1}], 0x4000\nv_cndmask_b32 v{vPT}, v{vPT}, v{t1}, s[{s_msk}:{s_msk+1}]')
                p('s_mov_b64 s[4:5], ' + str(opt.get('touchmask', '0x7f0f' if opt.get('inplace') else '0x3fff')))
            else: p('s_mov_b64 s[4:5], 0x1fff')
        p(f's_lshl_b32 s{s_tmp}, s{s_g}, 5\ns_add_u32 s{s_tmp}, s{s_tmp}, s{s_m}')
        p(f's_lshl_b32 s6, s{s_tmp}, 11\ns_mul_i32 s7, s{s_tmp}, 6144')
        p(f'v_lshlrev_b32 v88, 7, v{vLane}')
        p(f'v_bfe_u32 v{t1}, v0, 3, 1\nv_mul_u32_u24 v{t1}, 3072, v{t1}\nv_and_b32 v{t2}, 7, v0\nv_lshl_add_u32 v{t1}, v{t2}, 7, v{t1}')
        p(f'v_bfe_u32 v{t2}, v0, 4, 1\nv_xor_b32 v{t2}, 1, v{t2}\nv_lshl_add_u32 v89, v{t2}, 11, v{t1}')
        p('s_mov_b32 s74, 0x80000\ns_mov_b32 s75, 0x20000')
        p('A_NOPRE:')
    p('s_waitcnt lgkmcnt(0)')
    if WS_BASE: p(f's_add_u32 s{sWS}, s{sWS}, {hex(WS_BASE)}\ns_addc_u32 s{sWS+1}, s{sWS+1}, 0\ns_mov_b32 s{sWS+2}, {hex(0x10000000-WS_BASE)}')
    stamp('a')
    LD = opt.get('ldflagA', '')
    PAR = 12
    p(f'buffer_load_dword v{vEp}, v{vEp}, s[{sWS}:{sWS+3}], s{s_so+3} offen offset:{WS_EA} sc1')
    for i in range(6): p(f'buffer_load_ushort v{PAR+i}, v{vPg}, s[{sPar+4*i}:{sPar+4*i+3}], s{s_so+2} offen {LD}')
    p(f's_load_dword s{s_ldv}, s[{s_ldt}:{s_ldt+1}], s{s_tmp3}')
    p(f's_load_dword s{s_dsv}, s[{s_dsk}:{s_dsk+1}], s{s_tmp3}')
    def u_issue():
        p(f's_lshl_b32 s3, s{s_w}, 10\ns_add_u32 m0, s3, {ST1}\ns_nop 0')
        p(f'buffer_load_dwordx4 v{vUg}, s[{sU}:{sU+3}], s{s_so} offen {LD} lds')
        p(f's_add_u32 m0, s3, {ST1+4096}')
        p(f'buffer_load_dwordx4 v{vUg}, s[{sU}:{sU+3}], s{s_so+1} offen {LD} lds', tok='utile')
    O3 = opt.get('kfirst', 0)
    if O3: p(f's_setprio {opt.get("prioAu", 0)}')
    UD = opt.get('udel', 0)
    if not O2 and not UD: u_issue()
    if opt.get('outtouch'):
        p(f'v_and_b32 v11, 15, v0\nv_lshlrev_b32 v11, 11, v11\ns_lshl2_add_u32 s3, s{s_m}, s{s_w}\ns_lshl_b32 s3, s3, 15\ns_lshl_b32 s{s_tmp}, s{s_g}, 7\ns_add_u32 s3, s3, s{s_tmp}')
        p(f'buffer_load_dword v11, v11, s[{sOUT}:{sOUT+3}], s3 offen')
    if PRE_:
        mp = str(opt.get('mallpf', '')).replace('none', '')
        p(f's_cmp_lt_u32 s{s_w}, 2\ns_cbranch_scc1 A_NOTOUCH\ns_cmp_eq_u32 s{s_w}, 2\ns_cbranch_scc1 A_MP')
        p('s_mov_b64 exec, s[4:5]')
        p(f'buffer_load_dword v{vPT+1}, v{vPT}, s[{sWS}:{sWS+3}], 0 offen', tok='nocount')
        p('s_mov_b64 exec, -1\ns_branch A_NOTOUCH\nA_MP:\ns_mov_b64 exec, 0xffff')
        if 'o' in mp: p('buffer_load_dword v88, v88, s[72:75], s6 offen', tok='nocount')
        if 'v' in mp:
            p('s_mov_b32 s72, s76\ns_mov_b32 s73, s77\ns_mov_b32 s74, 0x180000')
            if 'q' in mp: p('s_mov_b32 exec_lo, -1')
            p('buffer_load_dword v89, v89, s[72:75], s7 offen', tok='nocount')
        p('s_mov_b64 exec, -1\nA_NOTOUCH:')
    if not opt.get('touch_early'):
        if opt.get('prioA0'): p(f's_setprio {opt.get("prioA1", 0)}')
        stamp('a')
        yield
        stamp('a')
    p(f's_getreg_b32 s{s_xcc}, hwreg(HW_REG_XCC_ID, 0, 4)')
    if opt.get('touch', 1) and not PRE_:
        vPT = 86
        p(f's_cmp_lg_u32 s{s_w}, 3\ns_cbranch_scc1 A_NOTOUCH')
        p(f's_lshl_b32 s{s_tmp}, s{s_g}, 5\ns_add_u32 s{s_tmp}, s{s_tmp}, s{s_m}\ns_lshl_b32 s{s_tmp2}, s{s_tmp}, 2')
        p(f'v_and_b32 v{t0}, 3, v0\nv_add_u32 v{t0}, s{s_tmp2}, v{t0}')
        p(f'v_mul_u32_u24 v{t1}, 640, v{t0}\nv_add_u32 v{vPT}, {WS_KVP+512}, v{t1}')
        p(f'v_lshlrev_b32 v{t1}, 11, v{t0}\nv_add_u32 v{t1}, {WS_OX+1920}, v{t1}\ns_mov_b64 s[{s_msk}:{s_msk+1}], 0xf0\nv_cndmask_b32 v{vPT}, v{vPT}, v{t1}, s[{s_msk}:{s_msk+1}]')
        p(f'v_lshlrev_b32 v{t1}, {FS}, v{t0}\nv_add_u32 v{t1}, {WS_YF}, v{t1}\ns_mov_b64 s[{s_msk}:{s_msk+1}], 0xf00\nv_cndmask_b32 v{vPT}, v{vPT}, v{t1}, s[{s_msk}:{s_msk+1}]')
        p(f's_lshl_b32 s{s_tmp}, s{s_tmp}, {FS}\ns_add_u32 s{s_tmp}, s{s_tmp}, {WS_FLAG}\nv_mov_b32 v{t1}, s{s_tmp}\ns_mov_b64 s[{s_msk}:{s_msk+1}], 0xf000\nv_cndmask_b32 v{vPT}, v{vPT}, v{t1}, s[{s_msk}:{s_msk+1}]')
        if opt.get('touchkv', 0):
            p(f's_lshr_b32 s{s_tmp2}, s{s_tmp2}, 2\ns_mul_i32 s{s_tmp2}, s{s_tmp2}, {KVP_SZ}\ns_add_u32 s{s_tmp2}, s{s_tmp2}, {WS_KVP}')
            p(f'v_bfe_u32 v{t1}, v0, 2, 2\nv_mul_u32_u24 v{t1}, 640, v{t1}\nv_and_b32 v{t2}, 3, v0\nv_lshl_add_u32 v{t1}, v{t2}, 7, v{t1}\nv_add_u32 v{t1}, s{s_tmp2}, v{t1}')
            p(f's_mov_b32 s{s_msk}, 0xffff0000\nv_cndmask_b32 v{vPT}, v{vPT}, v{t1}, s[{s_msk}:{s_msk+1}]')
            p('s_mov_b32 exec_lo, 0xffff1f0f\ns_mov_b32 exec_hi, 0')
        else:
            if opt.get('local2'):
                p(f's_and_b32 s{s_tmp}, s{s_m}, 3\ns_lshl2_add_u32 s{s_tmp}, s{s_g}, s{s_tmp}\ns_lshl_b32 s{s_tmp}, s{s_tmp}, 7\ns_add_u32 s{s_tmp}, s{s_tmp}, {WS_BF}\nv_mov_b32 v{t1}, s{s_tmp}\ns_mov_b64 s[{s_msk}:{s_msk+1}], 0x2000\nv_cndmask_b32 v{vPT}, v{vPT}, v{t1}, s[{s_msk}:{s_msk+1}]')
                if opt.get('inplace'):
                    p(f's_and_b32 s{s_tmp}, s{s_m}, 15\ns_lshl4_add_u32 s{s_tmp}, s{s_g}, s{s_tmp}\ns_lshl_b32 s{s_tmp}, s{s_tmp}, 7\ns_lshr_b32 s{s_tmp2}, s{s_m}, 4\ns_mul_i32 s{s_tmp2}, s{s_tmp2}, {WS_DNF-WS_P2F}\ns_add_u32 s{s_tmp}, s{s_tmp}, s{s_tmp2}\ns_add_u32 s{s_tmp}, s{s_tmp}, {WS_P2F}')
                    p(f'v_mov_b32 v{t1}, s{s_tmp}\ns_mov_b64 s[{s_msk}:{s_msk+1}], 0x4000\nv_cndmask_b32 v{vPT}, v{vPT}, v{t1}, s[{s_msk}:{s_msk+1}]')
                p('s_mov_b64 exec, ' + str(opt.get('touchmask', '0x7f0f' if opt.get('inplace') else '0x3fff')))
            else: p('s_mov_b64 exec, 0x1fff')
        p(f'buffer_load_dword v{vPT+1}, v{vPT}, s[{sWS}:{sWS+3}], 0 offen', tok='nocount')
        p('s_mov_b64 exec, -1')
        p('A_NOTOUCH:')
    def mallpf_block():
        mp = str(opt.get('mallpf', '')).replace('none', '')
        if mp and not PRE_:
            p(f's_cmp_lg_u32 s{s_w}, 2\ns_cbranch_scc1 A_NOMP')
            p('s_load_dwordx2 s[72:73], s[0:1], 96\ns_load_dwordx2 s[76:77], s[0:1], 80')
            p(f's_lshl_b32 s{s_tmp}, s{s_g}, 5\ns_add_u32 s{s_tmp}, s{s_tmp}, s{s_m}')
            p(f's_lshl_b32 s{s_tmp2}, s{s_tmp}, 11\ns_mul_i32 s{s_tmp}, s{s_tmp}, 6144')
            p(f'v_lshlrev_b32 v{t0}, 7, v{vLane}')
            p(f'v_bfe_u32 v{t1}, v0, 3, 1\nv_mul_u32_u24 v{t1}, 3072, v{t1}\nv_and_b32 v{t2}, 7, v0\nv_lshl_add_u32 v{t1}, v{t2}, 7, v{t1}')
            p(f'v_bfe_u32 v{t2}, v0, 4, 1\nv_xor_b32 v{t2}, 1, v{t2}\nv_lshl_add_u32 v{t1}, v{t2}, 11, v{t1}')
            p('s_mov_b32 s74, 0x80000\ns_mov_b32 s75, 0x20000\ns_waitcnt lgkmcnt(0)')
            if 'o' in mp:
                p('s_mov_b64 exec, 0xffff')
                p(f'buffer_load_dword v88, v{t0}, s[72:75], s{s_tmp2} offen', tok='nocount')
            if 'v' in mp or 'q' in mp:
                p('s_mov_b32 s72, s76\ns_mov_b32 s73, s77\ns_mov_b32 s74, 0x180000')
                p('s_mov_b64 exec, ' + ('0xffff' if 'q' not in mp else '0x7fffffff'))
                if 'q' in mp: p('s_mov_b32 exec_lo, -1')
                p(f'buffer_load_dword v89, v{t1}, s[72:75], s{s_tmp} offen', tok='nocount')
            p('s_mov_b64 exec, -1')
            p('A_NOMP:')
    if not opt.get('mp_late'): mallpf_block()
    if opt.get('touch_early'):
        if opt.get('prioA0'): p(f's_setprio {opt.get("prioA1", 0)}')
        stamp('a')
        yield
        stamp('a')
    stamp('a')
    def bands_code():
        vD = 20
        p(f'v_bfe_u32 v{t0}, v0, 4, 2\nv_and_b32 v{t1}, 15, v0\nv_lshlrev_b32 v{t0}, 3, v{t0}\nv_sub_u32 v{vD}, v{t0}, v{t1}\nv_add_u32 v{vD}, 16, v{vD}')
        bands = [(11, 13), (6, 10), (3, 5), (6, 10), (5, 11), (4, 12), (4, 10)]
        p(f's_mov_b32 s{s_tmp}, 0x10001')
        for n, (lo, hi) in enumerate(bands):
            if n == 3: continue
            bits = ((1 << (hi-lo+1)) - 1) << (lo+16)
            dst = BAND + 4*n
            mul = 0x3f80 if n < 6 else 0xffff
            p(f's_mov_b32 s{s_msk}, {hex(bits)}\ns_mov_b32 s{s_msk+1}, 0')
            p(f'v_lshrrev_b64 v[{t1}:{t2}], v{vD}, s[{s_msk}:{s_msk+1}]')
            p(f'v_and_b32 v{t3}, 0xaa, v{t1}\nv_and_b32 v{t1}, 0x55, v{t1}\nv_lshl_or_b32 v{t1}, v{t3}, 15, v{t1}')
            for j in range(4):
                if j: p(f'v_lshrrev_b32 v{t3}, {2*j}, v{t1}\nv_and_b32 v{t3}, s{s_tmp}, v{t3}')
                else: p(f'v_and_b32 v{t3}, s{s_tmp}, v{t1}')
                p(f'v_mul_u32_u24 v{dst+j}, {hex(mul)}, v{t3}')
    UF1 = opt.get('ufirst', 0)
    assert not UF1 or (XE and not O3)
    if not O3 and not UF1: bands_code()
    BC = [BAND, BAND+4, BAND+8, BAND+4]; B7, B9 = BAND+16, BAND+20
    stamp('a')
    def prefetch(*a, **k): pass
    trA, wT2, rT2, gUT = 21, 22, 24, 25
    p(f'v_bfe_u32 v{t0}, v0, 2, 2\nv_bfe_u32 v{t1}, v0, 5, 1\nv_lshrrev_b32 v{t2}, 1, v{t0}\nv_xor_b32 v{t1}, v{t1}, v{t2}')
    p(f'v_lshlrev_b32 v{t0}, 7, v{t0}\nv_lshl_add_u32 v{t0}, v{t1}, 6, v{t0}')
    p(f'v_bfe_u32 v{t1}, v0, 4, 1\nv_lshl_add_u32 v{t0}, v{t1}, 5, v{t0}\nv_and_b32 v{t1}, 3, v0\nv_lshl_add_u32 v{t0}, v{t1}, 3, v{t0}')
    p(f's_lshl_b32 s{s_tmp}, s{s_w}, 11\ns_add_u32 s{s_tmp}, s{s_tmp}, {ST1}')
    p(f'v_add_u32 v{trA}, s{s_tmp}, v{t0}')
    p(f's_lshl_b32 s{s_tmp}, s{s_w}, 1')
    p(f'v_and_b32 v{t0}, 7, v0\nv_xor_b32 v{t0}, s{s_tmp}, v{t0}\nv_lshlrev_b32 v{t0}, 4, v{t0}\nv_lshl_add_u32 v{t0}, v{vLane}, 7, v{t0}')
    p(f'v_add_u32 v{wT2}, {ST2}, v{t0}\nv_xor_b32 v{t0}, 16, v{t0}\nv_add_u32 v{wT2+1}, {ST2}, v{t0}')
    p(f'v_lshlrev_b32 v{rT2}, 4, v0\nv_add_u32 v{rT2}, {T1}, v{rT2}')
    vL16 = 27
    p(f'v_lshlrev_b32 v{vL16}, 4, v{vLane}')
    p(f'v_bfe_u32 v{t0}, v0, 3, 3\nv_and_b32 v{t1}, 7, v0\nv_xor_b32 v{t0}, v{t0}, v{t1}\nv_lshlrev_b32 v{t0}, 4, v{t0}')
    p(f'v_lshrrev_b32 v{t1}, 3, v0\nv_lshl_add_u32 v{gUT}, v{t1}, 11, v{t0}')
    s_ob = 71
    p(f's_lshl_b32 s{s_tmp}, s{s_m}, 17\ns_lshl_b32 s{s_tmp2}, s{s_g}, 7\ns_add_u32 s{s_ob}, s{s_tmp}, s{s_tmp2}\ns_add_u32 s{s_ob+1}, s{s_ob}, 65536')
    p(f's_mul_i32 s{s_ctb}, s{s_ch}, {CTS}\ns_add_u32 s{s_ctb}, s{s_ctb}, {CT}\ns_mul_i32 s{s_utb}, s{s_ch}, {UTS}\ns_add_u32 s{s_utb}, s{s_utb}, {UT0}')
    stamp('a')
    stn = [0]
    def two_mode(instrs):
        k = stn[0]; stn[0] += 1
        L = [f's_cmp_eq_u32 s{s_mode}, 0', f's_cbranch_scc0 A_SM{k}a'] + instrs + [f's_branch A_SM{k}b', f'A_SM{k}a:'] + [x + ' sc1' for x in instrs] + [f'A_SM{k}b:']
        return L
    XW = 104; X1 = opt.get('x1', 0)
    def x_publish():
        p(f'v_readfirstlane_b32 s{s_E1}, v{vEp}')
        p(f's_add_u32 s{s_E1}, s{s_E1}, 1')
        p(f's_cmp_lg_u32 s{s_w}, 0\ns_cbranch_scc1 A_NOXP')
        for j in range(4): p(f'v_mov_b32 v{XW+j}, s{s_xcc if j == 1 else s_E1}')
        p(f's_lshl_b32 s{s_tmp}, s{s_g}, 5\ns_add_u32 s{s_tmp}, s{s_tmp}, s{s_m}\ns_lshl_b32 s{s_tmp}, s{s_tmp}, 7\ns_add_u32 s{s_tmp}, s{s_tmp}, {WS_AX}')
        p('s_mov_b64 exec, 0xff')
        p(f'buffer_store_dwordx4 {vr(XW,4)}, v{vL16}, s[{sWS}:{sWS+3}], s{s_tmp} offen sc1', tok='nocount')
        p('s_mov_b64 exec, -1\nA_NOXP:')
    def x_issue():
        p(f'v_and_b32 v{XW+4}, 31, v0\nv_lshlrev_b32 v{XW+4}, 7, v{XW+4}\ns_lshl_b32 s73, s{s_g}, 12\ns_add_u32 s73, s73, {WS_AX}\ns_mov_b32 s{s_sp}, 0')
        if X1: p(f's_cmp_lg_u32 s{s_w}, 0\ns_cbranch_scc1 A_NOXI')
        p(f'buffer_load_dwordx2 {vr(XW+6,2)}, v{XW+4}, s[{sWS}:{sWS+3}], s73 offen sc1', tok='nocount' if X1 else None)
        if X1: p('A_NOXI:')
    def x_check():
        if X1: p(f's_cmp_lg_u32 s{s_w}, 0\ns_cbranch_scc1 A_NOXC\ns_waitcnt vmcnt(0)')
        p('A_X_CHK:')
        p(f'v_cmp_ne_u32 vcc, s{s_E1}, v{XW+6}')
        p('s_cbranch_vccnz A_X_AGAIN')
        p('A_X_OK:')
        p(f'v_cmp_ne_u32 vcc, s{s_xcc}, v{XW+7}')
        p(f's_or_b32 s{s_mode}, vcc_lo, vcc_hi')
        if opt.get('slowA'): p(f's_mov_b32 s{s_mode}, 1')
        if X1: p(f'v_mov_b32 v{XW}, s{s_mode}\nv_mov_b32 v{XW+1}, 81904\nds_write_b32 v{XW+1}, v{XW}\nA_NOXC:')
    if UD == 1:
        p('s_setprio 3'); u_issue(); p(f's_setprio {opt.get("prioA1", 0)}')
    UB = 96
    ZR = 92
    def tr_a():
        p.wait_tok('utile')
        if XE and not O3 and not UF1: x_publish()
        if XE and (O3 or UF1) and not opt.get('xi3'): x_issue()
        stamp('a')
        p('s_waitcnt lgkmcnt(0)\ns_barrier')
        stamp('a')
        stamp()
        for rd in range(4): p(f'ds_read_b64_tr_b16 {vr(UB+2*rd,2)}, v{trA} offset:{512*rd}')
        p('s_waitcnt lgkmcnt(0)')
        p(f'ds_write_b128 v{wT2}, {vr(UB,4)}\nds_write_b128 v{wT2+1}, {vr(UB+4,4)}')
    def zero_ct():
        for j in range(4): p(f'v_mov_b32 v{ZR+j}, 0')
        p(f'ds_write_b128 v{rT2}, {vr(ZR,4)}\nds_write_b128 v{rT2}, {vr(ZR,4)} offset:4096')
    def tr_b():
        if XE and X1: x_check()
        p('s_waitcnt lgkmcnt(0)\ns_barrier')
        if XE and X1: p(f'v_mov_b32 v{XW+1}, 81904\nds_read_b32 v{XW}, v{XW+1}')
        if O2:
            p(f'v_lshlrev_b32 v{rT2}, 4, v0')
            p(f'ds_read_b128 {vr(UB,4)}, v{rT2} offset:{ST2}\nds_read_b128 {vr(UB+4,4)}, v{rT2} offset:{ST2+4096}')
            upad()
        else:
            p(f'ds_read_b128 {vr(UB,4)}, v{rT2} offset:{T2-T1}\nds_read_b128 {vr(UB+4,4)}, v{rT2} offset:{T2-T1+4096}')
            zero_ct()
        ust = [f'buffer_store_dwordx4 {vr(UB,4)}, v{gUT}, s[{sOUT}:{sOUT+3}], s{s_ob} offen', f'buffer_store_dwordx4 {vr(UB+4,4)}, v{gUT}, s[{sOUT}:{sOUT+3}], s{s_ob+1} offen']
        if XE:
            if X1: p(f'v_readfirstlane_b32 s{s_mode}, v{XW}')
            else: x_check()
            p('s_waitcnt lgkmcnt(2)' if not O2 else 's_waitcnt lgkmcnt(1)'); p.ext(two_mode(ust))
        else:
            for x in ust: p(x + (' sc1' if opt.get('ut_sc1') else ''))
        stamp()
    def upad():
        p(f'v_mov_b32 v17, {UPAD+4096}\ns_mov_b32 s{s_msk}, 0\ns_mov_b32 s{s_msk+1}, 2')
        p(f'v_cndmask_b32 v16, v{vL16}, v17, s[{s_msk}:{s_msk+1}]\nv_add_u32 v16, s{s_utb}, v16')
        p('s_mov_b32 exec_hi, 3')
        p(f'ds_write_b128 v16, {vr(ZR,4)}')
        p('s_mov_b32 exec_hi, -1')
    if UF1:
        x_publish()
        if opt.get('ubands', 1): bands_code()
        tr_a(); tr_b()
    elif O3:
        p('s_waitcnt lgkmcnt(0)')
        if XE: x_publish()
    elif not O2: tr_a()
    else: zero_ct(); p('s_waitcnt lgkmcnt(0)')
    p(f's_cmp_eq_u32 s{s_ch}, 0')
    p(f's_cselect_b32 s{s_tmp}, 16, 0')
    p(f's_lshl_b32 s{s_ldv}, s{s_ldv}, s{s_tmp}\ns_and_b32 s{s_ldv}, s{s_ldv}, 0xffff0000\ns_lshl_b32 s{s_dsv}, s{s_dsv}, s{s_tmp}\ns_and_b32 s{s_dsv}, s{s_dsv}, 0xffff0000')
    DT = 36
    p(f'v_mov_b32 v{t0}, s{s_ldv}\nv_mov_b32 v{t4}, {hex(LOG2E)}\nv_mul_f32 v{t1}, v{t4}, v{t0}')
    p(f'v_fma_f32 v{t2}, v{t0}, v{t4}, -v{t1}\nv_fmac_f32 v{t2}, 0x32a57060, v{t0}')
    p(f'v_exp_f32 v{t1}, v{t1}\nv_mul_f32 v{t2}, 0x3f317218, v{t2}\nv_fmac_f32 v{t1}, v{t1}, v{t2}')
    p(f'v_cvt_pk_bf16_f32 v{t1}, v{t1}, v{t1}\nv_and_b32 v{DT}, 0xffff0000, v{t1}')
    for i in range(6): p(f'v_lshlrev_b32 v{PAR+i}, 16, v{PAR+i}')
    for i in range(4): p(f'v_mul_f32 v{PAR+i}, v{PAR+i}, v{DT}')
    Xr = 40
    S = [40+2*i for i in range(8)]
    P1, P8, P128, Y, Y2, P16, TMP = 56, 58, 60, 62, 64, 66, 68
    p(f'v_mul_f32 v{S[0]}, v{PAR+4}, v{PAR+2}\nv_mul_f32 v{S[0]+1}, v{PAR+4}, v{PAR+3}')
    p(f'v_fma_f32 v{S[0]}, -v{PAR+5}, v{PAR+3}, v{S[0]}\nv_fmac_f32 v{S[0]+1}, v{PAR+5}, v{PAR+2}')
    p(f'v_mul_f32 v{PAR}, {hex(LOG2E)}, v{PAR}\nv_mul_f32 v{PAR+1}, 0.15915494, v{PAR+1}')
    for dst, L in ((P1, 1), (P8, 8), (P128, 128)):
        if L == 1: p(f'v_exp_f32 v{t0}, v{PAR}\nv_fract_f32 v{t1}, v{PAR+1}')
        else:
            import struct
            lf = hex(struct.unpack('<I', struct.pack('<f', float(L)))[0])
            p(f'v_mul_f32 v{t0}, {lf}, v{PAR}\nv_mul_f32 v{t1}, {lf}, v{PAR+1}\nv_exp_f32 v{t0}, v{t0}\nv_fract_f32 v{t1}, v{t1}')
        p(f'v_cos_f32 v{t2}, v{t1}\nv_sin_f32 v{t3}, v{t1}\nv_mul_f32 v{dst}, v{t0}, v{t2}\nv_mul_f32 v{dst+1}, v{t0}, v{t3}')
    if UD == 2:
        p('s_setprio 3'); u_issue(); p(f's_setprio {opt.get("prioA1", 0)}')
    vW = 26
    p(f's_mul_i32 s{s_tmp}, s{s_ch}, {KTCH}\ns_lshl_b32 s{s_tmp2}, s{s_nh}, 8\ns_add_u32 s{s_tmp}, s{s_tmp}, s{s_tmp2}')
    p(f'v_lshl_add_u32 v{vW}, v{vLane}, 2, s{s_tmp}\ns_mov_b32 m0, s{s_tmp}')
    XL = XE and not O3 and not UF1
    if not O2 and not O3 and not XL and not UF1: tr_b()
    EARLY = opt.get('earlyA', 0) or UF1; EF = opt.get('earlyflag', 0)
    def flag_block():
        if not XE:
            p(f'v_readfirstlane_b32 s{s_E1}, v{vEp}')
            p(f's_add_u32 s{s_E1}, s{s_E1}, 1')
        p(f's_cmp_lg_u32 s{s_w}, 0\ns_cbranch_scc1 A_NOFLAG')
        for j in range(4): p(f'v_mov_b32 v{12+j}, s{s_xcc if j == 1 else s_E1}')
        p(f's_lshl_b32 s{s_tmp}, s{s_g}, 5\ns_add_u32 s{s_tmp}, s{s_tmp}, s{s_m}\ns_lshl_b32 s{s_tmp}, s{s_tmp}, {FS}\ns_add_u32 s{s_tmp}, s{s_tmp}, {WS_FLAG}')
        p(f's_mov_b64 exec, {FX_}')
        fst = f'buffer_store_dwordx4 v[12:15], v{vL16}, s[{sWS}:{sWS+3}], s{s_tmp} offen'
        if XE: p.ext(two_mode([fst]))
        else: p(fst + ' sc1')
        p('s_mov_b64 exec, -1')
        p('A_NOFLAG:')

    def poll_block():
        p(f'v_and_b32 v16, 31, v0\nv_lshlrev_b32 v16, {FS}, v16')
        p(f's_lshl_b32 s{s_tmp}, s{s_g}, {5+FS}\ns_add_u32 s{s_tmp}, s{s_tmp}, {WS_FLAG}\ns_mov_b32 s{s_sp}, 0')
        p(f's_lshl1_add_u32 s{s_tmp2}, s{s_m}, s{s_ch}\ns_lshl_b32 s{s_tmp2}, s{s_tmp2}, 11\ns_lshl_b32 s{s_tmp3}, s{s_g}, 7\ns_add_u32 s{s_so+2}, s{s_tmp2}, s{s_tmp3}')
        p(f's_lshl_b32 s{s_tmp2}, s{s_nh}, 21\ns_add_u32 s{s_tmp2}, s{s_tmp2}, s{s_so+2}\ns_add_u32 s{s_so+3}, s{s_tmp2}, 0x100000')
        p(f'v_lshrrev_b32 v14, 3, v{vLane}\nv_lshlrev_b32 v14, 17, v14\nv_and_b32 v15, 7, v0\nv_lshl_add_u32 v14, v15, 4, v14')
        p(f's_lshl_b32 s{s_tmp3}, s{s_nh}, 11\ns_add_u32 s{s_tmp3}, s{s_tmp3}, s{s_utb}\ns_add_u32 m0, s{s_tmp3}, {UPAD}')
        p('A_F_POLL:')
        p(f'buffer_load_dwordx2 v[12:13], v16, s[{sWS}:{sWS+3}], s{s_tmp} offen sc1')
        p(f's_add_u32 s{s_sp}, s{s_sp}, 1\ns_cmp_gt_u32 s{s_sp}, {SPIN_MAX}\ns_cbranch_scc1 A_F_GO')
        p(f'v_cmp_ne_u32 vcc, s{s_E1}, v12')
        p(f's_cbranch_vccz A_F_GO\ns_sleep {SLP}\ns_branch A_F_POLL')
        p('A_F_GO:')
        if not XE:
            p(f'v_cmp_ne_u32 vcc, s{s_xcc}, v13')
            p(f's_or_b32 s{s_mode}, vcc_lo, vcc_hi')
            if opt.get('slowA'): p(f's_mov_b32 s{s_mode}, 1')
            if not opt.get('ut_sc1'):
                p(f's_cmp_lg_u32 s{s_mode}, 0\ns_cbranch_scc1 A_F_SLOW')
        p('A_F_DMA:')
        p(f'buffer_load_dwordx4 v14, s[{sOUT}:{sOUT+3}], s{s_tmp2} offen sc1 lds')
        p(f's_add_u32 m0, s{s_tmp3}, {UPAD+1024}')
        p(f'buffer_load_dwordx4 v14, s[{sOUT}:{sOUT+3}], s{s_so+3} offen sc1 lds')

    stamp('a')
    cv = [76, 77, 78, 79]; cvn = [0]
    def cmul(dst, a, b, conj=False):
        if PK:
            if dst == a:
                L = [f'v_pk_mul_f32 {vr(TMP,2)}, {vr(a,2)}, {vr(b,2)} op_sel:[0,0] op_sel_hi:[1,0]']; acc = TMP
            else:
                L = [f'v_pk_mul_f32 {vr(dst,2)}, {vr(a,2)}, {vr(b,2)} op_sel:[0,0] op_sel_hi:[1,0]']; acc = dst
            neg = 'neg_hi:[0,1,0]' if conj else 'neg_lo:[0,1,0]'
            L.append(f'v_pk_fma_f32 {vr(dst,2)}, {vr(a,2)}, {vr(b,2)}, {vr(acc,2)} op_sel:[1,1,0] op_sel_hi:[0,1,1] {neg}')
            return L
        T = TMP + 2*(cvn[0] & 1)
        s1, s2 = ('', '-') if conj else ('-', '')
        return [f'v_mul_f32 v{T}, v{a+1}, v{b+1}', f'v_mul_f32 v{T+1}, v{a}, v{b+1}',
                f'v_fma_f32 v{dst}, v{a}, v{b}, {s1}v{T}', f'v_fma_f32 v{dst+1}, v{a+1}, v{b}, {s2}v{T+1}']
    def tabw(c, e):
        if opt.get('addtid', 1): return f'ds_write_addtid_b32 v{c} offset:{e*PITCH}'
        return f'ds_write_b32 v{vW}, v{c} offset:{e*PITCH}'
    def put(reg, e):
        c = cv[cvn[0] & 3]; cvn[0] += 1
        return [f'v_cvt_pk_bf16_f32 v{c}, v{reg}, v{reg+1}', tabw(c, e)]
    xs = []
    xs.append(put(S[0], 0))
    for o in range(1, 8): xs.append(cmul(S[o], S[o-1], P1) + put(S[o], o))
    for o in range(8): xs.append(cmul(S[o], S[o], P128) + put(S[o], 8+o))
    for k, o in enumerate((0, 2, 4, 6)): xs.append(cmul(S[o], S[o], P128) + put(S[o], 16+k))
    for k, o in enumerate((0, 2, 4, 6)): xs.append(cmul(S[o], S[o], P128) + put(S[o], 20+k))
    xs.append(cmul(S[0], S[0], P128) + put(S[0], 40))
    xs.append(cmul(S[4], S[4], P128) + put(S[4], 24))
    xs.append(cmul(S[0], S[0], P8) + put(S[0], 25))
    for i in range(1, 4):
        xs.append(cmul(S[4], S[4], P128) + put(S[4], 24+2*i))
        xs.append(cmul(S[0], S[0], P128) + put(S[0], 25+2*i))
    for i in range(8): xs.append(cmul(S[0], S[0], P128) + put(S[0], 32+i))
    ys = []
    ys.append([f'v_mov_b32 v{cv[0]}, 0x3f80', tabw(cv[0], 41)])
    ys.append([f'v_mov_b32 v{Y}, v{P8}', f'v_xor_b32 v{Y+1}, 0x80000000, v{P8+1}'] + put(Y, 42))
    for j in range(2, 16): ys.append(cmul(Y, Y, P8, conj=True) + put(Y, 41+j))
    def zipops(a, b):
        out = []
        for i in range(max(len(a), len(b))):
            if i < len(a): out.append(a[i])
            if i < len(b): out.append(b[i])
        return out
    yi = 0
    if not PK:
        def retmp(L, new): return [x.replace(f'v{TMP+3}', f'v{new+1}').replace(f'v{TMP+2}', f'v{new}').replace(f'v{TMP+1}', f'v{new+1}').replace(f'v{TMP}', f'v{new}') for x in L]
        ys = [retmp(y, 80) for y in ys]
    else:
        ys = [[x.replace(vr(TMP, 2), vr(80, 2)) for x in y] for y in ys]
    ys = [[x.replace(f'v{cv[0]}', 'v84').replace(f'v{cv[1]}', 'v85').replace(f'v{cv[2]}', 'v84').replace(f'v{cv[3]}', 'v85') for x in y] for y in ys]
    n = 0
    fl_at, po_at = opt.get('flag_at', 6), opt.get('poll_at', 27)
    while n < len(xs):
        if XL and n == opt.get('xi_at', 8): x_issue()
        if XE and O3 and n == opt.get('xi3', -1): x_issue()
        if opt.get('mp_late', 0) > 1 and n == opt['mp_late']: mallpf_block(); p(f's_add_u32 s{s_ob+1}, s{s_ob}, 65536')
        if XL and n == opt.get('trb_at', 20): tr_b()
        if (EARLY or EF) and n == fl_at:
            p('s_waitcnt vmcnt(0)\ns_barrier')
            flag_block()
        if EARLY and n == po_at:
            upad(); poll_block()
            p(f's_mul_i32 s3, s{s_ch}, {KTCH}\ns_lshl_b32 s{s_tmp}, s{s_nh}, 8\ns_add_u32 m0, s3, s{s_tmp}')
        if n < 8 or n >= len(xs) - 8:
            p.ext(zipops(xs[n], ys[yi])); yi += 1; n += 1
        elif n in (24,):
            p.ext(zipops(xs[n], xs[n+1])); n += 2
        elif n == 26:
            p.ext(xs[n]); n += 1
        else:
            p.ext(zipops(xs[n], xs[n+1])); n += 2
    assert yi == 16
    if O3:
        if opt.get('mp_late') == 1: mallpf_block(); p(f's_add_u32 s{s_ob+1}, s{s_ob}, 65536')
        stamp('a')
        p(f's_setprio {opt.get("prioA3", 0)}')
        if opt.get('bands_first', 1): bands_code()
        tr_a(); tr_b()
        if not opt.get('bands_first', 1): bands_code()
    if UF1:
        p(f's_setprio {opt.get("prioA3", 0)}')
        if not opt.get('ubands', 1): bands_code()
    vR = 3
    p(f'v_and_b32 v{t1}, 15, v0\nv_mul_u32_u24 v{vR}, {PITCH}, v{t1}\nv_bfe_u32 v{t2}, v0, 4, 2\nv_lshl_add_u32 v{vR}, v{t2}, 4, v{vR}')
    p(f's_mul_i32 s{s_tmp}, s{s_ch}, {KTCH}\nv_add_u32 v{vR}, s{s_tmp}, v{vR}')
    if O2 == 1: u_issue()
    p(('s_waitcnt lgkmcnt(0)' if (EARLY or O2 or EF) else 's_waitcnt vmcnt(0) lgkmcnt(0)') + '\ns_barrier')
    kg_state = p.save_state(); p.restore_state(kg_state)
    stamp()
    if not EARLY and not O2 and not EF: flag_block()
    FR = 44
    D0, D1 = 28, 32
    j_, q_ = t1, t2
    p(f's_cmp_lg_u32 s{s_nh}, 0\ns_cbranch_scc1 A_KG1')
    def rdk(dst, e0, ks): return f'ds_read_b128 {vr(dst,4)}, v{vR} offset:{e0*PITCH+64*ks}'
    for ks in range(4):
        p(rdk(FR+12*ks, 41, ks)); p(rdk(FR+12*ks+4, 16, ks)); p(rdk(FR+12*ks+8, 0, ks))
    aW0, aW1, aG4, vDs = 6, 7, 8, 9
    p(f'v_lshrrev_b32 v{aW0}, 1, v{q_}\nv_lshlrev_b32 v{aW0}, 5, v{aW0}\nv_and_b32 v{aW1}, 1, v{q_}\nv_add_u32 v{aW0}, v{aW0}, v{aW1}')
    p(f'v_lshl_add_u32 v{aW0}, v{j_}, 1, v{aW0}\nv_lshlrev_b32 v{aW0}, 3, v{aW0}')
    p(f's_add_u32 s{s_tmp}, s{s_ctb}, {KR0+1064}\nv_sub_u32 v{aW0}, s{s_tmp}, v{aW0}')
    p(f'v_lshlrev_b32 v{aW1}, 4, v{q_}\nv_add_u32 v{aW1}, v{aW1}, v{j_}\nv_lshlrev_b32 v{aW1}, 4, v{aW1}')
    p(f's_add_u32 s{s_tmp}, s{s_ctb}, {KR0+1056-512}\nv_sub_u32 v{aW1}, s{s_tmp}, v{aW1}')
    p(f'v_lshlrev_b32 v{aG4}, 5, v{q_}\nv_add_u32 v{aG4}, v{aG4}, v{j_}\nv_lshlrev_b32 v{aG4}, 2, v{aG4}')
    p(f's_add_u32 s{s_tmp}, s{s_ctb}, {G4B+128-256}\nv_add_u32 v{aG4}, s{s_tmp}, v{aG4}')
    p(f'v_mov_b32 v{vDs}, 0\nv_mov_b32 v10, s{s_dsv}\ns_mov_b64 s[{s_msk}:{s_msk+1}], 1\nv_cndmask_b32 v{vDs}, v{vDs}, v10, s[{s_msk}:{s_msk+1}]')
    for ks in range(8):
        b = FR + 12*(ks & 3)
        p(f'v_mfma_f32_16x16x32_bf16 {vr(D1,4)}, {vr(b+4,4)}, {vr(b,4)}, {"0" if ks==0 else vr(D1,4)}')
        p(f'v_mfma_f32_16x16x32_bf16 {vr(D0,4)}, {vr(b+8,4)}, {vr(b,4)}, {"0" if ks==0 else vr(D0,4)}')
        if ks < 4:
            p(rdk(b, 41, ks+4)); p(rdk(b+4, 16, ks+4)); p(rdk(b+8, 0, ks+4))
    cA, cB, cC, cD, cE, cF = 12, 13, 14, 15, 16, 17
    p(f'v_cvt_pk_bf16_f32 v{cA}, v{D1+2}, v{D1+2}')
    p(f'v_cvt_pk_bf16_f32 v{cB}, v{D1+1}, v{D1}')
    p(f'v_cvt_pk_bf16_f32 v{cC}, v{D1+2}, v{D1+1}')
    p(f'v_cvt_pk_bf16_f32 v{cD}, v{D1}, v{D1}')
    p(f'v_cvt_pk_bf16_f32 v{cE}, v{D1+3}, v{D1+2}')
    p(f'v_cvt_pk_bf16_f32 v{cF}, v{D1+3}, v{D1+3}')
    p('s_mov_b32 exec_hi, 0')
    p(f'ds_write_b16 v{aW1}, v{cE} offset:2\nds_write_b32 v{aW1}, v{cA} offset:4\nds_write_b64 v{aW1}, {vr(cC,2)} offset:8\nds_write_b16 v{aW1}, v{cD} offset:16')
    p(f'ds_write_b32 v{aW1}, v{cE} offset:{KR1+4}\nds_write_b64 v{aW1}, {vr(cA,2)} offset:{KR1+8}\nds_write_b32 v{aW1}, v{cD} offset:{KR1+16}')
    p('s_mov_b32 exec_lo, 0\ns_mov_b32 exec_hi, 0x80000000')
    p(f'v_mov_b32 v18, s{s_ctb}\nds_write_b32 v18, v{cF} offset:{F1K}\nv_mov_b32 v{D1+3}, 0')
    p('s_mov_b32 exec_hi, -1')
    p(f'v_cvt_pk_bf16_f32 v{cA}, v{D1}, v{D1+1}\nv_cvt_pk_bf16_f32 v{cB}, v{D1+2}, v{D1+3}')
    p(f'ds_write_b32 v{aG4}, v{cA}\nds_write_b32 v{aG4}, v{cB} offset:64')
    p('s_mov_b32 exec_lo, -1')
    p(f'v_add_f32 v{D0}, v{D0}, v{vDs}')
    p(f'v_cvt_pk_bf16_f32 v{cC}, v{D0+3}, v{D0+2}\nv_cvt_pk_bf16_f32 v{cD}, v{D0+1}, v{D0}\nv_cvt_pk_bf16_f32 v{cE}, v{D0+2}, v{D0+1}')
    p(f'ds_write_b64 v{aW0}, {vr(cC,2)}')
    p(f'ds_write_b16 v{aW0}, v{cC} offset:{KR1+2}\nds_write_b32 v{aW0}, v{cE} offset:{KR1+4}\nds_write_b16_d16_hi v{aW0}, v{cD} offset:{KR1+8}')
    p('s_branch A_KG2')
    p.assume_clean()
    p('A_KG1:')
    for ks in range(8):
        if ks < 6: p(rdk(FR+8*ks, 41, ks)); p(rdk(FR+8*ks+4, 32, ks))
    if not O2 and not EARLY: upad()
    p(f'v_lshlrev_b32 v8, 2, v{j_}\nv_add_u32 v8, v8, v{q_}\nv_lshlrev_b32 v8, 3, v8\ns_add_u32 s{s_tmp}, s{s_ctb}, {G8B+64}\nv_add_u32 v8, s{s_tmp}, v8')
    for ks in range(8):
        b = FR + 8*(ks % 6)
        p(f'v_mfma_f32_16x16x32_bf16 {vr(D0,4)}, {vr(b,4)}, {vr(b+4,4)}, {"0" if ks==0 else vr(D0,4)}')
        if ks < 2: p(rdk(b, 41, ks+6)); p(rdk(b+4, 32, ks+6))
    p(f'v_mov_b32 v18, s{s_ctb}')
    p(f'v_cvt_pk_bf16_f32 v{cA}, v{D0}, v{D0+1}\nv_cvt_pk_bf16_f32 v{cB}, v{D0+2}, v{D0+3}\nv_cvt_pk_bf16_f32 v{cC}, v{D0}, v{D0}\nv_cvt_pk_bf16_f32 v{cD}, v{D0}, v{D0}')
    p('s_mov_b32 exec_lo, 0x00ff00ff\ns_mov_b32 exec_hi, 0x00ff00ff')
    p(f'ds_write_b64 v8, {vr(cA,2)}')
    p('s_mov_b64 exec, 0x100')
    p(f'ds_write_b16 v18, v{cC} offset:{KR0+42}\nds_write_b32 v18, v{cC} offset:{KR0+44}\nds_write_b16 v18, v{cC} offset:{KR0+48}')
    p(f'ds_write_b32 v18, v{cC} offset:{KR1+44}\nds_write_b32 v18, v{cC} offset:{KR1+48}')
    p('s_mov_b64 exec, -1')
    p('A_KG2:')
    if opt.get('prioA0'): p(f's_setprio {opt.get("prioA2", 0)}')
    p('s_waitcnt lgkmcnt(0)')
    p.assume_clean()
    if O2: p.restore_state(kg_state); p('s_waitcnt lgkmcnt(0)')
    stamp()
    if O2 == 2: u_issue()
    if not EARLY and not O2: poll_block()
    vU, vK0, vK1, vG4, vG8 = 3, 6, 7, 8, 9
    p(f'v_lshlrev_b32 v{vU}, 1, v{j_}\nv_add_u32 v{vU}, v{vU}, v{q_}\nv_lshlrev_b32 v{vU}, 4, v{vU}\nv_add_u32 v{vU}, s{s_utb}, v{vU}')
    p(f'v_lshlrev_b32 v10, 3, v{q_}\nv_sub_u32 v10, v10, v{j_}\nv_lshlrev_b32 v10, 1, v10')
    p(f'v_and_b32 v11, 1, v0\nv_mul_u32_u24 v11, {KR1+2}, v11\nv_sub_u32 v10, v10, v11')
    p(f's_add_u32 s{s_tmp}, s{s_ctb}, {KR1+1056-512}\nv_add_u32 v{vK0}, s{s_tmp}, v10\nv_subrev_u32 v{vK1}, 512, v{vK0}')
    p(f'v_lshlrev_b32 v10, 2, v{q_}\nv_sub_u32 v10, v{j_}, v10')
    p(f's_add_u32 s{s_tmp}, s{s_ctb}, {G4B+8}\nv_lshl_add_u32 v{vG4}, v10, 3, s{s_tmp}\nv_add_u32 v{vG4}, 96, v{vG4}')
    p(f's_add_u32 s{s_tmp}, s{s_ctb}, {G8B+4}\nv_lshl_add_u32 v{vG8}, v10, 2, s{s_tmp}\nv_add_u32 v{vG8}, 48, v{vG8}')
    vY = 26
    p(f'v_and_b32 v10, 1, v{q_}\nv_lshrrev_b32 v11, 2, v{j_}\nv_lshl_add_u32 v10, v10, 2, v11\nv_lshlrev_b32 v{vY}, 17, v10')
    p(f'v_lshrrev_b32 v10, 1, v{q_}\nv_and_b32 v11, 3, v0\nv_lshl_add_u32 v10, v10, 2, v11\nv_lshl_add_u32 v{vY}, v10, 4, v{vY}')
    xw, xr = 252, 253
    p(f's_lshl_b32 s{s_tmp}, s{s_w}, 12\ns_xor_b32 s{s_tmp2}, s{s_tmp}, 4096')
    p(f'v_add_u32 v{xw}, s{s_tmp}, v{vL16}\nv_add_u32 v{xr}, s{s_tmp2}, v{vL16}')
    if O2:
        tr_a(); tr_b()
        p('s_waitcnt vmcnt(0) lgkmcnt(0)\ns_barrier')
        flag_block(); poll_block()
    p('s_waitcnt vmcnt(0)\ns_barrier')
    stamp()
    ACC = 28
    KF = 60
    UF = 128
    def acc(t): return vr(ACC+4*t, 4)
    def rdK(s):
        a, o = (vK0, 16*(8-s)) if s <= 8 else (vK1, 16*(16-s))
        return [f'ds_read2_b32 {vr(KF+4*s,2)}, v{a} offset0:{o} offset1:{o+1}', f'ds_read2_b32 {vr(KF+4*s+2,2)}, v{a} offset0:{o+2} offset1:{o+3}']
    def rdU(n, slot): return f'ds_read_b128 {vr(UF+4*slot,4)}, v{vU} offset:{64*n+512}'
    started = set()
    def mf(t, A, B):
        c = acc(t) if t in started else '0'
        started.add(t)
        return f'v_mfma_f32_16x16x32_bf16 {acc(t)}, {vr(A,4)}, {vr(B,4)}, {c}'
    YP = 12
    def ypack(t, r):
        L = [f'v_cvt_pk_bf16_f32 v{r}, v{ACC+4*t}, v{ACC+4*t+1}', f'v_cvt_pk_bf16_f32 v{r+1}, v{ACC+4*t+2}, v{ACC+4*t+3}',
             f'v_cvt_pk_bf16_f32 v{r+2}, v{ACC+4*t+4}, v{ACC+4*t+5}', f'v_cvt_pk_bf16_f32 v{r+3}, v{ACC+4*t+6}, v{ACC+4*t+7}',
             f's_add_u32 s{s_so+(t>>1&1)}, s{s_so+2}, {t << 19}',
             f'v_permlane16_swap_b32 v{r}, v{r+2}', f'v_permlane16_swap_b32 v{r+1}, v{r+3}']
        return L
    def yst(t, r): return f'buffer_store_dwordx4 {vr(r,4)}, v{vY}, s[{sOUT}:{sOUT+3}], s{s_so+(t>>1&1)} offen'
    p(f's_cmp_lg_u32 s{s_nh}, 0\ns_cbranch_scc1 A_CONV_P')
    PREU = 5
    FX = 160
    p(f'v_mov_b32 v18, s{s_ctb}\nds_read_b32 v{FX+4}, v18 offset:{F1K}')
    order = [-8] + list(range(0, 57))
    korder = list(range(16, -1, -1))
    pro = []
    kq = list(korder)
    p(rdU(order[0], 0))
    p.ext(rdK(kq.pop(0)))
    for i in range(1, PREU):
        p(rdU(order[i], i)); p.ext(rdK(kq.pop(0)))
    for j in range(4): p(f'v_and_b32 v{FX+j}, v{FIXM+j}, v{FX+4}')
    for i, n in enumerate(order):
        sl = UF + 4*(i % 8)
        ms = []
        if n >= 0:
            for t in range(2, 8):
                s = 8*t - n
                if 0 <= s <= 16: ms.append(mf(t, KF+4*s, sl))
        if n % 8 == 0 and -8 <= n <= 24: ms.append(mf((n+32)//8, FX, sl))
        nxt = []
        if i + PREU < len(order): nxt.append(rdU(order[i+PREU], (i+PREU) % 8))
        if kq: nxt += rdK(kq.pop(0))
        p(ms[0]); p.ext(nxt); p.ext(ms[1:])
    for k, t in enumerate((2, 3)): p(f'ds_write_b128 v{xw}, {acc(t)} offset:{XCH+1024*k}')
    p('s_waitcnt lgkmcnt(0)\ns_barrier')
    for k in range(4): p(f'ds_read_b128 {vr(UF+4*k,4)}, v{xr} offset:{XCH+1024*k}')
    for k, t in enumerate((4, 5, 6, 7)):
        for j in range(4): p(f'v_add_f32 v{ACC+4*t+j}, v{ACC+4*t+j}, v{UF+4*k+j}')
        if k & 1: p.ext(ypack(t-1, YP+2*(k-1)))
    p.ext(two_mode([yst(4, YP), yst(6, YP+4)]))
    p('s_branch A_CONV_END')
    p.assume_clean()
    started.clear()
    p('A_CONV_P:')
    G4F = 160
    G8F = 184
    WD = 200
    WFR = 252
    order = list(range(-8, 9))
    kneed = []
    for n in order:
        for s in ([8-n] + ([-n] if n <= 0 else [])):
            if s not in kneed: kneed.append(s)
    kq = list(kneed)
    extra = []
    for d in range(3):
        for i in range(4): extra.append(f'ds_read_b64 {vr(G4F+8*d+2*i,2)}, v{vG4} offset:{128*d+8*(3-i)}')
    for d in range(4):
        extra.append(f'ds_read2_b32 {vr(G8F+4*d,2)}, v{vG8} offset0:{16*d+3} offset1:{16*d+2}')
        extra.append(f'ds_read2_b32 {vr(G8F+4*d+2,2)}, v{vG8} offset0:{16*d+1} offset1:{16*d}')
    PP = 3
    for i in range(PP):
        p(rdU(order[i], i)); p.ext(rdK(kq.pop(0))); p.ext(rdK(kq.pop(0)))
    for i, n in enumerate(order):
        sl = UF + 4*(i % 8)
        ms = [mf(1, KF+4*(8-n), sl)]
        if n <= 0: ms.append(mf(0, KF+4*(-n), sl))
        nxt = []
        if i + PP < len(order): nxt.append(rdU(order[i+PP], (i+PP) % 8))
        for _ in range(2):
            if kq: nxt += rdK(kq.pop(0))
        if not kq:
            for _ in range(3):
                if extra: nxt.append(extra.pop(0))
        p(ms[0]); p.ext(nxt); p.ext(ms[1:])
    p.ext(extra)
    FA = [UF, UF+8, UF+16]; FB = [UF+4, UF+12, UF+20]
    def rdF(be): return [f'ds_read_b128 {vr(FA[be%3],4)}, v{vU} offset:{512*be+496}', f'ds_read_b128 {vr(FB[be%3],4)}, v{vU} offset:{512*be+480}']
    def win(be):
        fa, fb = FA[be % 3], FB[be % 3]
        L = [f'v_mfma_f32_16x16x32_bf16 {vr(WD+4*c,4)}, {vr(fa if c<3 else fb,4)}, {vr(BC[c],4)}, 0' for c in range(4)]
        if be < 4:
            L += [f'v_mfma_f32_16x16x32_bf16 {vr(WD+16,4)}, {vr(fa,4)}, {vr(B7,4)}, 0', f'v_mfma_f32_16x16x32_bf16 {vr(WD+20,4)}, {vr(fb,4)}, {vr(B9,4)}, 0']
        return L
    def wfr(be): return KF + 12*(be & 1)
    def cvts(be):
        w = wfr(be); L = []
        for i in range(4):
            L.append(f'v_cvt_pk_bf16_f32 v{w+2*i}, v{WD+i}, v{WD+4+i}')
            L.append(f'v_cvt_pk_bf16_f32 v{w+2*i+1}, v{WD+8+i}, v{WD+12+i}')
        if be < 4:
            for i in range(4): L.append(f'v_cvt_pk_bf16_f32 v{w+8+i}, v{WD+16+i}, v{WD+20+i}')
        return L
    def cons(be):
        w = wfr(be); L = []
        for d in range(3):
            if be + d <= 5:
                L.append(mf(2+be+d, w, G4F+8*d)); L.append(mf(2+be+d, w+4, G4F+8*d+4))
        if be < 4:
            for d in range(4):
                if be + d <= 3: L.append(mf(4+be+d, w+8, G8F+4*d))
        return L
    p.ext(rdF(0)); p.ext(rdF(1))
    p.ext(win(0)); p.ext(rdF(2))
    p.ext(cvts(0))
    for be in range(6):
        if be < 5:
            p.ext(win(be+1))
            if be + 3 <= 5: p.ext(rdF(be+3))
            c = cons(be); cv_ = cvts(be+1)
            k = min(3, len(c))
            p.ext(c[:k])
            if be == 0: p.ext(ypack(0, YP))
            p.ext(interleave(c[k:], cv_) if len(c) > k else cv_)
        else: p.ext(cons(be))
    for k, t in enumerate((4, 5, 6, 7)): p(f'ds_write_b128 v{xw}, {acc(t)} offset:{XCH+1024*k}')
    p('s_waitcnt lgkmcnt(0)\ns_barrier')
    for k in range(2): p(f'ds_read_b128 {vr(UF+4*k,4)}, v{xr} offset:{XCH+1024*k}')
    for k, t in enumerate((2, 3)):
        for j in range(4): p(f'v_add_f32 v{ACC+4*t+j}, v{ACC+4*t+j}, v{UF+4*k+j}')
    p.ext(ypack(2, YP+4))
    p.ext(two_mode([yst(0, YP), yst(2, YP+4)]))
    p('A_CONV_END:')
    p.assume_clean()
    stamp()
    F1, F2 = 16384, 16384 + 8192
    FV = 28
    for j in range(4): p(f'v_mov_b32 v{FV+j}, s{s_E1}')
    p(f's_lshl_b32 s{s_tmp}, s{s_g}, 5\ns_add_u32 s{s_tmp}, s{s_tmp}, s{s_m}\ns_lshl2_add_u32 s{s_tmp}, s{s_tmp}, s{s_w}\ns_lshl_b32 s{s_tmp}, s{s_tmp}, {FS}\ns_add_u32 s{s_tmp}, s{s_tmp}, {WS_YF}')
    p(f'v_and_b32 v3, 7, v0\nv_bfe_u32 v4, v0, 3, 1\nv_lshl_add_u32 v3, v4, 5, v3\nv_lshlrev_b32 v3, {FS+1}, v3')
    p(f's_cmp_lt_u32 s{s_m}, 16\ns_cselect_b32 s{s_tmp2}, {1<<FS}, 0\ns_lshl_b32 s{s_tmp3}, s{s_g}, 3\ns_add_u32 s{s_tmp3}, s{s_tmp3}, s{s_w}\ns_lshl_b32 s{s_tmp3}, s{s_tmp3}, {FS+4}\ns_add_u32 s{s_tmp2}, s{s_tmp2}, s{s_tmp3}\ns_add_u32 s{s_so}, s{s_tmp2}, {WS_YF}')
    p(f'v_bfe_u32 v4, v0, 4, 1\nv_lshlrev_b32 v4, 2, v4\nv_and_b32 v5, 7, v0\nv_xor_b32 v4, v4, v5\nv_lshlrev_b32 v4, 4, v4\nv_lshrrev_b32 v5, 3, v0\nv_lshl_add_u32 v4, v5, 11, v4')
    p(f's_lshl_b32 s{s_tmp2}, s{s_w}, 10\ns_add_u32 m0, s{s_tmp2}, {F1}')
    p('s_waitcnt vmcnt(0)')
    p(f's_mov_b64 exec, {FX_}')
    p.ext(two_mode([f'buffer_store_dwordx4 {vr(FV,4)}, v{vL16}, s[{sWS}:{sWS+3}], s{s_tmp} offen']))
    p('s_mov_b64 exec, -1')
    p(f'v_subrev_u32 v{trA}, {ST1-F1}, v{trA}')
    p(f'v_bfe_u32 v6, v0, 3, 2\nv_lshlrev_b32 v6, 4, v6\nv_bfe_u32 v7, v0, 5, 1\nv_lshl_add_u32 v6, v7, 3, v6\nv_and_b32 v7, 7, v0\nv_add_u32 v6, v6, v7')
    p(f's_lshl_b32 s{s_tmp}, s{s_w}, 1\nv_xor_b32 v7, s{s_tmp}, v7\nv_lshlrev_b32 v7, 4, v7\nv_lshl_add_u32 v6, v6, 7, v7\nv_add_u32 v6, {F2}, v6\nv_xor_b32 v7, 16, v6')
    p(f'v_lshlrev_b32 v9, 4, v0')
    p(f's_mov_b32 s{s_sp}, 0')
    p('A_Y_POLL:')
    p(f'buffer_load_dword v18, v3, s[{sWS}:{sWS+3}], s{s_so} offen sc1')
    p(f's_add_u32 s{s_sp}, s{s_sp}, 1\ns_cmp_gt_u32 s{s_sp}, {SPIN_MAX}\ns_cbranch_scc1 A_Y_LOAD')
    p(f'v_cmp_ne_u32 vcc, s{s_E1}, v18')
    p(f's_cbranch_vccz A_Y_LOAD\ns_sleep {SLP}\ns_branch A_Y_POLL')
    p('A_Y_LOAD:')
    p(f'buffer_load_dwordx4 v4, s[{sOUT}:{sOUT+3}], s{s_ob} offen sc1 lds')
    p(f's_add_u32 m0, s{s_tmp2}, {F1+4096}')
    p(f'buffer_load_dwordx4 v4, s[{sOUT}:{sOUT+3}], s{s_ob+1} offen sc1 lds')
    p('s_waitcnt vmcnt(0)\ns_barrier')
    stamp()
    for rd in range(4): p(f'ds_read_b64_tr_b16 {vr(UB+2*rd,2)}, v{trA} offset:{512*rd}')
    p(f'ds_write_b128 v6, {vr(UB,4)}\nds_write_b128 v7, {vr(UB+4,4)}')
    p('s_waitcnt lgkmcnt(0)\ns_barrier')
    p(f'ds_read_b128 v[52:55], v9 offset:{F2}\nds_read_b128 v[56:59], v9 offset:{F2+4096}')
    p('s_waitcnt lgkmcnt(0)')
    fin = [f'buffer_store_dwordx4 v[52:55], v{gUT}, s[{sOUT}:{sOUT+3}], s{s_ob} offen', f'buffer_store_dwordx4 v[56:59], v{gUT}, s[{sOUT}:{sOUT+3}], s{s_ob+1} offen']
    if opt.get('outflagA'): p.ext([x + ' ' + opt['outflagA'] for x in fin])
    else: p.ext(two_mode(fin))
    p(f's_or_b32 s{s_tmp}, s{s_m}, s{s_w}\ns_cmp_lg_u32 s{s_tmp}, 0\ns_cbranch_scc1 A_END')
    p(f'v_mov_b32 v10, s{s_E1}\nv_mov_b32 v11, 0\ns_lshl_b32 s{s_tmp}, s{s_g}, 8\ns_mov_b64 exec, 1')
    p(f'buffer_store_dword v10, v11, s[{sWS}:{sWS+3}], s{s_tmp} offen offset:{WS_EA} sc1')
    if opt.get('wbl2'): p('s_waitcnt vmcnt(0)\nbuffer_wbl2 sc1')
    p('A_END:')
    if opt.get('stamps'):
        p('s_mov_b64 exec, -1')
        p('s_waitcnt vmcnt(0)')
        p('s_memtime s[100:101]\ns_memrealtime s[76:77]\ns_waitcnt lgkmcnt(0)')
        for k in range(11): p(f'v_mov_b32 v{16+k}, s{80+2*k}')
        p('v_mov_b32 v27, s78\nv_mov_b32 v28, s76\n' + f'v_mov_b32 v29, s{s_sp}')
        p(f's_lshl_b32 s{s_tmp}, s2, 8\ns_lshl_b32 s{s_tmp2}, s{s_w}, 6\ns_add_u32 s{s_tmp}, s{s_tmp}, s{s_tmp2}\ns_add_u32 s{s_tmp}, s{s_tmp}, {WS_STAMP}')
        p('v_mov_b32 v0, 0\ns_mov_b64 exec, 1')
        for k in range(4): p(f'buffer_store_dwordx4 v[{16+4*k}:{19+4*k}], v0, s[{sWS}:{sWS+3}], s{s_tmp} offen offset:{16*k}')
    p('s_endpgm')
    p.assume_clean()
    if XE:
        p('A_X_AGAIN:')
        p(f's_add_u32 s{s_sp}, s{s_sp}, 1\ns_cmp_gt_u32 s{s_sp}, {SPIN_MAX}\ns_cbranch_scc1 A_X_OK\ns_sleep 8')
        p(f'buffer_load_dwordx2 {vr(XW+6,2)}, v{XW+4}, s[{sWS}:{sWS+3}], s73 offen sc1\ns_waitcnt vmcnt(0)\ns_branch A_X_CHK')
        p.assume_clean()
    elif not opt.get('ut_sc1'):
        p('A_F_SLOW:')
        p(f'buffer_store_dwordx4 {vr(UB,4)}, v{gUT}, s[{sOUT}:{sOUT+3}], s{s_ob} offen sc1')
        p(f'buffer_store_dwordx4 {vr(UB+4,4)}, v{gUT}, s[{sOUT}:{sOUT+3}], s{s_ob+1} offen sc1')
        for j in range(4): p(f'v_mov_b32 v{104+j}, s{s_E1}')
        p(f's_lshl_b32 s73, s{s_g}, 5\ns_add_u32 s73, s73, s{s_m}\ns_lshl2_add_u32 s73, s73, s{s_w}\ns_lshl_b32 s73, s73, 7\ns_add_u32 s73, s73, {WS_FLAG2}')
        p('s_waitcnt vmcnt(0)\ns_mov_b64 exec, 0xff')
        p(f'buffer_store_dwordx4 v[104:107], v{vL16}, s[{sWS}:{sWS+3}], s73 offen sc1')
        p('s_mov_b64 exec, -1')
        p(f's_lshl_b32 s73, s{s_g}, 14\ns_add_u32 s73, s73, {WS_FLAG2}\ns_add_u32 s74, s73, 8192\nv_lshlrev_b32 v16, 3, v{vL16}')
        p('A_F_POLL2:')
        p(f'buffer_load_dword v12, v16, s[{sWS}:{sWS+3}], s73 offen sc1')
        p(f'buffer_load_dword v13, v16, s[{sWS}:{sWS+3}], s74 offen sc1')
        p(f's_add_u32 s{s_sp}, s{s_sp}, 1\ns_cmp_gt_u32 s{s_sp}, {SPIN_MAX}\ns_cbranch_scc1 A_F_DMA')
        p(f'v_xor_b32 v12, s{s_E1}, v12\nv_xor_b32 v13, s{s_E1}, v13\nv_or_b32 v12, v12, v13\nv_cmp_ne_u32 vcc, 0, v12')
        p('s_cbranch_vccz A_F_DMA\ns_sleep 2\ns_branch A_F_POLL2')
        p.assume_clean()
```

```python
from asmdsl import Prog, interleave, slotted
from common import *

RA, RB, ST = 0, 32768, 65536
KT = ST
ZERO = ST + 3200

def vr(a, n): return f'v[{a}:{a+n-1}]'
def L_(txt): return [x for x in txt.split('\n') if x.strip()]

def genB(p, opt):
    stamp_n = [0]
    def stamp(kind='main'):
        if kind != opt.get('stampset', 'main') and not (kind == 'main' and stamp_n[0] == 0): return
        if opt.get('amp') and stamp_n[0] == opt.get('amp_at', -1): p('s_memrealtime s[76:77]\ns_waitcnt lgkmcnt(0)\ns_mov_b32 s99, s76')
        if opt.get('amp'): stamp_n[0] += 1
        if opt.get('stamps'):
            k = stamp_n[0]; stamp_n[0] += 1
            p(f's_memtime s[{80+2*k}:{81+2*k}]') if k < 10 else None
    cap = [opt.get('vmcap', 0)]
    def ext2(L):
        for x in L:
            if isinstance(x, tuple) and x[0] == 'dma':
                p(x[1])
                if cap[0]: p(f's_waitcnt vmcnt({cap[0]})')
                p(x[2], tok=x[3])
            else: p.ext([x])
    sX, sW, sP, sO, sOUT, sWS = 8, 12, 16, 20, 24, 28
    s_rb, s_hp, s_w, s_loc, s_xcd = 32, 33, 34, 35, 36
    s_m0b, s_st = 37, 38
    s_p1 = 39
    s_xo = 40
    s_wo = 48
    s_t = 56
    s_E1 = 60
    s_tmp, s_tmp2, s_tmp3 = 61, 62, 63
    s_c = 64
    s_p2 = 65
    s_msk = 66
    s_sp, s_rdy = 68, 69
    s_so = 70
    s_rt, s_ct, s_oo = 74, 75, 76
    s_pf = 16
    s_F, s_H = 4, 5
    s_xcc, s_mode = 77, 69
    GRP = opt.get('grp', 0)
    LOC2 = opt.get('local2', 0); INP = opt.get('inplace', 0)
    assert LOC2 or not INP
    ACC0, ACC1, P, WF, PA, E, X = 16, 32, 48, 64, 88, 96, 128
    NSL = 6
    vA1, vA2 = 8, 12
    vTR, vTRv, vWg, vL16, vEp = 1, 2, 3, 4, 5
    vT0, vT1 = 6, 7
    a0, b0, pa, va, sa, vMask, hA, hZ = PA, PA+1, PA+2, PA+3, PA+4, PA+5, PA+6, PA+7
    vXg = E; vSR = E + 4
    t0, t1, t2, t3, t4, t5 = E + 8, E + 9, E + 10, E + 11, E + 12, E + 13
    LD = opt.get('ldflag', '')

    p('B_ROLE:')
    p(f's_load_dwordx4 s[{sX}:{sX+3}], s[0:1], 72')
    p(f's_load_dwordx2 s[{sP}:{sP+1}], s[0:1], 88')
    p(f's_load_dwordx2 s[{sO}:{sO+1}], s[0:1], 96')
    p(f's_load_dwordx2 s[{sOUT}:{sOUT+1}], s[0:1], 104')
    p(f's_load_dwordx2 s[{sWS}:{sWS+1}], s[0:1], 120')
    if opt.get('stamps') or opt.get('amp') or opt.get('skew'): p('s_memrealtime s[78:79]')
    stamp()
    if opt.get('prioB0'): p(f's_setprio {opt["prioB0"]}')
    p(f'v_lshrrev_b32 v{t0}, 6, v0')
    p(f's_and_b32 s{s_xcd}, s2, 7\ns_lshr_b32 s{s_loc}, s2, 3')
    p(f'v_readfirstlane_b32 s{s_w}, v{t0}')
    if opt.get('map', '4x8') == '8x4':
        p(f's_and_b32 s{s_tmp}, s{s_xcd}, 1\ns_lshl_b32 s{s_tmp}, s{s_tmp}, 3\ns_and_b32 s{s_tmp2}, s{s_loc}, 7\ns_add_u32 s{s_rb}, s{s_tmp}, s{s_tmp2}')
        p(f's_lshr_b32 s{s_tmp}, s{s_xcd}, 1\ns_lshl_b32 s{s_tmp}, s{s_tmp}, 2\ns_lshr_b32 s{s_tmp3}, s{s_loc}, 3\ns_add_u32 s{s_hp}, s{s_tmp}, s{s_tmp3}')
        p(f's_lshl_b32 s{s_tmp3}, s{s_tmp3}, 1\ns_add_u32 s{s_tmp}, s{s_tmp2}, s{s_tmp3}\ns_and_b32 s{s_tmp}, s{s_tmp}, 7')
    elif opt.get('map') == '16x2':
        p(f's_and_b32 s{s_rb}, s{s_loc}, 15\ns_lshr_b32 s{s_tmp3}, s{s_loc}, 4\ns_lshl1_add_u32 s{s_hp}, s{s_xcd}, s{s_tmp3}')
        p(f's_lshl2_add_u32 s{s_tmp}, s{s_tmp3}, s{s_xcd}\ns_add_u32 s{s_tmp}, s{s_tmp}, s{s_rb}\ns_and_b32 s{s_tmp}, s{s_tmp}, 7')
    elif opt.get('map') == '8x4b':
        p(f's_and_b32 s{s_tmp}, s{s_xcd}, 1\ns_lshl_b32 s{s_tmp}, s{s_tmp}, 3\ns_and_b32 s{s_tmp2}, s{s_loc}, 7\ns_add_u32 s{s_rb}, s{s_tmp}, s{s_tmp2}')
        p(f's_lshr_b32 s{s_tmp}, s{s_xcd}, 1\ns_lshr_b32 s{s_tmp3}, s{s_loc}, 3\ns_lshl2_add_u32 s{s_hp}, s{s_tmp}, s{s_tmp3}')
        p(f's_and_b32 s{s_tmp}, s{s_tmp}, 1\ns_add_u32 s{s_tmp2}, s{s_tmp2}, s{s_tmp}\ns_lshl1_add_u32 s{s_tmp}, s{s_tmp3}, s{s_tmp2}\ns_and_b32 s{s_tmp}, s{s_tmp}, 7')
    elif opt.get('map') == '2x16':
        p(f's_and_b32 s{s_tmp2}, s{s_loc}, 1\ns_lshl1_add_u32 s{s_rb}, s{s_xcd}, s{s_tmp2}\ns_lshr_b32 s{s_hp}, s{s_loc}, 1')
        p(f's_and_b32 s{s_tmp}, s{s_hp}, 1\ns_lshl1_add_u32 s{s_tmp}, s{s_tmp}, s{s_tmp2}\ns_lshr_b32 s{s_tmp3}, s{s_hp}, 1\ns_lshl1_add_u32 s{s_tmp}, s{s_tmp}, s{s_tmp3}\ns_add_u32 s{s_tmp}, s{s_tmp}, s{s_xcd}\ns_and_b32 s{s_tmp}, s{s_tmp}, 7')
    else:
        p(f's_and_b32 s{s_tmp}, s{s_xcd}, 3\ns_and_b32 s{s_tmp2}, s{s_loc}, 3\ns_lshl2_add_u32 s{s_rb}, s{s_tmp}, s{s_tmp2}')
        p(f's_lshr_b32 s{s_tmp}, s{s_xcd}, 2\ns_lshr_b32 s{s_tmp3}, s{s_loc}, 2\ns_lshl3_add_u32 s{s_hp}, s{s_tmp}, s{s_tmp3}')
        p(f's_lshl1_add_u32 s{s_tmp}, s{s_tmp2}, s{s_tmp3}\ns_and_b32 s{s_tmp}, s{s_tmp}, 7')
    if opt.get('rotmask'): p(f's_and_b32 s{s_tmp}, s{s_tmp}, {opt["rotmask"]}')
    p(f's_lshl_b32 s{s_xo}, s{s_tmp}, 7\ns_mul_i32 s{s_wo}, s{s_xo}, 1536')
    p(f'v_bfe_u32 v{t1}, v0, 3, 3\nv_lshl_add_u32 v{t1}, v{t0}, 5, v{t1}')
    p(f'v_and_b32 v{t2}, 7, v0\nv_bfe_u32 v{t3}, v0, 4, 2\nv_xor_b32 v{t2}, v{t2}, v{t3}\nv_lshlrev_b32 v{t2}, 4, v{t2}')
    p(f's_lshl_b32 s{s_tmp}, s{s_rb}, 17')
    p(f'v_lshl_add_u32 v{t1}, v{t1}, 10, v{t2}\nv_add_u32 v{vXg}, s{s_tmp}, v{t1}')
    p(f'v_xor_b32 v{vXg+1}, 64, v{vXg}\nv_add_u32 v{vXg+2}, 16384, v{vXg}\nv_add_u32 v{vXg+1}, 8192, v{vXg+1}\nv_add_u32 v{vXg+3}, 16384, v{vXg+1}')
    p(f'v_lshrrev_b32 v{t1}, 2, v0\nv_mul_u32_u24 v{t1}, 3072, v{t1}\nv_and_b32 v{t2}, 3, v0\nv_lshl_add_u32 v{t1}, v{t2}, 4, v{t1}')
    p(f's_lshl_b32 s{s_tmp}, s{s_hp}, 6\ns_add_u32 s{s_tmp}, s{s_tmp}, 1024')
    p(f'v_add_u32 v{vWg}, s{s_tmp}, v{t1}')
    p(f's_lshl_b32 s{s_m0b}, s{s_w}, 10\ns_lshl_b32 s{s_st}, s{s_w}, 12')
    p(f's_mov_b32 s{sW+2}, 0x180000\ns_mov_b32 s{sW+3}, 0x20000')
    p('s_waitcnt lgkmcnt(0)')
    p(f's_mov_b32 s{sW}, s{sX+2}\ns_mov_b32 s{sW+1}, s{sX+3}\ns_mov_b32 s{sX+2}, 0x200000\ns_mov_b32 s{sX+3}, 0x20000')
    def xslot(c): return RB + 16384*((c+1) % 3)
    def issue_k(c):
        L = []
        for i in range(4):
            L.append(('dma', f's_add_u32 m0, s{s_st}, {xslot(c)+1024*i}', f'buffer_load_dwordx4 v{vXg+i}, s[{sX}:{sX+3}], s{s_xo+c} offen {opt.get("ldflagx", LD)} lds', None))
        L.append(('dma', f's_add_u32 m0, s{s_m0b}, {RA+4096*c}', f'buffer_load_dwordx4 v{vWg}, s[{sW}:{sW+3}], s{s_wo+c} offen {LD} lds', f'wk{c}'))
        return L
    def issue_v(c):
        return [('dma', f's_add_u32 m0, s{s_st}, {RB+16384*(c>>2)+1024*(c&3)-1024}', f'buffer_load_dwordx4 v{vWg}, s[{sW}:{sW+3}], s{s_wo+c} offen offset:1024 {LD} lds', f'wv{c}')]
    def nextoff(c): p(f's_add_u32 s{s_xo+c}, s{s_xo+c-1}, 128\ns_and_b32 s{s_xo+c}, s{s_xo+c}, 1023\ns_mul_i32 s{s_wo+c}, s{s_xo+c}, 1536')
    WF1 = opt.get('wfirst', 0)
    def retok(L, tok): return L[:-1] + [L[-1][:3] + (tok,)]
    if WF1:
        nextoff(1)
        ext2(retok(issue_k(0)[4:], None)); ext2(retok(issue_k(1)[4:], None)); ext2(retok(issue_k(0)[:4], 'wk0'))
    else: ext2(issue_k(0))
    p(f'v_and_b32 v{vL16}, 63, v0\nv_lshlrev_b32 v{vL16}, 4, v{vL16}\nv_mov_b32 v{vEp}, 0')
    for s, n in ((sP, 0x4000), (sWS, 0x10000000 - WS_BASE)): p(f's_mov_b32 s{s+2}, {hex(n)}\ns_mov_b32 s{s+3}, 0x20000')
    if WS_BASE: p(f's_add_u32 s{sWS}, s{sWS}, {hex(WS_BASE)}\ns_addc_u32 s{sWS+1}, s{sWS+1}, 0')
    p(f's_lshl_b32 s{s_tmp2}, s{s_hp}, 10\ns_add_u32 m0, s{s_m0b}, {RA+28672}')
    if not WF1: nextoff(1)
    p(f'buffer_load_dwordx4 v{vL16}, s[{sP}:{sP+3}], s{s_tmp2} offen lds', tok='wphi')
    p(f'buffer_load_dword v{vEp}, v{vEp}, s[{sWS}:{sWS+3}], 0 offen offset:{WS_EB} sc1')
    for c in range(2, 8): nextoff(c)
    k1 = retok(issue_k(1)[:4], 'wk1') if WF1 else issue_k(1)
    if not opt.get('late12', 0): ext2(k1); ext2(issue_k(2))
    yield
    for s, n in ((sO, 0x80000), (sOUT, 0x400000)): p(f's_mov_b32 s{s+2}, {hex(n)}\ns_mov_b32 s{s+3}, 0x20000')
    R_, CQ, NH, H_ = P, P+1, P+2, P+3
    p(f'v_bfe_u32 v{R_}, v0, 2, 2\nv_and_b32 v{CQ}, 3, v0\nv_bfe_u32 v{NH}, v0, 4, 1\nv_bfe_u32 v{H_}, v0, 5, 1')
    p(f'v_lshl_add_u32 v{t0}, v{H_}, 3, v{R_}\nv_lshlrev_b32 v{t0}, 6, v{t0}')
    p(f'v_lshl_add_u32 v{t1}, v{NH}, 2, v{CQ}\nv_lshl_add_u32 v{vTR}, v{t1}, 3, v{t0}')
    p(f'v_and_b32 v{t1}, 1, v{CQ}\nv_lshl_add_u32 v{t2}, v{t1}, 1, v{NH}')
    p(f'v_lshrrev_b32 v{t3}, 1, v{CQ}\nv_lshl_add_u32 v{t2}, v{t2}, 1, v{t3}')
    p(f'v_lshl_add_u32 v{vTRv}, v{t2}, 3, v{t0}')
    p(f's_add_u32 s{s_tmp}, s{s_st}, {RB}')
    p(f'v_bfe_u32 v{t0}, v0, 1, 3\nv_xor_b32 v{t0}, v{t0}, v{H_}\nv_lshlrev_b32 v{t0}, 4, v{t0}')
    p(f'v_and_b32 v{t4}, 31, v0\nv_lshl_add_u32 v{t0}, v{t4}, 7, v{t0}\nv_add_u32 v{vSR}, s{s_tmp}, v{t0}')
    for j in range(1, 4): p(f'v_xor_b32 v{vSR+j}, {32*j}, v{vSR}')
    p(f'v_lshl_add_u32 v{t2}, v{NH}, 1, v{t3}\nv_lshlrev_b32 v{t2}, 3, v{t2}\nv_lshl_add_u32 v{t2}, v{t1}, 9, v{t2}')
    p(f'v_lshl_add_u32 v{t0}, v{H_}, 2, v{R_}\nv_lshl_add_u32 v{t2}, v{t0}, 5, v{t2}')
    p(f's_add_u32 s{s_tmp}, s{s_m0b}, {RA+28672}\nv_add_u32 v{t5}, s{s_tmp}, v{t2}')
    p(f's_getreg_b32 s{s_xcc}, hwreg(HW_REG_XCC_ID, 0, 4)')
    p(f's_mov_b32 s{s_c}, {hex(LOG2E)}\ns_and_b32 s{s_F}, s{s_w}, 1\ns_lshr_b32 s{s_H}, s{s_w}, 1')
    u0, u1, u2, u3, u4 = P+4, P+5, P+6, P+7, P+8
    kfill = []
    kfill += L_(f'''v_bfe_u32 v{u0}, v0, 1, 2
v_lshlrev_b32 v{a0}, 4, v{u0}
v_lshl_add_u32 v{a0}, v{t4}, 6, v{a0}
v_lshl_add_u32 v{a0}, v{H_}, 11, v{a0}
s_add_u32 s{s_tmp}, s{s_st}, {ST}
v_add_u32 v{a0}, s{s_tmp}, v{a0}
v_bfe_u32 v{u0}, v0, 2, 1
v_lshlrev_b32 v{b0}, 4, v{u0}
v_lshl_add_u32 v{b0}, v{t4}, 5, v{b0}
v_lshl_add_u32 v{b0}, v{H_}, 10, v{b0}
s_add_u32 s{s_tmp}, s{s_st}, {RB}
v_add_u32 v{b0}, s{s_tmp}, v{b0}''')
    kfill += L_(f'''v_lshrrev_b32 v{u0}, 1, v{R_}
v_lshl_add_u32 v{u0}, v{NH}, 1, v{u0}
s_lshl_b32 s{s_tmp2}, s{s_F}, 1
v_or_b32 v{u1}, s{s_tmp2}, v{t3}
v_xor_b32 v{u1}, v{u1}, v{u0}
v_bfe_u32 v{u2}, v0, 2, 4
v_lshlrev_b32 v{u3}, 3, v{t1}
v_lshl_add_u32 v{pa}, v{u1}, 4, v{u3}
v_lshl_add_u32 v{pa}, v{u2}, 6, v{pa}
s_lshl_b32 s{s_tmp}, s{s_H}, 11
s_add_u32 s{s_tmp}, s{s_tmp}, {ST}
v_add_u32 v{pa}, s{s_tmp}, v{pa}
v_xor_b32 v{u1}, v{t3}, v{NH}
v_lshl_add_u32 v{va}, v{u1}, 4, v{u3}
v_lshl_add_u32 v{va}, v{u2}, 5, v{va}
s_lshl_b32 s{s_tmp}, s{s_H}, 10
s_add_u32 s{s_tmp}, s{s_tmp}, {RB}
v_add_u32 v{va}, s{s_tmp}, v{va}''')
    kfill += L_(f'''v_lshlrev_b32 v{u0}, 5, v{CQ}
v_lshl_add_u32 v{u0}, v{NH}, 4, v{u0}
v_add_u32 v{u0}, 512, v{u0}
s_mov_b32 s{s_msk}, 0
s_mov_b32 s{s_msk+1}, -1
v_cndmask_b32 v{sa}, v{vL16}, v{u0}, s[{s_msk}:{s_msk+1}]
s_mul_i32 s{s_tmp}, s{s_hp}, {16*KVP_SZ}
s_mul_i32 s{s_tmp2}, s{s_w}, 640
s_add_u32 s{s_tmp}, s{s_tmp}, s{s_tmp2}
s_add_u32 s{s_so}, s{s_tmp}, {WS_KVP}
s_mul_i32 s{s_tmp}, s{s_rb}, {KVP_SZ}
s_add_u32 s{s_p1}, s{s_so}, s{s_tmp}
s_add_u32 s{s_so+1}, s{s_so}, {4*KVP_SZ}
s_add_u32 s{s_so+2}, s{s_so}, {8*KVP_SZ}
s_add_u32 s{s_so+3}, s{s_so}, {12*KVP_SZ}
v_mov_b32 v{vMask}, 0xfffefffe
v_bfe_u32 v{u0}, v0, 4, 2
v_mul_u32_u24 v{hA}, {KVP_SZ}, v{u0}
v_and_b32 v{u1}, 15, v0
v_lshl_add_u32 v{hA}, v{u1}, 4, v{hA}
v_bfe_u32 v{u1}, v0, 1, 2
v_lshl_add_u32 v{u1}, v{u1}, 2, v{u0}
v_mul_u32_u24 v{hZ}, {KVP_SZ}, v{u1}
v_and_b32 v{u1}, 1, v0
v_lshl_add_u32 v{hZ}, v{u1}, 4, v{hZ}
v_add_u32 v{hZ}, 512, v{hZ}
s_lshl2_add_u32 s{s_tmp}, s{s_rb}, s{s_w}
s_lshl4_add_u32 s{s_tmp}, s{s_tmp}, s{s_hp}
s_lshl_b32 s{s_pf}, s{s_tmp}, 4
s_add_u32 s{s_pf}, s{s_pf}, {WS_P2F}
s_lshl_b32 s{s_tmp}, s{s_tmp}, {12 if INP else 11}
s_add_u32 s{s_p2}, s{s_tmp}, {1024 if INP else WS_OX}
s_and_b32 s{s_tmp}, s{s_loc}, 3
s_lshl2_add_u32 s{s_rt}, s{s_xcd}, s{s_tmp}
s_lshr_b32 s{s_ct}, s{s_loc}, 2''')
    tagfill = [f'v_readfirstlane_b32 s{s_E1}, v{vEp}', 's_nop 0', f's_add_u32 s{s_E1}, s{s_E1}, 1']
    for j in range(4):
        tagfill += L_(f's_lshr_b32 s{s_tmp}, s{s_E1}, {2*j}\ns_and_b32 s{s_tmp2}, s{s_tmp}, 1\ns_and_b32 s{s_tmp}, s{s_tmp}, 2\ns_lshl_b32 s{s_tmp}, s{s_tmp}, 15\ns_or_b32 s{s_t+j}, s{s_tmp}, s{s_tmp2}')
    if opt.get('late12', 0): ext2(k1)
    p.ext(kfill)
    if opt.get('late12', 0): ext2(issue_k(2))
    def trpair(dst, addr, off, d2=256):
        return [f'ds_read_b64_tr_b16 {vr(dst,2)}, v{addr} offset:{off}', f'ds_read_b64_tr_b16 {vr(dst+2,2)}, v{addr} offset:{off+d2}']
    for c in range(8):
        p.wait_tok(f'wk{c}')
        if c == 0: stamp()
        stamp('k')
        for j in range(4): p(f'ds_read_b128 {vr(X+16*c+4*j,4)}, v{vSR+j} offset:{xslot(c)-RB}')
        p('s_barrier')
        for j in range(4): p.ext(trpair(WF+4*j, vTR, RA+4096*c+1024*j))
        if c == 1:
            p.ext(trpair(vA1, t5, 0))
        for j in range(4):
            p(f'v_mfma_f32_32x32x16_bf16 {vr(ACC0,16)}, {vr(WF+4*j,4)}, {vr(X+16*c+4*j,4)}, {"0" if (c==0 and j==0) else vr(ACC0,16)}')
        if c == 1:
            p(f's_mov_b32 s{s_msk}, 0x0f0f0f0f\ns_mov_b32 s{s_msk+1}, 0x0f0f0f0f')
            for j in range(4): p(f'v_cndmask_b32 v{vA2+j}, v{vA1+j}, 0, s[{s_msk}:{s_msk+1}]')
            for j in range(4): p(f'v_cndmask_b32 v{vA1+j}, 0, v{vA1+j}, s[{s_msk}:{s_msk+1}]')
            p.ext(tagfill)
        if c + 3 < 8: ext2(issue_k(c + 3))
        elif c == 5 or (c == 6 and not opt.get('v47late', 1)):
            for cc in range(4*(c-5), 4*(c-5)+4): ext2(issue_v(cc))
        elif c == 7 and opt.get('v47late', 1):
            for cc in range(4, 8): ext2(issue_v(cc))
    stamp(); stamp('k'); stamp('v')
    cap[0] = 0
    if opt.get('prioB'): p(f's_setprio {opt["prioB"]}')
    def phi_head(acc):
        L = [f'v_cvt_pk_bf16_f32 v{E+j}, v{acc+2*j}, v{acc+2*j+1}' for j in range(8)]
        L.insert(4, f'v_mfma_f32_32x32x16_bf16 {vr(P,16)}, {vr(vA1,4)}, {vr(E,4)}, 0')
        L.insert(4, L.pop(5)); L.insert(5, L.pop(6))
        L.append(f'v_mfma_f32_32x32x16_bf16 {vr(P,16)}, {vr(vA2,4)}, {vr(E+4,4)}, {vr(P,16)}')
        return L
    def phi_body(dst, normalize, wr=None):
        mx, mn = vT0, vT1
        L = [f'v_max3_f32 v{mx}, v{P}, v{P+1}, v{P+2}', f'v_min3_f32 v{mn}, v{P}, v{P+1}, v{P+2}']
        for j in range(3, 15, 2):
            L += [f'v_max3_f32 v{mx}, v{mx}, v{P+j}, v{P+j+1}', f'v_min3_f32 v{mn}, v{mn}, v{P+j}, v{P+j+1}']
        L += [f'v_max_f32 v{mx}, v{mx}, v{P+15}', f'v_min_f32 v{mn}, v{mn}, v{P+15}']
        L += [f'v_mul_f32 v{mx}, 0xbfb8aa3b, v{mx}', f'v_mul_f32 v{mn}, {hex(LOG2E)}, v{mn}']
        fm = [f'v_fma_f32 v{E+j}, v{P+j}, s{s_c}, v{mx}' for j in range(16)] + [f'v_fma_f32 v{E+16+j}, v{P+j}, -s{s_c}, v{mn}' for j in range(16)]
        ex = [f'v_exp_f32 v{E+j}, v{E+j}' for j in range(32)]
        L += fm[:2]
        for j in range(32):
            if j + 2 < 32: L.append(fm[j+2])
            L.append(ex[j])
        if normalize:
            for b in range(2):
                for j in range(4): L.append(f'v_add_f32 v{P+4*b+j}, v{E+16*b+j}, v{E+16*b+4+j}')
            for k in (8, 12):
                for b in range(2):
                    for j in range(4): L.append(f'v_add_f32 v{P+4*b+j}, v{P+4*b+j}, v{E+16*b+k+j}')
            for b in range(2):
                for j in range(2): L.append(f'v_add_f32 v{P+4*b+j}, v{P+4*b+j}, v{P+4*b+2+j}')
            for b in range(2): L.append(f'v_add_f32 v{P+4*b}, v{P+4*b}, v{P+4*b+1}')
            L += [f'v_rcp_f32 v{mx}, v{P}', f'v_rcp_f32 v{mn}, v{P+4}']
            for j in range(1, 4): L.append(f'v_xor_b32 v{P+8+j}, {16*j}, v{a0}')
            for g in range(4):
                for j in range(8): L.append(f'v_mul_f32 v{E+8*g+j}, v{E+8*g+j}, v{mx if g < 2 else mn}')
                for j in range(4): L.append(f'v_cvt_pk_bf16_f32 v{dst+4*g+j}, v{E+8*g+2*j}, v{E+8*g+2*j+1}')
                L.append(f'ds_write_b128 v{a0 if g == 0 else P+8+g}, {vr(dst+4*g,4)}')
        else:
            for j in range(16): L.append(f'v_cvt_pk_bf16_f32 v{dst+j}, v{E+2*j}, v{E+2*j+1}')
        return L
    PRE = opt.get('pre', 4)
    def gemm_slots(acc, addr, offf, events={}):
        def rd(n):
            c, j = n >> 2, n & 3
            L = list(events.get(c, [])) if j == 0 else []
            return L + trpair(WF+4*(n % NSL), addr, offf(c, j))
        pro = []
        for n in range(PRE): pro += rd(n)
        slots = []
        for n in range(32):
            c, j = n >> 2, n & 3
            sl = [f'v_mfma_f32_32x32x16_bf16 {vr(acc,16)}, {vr(WF+4*(n%NSL),4)}, {vr(X+16*c+4*j,4)}, {"0" if n==0 else vr(acc,16)}']
            if n+PRE < 32: sl += rd(n+PRE)
            slots.append(sl)
        return pro, slots
    p.ext(phi_head(ACC0))
    body = phi_body(ACC0, True)
    vg = opt.get('vgrp', 2)
    ev = {c: [('waittok', f'wv{c+vg-1}'), 's_barrier'] for c in range(0, 8, vg)}
    ev[0] = [('waittok', f'wv{vg-1}'), 's_barrier', f'v_subrev_u32 v{vWg}, 1024, v{vWg}']
    pro, slots = gemm_slots(ACC1, vTRv, lambda c, j: RB + 16384*(c >> 2) + 4096*j + 1024*(c & 3), ev)
    wq = [('dma', f's_add_u32 m0, s{s_m0b}, {RA+4096*c}', f'buffer_load_dwordx4 v{vWg}, s[{sW}:{sW+3}], s{s_wo+c} offen {LD} lds', f'wq{c}') for c in range(8)]
    stamp('v')
    ext2(pro)
    nhead = opt.get('phik_head', 8)
    p.ext(body[:nhead]); rest = body[nhead:]
    stamp('v')
    pfw = []
    if opt.get('pfwo', 0):
        pfw = [f'v_and_b32 v{vEp}, 31, v0', f'v_lshlrev_b32 v{vEp}, 7, v{vEp}', f's_lshl2_add_u32 s3, s{s_loc}, s{s_w}', 's_lshl_b32 s3, s3, 12',
               f'buffer_load_dword v{vEp}, v{vEp}, s[{sO}:{sO+3}], s3 offen']
    if opt.get('oxt') not in (None, 'none'):
        if INP:
            pfw = [f'v_bfe_u32 v{vEp}, v0, 3, 1', f'v_lshlrev_b32 v{vEp}, 4, v{vEp}', f'v_and_or_b32 v{vEp}, v0, 7, v{vEp}', f'v_lshlrev_b32 v{vEp}, 7, v{vEp}',
                   f'buffer_load_dword v{vEp}, v{vEp}, s[{sOUT}:{sOUT+3}], s{s_p2} offen']
        else:
            pfw = [f'v_and_b32 v{vEp}, 15, v0', f'v_lshlrev_b32 v{vEp}, 7, v{vEp}', f'buffer_load_dword v{vEp}, v{vEp}, s[{sWS}:{sWS+3}], s{s_p2} offen']
        opt['pfwo_at'] = opt['oxt']
    sl = slotted(slots, [(rest, 0, opt.get('phik_last', 31)), (wq, opt.get('wq_at', 2), opt.get('wq_end', 16)), (pfw, opt.get('pfwo_at', 18), opt.get('pfwo_at', 18)+1)])
    if opt.get('stampset') == 'v':
        mi = [k for k, x in enumerate(sl) if isinstance(x, str) and x.startswith('v_mfma')]
        prev = 0
        for k in (mi[8], mi[16], mi[24]):
            ext2(sl[prev:k]); stamp('v'); prev = k
        ext2(sl[prev:])
    else: ext2(sl)
    stamp(); stamp('v')
    VB = E; ONES = P
    p(f'v_xor_b32 v{P+4}, 16, v{b0}')
    for j in range(4): p(f'v_mov_b32 v{ONES+j}, 0x3f803f80')
    for j in range(8):
        p(f'v_cvt_pk_bf16_f32 v{VB+j}, v{ACC1+2*j}, v{ACC1+2*j+1}')
        if j == 3: p(f'ds_write_b128 v{b0}, {vr(VB,4)}')
    p(f'ds_write_b128 v{P+4}, {vr(VB+4,4)}')
    p('s_waitcnt lgkmcnt(0)\ns_barrier')
    stamp('v')
    KV, Z, R0 = P+8, P+12, E+8
    FRG = ACC0
    for ks in range(4):
        p.ext(trpair(FRG+8*ks, pa, 4096*ks, 1024)); p.ext(trpair(FRG+8*ks+4, va, 4096*ks, 512))
    if GRP: p(f'buffer_load_dwordx4 {vr(PA,4)}, v{hZ}, s[{sWS}:{sWS+3}], s{s_so} offen sc1')
    for ks in range(4):
        p(f'v_mfma_f32_16x16x32_bf16 {vr(Z,4)}, {vr(FRG+8*ks,4)}, {vr(ONES,4)}, {"0" if ks==0 else vr(Z,4)}')
        p(f'v_mfma_f32_16x16x32_bf16 {vr(KV,4)}, {vr(FRG+8*ks,4)}, {vr(FRG+8*ks+4,4)}, {"0" if ks==0 else vr(KV,4)}')
    p(f's_mov_b32 s{s_rdy}, 0\ns_mov_b32 s{s_sp}, 0')
    p(f'v_cvt_pk_bf16_f32 v{R0+2}, v{Z}, v{Z+1}\nv_cvt_pk_bf16_f32 v{R0+3}, v{Z+2}, v{Z+3}')
    p(f'v_cvt_pk_bf16_f32 v{R0}, v{KV}, v{KV+1}\nv_cvt_pk_bf16_f32 v{R0+1}, v{KV+2}, v{KV+3}')
    p(f'v_permlane32_swap_b32 v{R0}, v{R0+2}\nv_permlane32_swap_b32 v{R0+1}, v{R0+3}')
    for j in range(4): p(f'v_and_or_b32 v{R0+j}, v{R0+j}, v{vMask}, s{s_t+j}')
    p(f's_mov_b32 exec_hi, 0x000f000f')
    p(f'buffer_store_dwordx4 {vr(R0,4)}, v{sa}, s[{sWS}:{sWS+3}], s{s_p1} offen sc1')
    p(f's_mov_b32 exec_hi, -1')
    stamp(); stamp('v'); stamp('q')
    if opt.get('skew'):
        if opt['skew'] == 'pub1': p('s_memrealtime s[78:79]\ns_waitcnt lgkmcnt(0)')
        p(f'v_mov_b32 v{E+20}, s78\ns_lshl_b32 s98, s2, 2\nv_mov_b32 v{E+21}, s98\ns_mov_b32 s98, {WS_STAMP}')
        p(f'buffer_store_dword v{E+20}, v{E+21}, s[{sWS}:{sWS+3}], s98 offen sc1')
    p.wait_tok('wq7')
    p('s_barrier')
    if LOC2:
        p(f's_cmp_lg_u32 s{s_w}, 0\ns_cbranch_scc1 B_NOBF')
        p(f'v_mov_b32 v{E+12}, s{s_E1}\nv_mov_b32 v{E+13}, s{s_xcc}\nv_mov_b32 v{E+14}, 0\ns_lshl_b32 s{s_tmp}, s{s_xcd}, 5\ns_add_u32 s{s_tmp}, s{s_tmp}, s{s_loc}\ns_lshl_b32 s{s_tmp}, s{s_tmp}, 4\ns_add_u32 s{s_tmp}, s{s_tmp}, {WS_BF}\ns_mov_b64 exec, 1')
        p(f'buffer_store_dwordx2 {vr(E+12,2)}, v{E+14}, s[{sWS}:{sWS+3}], s{s_tmp} offen sc1', tok='nocount')
        p('s_mov_b64 exec, -1\nB_NOBF:')
    stamp('q')
    pro, slots = gemm_slots(ACC0, vTR, lambda c, j: RA + 4096*c + 1024*j)
    ext2(pro)
    cA, cD = E+2, E+4
    fillc = (L_(f'''s_mul_i32 s{s_tmp}, s{s_H}, 1600
s_mul_i32 s{s_tmp2}, s{s_F}, 80
s_add_u32 s{s_tmp}, s{s_tmp}, s{s_tmp2}
s_add_u32 s{s_tmp3}, s{s_tmp}, {KT+16*80}
v_bfe_u32 v{cA}, v0, 2, 4
v_mul_u32_u24 v{cA}, 160, v{cA}
v_add_u32 v{cA}, s{s_tmp3}, v{cA}
s_mov_b64 s[{s_msk}:{s_msk+1}], 0xf00
v_mov_b32 v{cD}, {ZERO}
v_cndmask_b32 v{cA}, v{cA}, v{cD}, s[{s_msk}:{s_msk+1}]
v_and_b32 v{cD}, 3, v0
v_lshl_add_u32 v{cA}, v{cD}, 4, v{cA}
s_lshl_b32 s{s_tmp2}, s{s_F}, 1
s_lshl_b32 s{s_msk}, 3, s{s_tmp2}
v_mov_b32 v{cD+1}, 0x3f803f80
v_cndmask_b32 v{cD}, 0, v{cD+1}, s[{s_msk}:{s_msk+1}]
v_mov_b32 v{cD+1}, v{cD}
v_mov_b32 v{cD+2}, v{cD}
v_mov_b32 v{cD+3}, v{cD}
''') + [f's_mov_b64 exec, 0xfff\nds_write_b128 v{cA}, {vr(cD,4)}\ns_mov_b64 exec, -1'])
    if not opt.get('cfill'): p.ext(fillc); fillc = []
    SEL = ACC1
    tK, tZ, aN, aX, zc = ACC1+8, ACC1+9, ACC1+10, ACC1+11, ACC1+12
    w0, w1, w2 = ACC1+13, ACC1+14, ACC1+15
    vOg = vWg
    s_r8 = s_xo
    fill = []
    fill0 = []
    fill0 += L_(f'''v_bfe_u32 v{w0}, v0, 4, 1
v_lshlrev_b32 v{w0}, 2, v{w0}
v_and_b32 v{w1}, 7, v0
v_xor_b32 v{w0}, v{w0}, v{w1}
v_lshlrev_b32 v{w0}, 4, v{w0}
v_lshrrev_b32 v{w1}, 3, v0
v_lshl_add_u32 v{w0}, v{w1}, 10, v{w0}
s_lshl_b32 s{s_tmp2}, s{s_ct}, 7
v_add_u32 v{vOg}, s{s_tmp2}, v{w0}''')
    for n in range(8): fill0 += L_(f's_add_u32 s{s_r8+n}, s{s_ct}, {n}\ns_and_b32 s{s_r8+n}, s{s_r8+n}, 7')
    fill = fillc + L_(f'''v_and_b32 v{w0}, 1, v0
v_lshlrev_b32 v{w0}, 4, v{w0}
v_mov_b32 v{w1}, 0x3f80
v_lshlrev_b32 v{w0}, v{w0}, v{w1}
v_bfe_u32 v{w1}, v0, 1, 3''')
    mk = [(s_msk, s_msk+1), (6, 7)]
    for j in range(0, 8, 2):
        fill += [f'v_cmp_eq_u32 s[{mk[0][0]}:{mk[0][1]}], {j}, v{w1}', f'v_cmp_eq_u32 s[{mk[1][0]}:{mk[1][1]}], {j+1}, v{w1}', f's_nop 0',
                 f'v_cndmask_b32 v{SEL+j}, 0, v{w0}, s[{mk[0][0]}:{mk[0][1]}]', f'v_cndmask_b32 v{SEL+j+1}, 0, v{w0}, s[{mk[1][0]}:{mk[1][1]}]']
    fill += L_(f'''v_bfe_u32 v{w0}, v0, 4, 1
v_bfe_u32 v{w1}, v0, 5, 1
v_lshl_add_u32 v{w2}, v{w0}, 1, v{w1}
v_and_b32 v{tK}, 15, v0
v_mul_u32_u24 v{tK}, 80, v{tK}
v_lshl_add_u32 v{tK}, v{w2}, 3, v{tK}
s_lshl_b32 s{s_tmp2}, s{s_F}, 5
s_add_u32 s{s_tmp}, s{s_tmp}, s{s_tmp2}
s_add_u32 s{s_tmp3}, s{s_tmp}, {KT+18*80}
v_and_b32 v{w2}, 1, v0
v_lshl_add_u32 v{w2}, v{w0}, 1, v{w2}
v_lshlrev_b32 v{tZ}, 3, v{w2}
v_add_u32 v{tZ}, s{s_tmp3}, v{tZ}
s_mul_i32 s{s_tmp2}, s{s_F}, 80
s_sub_u32 s{s_tmp}, s{s_tmp}, s{s_tmp2}
s_add_u32 s{s_tmp}, s{s_tmp}, {KT}
v_add_u32 v{tK}, s{s_tmp}, v{tK}
v_bfe_u32 v{w0}, v0, 3, 2
v_and_b32 v{w2}, 3, v0
v_lshl_add_u32 v{w0}, v{w0}, 2, v{w2}
v_mul_u32_u24 v{aN}, 80, v{w0}
v_mul_u32_u24 v{w1}, 1600, v{w1}
v_add_u32 v{w1}, {KT}, v{w1}
v_add_u32 v{aN}, v{aN}, v{w1}
v_mul_u32_u24 v{aX}, 80, v{w2}
v_add_u32 v{aX}, v{aX}, v{w1}
v_add_u32 v{aX}, {16*80}, v{aX}
v_mov_b32 v{w0}, {ZERO}
s_mov_b32 s{s_msk}, 0x0f0f0f0f
s_mov_b32 s{s_msk+1}, 0xf0f0f0f0
v_cndmask_b32 v{aN}, v{w0}, v{aN}, s[{s_msk}:{s_msk+1}]
s_mov_b32 s{s_msk}, 0x0000000f
s_mov_b32 s{s_msk+1}, 0x000000f0
v_cndmask_b32 v{aX}, v{w0}, v{aX}, s[{s_msk}:{s_msk+1}]''')
    def wo_dma(half):
        return [('dma', f's_lshl_b32 s3, s{s_r8+n}, 15\n' + (f's_add_u32 s3, s3, 0x40000\n' if half else '') + f's_add_u32 m0, s{s_m0b}, {(RB if half==0 else RA)+4096*n}',
                 f'buffer_load_dwordx4 v{vOg}, s[{sO}:{sO+3}], s3 offen lds', f'wo{half}_{n}') for n in range(8)]
    HZ, HK = E+12, X
    HZ = X + 32 if not GRP else PA
    def z_load(): return f'buffer_load_dwordx4 {vr(HZ,4)}, v{hZ}, s[{sWS}:{sWS+3}], s{s_so} offen sc1'
    def kv_list():
        return [f'buffer_load_dwordx4 {vr(HK+8*m+4*st,4)}, v{hA}, s[{sWS}:{sWS+3}], s{s_so+m} offen offset:{256*st} sc1' for m in range(4) for st in range(2)]
    HF = X + 36
    def bf_load(): return f'buffer_load_dwordx2 {vr(HF,2)}, v{sa}, s[{sWS}:{sWS+3}], s{s_p1} offen sc1'
    if LOC2: fill += L_(f'v_and_b32 v{sa}, 0x1f0, v{vL16}\ns_lshl_b32 s{s_p1}, s{s_xcd}, 9\ns_add_u32 s{s_p1}, s{s_p1}, {WS_BF}')
    def z_check():
        return [f'v_xor_b32 v{zc}, s{s_t}, v{HZ}'] + [f'v_bitop3_b32 v{zc}, v{zc}, v{HZ+j}, s{s_t+j} bitop3:0xf6' for j in range(1, 4)] + [f'v_and_b32 v{zc}, 0x00010001, v{zc}', f'v_cmp_ne_u32 vcc, 0, v{zc}']
    zat = opt.get('z_at', 10); h1 = opt.get('h1_at', 30)
    assert zat >= 9
    def go_block():
        L = kv_list() + ([bf_load()] if LOC2 else []) + [f's_mov_b32 s{s_rdy}, 1']
        return L
    cpn = [0]
    gcn = [0]
    def gcheck(wait, final=False):
        k = gcn[0]; gcn[0] += 1
        p(f's_cmp_eq_u32 s{s_rdy}, 15\ns_cbranch_scc1 B_GC{k}')
        if wait: p('s_waitcnt vmcnt(0)')
        p.ext(z_check())
        p(f's_or_b32 s3, vcc_lo, vcc_hi')
        kl = kv_list()
        for g in range(4):
            p(f's_bitcmp1_b32 s{s_rdy}, {g}\ns_cbranch_scc1 B_GD{k}_{g}\ns_and_b32 s17, s3, {hex(0x03030303 << (2*g))}\ns_cbranch_scc1 B_GD{k}_{g}')
            p(kl[2*g], tok='nocount'); p(kl[2*g+1], tok='nocount')
            p(f's_bitset1_b32 s{s_rdy}, {g}\nB_GD{k}_{g}:')
        p(f's_cmp_eq_u32 s{s_rdy}, 15\ns_cbranch_scc1 B_GE{k}')
        p(z_load(), tok='nocount')
        if final:
            p(f's_add_u32 s{s_sp}, s{s_sp}, 1\ns_cmp_gt_u32 s{s_sp}, {SPIN_MAX}\ns_cbranch_scc0 B_GLOOP')
        p(f'B_GE{k}:\nB_GC{k}:')
    def checkpoint(first=False):
        if GRP: return gcheck(True)
        k = cpn[0]; cpn[0] += 1
        if not first: p(f's_cmp_lg_u32 s{s_rdy}, 0\ns_cbranch_scc1 B_CP{k}\ns_waitcnt vmcnt(0)')
        p.ext(z_check())
        p(f's_cbranch_vccz B_CPGO{k}')
        p(z_load(), tok='nocount')
        p(f'B_CP{k}:')
    stamp('q')
    WOP = opt.get('woplan', 0)
    zl = [([z_load()], zat, zat)] if not GRP else []
    DIR = opt.get('h1direct', 0)
    if DIR:
        h1 = 32; zl = [([z_load()] + go_block(), DIR, 31)]
    if WOP == 1:
        sq = slotted(slots[:h1], [(fill0, 0, 1), (wo_dma(0), 2, zat-1), (fill, 2, h1-1)] + zl)
    elif WOP == 2:
        na = opt.get('wo_a', 4)
        sq = slotted(slots[:h1], [(fill0, 0, 1), (wo_dma(0)[:na], 2, 2+na), (fill, 2, h1-1)] + zl)
    else:
        sq = slotted(slots[:h1], [(fill0 + fill, 0, h1-1)] + zl)
    if GRP:
        ga = opt.get('ga_at', 9)
        mi = [k for k, x in enumerate(sq) if isinstance(x, str) and x.startswith('v_mfma')]
        ext2(sq[:mi[ga]]); gcheck(False); ext2(sq[mi[ga]:])
    else: ext2(sq)
    stamp('q')
    if not opt.get('nocp0') and not DIR: checkpoint(True)
    stamp('q')
    ext2(slotted(slots[h1:], []))
    stamp(); stamp('q')
    EQ = X + 48
    hd = phi_head(ACC0); bd = phi_body(EQ, False)
    if WOP == 1: p('s_barrier')
    ext2(hd)
    nw1 = opt.get('wo1_early', 4) if WOP == 1 else 0
    cps = [int(x) for x in str(opt.get('cps', '60')).split('-') if x != '']
    prev = 0
    for c in ([] if DIR else cps):
        ext2(bd[prev:c]); checkpoint(); prev = c
    if GRP and LOC2: p(bf_load())
    ext2(interleave(bd[prev:], wo_dma(1)[:nw1]) if nw1 else bd[prev:])
    stamp(); stamp('q')
    chk = zc
    DZ, DK = P, P+4
    if DIR:
        p.ext(z_check()); p('s_cbranch_vccnz B_H1_POLLZ')
    elif GRP:
        p('B_GLOOP:'); gcheck(True, True); p('s_waitcnt vmcnt(0)')
    else: p(f's_cmp_eq_u32 s{s_rdy}, 0\ns_cbranch_scc1 B_H1_POLL')
    p('B_H1_CHK:')
    p.assume_clean()
    if not GRP: p.pretend(kv_list() + ([bf_load()] if LOC2 else []), [None]*9)
    if WOP == 1:
        wo0 = wo_dma(1)[nw1:] + [None]*8
    elif WOP == 2: wo0 = wo_dma(0)[na:] + [None]*8
    else: wo0 = wo_dma(0)
    p(f'v_mfma_f32_16x16x32_bf16 {vr(DZ,4)}, {vr(SEL,4)}, {vr(HZ,4)}, 0')
    for n in range(8):
        p(f'v_mfma_f32_16x16x32_bf16 {vr(DK,4)}, {vr(SEL+4*(n&1),4)}, {vr(HK+4*n,4)}, {"0" if n==0 else vr(DK,4)}')
        for j in range(4):
            if n == 0 and j == 0: p(f'v_xor_b32 v{chk}, s{s_t}, v{HK}')
            else: p(f'v_bitop3_b32 v{chk}, v{chk}, v{HK+4*n+j}, s{s_t+j} bitop3:0xf6')
        if wo0[n]: ext2([wo0[n]])
        if n == 1:
            for j in range(4): p(f'v_add_f32_dpp v{DZ+j}, v{DZ+j}, v{DZ+j} row_ror:2 row_mask:0xf bank_mask:0xf')
        if n == 2:
            for j in range(4): p(f'v_add_f32_dpp v{DZ+j}, v{DZ+j}, v{DZ+j} row_ror:4 row_mask:0xf bank_mask:0xf')
        if n == 3:
            p(f'v_cvt_pk_bf16_f32 v{DZ}, v{DZ}, v{DZ+1}\nv_cvt_pk_bf16_f32 v{DZ+1}, v{DZ+2}, v{DZ+3}')
            p('s_mov_b64 exec, 0x00030003')
            p(f'ds_write_b64 v{tZ}, {vr(DZ,2)}')
            p('s_mov_b64 exec, -1')
    p(f'v_and_b32 v{chk}, 0x00010001, v{chk}')
    p(f'v_cmp_ne_u32 vcc, 0, v{chk}')
    p('s_cbranch_vccnz B_H1_RETRY')
    p('B_H1_OK:')
    stamp('q')
    p(f'v_cvt_pk_bf16_f32 v{DK}, v{DK}, v{DK+1}\nv_cvt_pk_bf16_f32 v{DK+1}, v{DK+2}, v{DK+3}')
    p(f'ds_write_b64 v{tK}, {vr(DK,2)}')
    if LOC2:
        p(f'v_xor_b32 v{HF}, s{s_E1}, v{HF}\nv_xor_b32 v{HF+1}, s{s_xcc}, v{HF+1}\nv_or_b32 v{HF}, v{HF}, v{HF+1}\nv_cmp_ne_u32 vcc, 0, v{HF}')
        p(f's_or_b32 s{s_mode}, vcc_lo, vcc_hi')
        if opt.get('slowB'): p(f's_mov_b32 s{s_mode}, 1')
    p('s_waitcnt lgkmcnt(0)\ns_barrier')
    stamp(); stamp('q'); stamp('g')
    OFR = X
    for j in range(4): p(f'ds_read_b128 {vr(OFR+4*j,4)}, v{aX} offset:{16*j}')
    for j in range(4): p(f'ds_read_b128 {vr(OFR+16+4*j,4)}, v{aN} offset:{16*j}')
    AUX, NP, NM = P, ACC0, ACC1
    om = [f'v_mfma_f32_32x32x16_bf16 {vr(AUX,16)}, {vr(OFR+4*j,4)}, {vr(EQ+4*j,4)}, {"0" if j==0 else vr(AUX,16)}' for j in range(4)]
    om += [f'v_mfma_f32_32x32x16_bf16 {vr(NP,16)}, {vr(OFR+16+4*j,4)}, {vr(EQ+4*j,4)}, {"0" if j==0 else vr(NP,16)}' for j in range(2)]
    om += [f'v_mfma_f32_32x32x16_bf16 {vr(NM,16)}, {vr(OFR+16+4*j,4)}, {vr(EQ+4*j,4)}, {"0" if j==2 else vr(NM,16)}' for j in range(2, 4)]
    pl = WF; POL = WF + 2; FLG = WF + 6
    if INP:
        pre2 = L_(f"""s_lshl2_add_u32 s{s_tmp}, s{s_rt}, s{s_w}
s_lshl_b32 s{s_so+1}, s{s_tmp}, 7
s_add_u32 s{s_so+1}, s{s_so+1}, {WS_P2F}
s_lshl_b32 s{s_tmp}, s{s_tmp}, 15
s_add_u32 s{s_so}, s{s_tmp}, 1024
v_and_b32 v{pl}, 0x70, v{vL16}
v_mov_b32 v{pl+1}, 0
v_mov_b32 v{FLG}, s{s_E1}""")
    else:
        pre2 = L_(f"""s_lshl2_add_u32 s{s_tmp}, s{s_rt}, s{s_w}
s_lshl_b32 s{s_tmp}, s{s_tmp}, 14
s_add_u32 s{s_so}, s{s_tmp}, {WS_OX}
v_and_b32 v{pl}, 7, v0
v_lshlrev_b32 v{pl}, 11, v{pl}
v_add_u32 v{pl}, 2032, v{pl}""")
    if WOP == 2:
        w1 = wo_dma(1); ext2(w1[:1]); ext2(pre2)
        for k, m in enumerate(om):
            p(m)
            if k < 7: ext2([w1[k+1]])
    else:
        ext2(pre2); p.ext(om)
    def poll2():
        if INP: return f'buffer_load_dword v{POL}, v{pl}, s[{sWS}:{sWS+3}], s{s_so+1} offen sc1'
        return f'buffer_load_dwordx4 {vr(POL,4)}, v{pl}, s[{sWS}:{sWS+3}], s{s_so} offen sc1'
    tmn = [0]
    def two_mode(st, plain=''):
        k = tmn[0]; tmn[0] += 1
        p(f's_cmp_eq_u32 s{s_mode}, 0\ns_cbranch_scc1 B_TMa{k}')
        p(st + ' sc1', tok='nocount'); p(f's_branch B_TMb{k}\nB_TMa{k}:'); p(st + ' ' + plain); p(f'B_TMb{k}:')
    def flag_store(soff):
        p('s_mov_b64 exec, 1'); two_mode(f'buffer_store_dword v{FLG}, v{pl+1}, s[{sWS}:{sWS+3}], s{soff} offen'); p('s_mov_b64 exec, -1')
    PF = opt.get('pollfirst', 0)
    c0 = E
    p(f'v_rcp_f32 v{c0}, v{AUX}\nv_rcp_f32 v{c0+1}, v{AUX+1}')
    p(f'v_mul_f32 v{c0+2}, v{AUX+2}, v{c0}\nv_fma_f32 v{c0+2}, v{AUX+3}, v{c0+1}, v{c0+2}\nv_add_f32 v{c0+2}, 0x358637bd, v{c0+2}')
    p(f'v_rcp_f32 v{c0+2}, v{c0+2}')
    p(f'v_mul_f32 v{c0}, v{c0}, v{c0+2}\nv_mul_f32 v{c0+1}, v{c0+1}, v{c0+2}')
    OB = E+16
    for hh in range(2):
        for j in range(8*hh, 8*hh+8): p(f'v_mul_f32 v{NP+j}, v{NP+j}, v{c0}')
        for j in range(8*hh, 8*hh+8): p(f'v_fmac_f32 v{NP+j}, v{NM+j}, v{c0+1}')
        for j in range(4*hh, 4*hh+4): p(f'v_cvt_pk_bf16_f32 v{OB+j}, v{NP+2*j}, v{NP+2*j+1}')
        if not INP:
            for j in range(4*hh, 4*hh+4): p(f'v_and_or_b32 v{OB+j}, v{OB+j}, v{vMask}, s{s_t+(j&3)}')
        if PF == 1 + hh: p(poll2())
        st = f'buffer_store_dwordx4 {vr(OB+4*hh,4)}, v{vL16}, s[{sWS}:{sWS+3}], s{s_p2} offen offset:{1024*hh}'
        if INP: st = f'buffer_store_dwordx4 {vr(OB+4*hh,4)}, v{vL16}, s[{sOUT}:{sOUT+3}], s{s_p2} offen offset:{2048*hh}'
        if LOC2: two_mode(st, str(opt.get('oflag', '')))
        else: p(st + ' sc1')
        if opt.get('dupst'): p(f's_add_u32 s3, s{s_p2}, 0x400000'); p(st.replace(f's{s_p2} offen', 's3 offen'))
    stamp(); stamp('g')
    setup = []
    wa, wb, oa, xw, xr = E, E+1, E+3, E+6, E+7
    chk = E+8
    setup += L_(f'''v_bfe_u32 v{E+4}, v0, 2, 2
v_bfe_u32 v{E+5}, v0, 5, 1
v_lshl_add_u32 v{E+9}, v{E+5}, 4, v{E+4}
v_lshlrev_b32 v{wa}, 7, v{E+9}
v_lshrrev_b32 v{E+4}, 1, v{E+4}
v_xor_b32 v{E+4}, s{s_F}, v{E+4}
v_lshl_add_u32 v{wa}, v{E+4}, 6, v{wa}
v_and_b32 v{E+4}, 63, v{vTRv}
v_add_u32 v{wa}, v{wa}, v{E+4}
s_xor_b32 s{s_tmp3}, s{s_F}, 1
s_lshl_b32 s{s_tmp3}, s{s_tmp3}, 15
v_add_u32 v{wa}, s{s_tmp3}, v{wa}
v_xor_b32 v{wb}, 64, v{wa}
v_and_b32 v{E+4}, 31, v0
v_lshlrev_b32 v{E+5}, 5, v{E+5}
v_lshl_add_u32 v{oa}, v{E+4}, 11, v{E+5}
s_lshl1_add_u32 s{s_tmp}, s{s_rt}, s{s_H}
s_lshl_b32 s{s_tmp}, s{s_tmp}, 16
s_lshl1_add_u32 s{s_tmp3}, s{s_ct}, s{s_F}
s_lshl_b32 s{s_tmp3}, s{s_tmp3}, 6
s_add_u32 s{s_oo}, s{s_tmp}, s{s_tmp3}
s_add_u32 s{s_oo}, s{s_oo}, 1024
s_add_u32 s{s_tmp}, s{s_st}, {ST}
s_xor_b32 s{s_tmp3}, s{s_st}, 4096
s_add_u32 s{s_tmp3}, s{s_tmp3}, {ST}
v_add_u32 v{xw}, s{s_tmp}, v{vL16}
v_add_u32 v{xr}, s{s_tmp3}, v{vL16}''')
    e2w, e2r = E+10, E+12
    E3 = opt.get('e3', 0)
    e3k, e3s, e3r = E+12, E+16, E+20
    if E3:
        assert INP
        setup = [x for x in setup if not any(f'v{r},' in x.split(',')[0] + ',' for r in (oa, xw, xr)) and f's{s_oo},' not in x.split(',')[0] + ',']
        setup += L_(f"""v_and_b32 v{E+4}, 31, v0
v_bfe_u32 v{E+5}, v0, 5, 1
v_lshlrev_b32 v{E+5}, 2, v{E+5}
v_and_b32 v{E+9}, 7, v0
v_xor_b32 v{E+5}, v{E+5}, v{E+9}
v_lshlrev_b32 v{E+5}, 4, v{E+5}
v_lshl_add_u32 v{E+5}, v{E+4}, 7, v{E+5}
v_add_u32 v{e3k}, s{s_st}, v{E+5}
v_xor_b32 v{e3k+1}, 16, v{e3k}
v_xor_b32 v{e3k+2}, 32, v{e3k}
v_xor_b32 v{e3k+3}, 48, v{e3k}
v_add_u32 v{e3s}, {ST-RA}, v{e3k}
v_add_u32 v{e3s+1}, {ST-RA}, v{e3k+1}
v_add_u32 v{e3s+2}, {ST-RA}, v{e3k+2}
v_add_u32 v{e3s+3}, {ST-RA}, v{e3k+3}
v_lshrrev_b32 v{E+4}, 3, v0
v_and_b32 v{E+5}, 3, v0
v_lshlrev_b32 v{E+5}, 1, v{E+5}
v_bfe_u32 v{E+10}, v0, 3, 3
v_xor_b32 v{E+5}, v{E+5}, v{E+10}
v_lshlrev_b32 v{E+5}, 4, v{E+5}
v_lshl_add_u32 v{E+5}, v{E+4}, 7, v{E+5}
v_bfe_u32 v{E+10}, v0, 2, 1
v_lshl_add_u32 v{e3r}, v{E+10}, 12, v{E+5}
v_xor_b32 v{e3r+1}, 16, v{e3r}
v_xor_b32 v{e3r+2}, {4096+ST}, v{e3r}
v_xor_b32 v{e3r+3}, 16, v{e3r+2}
v_lshlrev_b32 v{E+9}, 4, v{E+9}
v_lshl_add_u32 v{oa}, v{E+4}, 11, v{E+9}
s_lshl_b32 s{s_tmp}, s{s_rt}, 17
s_lshl_b32 s{s_tmp3}, s{s_ct}, 7
s_add_u32 s{s_oo}, s{s_tmp}, s{s_tmp3}
s_add_u32 s{s_oo}, s{s_oo}, 1024
s_add_u32 s{s_tmp2}, s{s_oo}, 65536
s_lshl_b32 s{s_tmp3}, s{s_ct}, 2
s_lshl_b32 s{s_msk}, 15, s{s_tmp3}""")
    elif opt.get('e2'):
        setup += L_(f"""v_and_b32 v{E+4}, 31, v0
v_bfe_u32 v{E+5}, v0, 5, 1
s_lshl_b32 s{s_tmp}, s{s_F}, 2
v_lshl_add_u32 v{E+5}, v{E+5}, 1, s{s_tmp}
v_and_b32 v{E+9}, 7, v0
v_xor_b32 v{E+5}, v{E+5}, v{E+9}
v_lshlrev_b32 v{E+5}, 4, v{E+5}
v_lshl_add_u32 v{E+5}, v{E+4}, 7, v{E+5}
s_lshl_b32 s{s_tmp}, s{s_H}, 12
v_add_u32 v{e2w}, s{s_tmp}, v{E+5}
v_xor_b32 v{e2w+1}, 16, v{e2w}
v_lshlrev_b32 v{e2r}, 4, v0
v_bfe_u32 v{E+4}, v0, 3, 3
v_xor_b32 v{E+4}, v{E+4}, v{E+9}
v_lshlrev_b32 v{E+4}, 4, v{E+4}
v_lshrrev_b32 v{E+5}, 3, v0
v_lshl_add_u32 v{oa}, v{E+5}, 11, v{E+4}
s_lshl_b32 s{s_tmp}, s{s_rt}, 17
s_lshl_b32 s{s_tmp3}, s{s_ct}, 7
s_add_u32 s{s_oo}, s{s_tmp}, s{s_tmp3}
s_add_u32 s{s_oo}, s{s_oo}, 1024
s_add_u32 s{s_tmp2}, s{s_oo}, 65536""")
    if INP:
        ext2(setup)
        p('s_waitcnt vmcnt(0)')
        flag_store(s_pf)
        if WOP == 0: ext2(wo_dma(1))
    else:
        ext2(setup if WOP >= 1 else interleave(setup, wo_dma(1)))
    if opt.get('pollwait'): p('s_waitcnt vmcnt(0)')
    for n in range(8): p(f's_lshl_b32 s{s_r8+n}, s{s_r8+n}, {12 if INP else 11}\ns_add_u32 s{s_r8+n}, s{s_r8+n}, s{s_so}')
    if INP:
        p(f's_lshl_b32 s{s_so+3}, s{s_rt}, 9\ns_add_u32 s{s_so+3}, s{s_so+3}, {WS_DNF}\ns_lshl2_add_u32 s{s_so+2}, s{s_ct}, s{s_w}\ns_lshl_b32 s{s_so+2}, s{s_so+2}, 4\ns_add_u32 s{s_so+2}, s{s_so+2}, s{s_so+3}')
        p(f'v_and_b32 v{WF+7}, 0x1f0, v{vL16}')
    OF = X
    stamp('g')
    def pcheck():
        if INP:
            p(f'v_cmp_ne_u32 vcc, s{s_E1}, v{POL}'); return
        p(f'v_xor_b32 v{chk}, s{s_t}, v{POL}')
        for j in range(1, 4): p(f'v_bitop3_b32 v{chk}, v{chk}, v{POL+j}, s{s_t+j} bitop3:0xf6')
        p(f'v_and_b32 v{chk}, 0x00010001, v{chk}')
        p(f'v_cmp_ne_u32 vcc, 0, v{chk}')
    if PF:
        pcheck()
        p('s_cbranch_vccz B_H2_FIRST')
    p('B_H2_POLL:')
    p(poll2())
    p(f's_add_u32 s{s_sp}, s{s_sp}, 1\ns_cmp_gt_u32 s{s_sp}, {SPIN_MAX}\ns_cbranch_scc1 B_H2_FIRST')
    pcheck()
    if opt.get('slpB'): p(f's_cbranch_vccz B_H2_FIRST\ns_sleep {opt["slpB"]}\ns_branch B_H2_POLL')
    else: p('s_cbranch_vccnz B_H2_POLL')
    p('B_H2_FIRST:')
    stamp(); stamp('g')
    def o_loads():
        for n in range(16):
            p(f'buffer_load_dwordx4 {vr(OF+4*n,4)}, v{vL16}, s[{sWS}:{sWS+3}], s{s_r8+(n>>1)} offen offset:{1024*(n&1)} sc1')
    G2 = opt.get('g2pipe', 0)
    def oload(n):
        if INP: return f'buffer_load_dwordx4 {vr(OF+4*n,4)}, v{vL16}, s[{sOUT}:{sOUT+3}], s{s_r8+(n>>1)} offen offset:{2048*(n&1)} sc1'
        return f'buffer_load_dwordx4 {vr(OF+4*n,4)}, v{vL16}, s[{sWS}:{sWS+3}], s{s_r8+(n>>1)} offen offset:{1024*(n&1)} sc1'
    assert G2 or not INP
    if G2:
        for n in range(G2): p(oload(n))
        p(f's_waitcnt vmcnt({G2})\ns_barrier')
    else:
        o_loads()
        p('s_waitcnt vmcnt(16)\ns_barrier')
    stamp('g')
    p('B_H2_GO:')
    AK, AS = ACC0, P
    W2 = X + 64
    def wofr(n, slot):
        off = 128*(32*(n >> 1) + 8*(n & 1))
        return trpair(W2+8*slot+4, wb, off, 512) + trpair(W2+8*slot, wa, off, 512)
    NS2 = 5
    for n in range(3): p.ext(wofr(n, n))
    if E3:
        def mS(n): return f'v_mfma_f32_32x32x16_bf16 {vr(AS,16)}, {vr(W2+8*(n%NS2)+4,4)}, {vr(OF+4*n,4)}, {"0" if n==0 else vr(AS,16)}'
        def mK(n): return f'v_mfma_f32_32x32x16_bf16 {vr(AK,16)}, {vr(W2+8*(n%NS2),4)}, {vr(OF+4*n,4)}, {"0" if n==0 else vr(AK,16)}'
        def dn_load(): return f'buffer_load_dword v{POL}, v{WF+7}, s[{sWS}:{sWS+3}], s{s_so+3} offen sc1'
        for n in range(12):
            p(mS(n))
            if n + G2 < 16: p(oload(n+G2))
            p.ext(wofr(n+3, (n+3) % NS2)[:2])
            p(mK(n))
            p.ext(wofr(n+3, (n+3) % NS2)[2:])
            if n == 10: p('s_barrier')
        p(mS(12)); p.ext(wofr(15, 0)); p(mS(13)); p(mS(14)); p(mS(15))
        flag_store(s_so+2)
        p(mK(12)); p(mK(13))
        p(f'ds_write_b128 v{e3s}, {vr(AS,4)}'); p(mK(14)); p(f'ds_write_b128 v{e3s+1}, {vr(AS+4,4)}'); p(mK(15))
        p(f'ds_write_b128 v{e3s+2}, {vr(AS+8,4)}\nds_write_b128 v{e3s+3}, {vr(AS+12,4)}')
        p('B_H2_OK:')
        stamp('g')
        if not opt.get('dnlate'): p(dn_load())
        for j in range(4): p(f'ds_write_b128 v{e3k+j}, {vr(AK+4*j,4)}')
        if opt.get('dnlate') == 1: p(dn_load())
        p('s_waitcnt lgkmcnt(0)\ns_barrier')
        if opt.get('dnlate') == 2: p(dn_load())
        stamp('g')
        STF = opt.get('outflag', '')
        for i in range(2):
            for j in range(2):
                p(f'ds_read_b128 {vr(AK+8*i+4*j,4)}, v{e3r+j} offset:{8192*i}\nds_read_b128 {vr(AS+8*i+4*j,4)}, v{e3r+2+j} offset:{8192*i}')
        for i in range(2):
            for j in range(8): p(f'v_add_f32 v{AK+8*i+j}, v{AK+8*i+j}, v{AS+8*i+j}')
            for j in range(4): p(f'v_cvt_pk_bf16_f32 v{OF+4*i+j}, v{AK+8*i+2*j}, v{AK+8*i+2*j+1}')
            if i == 0:
                p('B_DN_CHK:')
                p(f'v_cmp_ne_u32 vcc, s{s_E1}, v{POL}')
                p(f's_andn2_b32 s3, vcc_lo, s{s_msk}')
                p('s_cbranch_scc1 B_DN_AGAIN')
                p('B_DN_OK:')
            p(f'buffer_store_dwordx4 {vr(OF+4*i,4)}, v{oa}, s[{sOUT}:{sOUT+3}], s{s_oo if i == 0 else s_tmp2} offen {STF}')
    else:
        for n in range(16):
            p(f'v_mfma_f32_32x32x16_bf16 {vr(AS,16)}, {vr(W2+8*(n%NS2)+4,4)}, {vr(OF+4*n,4)}, {"0" if n==0 else vr(AS,16)}')
            if G2 and n + G2 < 16: p(oload(n+G2))
            if n+3 < 16: p.ext(wofr(n+3, (n+3) % NS2)[:2])
            if not INP:
                for j in range(2):
                    if n == 0 and j == 0: p(f'v_xor_b32 v{chk}, s{s_t}, v{OF}')
                    else: p(f'v_bitop3_b32 v{chk}, v{chk}, v{OF+4*n+j}, s{s_t+j} bitop3:0xf6')
            elif n == 15: flag_store(s_so+2)
            p(f'v_mfma_f32_32x32x16_bf16 {vr(AK,16)}, {vr(W2+8*(n%NS2),4)}, {vr(OF+4*n,4)}, {"0" if n==0 else vr(AK,16)}')
            if n+3 < 16: p.ext(wofr(n+3, (n+3) % NS2)[2:])
            if not INP:
                for j in range(2, 4): p(f'v_bitop3_b32 v{chk}, v{chk}, v{OF+4*n+j}, s{s_t+j} bitop3:0xf6')
        if not INP:
            p(f'v_and_b32 v{chk}, 0x00010001, v{chk}')
            p(f'v_cmp_ne_u32 vcc, 0, v{chk}')
            p('s_cbranch_vccnz B_H2_RETRY')
        p('B_H2_OK:')
        stamp('g')
        for j in range(4): p(f'ds_write_b128 v{xw}, {vr(AS+4*j,4)} offset:{1024*j}')
        p('s_waitcnt lgkmcnt(0)\ns_barrier')
        stamp('g')
        for j in range(4): p(f'ds_read_b128 {vr(AS+4*j,4)}, v{xr} offset:{1024*j}')
        def dn_load(): return f'buffer_load_dword v{POL}, v{WF+7}, s[{sWS}:{sWS+3}], s{s_so+3} offen sc1'
        if INP:
            assert opt.get('e2')
            p(dn_load())
        STF = opt.get('outflag', '')
        if not opt.get('e2'):
            for hh in range(2):
                for j in range(8): p(f'v_add_f32 v{AK+8*hh+j}, v{AK+8*hh+j}, v{AS+8*hh+j}')
                for j in range(4): p(f'v_cvt_pk_bf16_f32 v{OB+4*hh+j}, v{AK+8*hh+2*j}, v{AK+8*hh+2*j+1}')
                p(f'buffer_store_dwordx4 {vr(OB+4*hh,4)}, v{oa}, s[{sOUT}:{sOUT+3}], s{s_oo} offen offset:{16*hh} {STF}')
        else:
            for hh in range(2):
                for j in range(8): p(f'v_add_f32 v{AK+8*hh+j}, v{AK+8*hh+j}, v{AS+8*hh+j}')
                for j in range(4): p(f'v_cvt_pk_bf16_f32 v{OB+4*hh+j}, v{AK+8*hh+2*j}, v{AK+8*hh+2*j+1}')
                p(f'ds_write_b128 v{e2w+hh}, {vr(OB+4*hh,4)}')
            p('s_waitcnt lgkmcnt(0)\ns_barrier')
            p(f'ds_read_b128 {vr(AS,4)}, v{e2r}\nds_read_b128 {vr(AS+4,4)}, v{e2r} offset:4096')
            if INP:
                p('B_DN_CHK:')
                p(f'v_cmp_ne_u32 vcc, s{s_E1}, v{POL}')
                p('s_cbranch_vccnz B_DN_AGAIN')
                p('B_DN_OK:')
            p(f'buffer_store_dwordx4 {vr(AS,4)}, v{oa}, s[{sOUT}:{sOUT+3}], s{s_oo} offen {STF}')
            p(f'buffer_store_dwordx4 {vr(AS+4,4)}, v{oa}, s[{sOUT}:{sOUT+3}], s{s_tmp2} offen {STF}')
    stamp('g')
    p(f's_or_b32 s{s_tmp}, s2, s{s_w}\ns_cmp_lg_u32 s{s_tmp}, 0\ns_cbranch_scc1 B_END')
    p(f'v_mov_b32 v{E}, s{s_E1}\nv_mov_b32 v{E+1}, 0\ns_mov_b64 exec, 1')
    p(f'buffer_store_dword v{E}, v{E+1}, s[{sWS}:{sWS+3}], 0 offen offset:{WS_EB} sc1')
    if opt.get('probe'):
        p('s_mul_i32 s98, s98, 100\ns_memtime s[90:91]\ns_waitcnt lgkmcnt(0)\nB_PRB:\ns_memtime s[94:95]\ns_waitcnt lgkmcnt(0)\ns_sub_u32 s94, s94, s90\ns_cmp_lt_u32 s94, s98\ns_cbranch_scc1 B_PRB')
    if opt.get('skew'):
        p(f's_mov_b64 exec, -1\ns_mov_b32 s98, {WS_STAMP}\nbuffer_load_dwordx4 v[20:23], v{vL16}, s[{sWS}:{sWS+3}], s98 offen sc1\ns_waitcnt vmcnt(0)')
        for j in range(4): p(f'v_subrev_u32 v{20+j}, s78, v{20+j}')
        if opt.get('skewmode') == 'late':
            p('v_max3_i32 v24, v20, v21, v22\nv_max_i32 v24, v24, v23\ns_mov_b32 s92, 0')
            for l in range(64): p(f'v_readlane_b32 s93, v24, {l}\ns_max_i32 s92, s92, s93')
        else:
            p('v_min3_i32 v24, v20, v21, v22\nv_min_i32 v24, v24, v23\ns_mov_b32 s92, 0')
            for l in range(64): p(f'v_readlane_b32 s93, v24, {l}\ns_min_i32 s92, s92, s93')
            p('s_sub_u32 s92, 0, s92')
        p('s_mul_i32 s92, s92, 20\ns_memrealtime s[90:91]\ns_waitcnt lgkmcnt(0)\nB_SKW:\ns_memrealtime s[94:95]\ns_waitcnt lgkmcnt(0)\ns_sub_u32 s94, s94, s90\ns_cmp_lt_u32 s94, s92\ns_cbranch_scc1 B_SKW')
    if opt.get('amp'):
        p('s_waitcnt vmcnt(0)\ns_memrealtime s[90:91]\ns_waitcnt lgkmcnt(0)')
        if opt.get('amp_at', -1) < 0: p('s_mov_b32 s99, s90')
        p(f's_sub_u32 s92, s99, s78\ns_mul_i32 s92, s92, {opt["amp"]}\nB_AMP:\ns_memrealtime s[94:95]\ns_waitcnt lgkmcnt(0)\ns_sub_u32 s94, s94, s90\ns_cmp_lt_u32 s94, s92\ns_cbranch_scc1 B_AMP')
    p('B_END:')
    if opt.get('stamps'):
        p('s_mov_b64 exec, -1')
        p('s_waitcnt vmcnt(0)')
        p('s_memtime s[100:101]\ns_memrealtime s[76:77]\ns_waitcnt lgkmcnt(0)')
        for k in range(11): p(f'v_mov_b32 v{16+k}, s{80+2*k}')
        p('v_mov_b32 v27, s78\nv_mov_b32 v28, s76\n' + f'v_mov_b32 v29, s{s_sp}\nv_mov_b32 v30, s{s_rdy}')
        p(f's_lshl_b32 s{s_tmp}, s2, 8\ns_lshl_b32 s{s_tmp2}, s{s_w}, 6\ns_add_u32 s{s_tmp}, s{s_tmp}, s{s_tmp2}\ns_add_u32 s{s_tmp}, s{s_tmp}, {WS_STAMP}')
        p('v_mov_b32 v0, 0\ns_mov_b64 exec, 1')
        for k in range(4): p(f'buffer_store_dwordx4 v[{16+4*k}:{19+4*k}], v0, s[{sWS}:{sWS+3}], s{s_tmp} offen offset:{16*k}')
    p('s_endpgm')
    p.assume_clean()
    for k in range(cpn[0]):
        p(f'B_CPGO{k}:')
        ext2(go_block())
        p(f's_branch B_CP{k}')
        p.assume_clean()
    if DIR:
        p('B_H1_POLLZ:')
        p(z_load())
    p('B_H1_POLL:')
    p('s_waitcnt vmcnt(0)')
    p.ext(z_check())
    p(f's_add_u32 s{s_sp}, s{s_sp}, 1\ns_cmp_gt_u32 s{s_sp}, {SPIN_MAX}\ns_cbranch_scc1 B_H1_GO')
    p('s_cbranch_vccz B_H1_GO')
    p(z_load())
    p('s_branch B_H1_POLL')
    p('B_H1_GO:')
    ext2(go_block())
    p('s_branch B_H1_CHK')
    p.assume_clean()
    p('B_H1_RETRY:')
    p(f's_add_u32 s{s_sp}, s{s_sp}, 1\ns_cmp_gt_u32 s{s_sp}, {SPIN_MAX}\ns_cbranch_scc1 B_H1_OK')
    p('s_sleep 2')
    p.ext(kv_list())
    p('s_waitcnt vmcnt(0)\ns_branch B_H1_CHK')
    p.assume_clean()
    if not INP:
        p('B_H2_RETRY:')
        p(f's_add_u32 s{s_sp}, s{s_sp}, 1\ns_cmp_gt_u32 s{s_sp}, {SPIN_MAX}\ns_cbranch_scc1 B_H2_OK')
        p('s_sleep 2')
        for n in range(G2 or 16): p(oload(n))
        p('s_branch B_H2_GO')
        p.assume_clean()
    if INP:
        p('B_DN_AGAIN:')
        p(f's_add_u32 s{s_sp}, s{s_sp}, 1\ns_cmp_gt_u32 s{s_sp}, {SPIN_MAX}\ns_cbranch_scc1 B_DN_OK')
        p(dn_load())
        p('s_waitcnt vmcnt(0)\ns_branch B_DN_CHK')
        p.assume_clean()
```

```python
from asmdsl import Prog, interleave, slotted
from common import *

def vr(a, n): return f'v[{a}:{a+n-1}]'

PITCH = 544
KTCH = 57 * PITCH
T1 = 2 * KTCH
T2 = T1 + 8192
CT = T1; CTS = 3328
KR0, KR1, G4B, G8B, F1K = 0, 1216, 2368, 2880, 3200
UT0 = T2; UTS = 4640; UPAD = 528
XCH = 0
A3S = 16384

def genA(p, opt):
    stamp_n = [0]
    def stamp(kind='main'):
        if kind != opt.get('stampsetA', 'main') and not (kind == 'main' and stamp_n[0] == 0): return
        if opt.get('stamps'):
            k = stamp_n[0]; stamp_n[0] += 1
            if k < 10: p(f's_memtime s[{80+2*k}:{81+2*k}]')
    PK = opt.get('pkA', 0)
    sU, sPar, sOUT, sWS = 8, 12, 36, 40
    s_g, s_m, s_w, s_ch, s_nh = 44, 45, 46, 47, 48
    s_tmp, s_tmp2, s_tmp3 = 49, 50, 51
    s_ldt, s_dsk = 52, 54
    s_ldv, s_dsv = 56, 57
    s_E1, s_tag = 58, 59
    s_msk = 60
    s_sp = 68
    s_so = 62
    s_ctb, s_utb = 66, 67
    vEp, vLane = 1, 2
    BAND = 224
    FIXM = 248
    O2 = opt.get('u_at', 0)
    ST1 = T1 if not O2 else UT0
    ST2 = T2 if not O2 else 24576
    FS = opt.get('fs', 4); FX_ = '0xff' if FS == 7 else '1'; SLP = opt.get('slp', 4)
    XE = opt.get('xearly', 0)
    p('A_ROLE:')
    p(f's_load_dwordx2 s[{sU}:{sU+1}], s[0:1], 0')
    for i in range(6): p(f's_load_dwordx2 s[{sPar+4*i}:{sPar+4*i+1}], s[0:1], {8+8*i}')
    p(f's_load_dwordx4 s[{s_ldt}:{s_ldt+3}], s[0:1], 56')
    if opt.get('touch_pre'): p('s_load_dwordx2 s[72:73], s[0:1], 96\ns_load_dwordx2 s[76:77], s[0:1], 80')
    p(f's_load_dwordx2 s[{sOUT}:{sOUT+1}], s[0:1], 104')
    p(f's_load_dwordx2 s[{sWS}:{sWS+1}], s[0:1], 120')
    if opt.get('stamps'): p('s_memrealtime s[78:79]')
    stamp()
    if opt.get('prioA0'): p(f's_setprio {opt["prioA0"]}')
    t0, t1, t2, t3, t4, t5 = 3, 4, 5, 6, 7, 8
    p(f'v_lshrrev_b32 v{t0}, 6, v0\nv_and_b32 v{vLane}, 63, v0\nv_readfirstlane_b32 s{s_w}, v{t0}')
    p(f's_and_b32 s{s_g}, s2, 7\ns_bfe_u32 s{s_m}, s2, 0x50003')
    p(f's_lshr_b32 s{s_ch}, s{s_w}, 1\ns_and_b32 s{s_nh}, s{s_w}, 1')
    vUg = 19
    p(f'v_bfe_u32 v{t1}, v0, 4, 1\nv_lshlrev_b32 v{t1}, 2, v{t1}\nv_and_b32 v{t2}, 7, v0\nv_xor_b32 v{t1}, v{t1}, v{t2}\nv_lshlrev_b32 v{t1}, 4, v{t1}')
    p(f'v_lshrrev_b32 v{t2}, 3, v0\nv_lshl_add_u32 v{vUg}, v{t2}, 10, v{t1}')
    p(f's_lshl_b32 s{s_tmp}, s{s_m}, 16\ns_lshl_b32 s{s_tmp2}, s{s_g}, 7\ns_add_u32 s{s_so}, s{s_tmp}, s{s_tmp2}\ns_add_u32 s{s_so+1}, s{s_so}, 32768')
    vPg = 10
    p(f's_lshl_b32 s{s_tmp}, s{s_g}, 5\ns_add_u32 s{s_tmp}, s{s_tmp}, s{s_m}')
    p(f's_lshl_b32 s{s_tmp3}, s{s_tmp}, 2')
    p(f's_add_u32 s{s_tmp2}, s{s_tmp3}, s{s_w}\ns_lshl_b32 s{s_so+2}, s{s_tmp2}, 7')
    p(f'v_lshlrev_b32 v{vPg}, 1, v{vLane}')
    p(f'v_mov_b32 v{vEp}, 0')
    p(f's_lshl_b32 s{s_so+3}, s{s_g}, 8')
    p(f's_mov_b32 s{sU+2}, 0x200000\ns_mov_b32 s{sU+3}, 0x20000')
    for i in range(6): p(f's_mov_b32 s{sPar+4*i+2}, 0x20000\ns_mov_b32 s{sPar+4*i+3}, 0x20000')
    p(f's_mov_b32 s{sOUT+2}, 0x400000\ns_mov_b32 s{sOUT+3}, 0x20000\ns_mov_b32 s{sWS+2}, 0x10000000\ns_mov_b32 s{sWS+3}, 0x20000')
    s_xcc, s_mode = 69, 70
    PRE_ = opt.get('touch_pre', 0)
    if PRE_:
        vPT = 86
        p(f's_cmp_lt_u32 s{s_w}, 2\ns_cbranch_scc1 A_NOPRE')
        p(f's_lshl_b32 s{s_tmp}, s{s_g}, 5\ns_add_u32 s{s_tmp}, s{s_tmp}, s{s_m}\ns_lshl_b32 s{s_tmp2}, s{s_tmp}, 2')
        p(f'v_and_b32 v{t0}, 3, v0\nv_add_u32 v{t0}, s{s_tmp2}, v{t0}')
        p(f'v_mul_u32_u24 v{t1}, 640, v{t0}\nv_add_u32 v{vPT}, {WS_KVP+512}, v{t1}')
        p(f'v_lshlrev_b32 v{t1}, 11, v{t0}\nv_add_u32 v{t1}, {WS_OX+1920}, v{t1}\ns_mov_b64 s[{s_msk}:{s_msk+1}], 0xf0\nv_cndmask_b32 v{vPT}, v{vPT}, v{t1}, s[{s_msk}:{s_msk+1}]')
        p(f'v_lshlrev_b32 v{t1}, {FS}, v{t0}\nv_add_u32 v{t1}, {WS_YF}, v{t1}\ns_mov_b64 s[{s_msk}:{s_msk+1}], 0xf00\nv_cndmask_b32 v{vPT}, v{vPT}, v{t1}, s[{s_msk}:{s_msk+1}]')
        p(f's_lshl_b32 s{s_tmp}, s{s_tmp}, {FS}\ns_add_u32 s{s_tmp}, s{s_tmp}, {WS_FLAG}\nv_mov_b32 v{t1}, s{s_tmp}\ns_mov_b64 s[{s_msk}:{s_msk+1}], 0xf000\nv_cndmask_b32 v{vPT}, v{vPT}, v{t1}, s[{s_msk}:{s_msk+1}]')
        if opt.get('touchkv', 0):
            p(f's_lshr_b32 s{s_tmp2}, s{s_tmp2}, 2\ns_mul_i32 s{s_tmp2}, s{s_tmp2}, {KVP_SZ}\ns_add_u32 s{s_tmp2}, s{s_tmp2}, {WS_KVP}')
            p(f'v_bfe_u32 v{t1}, v0, 2, 2\nv_mul_u32_u24 v{t1}, 640, v{t1}\nv_and_b32 v{t2}, 3, v0\nv_lshl_add_u32 v{t1}, v{t2}, 7, v{t1}\nv_add_u32 v{t1}, s{s_tmp2}, v{t1}')
            p(f's_mov_b32 s{s_msk}, 0xffff0000\nv_cndmask_b32 v{vPT}, v{vPT}, v{t1}, s[{s_msk}:{s_msk+1}]')
            p('s_mov_b32 exec_lo, 0xffff1f0f\ns_mov_b32 exec_hi, 0')
        else:
            if opt.get('local2'):
                p(f's_and_b32 s{s_tmp}, s{s_m}, 3\ns_lshl2_add_u32 s{s_tmp}, s{s_g}, s{s_tmp}\ns_lshl_b32 s{s_tmp}, s{s_tmp}, 7\ns_add_u32 s{s_tmp}, s{s_tmp}, {WS_BF}\nv_mov_b32 v{t1}, s{s_tmp}\ns_mov_b64 s[{s_msk}:{s_msk+1}], 0x2000\nv_cndmask_b32 v{vPT}, v{vPT}, v{t1}, s[{s_msk}:{s_msk+1}]')
                if opt.get('inplace'):
                    p(f's_and_b32 s{s_tmp}, s{s_m}, 15\ns_lshl4_add_u32 s{s_tmp}, s{s_g}, s{s_tmp}\ns_lshl_b32 s{s_tmp}, s{s_tmp}, 7\ns_lshr_b32 s{s_tmp2}, s{s_m}, 4\ns_mul_i32 s{s_tmp2}, s{s_tmp2}, {WS_DNF-WS_P2F}\ns_add_u32 s{s_tmp}, s{s_tmp}, s{s_tmp2}\ns_add_u32 s{s_tmp}, s{s_tmp}, {WS_P2F}')
                    p(f'v_mov_b32 v{t1}, s{s_tmp}\ns_mov_b64 s[{s_msk}:{s_msk+1}], 0x4000\nv_cndmask_b32 v{vPT}, v{vPT}, v{t1}, s[{s_msk}:{s_msk+1}]')
                p('s_mov_b64 s[4:5], ' + str(opt.get('touchmask', '0x7f0f' if opt.get('inplace') else '0x3fff')))
            else: p('s_mov_b64 s[4:5], 0x1fff')
        p(f's_lshl_b32 s{s_tmp}, s{s_g}, 5\ns_add_u32 s{s_tmp}, s{s_tmp}, s{s_m}')
        p(f's_lshl_b32 s6, s{s_tmp}, 11\ns_mul_i32 s7, s{s_tmp}, 6144')
        p(f'v_lshlrev_b32 v88, 7, v{vLane}')
        p(f'v_bfe_u32 v{t1}, v0, 3, 1\nv_mul_u32_u24 v{t1}, 3072, v{t1}\nv_and_b32 v{t2}, 7, v0\nv_lshl_add_u32 v{t1}, v{t2}, 7, v{t1}')
        p(f'v_bfe_u32 v{t2}, v0, 4, 1\nv_xor_b32 v{t2}, 1, v{t2}\nv_lshl_add_u32 v89, v{t2}, 11, v{t1}')
        p('s_mov_b32 s74, 0x80000\ns_mov_b32 s75, 0x20000')
        p('A_NOPRE:')
    p('s_waitcnt lgkmcnt(0)')
    if WS_BASE: p(f's_add_u32 s{sWS}, s{sWS}, {hex(WS_BASE)}\ns_addc_u32 s{sWS+1}, s{sWS+1}, 0\ns_mov_b32 s{sWS+2}, {hex(0x10000000-WS_BASE)}')
    stamp('a')
    LD = opt.get('ldflagA', '')
    PAR = 12
    p(f'buffer_load_dword v{vEp}, v{vEp}, s[{sWS}:{sWS+3}], s{s_so+3} offen offset:{WS_EA} sc1')
    for i in range(6): p(f'buffer_load_ushort v{PAR+i}, v{vPg}, s[{sPar+4*i}:{sPar+4*i+3}], s{s_so+2} offen {LD}')
    p(f's_load_dword s{s_ldv}, s[{s_ldt}:{s_ldt+1}], s{s_tmp3}')
    p(f's_load_dword s{s_dsv}, s[{s_dsk}:{s_dsk+1}], s{s_tmp3}')
    def u_issue():
        p(f's_lshl_b32 s3, s{s_w}, 10\ns_add_u32 m0, s3, {ST1}\ns_nop 0')
        p(f'buffer_load_dwordx4 v{vUg}, s[{sU}:{sU+3}], s{s_so} offen {LD} lds')
        p(f's_add_u32 m0, s3, {ST1+4096}')
        p(f'buffer_load_dwordx4 v{vUg}, s[{sU}:{sU+3}], s{s_so+1} offen {LD} lds', tok='utile')
    O3 = opt.get('kfirst', 0)
    if O3: p(f's_setprio {opt.get("prioAu", 0)}')
    UD = opt.get('udel', 0)
    if not O2 and not UD: u_issue()
    def outtouch():
        p(f'v_and_b32 v127, 15, v0\nv_lshlrev_b32 v127, 11, v127\ns_lshl2_add_u32 s3, s{s_m}, s{s_w}\ns_lshl_b32 s3, s3, 15\ns_lshl_b32 s{s_tmp}, s{s_g}, 7\ns_add_u32 s3, s3, s{s_tmp}')
        p(f'buffer_load_dword v127, v127, s[{sOUT}:{sOUT+3}], s3 offen')
    if opt.get('outtouch') == 1: outtouch()
    if PRE_:
        mp = str(opt.get('mallpf', '')).replace('none', '')
        p(f's_cmp_lt_u32 s{s_w}, 2\ns_cbranch_scc1 A_NOTOUCH\ns_cmp_eq_u32 s{s_w}, 2\ns_cbranch_scc1 A_MP')
        p('s_mov_b64 exec, s[4:5]')
        p(f'buffer_load_dword v{vPT+1}, v{vPT}, s[{sWS}:{sWS+3}], 0 offen', tok='nocount')
        p('s_mov_b64 exec, -1\ns_branch A_NOTOUCH\nA_MP:\ns_mov_b64 exec, 0xffff')
        if 'o' in mp: p('buffer_load_dword v88, v88, s[72:75], s6 offen', tok='nocount')
        if 'v' in mp:
            p('s_mov_b32 s72, s76\ns_mov_b32 s73, s77\ns_mov_b32 s74, 0x180000')
            if 'q' in mp: p('s_mov_b32 exec_lo, -1')
            p('buffer_load_dword v89, v89, s[72:75], s7 offen', tok='nocount')
        p('s_mov_b64 exec, -1\nA_NOTOUCH:')
    if not opt.get('touch_early'):
        if opt.get('prioA0'): p(f's_setprio {opt.get("prioA1", 0)}')
        stamp('a')
        yield
        stamp('a')
    p(f's_getreg_b32 s{s_xcc}, hwreg(HW_REG_XCC_ID, 0, 4)')
    def touch_block():
        t0, t1, t2 = 122, 123, 124
        if opt.get('touch', 1) and not PRE_:
            vPT = 125
            p(f's_cmp_lg_u32 s{s_w}, 3\ns_cbranch_scc1 A_NOTOUCH')
            p(f's_lshl_b32 s{s_tmp}, s{s_g}, 5\ns_add_u32 s{s_tmp}, s{s_tmp}, s{s_m}\ns_lshl_b32 s{s_tmp2}, s{s_tmp}, 2')
            p(f'v_and_b32 v{t0}, 3, v0\nv_add_u32 v{t0}, s{s_tmp2}, v{t0}')
            p(f'v_mul_u32_u24 v{t1}, 640, v{t0}\nv_add_u32 v{vPT}, {WS_KVP+512}, v{t1}')
            p(f'v_lshlrev_b32 v{t1}, 11, v{t0}\nv_add_u32 v{t1}, {WS_OX+1920}, v{t1}\ns_mov_b64 s[{s_msk}:{s_msk+1}], 0xf0\nv_cndmask_b32 v{vPT}, v{vPT}, v{t1}, s[{s_msk}:{s_msk+1}]')
            p(f'v_lshlrev_b32 v{t1}, {FS}, v{t0}\nv_add_u32 v{t1}, {WS_YF}, v{t1}\ns_mov_b64 s[{s_msk}:{s_msk+1}], 0xf00\nv_cndmask_b32 v{vPT}, v{vPT}, v{t1}, s[{s_msk}:{s_msk+1}]')
            p(f's_lshl_b32 s{s_tmp}, s{s_tmp}, {FS}\ns_add_u32 s{s_tmp}, s{s_tmp}, {WS_FLAG}\nv_mov_b32 v{t1}, s{s_tmp}\ns_mov_b64 s[{s_msk}:{s_msk+1}], 0xf000\nv_cndmask_b32 v{vPT}, v{vPT}, v{t1}, s[{s_msk}:{s_msk+1}]')
            if opt.get('touchkv', 0):
                p(f's_lshr_b32 s{s_tmp2}, s{s_tmp2}, 2\ns_mul_i32 s{s_tmp2}, s{s_tmp2}, {KVP_SZ}\ns_add_u32 s{s_tmp2}, s{s_tmp2}, {WS_KVP}')
                p(f'v_bfe_u32 v{t1}, v0, 2, 2\nv_mul_u32_u24 v{t1}, 640, v{t1}\nv_and_b32 v{t2}, 3, v0\nv_lshl_add_u32 v{t1}, v{t2}, 7, v{t1}\nv_add_u32 v{t1}, s{s_tmp2}, v{t1}')
                p(f's_mov_b32 s{s_msk}, 0xffff0000\nv_cndmask_b32 v{vPT}, v{vPT}, v{t1}, s[{s_msk}:{s_msk+1}]')
                p('s_mov_b32 exec_lo, 0xffff1f0f\ns_mov_b32 exec_hi, 0')
            else:
                if opt.get('local2'):
                    p(f's_and_b32 s{s_tmp}, s{s_m}, 3\ns_lshl2_add_u32 s{s_tmp}, s{s_g}, s{s_tmp}\ns_lshl_b32 s{s_tmp}, s{s_tmp}, 7\ns_add_u32 s{s_tmp}, s{s_tmp}, {WS_BF}\nv_mov_b32 v{t1}, s{s_tmp}\ns_mov_b64 s[{s_msk}:{s_msk+1}], 0x2000\nv_cndmask_b32 v{vPT}, v{vPT}, v{t1}, s[{s_msk}:{s_msk+1}]')
                    if opt.get('inplace'):
                        p(f's_and_b32 s{s_tmp}, s{s_m}, 15\ns_lshl4_add_u32 s{s_tmp}, s{s_g}, s{s_tmp}\ns_lshl_b32 s{s_tmp}, s{s_tmp}, 7\ns_lshr_b32 s{s_tmp2}, s{s_m}, 4\ns_mul_i32 s{s_tmp2}, s{s_tmp2}, {WS_DNF-WS_P2F}\ns_add_u32 s{s_tmp}, s{s_tmp}, s{s_tmp2}\ns_add_u32 s{s_tmp}, s{s_tmp}, {WS_P2F}')
                        p(f'v_mov_b32 v{t1}, s{s_tmp}\ns_mov_b64 s[{s_msk}:{s_msk+1}], 0x4000\nv_cndmask_b32 v{vPT}, v{vPT}, v{t1}, s[{s_msk}:{s_msk+1}]')
                    p('s_mov_b64 exec, ' + str(opt.get('touchmask', '0x7f0f' if opt.get('inplace') else '0x3fff')))
                else: p('s_mov_b64 exec, 0x1fff')
            p(f'buffer_load_dword v{vPT+1}, v{vPT}, s[{sWS}:{sWS+3}], 0 offen', tok='nocount')
            p('s_mov_b64 exec, -1')
            p('A_NOTOUCH:')
    if not opt.get('touch_late'): touch_block()
    def mallpf_block():
        t0, t1, t2 = 117, 118, 119
        mp = str(opt.get('mallpf', '')).replace('none', '')
        if mp and not PRE_:
            p(f's_cmp_lg_u32 s{s_w}, 2\ns_cbranch_scc1 A_NOMP')
            p('s_load_dwordx2 s[72:73], s[0:1], 96\ns_load_dwordx2 s[76:77], s[0:1], 80')
            p(f's_lshl_b32 s{s_tmp}, s{s_g}, 5\ns_add_u32 s{s_tmp}, s{s_tmp}, s{s_m}')
            p(f's_lshl_b32 s{s_tmp2}, s{s_tmp}, 11\ns_mul_i32 s{s_tmp}, s{s_tmp}, 6144')
            p(f'v_lshlrev_b32 v{t0}, 7, v{vLane}')
            p(f'v_bfe_u32 v{t1}, v0, 3, 1\nv_mul_u32_u24 v{t1}, 3072, v{t1}\nv_and_b32 v{t2}, 7, v0\nv_lshl_add_u32 v{t1}, v{t2}, 7, v{t1}')
            p(f'v_bfe_u32 v{t2}, v0, 4, 1\nv_xor_b32 v{t2}, 1, v{t2}\nv_lshl_add_u32 v{t1}, v{t2}, 11, v{t1}')
            p('s_mov_b32 s74, 0x80000\ns_mov_b32 s75, 0x20000\ns_waitcnt lgkmcnt(0)')
            if 'o' in mp:
                p('s_mov_b64 exec, 0xffff')
                p(f'buffer_load_dword v120, v{t0}, s[72:75], s{s_tmp2} offen', tok='nocount')
            if 'v' in mp or 'q' in mp:
                p('s_mov_b32 s72, s76\ns_mov_b32 s73, s77\ns_mov_b32 s74, 0x180000')
                p('s_mov_b64 exec, ' + ('0xffff' if 'q' not in mp else '0x7fffffff'))
                if 'q' in mp: p('s_mov_b32 exec_lo, -1')
                p(f'buffer_load_dword v121, v{t1}, s[72:75], s{s_tmp} offen', tok='nocount')
            p('s_mov_b64 exec, -1')
            p('A_NOMP:')
    if not opt.get('mp_late'): mallpf_block()
    if opt.get('touch_early'):
        if opt.get('prioA0'): p(f's_setprio {opt.get("prioA1", 0)}')
        stamp('a')
        yield
        stamp('a')
    stamp('a')
    def bands_code():
        vD = 116; t0, t1, t2, t3 = 114, 112, 113, 115
        p(f'v_bfe_u32 v{t0}, v0, 4, 2\nv_and_b32 v{t1}, 15, v0\nv_lshlrev_b32 v{t0}, 3, v{t0}\nv_sub_u32 v{vD}, v{t0}, v{t1}\nv_add_u32 v{vD}, 16, v{vD}')
        bands = [(11, 13), (6, 10), (3, 5), (6, 10), (5, 11), (4, 12), (4, 10)]
        p(f's_mov_b32 s{s_tmp}, 0x10001')
        for n, (lo, hi) in enumerate(bands):
            if n == 3: continue
            bits = ((1 << (hi-lo+1)) - 1) << (lo+16)
            dst = BAND + 4*n
            mul = 0x3f80 if n < 6 else 0xffff
            p(f's_mov_b32 s{s_msk}, {hex(bits)}\ns_mov_b32 s{s_msk+1}, 0')
            p(f'v_lshrrev_b64 v[{t1}:{t2}], v{vD}, s[{s_msk}:{s_msk+1}]')
            p(f'v_and_b32 v{t3}, 0xaa, v{t1}\nv_and_b32 v{t1}, 0x55, v{t1}\nv_lshl_or_b32 v{t1}, v{t3}, 15, v{t1}')
            for j in range(4):
                if j: p(f'v_lshrrev_b32 v{t3}, {2*j}, v{t1}\nv_and_b32 v{t3}, s{s_tmp}, v{t3}')
                else: p(f'v_and_b32 v{t3}, s{s_tmp}, v{t1}')
                p(f'v_mul_u32_u24 v{dst+j}, {hex(mul)}, v{t3}')
    UF1 = opt.get('ufirst', 0)
    assert not UF1 or (XE and not O3)
    if not O3 and not UF1 and not opt.get('bands_late'): bands_code()
    BC = [BAND, BAND+4, BAND+8, BAND+4]; B7, B9 = BAND+16, BAND+20
    stamp('a')
    def prefetch(*a, **k): pass
    trA, wT2, rT2, gUT = 21, 22, 24, 25
    p(f'v_bfe_u32 v{t0}, v0, 2, 2\nv_bfe_u32 v{t1}, v0, 5, 1\nv_lshrrev_b32 v{t2}, 1, v{t0}\nv_xor_b32 v{t1}, v{t1}, v{t2}')
    p(f'v_lshlrev_b32 v{t0}, 7, v{t0}\nv_lshl_add_u32 v{t0}, v{t1}, 6, v{t0}')
    p(f'v_bfe_u32 v{t1}, v0, 4, 1\nv_lshl_add_u32 v{t0}, v{t1}, 5, v{t0}\nv_and_b32 v{t1}, 3, v0\nv_lshl_add_u32 v{t0}, v{t1}, 3, v{t0}')
    p(f's_lshl_b32 s{s_tmp}, s{s_w}, 11\ns_add_u32 s{s_tmp}, s{s_tmp}, {ST1}')
    p(f'v_add_u32 v{trA}, s{s_tmp}, v{t0}')
    p(f's_lshl_b32 s{s_tmp}, s{s_w}, 1')
    p(f'v_and_b32 v{t0}, 7, v0\nv_xor_b32 v{t0}, s{s_tmp}, v{t0}\nv_lshlrev_b32 v{t0}, 4, v{t0}\nv_lshl_add_u32 v{t0}, v{vLane}, 7, v{t0}')
    p(f'v_add_u32 v{wT2}, {ST2}, v{t0}\nv_xor_b32 v{t0}, 16, v{t0}\nv_add_u32 v{wT2+1}, {ST2}, v{t0}')
    p(f'v_lshlrev_b32 v{rT2}, 4, v0\nv_add_u32 v{rT2}, {T1}, v{rT2}')
    vL16 = 27
    p(f'v_lshlrev_b32 v{vL16}, 4, v{vLane}')
    p(f'v_bfe_u32 v{t0}, v0, 3, 3\nv_and_b32 v{t1}, 7, v0\nv_xor_b32 v{t0}, v{t0}, v{t1}\nv_lshlrev_b32 v{t0}, 4, v{t0}')
    p(f'v_lshrrev_b32 v{t1}, 3, v0\nv_lshl_add_u32 v{gUT}, v{t1}, 11, v{t0}')
    s_ob = 71
    p(f's_lshl_b32 s{s_tmp}, s{s_m}, 17\ns_lshl_b32 s{s_tmp2}, s{s_g}, 7\ns_add_u32 s{s_ob}, s{s_tmp}, s{s_tmp2}\ns_add_u32 s{s_ob+1}, s{s_ob}, 65536')
    p(f's_mul_i32 s{s_ctb}, s{s_ch}, {CTS}\ns_add_u32 s{s_ctb}, s{s_ctb}, {CT}\ns_mul_i32 s{s_utb}, s{s_ch}, {UTS}\ns_add_u32 s{s_utb}, s{s_utb}, {UT0}')
    stamp('a')
    stn = [0]
    def two_mode(instrs):
        k = stn[0]; stn[0] += 1
        L = [f's_cmp_eq_u32 s{s_mode}, 0', f's_cbranch_scc0 A_SM{k}a'] + instrs + [f's_branch A_SM{k}b', f'A_SM{k}a:'] + [x + ' sc1' for x in instrs] + [f'A_SM{k}b:']
        return L
    XW = 104; X1 = opt.get('x1', 0)
    def x_publish():
        p(f'v_readfirstlane_b32 s{s_E1}, v{vEp}')
        p(f's_add_u32 s{s_E1}, s{s_E1}, 1')
        p(f's_cmp_lg_u32 s{s_w}, 0\ns_cbranch_scc1 A_NOXP')
        for j in range(4): p(f'v_mov_b32 v{XW+j}, s{s_xcc if j == 1 else s_E1}')
        p(f's_lshl_b32 s{s_tmp}, s{s_g}, 5\ns_add_u32 s{s_tmp}, s{s_tmp}, s{s_m}\ns_lshl_b32 s{s_tmp}, s{s_tmp}, 7\ns_add_u32 s{s_tmp}, s{s_tmp}, {WS_AX}')
        p('s_mov_b64 exec, 0xff')
        p(f'buffer_store_dwordx4 {vr(XW,4)}, v{vL16}, s[{sWS}:{sWS+3}], s{s_tmp} offen sc1', tok='nocount')
        p('s_mov_b64 exec, -1\nA_NOXP:')
    def x_issue():
        p(f'v_and_b32 v{XW+4}, 31, v0\nv_lshlrev_b32 v{XW+4}, 7, v{XW+4}\ns_lshl_b32 s73, s{s_g}, 12\ns_add_u32 s73, s73, {WS_AX}\ns_mov_b32 s{s_sp}, 0')
        if X1: p(f's_cmp_lg_u32 s{s_w}, 0\ns_cbranch_scc1 A_NOXI')
        p(f'buffer_load_dwordx2 {vr(XW+6,2)}, v{XW+4}, s[{sWS}:{sWS+3}], s73 offen sc1', tok='nocount' if X1 else None)
        if X1: p('A_NOXI:')
    def x_check():
        if X1: p(f's_cmp_lg_u32 s{s_w}, 0\ns_cbranch_scc1 A_NOXC\ns_waitcnt vmcnt(0)')
        p('A_X_CHK:')
        p(f'v_cmp_ne_u32 vcc, s{s_E1}, v{XW+6}')
        p('s_cbranch_vccnz A_X_AGAIN')
        p('A_X_OK:')
        p(f'v_cmp_ne_u32 vcc, s{s_xcc}, v{XW+7}')
        p(f's_or_b32 s{s_mode}, vcc_lo, vcc_hi')
        if opt.get('slowA'): p(f's_mov_b32 s{s_mode}, 1')
        if X1: p(f'v_mov_b32 v{XW}, s{s_mode}\nv_mov_b32 v{XW+1}, 81904\nds_write_b32 v{XW+1}, v{XW}\nA_NOXC:')
    if UD == 1:
        p('s_setprio 3'); u_issue(); p(f's_setprio {opt.get("prioA1", 0)}')
    UB = 96
    ZR = 92
    def tr_a():
        p.wait_tok('utile')
        if XE and not O3 and not UF1 and not O2: x_publish()
        if opt.get('outtouch') == 2: outtouch()
        if XE and (O3 or UF1) and not opt.get('xi3'): x_issue()
        stamp('a')
        p('s_waitcnt lgkmcnt(0)\ns_barrier')
        stamp('a')
        stamp()
        for rd in range(4): p(f'ds_read_b64_tr_b16 {vr(UB+2*rd,2)}, v{trA} offset:{512*rd}')
        p('s_waitcnt lgkmcnt(0)')
        p(f'ds_write_b128 v{wT2}, {vr(UB,4)}\nds_write_b128 v{wT2+1}, {vr(UB+4,4)}')
    def zero_ct():
        for j in range(4): p(f'v_mov_b32 v{ZR+j}, 0')
        p(f'ds_write_b128 v{rT2}, {vr(ZR,4)}\nds_write_b128 v{rT2}, {vr(ZR,4)} offset:4096')
    def tr_b():
        if XE and X1: x_check()
        p('s_waitcnt lgkmcnt(0)\ns_barrier')
        if XE and X1: p(f'v_mov_b32 v{XW+1}, 81904\nds_read_b32 v{XW}, v{XW+1}')
        if O2:
            p(f'v_lshlrev_b32 v{rT2}, 4, v0')
            p(f'ds_read_b128 {vr(UB,4)}, v{rT2} offset:{ST2}\nds_read_b128 {vr(UB+4,4)}, v{rT2} offset:{ST2+4096}')
            upad()
        else:
            p(f'ds_read_b128 {vr(UB,4)}, v{rT2} offset:{T2-T1}\nds_read_b128 {vr(UB+4,4)}, v{rT2} offset:{T2-T1+4096}')
            zero_ct()
        ust = [f'buffer_store_dwordx4 {vr(UB,4)}, v{gUT}, s[{sOUT}:{sOUT+3}], s{s_ob} offen', f'buffer_store_dwordx4 {vr(UB+4,4)}, v{gUT}, s[{sOUT}:{sOUT+3}], s{s_ob+1} offen']
        if XE:
            if X1: p(f'v_readfirstlane_b32 s{s_mode}, v{XW}')
            else: x_check()
            p('s_waitcnt lgkmcnt(2)' if not O2 else 's_waitcnt lgkmcnt(1)'); p.ext(two_mode(ust))
        else:
            for x in ust: p(x + (' sc1' if opt.get('ut_sc1') else ''))
        stamp()
    def upad():
        p(f'v_mov_b32 v17, {UPAD+4096}\ns_mov_b32 s{s_msk}, 0\ns_mov_b32 s{s_msk+1}, 2')
        p(f'v_cndmask_b32 v16, v{vL16}, v17, s[{s_msk}:{s_msk+1}]\nv_add_u32 v16, s{s_utb}, v16')
        p('s_mov_b32 exec_hi, 3')
        p(f'ds_write_b128 v16, {vr(ZR,4)}')
        p('s_mov_b32 exec_hi, -1')
    if UF1:
        x_publish()
        if opt.get('ubands', 1): bands_code()
        tr_a(); tr_b()
    elif O3:
        p('s_waitcnt lgkmcnt(0)')
        if XE: x_publish()
    elif not O2: tr_a()
    else:
        if not opt.get('zlate'): zero_ct()
        p('s_waitcnt lgkmcnt(0)')
        if XE: x_publish()
    p(f's_cmp_eq_u32 s{s_ch}, 0')
    p(f's_cselect_b32 s{s_tmp}, 16, 0')
    p(f's_lshl_b32 s{s_ldv}, s{s_ldv}, s{s_tmp}\ns_and_b32 s{s_ldv}, s{s_ldv}, 0xffff0000\ns_lshl_b32 s{s_dsv}, s{s_dsv}, s{s_tmp}\ns_and_b32 s{s_dsv}, s{s_dsv}, 0xffff0000')
    DT = 36
    p(f'v_mov_b32 v{t0}, s{s_ldv}\nv_mov_b32 v{t4}, {hex(LOG2E)}\nv_mul_f32 v{t1}, v{t4}, v{t0}')
    p(f'v_fma_f32 v{t2}, v{t0}, v{t4}, -v{t1}\nv_fmac_f32 v{t2}, 0x32a57060, v{t0}')
    p(f'v_exp_f32 v{t1}, v{t1}\nv_mul_f32 v{t2}, 0x3f317218, v{t2}\nv_fmac_f32 v{t1}, v{t1}, v{t2}')
    p(f'v_cvt_pk_bf16_f32 v{t1}, v{t1}, v{t1}\nv_and_b32 v{DT}, 0xffff0000, v{t1}')
    for i in range(6): p(f'v_lshlrev_b32 v{PAR+i}, 16, v{PAR+i}')
    for i in range(4): p(f'v_mul_f32 v{PAR+i}, v{PAR+i}, v{DT}')
    Xr = 40
    S = [40+2*i for i in range(8)]
    P1, P8, P128, Y, Y2, P16, TMP = 56, 58, 60, 62, 64, 66, 68
    p(f'v_mul_f32 v{S[0]}, v{PAR+4}, v{PAR+2}\nv_mul_f32 v{S[0]+1}, v{PAR+4}, v{PAR+3}')
    p(f'v_fma_f32 v{S[0]}, -v{PAR+5}, v{PAR+3}, v{S[0]}\nv_fmac_f32 v{S[0]+1}, v{PAR+5}, v{PAR+2}')
    p(f'v_mul_f32 v{PAR}, {hex(LOG2E)}, v{PAR}\nv_mul_f32 v{PAR+1}, 0.15915494, v{PAR+1}')
    for dst, L in ((P1, 1), (P8, 8), (P128, 128)):
        if L == 1: p(f'v_exp_f32 v{t0}, v{PAR}\nv_fract_f32 v{t1}, v{PAR+1}')
        else:
            import struct
            lf = hex(struct.unpack('<I', struct.pack('<f', float(L)))[0])
            p(f'v_mul_f32 v{t0}, {lf}, v{PAR}\nv_mul_f32 v{t1}, {lf}, v{PAR+1}\nv_exp_f32 v{t0}, v{t0}\nv_fract_f32 v{t1}, v{t1}')
        p(f'v_cos_f32 v{t2}, v{t1}\nv_sin_f32 v{t3}, v{t1}\nv_mul_f32 v{dst}, v{t0}, v{t2}\nv_mul_f32 v{dst+1}, v{t0}, v{t3}')
    if UD == 2:
        p('s_setprio 3'); u_issue(); p(f's_setprio {opt.get("prioA1", 0)}')
    vW = 26
    p(f's_mul_i32 s{s_tmp}, s{s_ch}, {KTCH}\ns_lshl_b32 s{s_tmp2}, s{s_nh}, 8\ns_add_u32 s{s_tmp}, s{s_tmp}, s{s_tmp2}')
    p(f'v_lshl_add_u32 v{vW}, v{vLane}, 2, s{s_tmp}\ns_mov_b32 m0, s{s_tmp}')
    XL = XE and not O3 and not UF1 and not O2
    if not O2 and not O3 and not XL and not UF1: tr_b()
    EARLY = opt.get('earlyA', 0) or UF1; EF = opt.get('earlyflag', 0)
    def flag_block():
        if not XE:
            p(f'v_readfirstlane_b32 s{s_E1}, v{vEp}')
            p(f's_add_u32 s{s_E1}, s{s_E1}, 1')
        p(f's_cmp_lg_u32 s{s_w}, 0\ns_cbranch_scc1 A_NOFLAG')
        for j in range(4): p(f'v_mov_b32 v{12+j}, s{s_xcc if j == 1 else s_E1}')
        p(f's_lshl_b32 s{s_tmp}, s{s_g}, 5\ns_add_u32 s{s_tmp}, s{s_tmp}, s{s_m}\ns_lshl_b32 s{s_tmp}, s{s_tmp}, {FS}\ns_add_u32 s{s_tmp}, s{s_tmp}, {WS_FLAG}')
        p(f's_mov_b64 exec, {FX_}')
        fst = f'buffer_store_dwordx4 v[12:15], v{vL16}, s[{sWS}:{sWS+3}], s{s_tmp} offen'
        if XE: p.ext(two_mode([fst]))
        else: p(fst + ' sc1')
        p('s_mov_b64 exec, -1')
        p('A_NOFLAG:')

    def poll_block():
        p(f'v_and_b32 v16, 31, v0\nv_lshlrev_b32 v16, {FS}, v16')
        p(f's_lshl_b32 s{s_tmp}, s{s_g}, {5+FS}\ns_add_u32 s{s_tmp}, s{s_tmp}, {WS_FLAG}\ns_mov_b32 s{s_sp}, 0')
        p(f's_lshl1_add_u32 s{s_tmp2}, s{s_m}, s{s_ch}\ns_lshl_b32 s{s_tmp2}, s{s_tmp2}, 11\ns_lshl_b32 s{s_tmp3}, s{s_g}, 7\ns_add_u32 s{s_so+2}, s{s_tmp2}, s{s_tmp3}')
        p(f's_lshl_b32 s{s_tmp2}, s{s_nh}, 21\ns_add_u32 s{s_tmp2}, s{s_tmp2}, s{s_so+2}\ns_add_u32 s{s_so+3}, s{s_tmp2}, 0x100000')
        p(f'v_lshrrev_b32 v14, 3, v{vLane}\nv_lshlrev_b32 v14, 17, v14\nv_and_b32 v15, 7, v0\nv_lshl_add_u32 v14, v15, 4, v14')
        p(f's_lshl_b32 s{s_tmp3}, s{s_nh}, 11\ns_add_u32 s{s_tmp3}, s{s_tmp3}, s{s_utb}\ns_add_u32 m0, s{s_tmp3}, {UPAD}')
        p('A_F_POLL:')
        p(f'buffer_load_dwordx2 v[12:13], v16, s[{sWS}:{sWS+3}], s{s_tmp} offen sc1')
        p(f's_add_u32 s{s_sp}, s{s_sp}, 1\ns_cmp_gt_u32 s{s_sp}, {SPIN_MAX}\ns_cbranch_scc1 A_F_GO')
        p(f'v_cmp_ne_u32 vcc, s{s_E1}, v12')
        p(f's_cbranch_vccz A_F_GO\ns_sleep {SLP}\ns_branch A_F_POLL')
        p('A_F_GO:')
        if not XE:
            p(f'v_cmp_ne_u32 vcc, s{s_xcc}, v13')
            p(f's_or_b32 s{s_mode}, vcc_lo, vcc_hi')
            if opt.get('slowA'): p(f's_mov_b32 s{s_mode}, 1')
            if not opt.get('ut_sc1'):
                p(f's_cmp_lg_u32 s{s_mode}, 0\ns_cbranch_scc1 A_F_SLOW')
        p('A_F_DMA:')
        p(f'buffer_load_dwordx4 v14, s[{sOUT}:{sOUT+3}], s{s_tmp2} offen sc1 lds')
        p(f's_add_u32 m0, s{s_tmp3}, {UPAD+1024}')
        p(f'buffer_load_dwordx4 v14, s[{sOUT}:{sOUT+3}], s{s_so+3} offen sc1 lds')

    stamp('a')
    cv = [76, 77, 78, 79]; cvn = [0]
    def cmul(dst, a, b, conj=False):
        if PK:
            if dst == a:
                L = [f'v_pk_mul_f32 {vr(TMP,2)}, {vr(a,2)}, {vr(b,2)} op_sel:[0,0] op_sel_hi:[1,0]']; acc = TMP
            else:
                L = [f'v_pk_mul_f32 {vr(dst,2)}, {vr(a,2)}, {vr(b,2)} op_sel:[0,0] op_sel_hi:[1,0]']; acc = dst
            neg = 'neg_hi:[0,1,0]' if conj else 'neg_lo:[0,1,0]'
            L.append(f'v_pk_fma_f32 {vr(dst,2)}, {vr(a,2)}, {vr(b,2)}, {vr(acc,2)} op_sel:[1,1,0] op_sel_hi:[0,1,1] {neg}')
            return L
        T = TMP + 2*(cvn[0] & 1)
        s1, s2 = ('', '-') if conj else ('-', '')
        return [f'v_mul_f32 v{T}, v{a+1}, v{b+1}', f'v_mul_f32 v{T+1}, v{a}, v{b+1}',
                f'v_fma_f32 v{dst}, v{a}, v{b}, {s1}v{T}', f'v_fma_f32 v{dst+1}, v{a+1}, v{b}, {s2}v{T+1}']
    def tabw(c, e):
        if opt.get('addtid', 1): return f'ds_write_addtid_b32 v{c} offset:{e*PITCH}'
        return f'ds_write_b32 v{vW}, v{c} offset:{e*PITCH}'
    def put(reg, e):
        c = cv[cvn[0] & 3]; cvn[0] += 1
        return [f'v_cvt_pk_bf16_f32 v{c}, v{reg}, v{reg+1}', tabw(c, e)]
    xs = []
    xs.append(put(S[0], 0))
    for o in range(1, 8): xs.append(cmul(S[o], S[o-1], P1) + put(S[o], o))
    for o in range(8): xs.append(cmul(S[o], S[o], P128) + put(S[o], 8+o))
    for k, o in enumerate((0, 2, 4, 6)): xs.append(cmul(S[o], S[o], P128) + put(S[o], 16+k))
    for k, o in enumerate((0, 2, 4, 6)): xs.append(cmul(S[o], S[o], P128) + put(S[o], 20+k))
    xs.append(cmul(S[0], S[0], P128) + put(S[0], 40))
    xs.append(cmul(S[4], S[4], P128) + put(S[4], 24))
    xs.append(cmul(S[0], S[0], P8) + put(S[0], 25))
    for i in range(1, 4):
        xs.append(cmul(S[4], S[4], P128) + put(S[4], 24+2*i))
        xs.append(cmul(S[0], S[0], P128) + put(S[0], 25+2*i))
    for i in range(8): xs.append(cmul(S[0], S[0], P128) + put(S[0], 32+i))
    ys = []
    ys.append([f'v_mov_b32 v{cv[0]}, 0x3f80', tabw(cv[0], 41)])
    ys.append([f'v_mov_b32 v{Y}, v{P8}', f'v_xor_b32 v{Y+1}, 0x80000000, v{P8+1}'] + put(Y, 42))
    for j in range(2, 16): ys.append(cmul(Y, Y, P8, conj=True) + put(Y, 41+j))
    def zipops(a, b):
        out = []
        for i in range(max(len(a), len(b))):
            if i < len(a): out.append(a[i])
            if i < len(b): out.append(b[i])
        return out
    yi = 0
    if not PK:
        def retmp(L, new): return [x.replace(f'v{TMP+3}', f'v{new+1}').replace(f'v{TMP+2}', f'v{new}').replace(f'v{TMP+1}', f'v{new+1}').replace(f'v{TMP}', f'v{new}') for x in L]
        ys = [retmp(y, 80) for y in ys]
    else:
        ys = [[x.replace(vr(TMP, 2), vr(80, 2)) for x in y] for y in ys]
    ys = [[x.replace(f'v{cv[0]}', 'v84').replace(f'v{cv[1]}', 'v85').replace(f'v{cv[2]}', 'v84').replace(f'v{cv[3]}', 'v85') for x in y] for y in ys]
    n = 0
    fl_at, po_at = opt.get('flag_at', 6), opt.get('poll_at', 27)
    while n < len(xs):
        if XL and n == opt.get('xi_at', 8): x_issue()
        if XE and O3 and n == opt.get('xi3', -1): x_issue()
        if opt.get('outtouch', 0) > 2 and n == opt['outtouch']: outtouch()
        if opt.get('mp_late', 0) > 2 and n == opt['mp_late']: mallpf_block(); p(f's_add_u32 s{s_ob+1}, s{s_ob}, 65536')
        if XL and n == opt.get('trb_at', 20): tr_b()
        if (EARLY or EF) and n == fl_at:
            p('s_waitcnt vmcnt(0)\ns_barrier')
            flag_block()
        if EARLY and n == po_at:
            upad(); poll_block()
            p(f's_mul_i32 s3, s{s_ch}, {KTCH}\ns_lshl_b32 s{s_tmp}, s{s_nh}, 8\ns_add_u32 m0, s3, s{s_tmp}')
        if n < 8 or n >= len(xs) - 8:
            p.ext(zipops(xs[n], ys[yi])); yi += 1; n += 1
        elif n in (24,):
            p.ext(zipops(xs[n], xs[n+1])); n += 2
        elif n == 26:
            p.ext(xs[n]); n += 1
        else:
            p.ext(zipops(xs[n], xs[n+1])); n += 2
    assert yi == 16
    if O3:
        if opt.get('mp_late') == 1: mallpf_block(); p(f's_add_u32 s{s_ob+1}, s{s_ob}, 65536')
        stamp('a')
        p(f's_setprio {opt.get("prioA3", 0)}')
        if opt.get('bands_first', 1): bands_code()
        tr_a(); tr_b()
        if not opt.get('bands_first', 1): bands_code()
    if UF1:
        p(f's_setprio {opt.get("prioA3", 0)}')
        if not opt.get('ubands', 1): bands_code()
    if O2:
        if opt.get('zlate'): zero_ct()
        if opt.get('touch_late') == 1: touch_block()
        if opt.get('mp_late') == 1: mallpf_block(); p(f's_add_u32 s{s_ob+1}, s{s_ob}, 65536')
        p(f's_setprio {opt.get("prioA3", 0)}')
    vR = 3
    p(f'v_and_b32 v{t1}, 15, v0\nv_mul_u32_u24 v{vR}, {PITCH}, v{t1}\nv_bfe_u32 v{t2}, v0, 4, 2\nv_lshl_add_u32 v{vR}, v{t2}, 4, v{vR}')
    p(f's_mul_i32 s{s_tmp}, s{s_ch}, {KTCH}\nv_add_u32 v{vR}, s{s_tmp}, v{vR}')
    if O2 == 1:
        if XE: x_issue()
        u_issue()
        if opt.get('bands_late'): bands_code()
    p(('s_waitcnt lgkmcnt(0)' if (EARLY or O2 or EF) else 's_waitcnt vmcnt(0) lgkmcnt(0)') + '\ns_barrier')
    kg_state = p.save_state(); p.restore_state(kg_state)
    stamp()
    if not EARLY and not O2 and not EF: flag_block()
    FR = 44
    D0, D1 = 28, 32
    j_, q_ = t1, t2
    p(f's_cmp_lg_u32 s{s_nh}, 0\ns_cbranch_scc1 A_KG1')
    def rdk(dst, e0, ks): return f'ds_read_b128 {vr(dst,4)}, v{vR} offset:{e0*PITCH+64*ks}'
    for ks in range(4):
        p(rdk(FR+12*ks, 41, ks)); p(rdk(FR+12*ks+4, 16, ks)); p(rdk(FR+12*ks+8, 0, ks))
    aW0, aW1, aG4, vDs = 6, 7, 8, 9
    p(f'v_lshrrev_b32 v{aW0}, 1, v{q_}\nv_lshlrev_b32 v{aW0}, 5, v{aW0}\nv_and_b32 v{aW1}, 1, v{q_}\nv_add_u32 v{aW0}, v{aW0}, v{aW1}')
    p(f'v_lshl_add_u32 v{aW0}, v{j_}, 1, v{aW0}\nv_lshlrev_b32 v{aW0}, 3, v{aW0}')
    p(f's_add_u32 s{s_tmp}, s{s_ctb}, {KR0+1064}\nv_sub_u32 v{aW0}, s{s_tmp}, v{aW0}')
    p(f'v_lshlrev_b32 v{aW1}, 4, v{q_}\nv_add_u32 v{aW1}, v{aW1}, v{j_}\nv_lshlrev_b32 v{aW1}, 4, v{aW1}')
    p(f's_add_u32 s{s_tmp}, s{s_ctb}, {KR0+1056-512}\nv_sub_u32 v{aW1}, s{s_tmp}, v{aW1}')
    p(f'v_lshlrev_b32 v{aG4}, 5, v{q_}\nv_add_u32 v{aG4}, v{aG4}, v{j_}\nv_lshlrev_b32 v{aG4}, 2, v{aG4}')
    p(f's_add_u32 s{s_tmp}, s{s_ctb}, {G4B+128-256}\nv_add_u32 v{aG4}, s{s_tmp}, v{aG4}')
    p(f'v_mov_b32 v{vDs}, 0\nv_mov_b32 v10, s{s_dsv}\ns_mov_b64 s[{s_msk}:{s_msk+1}], 1\nv_cndmask_b32 v{vDs}, v{vDs}, v10, s[{s_msk}:{s_msk+1}]')
    for ks in range(8):
        b = FR + 12*(ks & 3)
        p(f'v_mfma_f32_16x16x32_bf16 {vr(D1,4)}, {vr(b+4,4)}, {vr(b,4)}, {"0" if ks==0 else vr(D1,4)}')
        p(f'v_mfma_f32_16x16x32_bf16 {vr(D0,4)}, {vr(b+8,4)}, {vr(b,4)}, {"0" if ks==0 else vr(D0,4)}')
        if ks < 4:
            p(rdk(b, 41, ks+4)); p(rdk(b+4, 16, ks+4)); p(rdk(b+8, 0, ks+4))
    cA, cB, cC, cD, cE, cF = 12, 13, 14, 15, 16, 17
    p(f'v_cvt_pk_bf16_f32 v{cA}, v{D1+2}, v{D1+2}')
    p(f'v_cvt_pk_bf16_f32 v{cB}, v{D1+1}, v{D1}')
    p(f'v_cvt_pk_bf16_f32 v{cC}, v{D1+2}, v{D1+1}')
    p(f'v_cvt_pk_bf16_f32 v{cD}, v{D1}, v{D1}')
    p(f'v_cvt_pk_bf16_f32 v{cE}, v{D1+3}, v{D1+2}')
    p(f'v_cvt_pk_bf16_f32 v{cF}, v{D1+3}, v{D1+3}')
    p('s_mov_b32 exec_hi, 0')
    p(f'ds_write_b16 v{aW1}, v{cE} offset:2\nds_write_b32 v{aW1}, v{cA} offset:4\nds_write_b64 v{aW1}, {vr(cC,2)} offset:8\nds_write_b16 v{aW1}, v{cD} offset:16')
    p(f'ds_write_b32 v{aW1}, v{cE} offset:{KR1+4}\nds_write_b64 v{aW1}, {vr(cA,2)} offset:{KR1+8}\nds_write_b32 v{aW1}, v{cD} offset:{KR1+16}')
    p('s_mov_b32 exec_lo, 0\ns_mov_b32 exec_hi, 0x80000000')
    p(f'v_mov_b32 v18, s{s_ctb}\nds_write_b32 v18, v{cF} offset:{F1K}\nv_mov_b32 v{D1+3}, 0')
    p('s_mov_b32 exec_hi, -1')
    p(f'v_cvt_pk_bf16_f32 v{cA}, v{D1}, v{D1+1}\nv_cvt_pk_bf16_f32 v{cB}, v{D1+2}, v{D1+3}')
    p(f'ds_write_b32 v{aG4}, v{cA}\nds_write_b32 v{aG4}, v{cB} offset:64')
    p('s_mov_b32 exec_lo, -1')
    p(f'v_add_f32 v{D0}, v{D0}, v{vDs}')
    p(f'v_cvt_pk_bf16_f32 v{cC}, v{D0+3}, v{D0+2}\nv_cvt_pk_bf16_f32 v{cD}, v{D0+1}, v{D0}\nv_cvt_pk_bf16_f32 v{cE}, v{D0+2}, v{D0+1}')
    p(f'ds_write_b64 v{aW0}, {vr(cC,2)}')
    p(f'ds_write_b16 v{aW0}, v{cC} offset:{KR1+2}\nds_write_b32 v{aW0}, v{cE} offset:{KR1+4}\nds_write_b16_d16_hi v{aW0}, v{cD} offset:{KR1+8}')
    p('s_branch A_KG2')
    p.assume_clean()
    p('A_KG1:')
    for ks in range(8):
        if ks < 6: p(rdk(FR+8*ks, 41, ks)); p(rdk(FR+8*ks+4, 32, ks))
    if not O2 and not EARLY: upad()
    p(f'v_lshlrev_b32 v8, 2, v{j_}\nv_add_u32 v8, v8, v{q_}\nv_lshlrev_b32 v8, 3, v8\ns_add_u32 s{s_tmp}, s{s_ctb}, {G8B+64}\nv_add_u32 v8, s{s_tmp}, v8')
    for ks in range(8):
        b = FR + 8*(ks % 6)
        p(f'v_mfma_f32_16x16x32_bf16 {vr(D0,4)}, {vr(b,4)}, {vr(b+4,4)}, {"0" if ks==0 else vr(D0,4)}')
        if ks < 2: p(rdk(b, 41, ks+6)); p(rdk(b+4, 32, ks+6))
    p(f'v_mov_b32 v18, s{s_ctb}')
    p(f'v_cvt_pk_bf16_f32 v{cA}, v{D0}, v{D0+1}\nv_cvt_pk_bf16_f32 v{cB}, v{D0+2}, v{D0+3}\nv_cvt_pk_bf16_f32 v{cC}, v{D0}, v{D0}\nv_cvt_pk_bf16_f32 v{cD}, v{D0}, v{D0}')
    p('s_mov_b32 exec_lo, 0x00ff00ff\ns_mov_b32 exec_hi, 0x00ff00ff')
    p(f'ds_write_b64 v8, {vr(cA,2)}')
    p('s_mov_b64 exec, 0x100')
    p(f'ds_write_b16 v18, v{cC} offset:{KR0+42}\nds_write_b32 v18, v{cC} offset:{KR0+44}\nds_write_b16 v18, v{cC} offset:{KR0+48}')
    p(f'ds_write_b32 v18, v{cC} offset:{KR1+44}\nds_write_b32 v18, v{cC} offset:{KR1+48}')
    p('s_mov_b64 exec, -1')
    p('A_KG2:')
    if opt.get('prioA0'): p(f's_setprio {opt.get("prioA2", 0)}')
    p('s_waitcnt lgkmcnt(0)')
    p.assume_clean()
    if O2: p.restore_state(kg_state); p('s_waitcnt lgkmcnt(0)')
    stamp()
    if O2 == 2:
        if XE: x_issue()
        if opt.get('touch_late') == 2: touch_block()
        if opt.get('mp_late') == 2: mallpf_block(); p(f's_add_u32 s{s_ob+1}, s{s_ob}, 65536')
        u_issue()
        if opt.get('bands_late'): bands_code()
    if not EARLY and not O2: poll_block()
    vU, vK0, vK1, vG4, vG8 = 3, 6, 7, 8, 9
    p(f'v_lshlrev_b32 v{vU}, 1, v{j_}\nv_add_u32 v{vU}, v{vU}, v{q_}\nv_lshlrev_b32 v{vU}, 4, v{vU}\nv_add_u32 v{vU}, s{s_utb}, v{vU}')
    p(f'v_lshlrev_b32 v10, 3, v{q_}\nv_sub_u32 v10, v10, v{j_}\nv_lshlrev_b32 v10, 1, v10')
    p(f'v_and_b32 v11, 1, v0\nv_mul_u32_u24 v11, {KR1+2}, v11\nv_sub_u32 v10, v10, v11')
    p(f's_add_u32 s{s_tmp}, s{s_ctb}, {KR1+1056-512}\nv_add_u32 v{vK0}, s{s_tmp}, v10\nv_subrev_u32 v{vK1}, 512, v{vK0}')
    p(f'v_lshlrev_b32 v10, 2, v{q_}\nv_sub_u32 v10, v{j_}, v10')
    p(f's_add_u32 s{s_tmp}, s{s_ctb}, {G4B+8}\nv_lshl_add_u32 v{vG4}, v10, 3, s{s_tmp}\nv_add_u32 v{vG4}, 96, v{vG4}')
    p(f's_add_u32 s{s_tmp}, s{s_ctb}, {G8B+4}\nv_lshl_add_u32 v{vG8}, v10, 2, s{s_tmp}\nv_add_u32 v{vG8}, 48, v{vG8}')
    vY = 26
    p(f'v_and_b32 v10, 1, v{q_}\nv_lshrrev_b32 v11, 2, v{j_}\nv_lshl_add_u32 v10, v10, 2, v11\nv_lshlrev_b32 v{vY}, 17, v10')
    p(f'v_lshrrev_b32 v10, 1, v{q_}\nv_and_b32 v11, 3, v0\nv_lshl_add_u32 v10, v10, 2, v11\nv_lshl_add_u32 v{vY}, v10, 4, v{vY}')
    xw, xr = 252, 253
    p(f's_lshl_b32 s{s_tmp}, s{s_w}, 12\ns_xor_b32 s{s_tmp2}, s{s_tmp}, 4096')
    p(f'v_add_u32 v{xw}, s{s_tmp}, v{vL16}\nv_add_u32 v{xr}, s{s_tmp2}, v{vL16}')
    if O2:
        tr_a(); tr_b()
        p('s_waitcnt vmcnt(0) lgkmcnt(0)\ns_barrier')
        flag_block(); poll_block()
    p('s_waitcnt vmcnt(0)\ns_barrier')
    stamp()
    ACC = 28
    KF = 60
    UF = 128
    def acc(t): return vr(ACC+4*t, 4)
    def rdK(s):
        a, o = (vK0, 16*(8-s)) if s <= 8 else (vK1, 16*(16-s))
        return [f'ds_read2_b32 {vr(KF+4*s,2)}, v{a} offset0:{o} offset1:{o+1}', f'ds_read2_b32 {vr(KF+4*s+2,2)}, v{a} offset0:{o+2} offset1:{o+3}']
    def rdU(n, slot): return f'ds_read_b128 {vr(UF+4*slot,4)}, v{vU} offset:{64*n+512}'
    started = set()
    def mf(t, A, B):
        c = acc(t) if t in started else '0'
        started.add(t)
        return f'v_mfma_f32_16x16x32_bf16 {acc(t)}, {vr(A,4)}, {vr(B,4)}, {c}'
    YP = 12
    def ypack(t, r):
        L = [f'v_cvt_pk_bf16_f32 v{r}, v{ACC+4*t}, v{ACC+4*t+1}', f'v_cvt_pk_bf16_f32 v{r+1}, v{ACC+4*t+2}, v{ACC+4*t+3}',
             f'v_cvt_pk_bf16_f32 v{r+2}, v{ACC+4*t+4}, v{ACC+4*t+5}', f'v_cvt_pk_bf16_f32 v{r+3}, v{ACC+4*t+6}, v{ACC+4*t+7}',
             f's_add_u32 s{s_so+(t>>1&1)}, s{s_so+2}, {t << 19}',
             f'v_permlane16_swap_b32 v{r}, v{r+2}', f'v_permlane16_swap_b32 v{r+1}, v{r+3}']
        return L
    def yst(t, r): return f'buffer_store_dwordx4 {vr(r,4)}, v{vY}, s[{sOUT}:{sOUT+3}], s{s_so+(t>>1&1)} offen'
    p(f's_cmp_lg_u32 s{s_nh}, 0\ns_cbranch_scc1 A_CONV_P')
    PREU = 5
    FX = 160
    p(f'v_mov_b32 v18, s{s_ctb}\nds_read_b32 v{FX+4}, v18 offset:{F1K}')
    order = [-8] + list(range(0, 57))
    korder = list(range(16, -1, -1))
    pro = []
    kq = list(korder)
    p(rdU(order[0], 0))
    p.ext(rdK(kq.pop(0)))
    for i in range(1, PREU):
        p(rdU(order[i], i)); p.ext(rdK(kq.pop(0)))
    for j in range(4): p(f'v_and_b32 v{FX+j}, v{FIXM+j}, v{FX+4}')
    for i, n in enumerate(order):
        sl = UF + 4*(i % 8)
        ms = []
        if n >= 0:
            for t in range(2, 8):
                s = 8*t - n
                if 0 <= s <= 16: ms.append(mf(t, KF+4*s, sl))
        if n % 8 == 0 and -8 <= n <= 24: ms.append(mf((n+32)//8, FX, sl))
        nxt = []
        if i + PREU < len(order): nxt.append(rdU(order[i+PREU], (i+PREU) % 8))
        if kq: nxt += rdK(kq.pop(0))
        p(ms[0]); p.ext(nxt); p.ext(ms[1:])
    for k, t in enumerate((2, 3)): p(f'ds_write_b128 v{xw}, {acc(t)} offset:{XCH+1024*k}')
    p('s_waitcnt lgkmcnt(0)\ns_barrier')
    for k in range(4): p(f'ds_read_b128 {vr(UF+4*k,4)}, v{xr} offset:{XCH+1024*k}')
    for k, t in enumerate((4, 5, 6, 7)):
        for j in range(4): p(f'v_add_f32 v{ACC+4*t+j}, v{ACC+4*t+j}, v{UF+4*k+j}')
        if k & 1: p.ext(ypack(t-1, YP+2*(k-1)))
    p.ext(two_mode([yst(4, YP), yst(6, YP+4)]))
    p('s_branch A_CONV_END')
    p.assume_clean()
    started.clear()
    p('A_CONV_P:')
    G4F = 160
    G8F = 184
    WD = 200
    WFR = 252
    order = list(range(-8, 9))
    kneed = []
    for n in order:
        for s in ([8-n] + ([-n] if n <= 0 else [])):
            if s not in kneed: kneed.append(s)
    kq = list(kneed)
    extra = []
    for d in range(3):
        for i in range(4): extra.append(f'ds_read_b64 {vr(G4F+8*d+2*i,2)}, v{vG4} offset:{128*d+8*(3-i)}')
    for d in range(4):
        extra.append(f'ds_read2_b32 {vr(G8F+4*d,2)}, v{vG8} offset0:{16*d+3} offset1:{16*d+2}')
        extra.append(f'ds_read2_b32 {vr(G8F+4*d+2,2)}, v{vG8} offset0:{16*d+1} offset1:{16*d}')
    PP = 3
    for i in range(PP):
        p(rdU(order[i], i)); p.ext(rdK(kq.pop(0))); p.ext(rdK(kq.pop(0)))
    for i, n in enumerate(order):
        sl = UF + 4*(i % 8)
        ms = [mf(1, KF+4*(8-n), sl)]
        if n <= 0: ms.append(mf(0, KF+4*(-n), sl))
        nxt = []
        if i + PP < len(order): nxt.append(rdU(order[i+PP], (i+PP) % 8))
        for _ in range(2):
            if kq: nxt += rdK(kq.pop(0))
        if not kq:
            for _ in range(3):
                if extra: nxt.append(extra.pop(0))
        p(ms[0]); p.ext(nxt); p.ext(ms[1:])
    p.ext(extra)
    FA = [UF, UF+8, UF+16]; FB = [UF+4, UF+12, UF+20]
    def rdF(be): return [f'ds_read_b128 {vr(FA[be%3],4)}, v{vU} offset:{512*be+496}', f'ds_read_b128 {vr(FB[be%3],4)}, v{vU} offset:{512*be+480}']
    def win(be):
        fa, fb = FA[be % 3], FB[be % 3]
        L = [f'v_mfma_f32_16x16x32_bf16 {vr(WD+4*c,4)}, {vr(fa if c<3 else fb,4)}, {vr(BC[c],4)}, 0' for c in range(4)]
        if be < 4:
            L += [f'v_mfma_f32_16x16x32_bf16 {vr(WD+16,4)}, {vr(fa,4)}, {vr(B7,4)}, 0', f'v_mfma_f32_16x16x32_bf16 {vr(WD+20,4)}, {vr(fb,4)}, {vr(B9,4)}, 0']
        return L
    def wfr(be): return KF + 12*(be & 1)
    def cvts(be):
        w = wfr(be); L = []
        for i in range(4):
            L.append(f'v_cvt_pk_bf16_f32 v{w+2*i}, v{WD+i}, v{WD+4+i}')
            L.append(f'v_cvt_pk_bf16_f32 v{w+2*i+1}, v{WD+8+i}, v{WD+12+i}')
        if be < 4:
            for i in range(4): L.append(f'v_cvt_pk_bf16_f32 v{w+8+i}, v{WD+16+i}, v{WD+20+i}')
        return L
    def cons(be):
        w = wfr(be); L = []
        for d in range(3):
            if be + d <= 5:
                L.append(mf(2+be+d, w, G4F+8*d)); L.append(mf(2+be+d, w+4, G4F+8*d+4))
        if be < 4:
            for d in range(4):
                if be + d <= 3: L.append(mf(4+be+d, w+8, G8F+4*d))
        return L
    p.ext(rdF(0)); p.ext(rdF(1))
    p.ext(win(0)); p.ext(rdF(2))
    p.ext(cvts(0))
    for be in range(6):
        if be < 5:
            p.ext(win(be+1))
            if be + 3 <= 5: p.ext(rdF(be+3))
            c = cons(be); cv_ = cvts(be+1)
            k = min(3, len(c))
            p.ext(c[:k])
            if be == 0: p.ext(ypack(0, YP))
            p.ext(interleave(c[k:], cv_) if len(c) > k else cv_)
        else: p.ext(cons(be))
    for k, t in enumerate((4, 5, 6, 7)): p(f'ds_write_b128 v{xw}, {acc(t)} offset:{XCH+1024*k}')
    p('s_waitcnt lgkmcnt(0)\ns_barrier')
    for k in range(2): p(f'ds_read_b128 {vr(UF+4*k,4)}, v{xr} offset:{XCH+1024*k}')
    for k, t in enumerate((2, 3)):
        for j in range(4): p(f'v_add_f32 v{ACC+4*t+j}, v{ACC+4*t+j}, v{UF+4*k+j}')
    p.ext(ypack(2, YP+4))
    p.ext(two_mode([yst(0, YP), yst(2, YP+4)]))
    p('A_CONV_END:')
    p.assume_clean()
    stamp()
    F1, F2 = 16384, 16384 + 8192
    FV = 28
    for j in range(4): p(f'v_mov_b32 v{FV+j}, s{s_E1}')
    p(f's_lshl_b32 s{s_tmp}, s{s_g}, 5\ns_add_u32 s{s_tmp}, s{s_tmp}, s{s_m}\ns_lshl2_add_u32 s{s_tmp}, s{s_tmp}, s{s_w}\ns_lshl_b32 s{s_tmp}, s{s_tmp}, {FS}\ns_add_u32 s{s_tmp}, s{s_tmp}, {WS_YF}')
    p(f'v_and_b32 v3, 7, v0\nv_bfe_u32 v4, v0, 3, 1\nv_lshl_add_u32 v3, v4, 5, v3\nv_lshlrev_b32 v3, {FS+1}, v3')
    p(f's_cmp_lt_u32 s{s_m}, 16\ns_cselect_b32 s{s_tmp2}, {1<<FS}, 0\ns_lshl_b32 s{s_tmp3}, s{s_g}, 3\ns_add_u32 s{s_tmp3}, s{s_tmp3}, s{s_w}\ns_lshl_b32 s{s_tmp3}, s{s_tmp3}, {FS+4}\ns_add_u32 s{s_tmp2}, s{s_tmp2}, s{s_tmp3}\ns_add_u32 s{s_so}, s{s_tmp2}, {WS_YF}')
    p(f'v_bfe_u32 v4, v0, 4, 1\nv_lshlrev_b32 v4, 2, v4\nv_and_b32 v5, 7, v0\nv_xor_b32 v4, v4, v5\nv_lshlrev_b32 v4, 4, v4\nv_lshrrev_b32 v5, 3, v0\nv_lshl_add_u32 v4, v5, 11, v4')
    p(f's_lshl_b32 s{s_tmp2}, s{s_w}, 10\ns_add_u32 m0, s{s_tmp2}, {F1}')
    p('s_waitcnt vmcnt(0)')
    p(f's_mov_b64 exec, {FX_}')
    p.ext(two_mode([f'buffer_store_dwordx4 {vr(FV,4)}, v{vL16}, s[{sWS}:{sWS+3}], s{s_tmp} offen']))
    p('s_mov_b64 exec, -1')
    p(f'v_subrev_u32 v{trA}, {ST1-F1}, v{trA}')
    p(f'v_bfe_u32 v6, v0, 3, 2\nv_lshlrev_b32 v6, 4, v6\nv_bfe_u32 v7, v0, 5, 1\nv_lshl_add_u32 v6, v7, 3, v6\nv_and_b32 v7, 7, v0\nv_add_u32 v6, v6, v7')
    p(f's_lshl_b32 s{s_tmp}, s{s_w}, 1\nv_xor_b32 v7, s{s_tmp}, v7\nv_lshlrev_b32 v7, 4, v7\nv_lshl_add_u32 v6, v6, 7, v7\nv_add_u32 v6, {F2}, v6\nv_xor_b32 v7, 16, v6')
    p(f'v_lshlrev_b32 v9, 4, v0')
    p(f's_mov_b32 s{s_sp}, 0')
    p('A_Y_POLL:')
    p(f'buffer_load_dword v18, v3, s[{sWS}:{sWS+3}], s{s_so} offen sc1')
    p(f's_add_u32 s{s_sp}, s{s_sp}, 1\ns_cmp_gt_u32 s{s_sp}, {SPIN_MAX}\ns_cbranch_scc1 A_Y_LOAD')
    p(f'v_cmp_ne_u32 vcc, s{s_E1}, v18')
    p(f's_cbranch_vccz A_Y_LOAD\ns_sleep {SLP}\ns_branch A_Y_POLL')
    p('A_Y_LOAD:')
    p(f'buffer_load_dwordx4 v4, s[{sOUT}:{sOUT+3}], s{s_ob} offen sc1 lds')
    p(f's_add_u32 m0, s{s_tmp2}, {F1+4096}')
    p(f'buffer_load_dwordx4 v4, s[{sOUT}:{sOUT+3}], s{s_ob+1} offen sc1 lds')
    p('s_waitcnt vmcnt(0)\ns_barrier')
    stamp()
    for rd in range(4): p(f'ds_read_b64_tr_b16 {vr(UB+2*rd,2)}, v{trA} offset:{512*rd}')
    p(f'ds_write_b128 v6, {vr(UB,4)}\nds_write_b128 v7, {vr(UB+4,4)}')
    p('s_waitcnt lgkmcnt(0)\ns_barrier')
    p(f'ds_read_b128 v[52:55], v9 offset:{F2}\nds_read_b128 v[56:59], v9 offset:{F2+4096}')
    p('s_waitcnt lgkmcnt(0)')
    fin = [f'buffer_store_dwordx4 v[52:55], v{gUT}, s[{sOUT}:{sOUT+3}], s{s_ob} offen', f'buffer_store_dwordx4 v[56:59], v{gUT}, s[{sOUT}:{sOUT+3}], s{s_ob+1} offen']
    if opt.get('outflagA'): p.ext([x + ' ' + opt['outflagA'] for x in fin])
    else: p.ext(two_mode(fin))
    p(f's_or_b32 s{s_tmp}, s{s_m}, s{s_w}\ns_cmp_lg_u32 s{s_tmp}, 0\ns_cbranch_scc1 A_END')
    p(f'v_mov_b32 v10, s{s_E1}\nv_mov_b32 v11, 0\ns_lshl_b32 s{s_tmp}, s{s_g}, 8\ns_mov_b64 exec, 1')
    p(f'buffer_store_dword v10, v11, s[{sWS}:{sWS+3}], s{s_tmp} offen offset:{WS_EA} sc1')
    if opt.get('wbl2'): p('s_waitcnt vmcnt(0)\nbuffer_wbl2 sc1')
    p('A_END:')
    if opt.get('stamps'):
        p('s_mov_b64 exec, -1')
        p('s_waitcnt vmcnt(0)')
        p('s_memtime s[100:101]\ns_memrealtime s[76:77]\ns_waitcnt lgkmcnt(0)')
        for k in range(11): p(f'v_mov_b32 v{16+k}, s{80+2*k}')
        p('v_mov_b32 v27, s78\nv_mov_b32 v28, s76\n' + f'v_mov_b32 v29, s{s_sp}')
        p(f's_lshl_b32 s{s_tmp}, s2, 8\ns_lshl_b32 s{s_tmp2}, s{s_w}, 6\ns_add_u32 s{s_tmp}, s{s_tmp}, s{s_tmp2}\ns_add_u32 s{s_tmp}, s{s_tmp}, {WS_STAMP}')
        p('v_mov_b32 v0, 0\ns_mov_b64 exec, 1')
        for k in range(4): p(f'buffer_store_dwordx4 v[{16+4*k}:{19+4*k}], v0, s[{sWS}:{sWS+3}], s{s_tmp} offen offset:{16*k}')
    p('s_endpgm')
    p.assume_clean()
    if XE:
        p('A_X_AGAIN:')
        p(f's_add_u32 s{s_sp}, s{s_sp}, 1\ns_cmp_gt_u32 s{s_sp}, {SPIN_MAX}\ns_cbranch_scc1 A_X_OK\ns_sleep 8')
        p(f'buffer_load_dwordx2 {vr(XW+6,2)}, v{XW+4}, s[{sWS}:{sWS+3}], s73 offen sc1\ns_waitcnt vmcnt(0)\ns_branch A_X_CHK')
        p.assume_clean()
    elif not opt.get('ut_sc1'):
        p('A_F_SLOW:')
        p(f'buffer_store_dwordx4 {vr(UB,4)}, v{gUT}, s[{sOUT}:{sOUT+3}], s{s_ob} offen sc1')
        p(f'buffer_store_dwordx4 {vr(UB+4,4)}, v{gUT}, s[{sOUT}:{sOUT+3}], s{s_ob+1} offen sc1')
        for j in range(4): p(f'v_mov_b32 v{104+j}, s{s_E1}')
        p(f's_lshl_b32 s73, s{s_g}, 5\ns_add_u32 s73, s73, s{s_m}\ns_lshl2_add_u32 s73, s73, s{s_w}\ns_lshl_b32 s73, s73, 7\ns_add_u32 s73, s73, {WS_FLAG2}')
        p('s_waitcnt vmcnt(0)\ns_mov_b64 exec, 0xff')
        p(f'buffer_store_dwordx4 v[104:107], v{vL16}, s[{sWS}:{sWS+3}], s73 offen sc1')
        p('s_mov_b64 exec, -1')
        p(f's_lshl_b32 s73, s{s_g}, 14\ns_add_u32 s73, s73, {WS_FLAG2}\ns_add_u32 s74, s73, 8192\nv_lshlrev_b32 v16, 3, v{vL16}')
        p('A_F_POLL2:')
        p(f'buffer_load_dword v12, v16, s[{sWS}:{sWS+3}], s73 offen sc1')
        p(f'buffer_load_dword v13, v16, s[{sWS}:{sWS+3}], s74 offen sc1')
        p(f's_add_u32 s{s_sp}, s{s_sp}, 1\ns_cmp_gt_u32 s{s_sp}, {SPIN_MAX}\ns_cbranch_scc1 A_F_DMA')
        p(f'v_xor_b32 v12, s{s_E1}, v12\nv_xor_b32 v13, s{s_E1}, v13\nv_or_b32 v12, v12, v13\nv_cmp_ne_u32 vcc, 0, v12')
        p('s_cbranch_vccz A_F_DMA\ns_sleep 2\ns_branch A_F_POLL2')
        p.assume_clean()
```

```python
from asmdsl import Prog, interleave, slotted
from common import *

RA, RB, ST = 0, 32768, 65536
KT = ST
ZERO = ST + 3200

def vr(a, n): return f'v[{a}:{a+n-1}]'
def L_(txt): return [x for x in txt.split('\n') if x.strip()]

def genB(p, opt):
    stamp_n = [0]
    def stamp(kind='main'):
        if kind != opt.get('stampset', 'main') and not (kind == 'main' and stamp_n[0] == 0): return
        if opt.get('amp') and stamp_n[0] == opt.get('amp_at', -1): p('s_memrealtime s[76:77]\ns_waitcnt lgkmcnt(0)\ns_mov_b32 s99, s76')
        if opt.get('amp'): stamp_n[0] += 1
        if opt.get('stamps'):
            k = stamp_n[0]; stamp_n[0] += 1
            p(f's_memtime s[{80+2*k}:{81+2*k}]') if k < 10 else None
    cap = [opt.get('vmcap', 0)]
    def ext2(L):
        for x in L:
            if isinstance(x, tuple) and x[0] == 'dma':
                p(x[1])
                if cap[0]: p(f's_waitcnt vmcnt({cap[0]})')
                p(x[2], tok=x[3])
            else: p.ext([x])
    sX, sW, sP, sO, sOUT, sWS = 8, 12, 16, 20, 24, 28
    s_rb, s_hp, s_w, s_loc, s_xcd = 32, 33, 34, 35, 36
    s_m0b, s_st = 37, 38
    s_p1 = 39
    s_xo = 40
    s_wo = 48
    s_t = 56
    s_E1 = 60
    s_tmp, s_tmp2, s_tmp3 = 61, 62, 63
    s_c = 64
    s_p2 = 65
    s_msk = 66
    s_sp, s_rdy = 68, 69
    s_so = 70
    s_rt, s_ct, s_oo = 74, 75, 76
    s_pf = 16
    s_F, s_H = 4, 5
    s_xcc, s_mode = 77, 69
    JKV = opt.get('jkv', 0)
    GRP = opt.get('grp', 0)
    LOC2 = opt.get('local2', 0); INP = opt.get('inplace', 0)
    assert LOC2 or not INP
    ACC0, ACC1, P, WF, PA, E, X = 16, 32, 48, 64, 88, 96, 128
    NSL = 6
    vA1, vA2 = 8, 12
    vTR, vTRv, vWg, vL16, vEp = 1, 2, 3, 4, 5
    vT0, vT1 = 6, 7
    a0, b0, pa, va, sa, vMask, hA, hZ = PA, PA+1, PA+2, PA+3, PA+4, PA+5, PA+6, PA+7
    vXg = E; vSR = E + 4
    t0, t1, t2, t3, t4, t5 = E + 8, E + 9, E + 10, E + 11, E + 12, E + 13
    LD = opt.get('ldflag', '')

    p('B_ROLE:')
    p(f's_load_dwordx4 s[{sX}:{sX+3}], s[0:1], 72')
    p(f's_load_dwordx2 s[{sP}:{sP+1}], s[0:1], 88')
    p(f's_load_dwordx2 s[{sO}:{sO+1}], s[0:1], 96')
    p(f's_load_dwordx2 s[{sOUT}:{sOUT+1}], s[0:1], 104')
    p(f's_load_dwordx2 s[{sWS}:{sWS+1}], s[0:1], 120')
    if opt.get('stamps') or opt.get('amp') or opt.get('skew'): p('s_memrealtime s[78:79]')
    stamp()
    if opt.get('prioB0'): p(f's_setprio {opt["prioB0"]}')
    p(f'v_lshrrev_b32 v{t0}, 6, v0')
    p(f's_and_b32 s{s_xcd}, s2, 7\ns_lshr_b32 s{s_loc}, s2, 3')
    p(f'v_readfirstlane_b32 s{s_w}, v{t0}')
    if opt.get('map', '4x8') == '8x4':
        p(f's_and_b32 s{s_tmp}, s{s_xcd}, 1\ns_lshl_b32 s{s_tmp}, s{s_tmp}, 3\ns_and_b32 s{s_tmp2}, s{s_loc}, 7\ns_add_u32 s{s_rb}, s{s_tmp}, s{s_tmp2}')
        p(f's_lshr_b32 s{s_tmp}, s{s_xcd}, 1\ns_lshl_b32 s{s_tmp}, s{s_tmp}, 2\ns_lshr_b32 s{s_tmp3}, s{s_loc}, 3\ns_add_u32 s{s_hp}, s{s_tmp}, s{s_tmp3}')
        p(f's_lshl_b32 s{s_tmp3}, s{s_tmp3}, 1\ns_add_u32 s{s_tmp}, s{s_tmp2}, s{s_tmp3}\ns_and_b32 s{s_tmp}, s{s_tmp}, 7')
    elif opt.get('map') == '16x2':
        p(f's_and_b32 s{s_rb}, s{s_loc}, 15\ns_lshr_b32 s{s_tmp3}, s{s_loc}, 4\ns_lshl1_add_u32 s{s_hp}, s{s_xcd}, s{s_tmp3}')
        p(f's_lshl2_add_u32 s{s_tmp}, s{s_tmp3}, s{s_xcd}\ns_add_u32 s{s_tmp}, s{s_tmp}, s{s_rb}\ns_and_b32 s{s_tmp}, s{s_tmp}, 7')
    elif opt.get('map') == '8x4b':
        p(f's_and_b32 s{s_tmp}, s{s_xcd}, 1\ns_lshl_b32 s{s_tmp}, s{s_tmp}, 3\ns_and_b32 s{s_tmp2}, s{s_loc}, 7\ns_add_u32 s{s_rb}, s{s_tmp}, s{s_tmp2}')
        p(f's_lshr_b32 s{s_tmp}, s{s_xcd}, 1\ns_lshr_b32 s{s_tmp3}, s{s_loc}, 3\ns_lshl2_add_u32 s{s_hp}, s{s_tmp}, s{s_tmp3}')
        p(f's_and_b32 s{s_tmp}, s{s_tmp}, 1\ns_add_u32 s{s_tmp2}, s{s_tmp2}, s{s_tmp}\ns_lshl1_add_u32 s{s_tmp}, s{s_tmp3}, s{s_tmp2}\ns_and_b32 s{s_tmp}, s{s_tmp}, 7')
    elif opt.get('map') == '2x16':
        p(f's_and_b32 s{s_tmp2}, s{s_loc}, 1\ns_lshl1_add_u32 s{s_rb}, s{s_xcd}, s{s_tmp2}\ns_lshr_b32 s{s_hp}, s{s_loc}, 1')
        p(f's_and_b32 s{s_tmp}, s{s_hp}, 1\ns_lshl1_add_u32 s{s_tmp}, s{s_tmp}, s{s_tmp2}\ns_lshr_b32 s{s_tmp3}, s{s_hp}, 1\ns_lshl1_add_u32 s{s_tmp}, s{s_tmp}, s{s_tmp3}\ns_add_u32 s{s_tmp}, s{s_tmp}, s{s_xcd}\ns_and_b32 s{s_tmp}, s{s_tmp}, 7')
    else:
        p(f's_and_b32 s{s_tmp}, s{s_xcd}, 3\ns_and_b32 s{s_tmp2}, s{s_loc}, 3\ns_lshl2_add_u32 s{s_rb}, s{s_tmp}, s{s_tmp2}')
        p(f's_lshr_b32 s{s_tmp}, s{s_xcd}, 2\ns_lshr_b32 s{s_tmp3}, s{s_loc}, 2\ns_lshl3_add_u32 s{s_hp}, s{s_tmp}, s{s_tmp3}')
        p(f's_lshl1_add_u32 s{s_tmp}, s{s_tmp2}, s{s_tmp3}\ns_and_b32 s{s_tmp}, s{s_tmp}, 7')
    if opt.get('rotmask'): p(f's_and_b32 s{s_tmp}, s{s_tmp}, {opt["rotmask"]}')
    p(f's_lshl_b32 s{s_xo}, s{s_tmp}, 7\ns_mul_i32 s{s_wo}, s{s_xo}, {96 if opt.get("fakew") else 1536}')
    p(f'v_bfe_u32 v{t1}, v0, 3, 3\nv_lshl_add_u32 v{t1}, v{t0}, 5, v{t1}')
    p(f'v_and_b32 v{t2}, 7, v0\nv_bfe_u32 v{t3}, v0, 4, 2\nv_xor_b32 v{t2}, v{t2}, v{t3}\nv_lshlrev_b32 v{t2}, 4, v{t2}')
    p(f's_lshl_b32 s{s_tmp}, s{s_rb}, 17')
    p(f'v_lshl_add_u32 v{t1}, v{t1}, 10, v{t2}\nv_add_u32 v{vXg}, s{s_tmp}, v{t1}')
    p(f'v_xor_b32 v{vXg+1}, 64, v{vXg}\nv_add_u32 v{vXg+2}, 16384, v{vXg}\nv_add_u32 v{vXg+1}, 8192, v{vXg+1}\nv_add_u32 v{vXg+3}, 16384, v{vXg+1}')
    p(f'v_lshrrev_b32 v{t1}, 2, v0\nv_mul_u32_u24 v{t1}, 3072, v{t1}\nv_and_b32 v{t2}, 3, v0\nv_lshl_add_u32 v{t1}, v{t2}, 4, v{t1}')
    p(f's_lshl_b32 s{s_tmp}, s{s_hp}, 6\ns_add_u32 s{s_tmp}, s{s_tmp}, 1024')
    p(f'v_add_u32 v{vWg}, s{s_tmp}, v{t1}')
    if opt.get('fakew'):
        p(f'v_lshlrev_b32 v{vWg}, 4, v0\ns_mul_i32 s{s_tmp}, s{s_hp}, 98304\ns_add_u32 s{s_tmp}, s{s_tmp}, 1024\nv_add_u32 v{vWg}, s{s_tmp}, v{vWg}')
    p(f's_lshl_b32 s{s_m0b}, s{s_w}, 10\ns_lshl_b32 s{s_st}, s{s_w}, 12')
    p(f's_mov_b32 s{sW+2}, 0x180000\ns_mov_b32 s{sW+3}, 0x20000')
    p('s_waitcnt lgkmcnt(0)')
    p(f's_mov_b32 s{sW}, s{sX+2}\ns_mov_b32 s{sW+1}, s{sX+3}\ns_mov_b32 s{sX+2}, 0x200000\ns_mov_b32 s{sX+3}, 0x20000')
    def xslot(c): return RB + 16384*((c+1) % 3)
    def issue_k(c):
        L = []
        for i in range(4):
            L.append(('dma', f's_add_u32 m0, s{s_st}, {xslot(c)+1024*i}', f'buffer_load_dwordx4 v{vXg+i}, s[{sX}:{sX+3}], s{s_xo+c} offen {opt.get("ldflagx", LD)} lds', None))
        if JKV:
            L.append(('dma', f's_add_u32 m0, s{s_m0b}, {RA+4096*(c&3)}', f'buffer_load_dwordx4 v{vWg}, s[{sW}:{sW+3}], s{s_wo+c} offen {LD} lds', None))
            L.append(('dma', f's_add_u32 m0, s{s_m0b}, {RA+16384+4096*(c&3)-1024}', f'buffer_load_dwordx4 v{vWg}, s[{sW}:{sW+3}], s{s_wo+c} offen offset:1024 {LD} lds', f'wk{c}'))
            return L
        L.append(('dma', f's_add_u32 m0, s{s_m0b}, {RA+4096*c}', f'buffer_load_dwordx4 v{vWg}, s[{sW}:{sW+3}], s{s_wo+c} offen {LD} lds', f'wk{c}'))
        return L
    def issue_v(c):
        if JKV:
            return [('dma', f's_add_u32 m0, s{s_st}, {RB+16384*(c>>2)+1024*(c&3)}', f'buffer_load_dwordx4 v{vWg}, s[{sW}:{sW+3}], s{s_wo+c} offen {LD} lds', f'wq{c}')]
        return [('dma', f's_add_u32 m0, s{s_st}, {RB+16384*(c>>2)+1024*(c&3)-1024}', f'buffer_load_dwordx4 v{vWg}, s[{sW}:{sW+3}], s{s_wo+c} offen offset:1024 {LD} lds', f'wv{c}')]
    WPH = RA + (12288 if JKV else 28672)
    def nextoff(c): p(f's_add_u32 s{s_xo+c}, s{s_xo+c-1}, 128\ns_and_b32 s{s_xo+c}, s{s_xo+c}, 1023\ns_mul_i32 s{s_wo+c}, s{s_xo+c}, {96 if opt.get("fakew") else 1536}')
    WF1 = opt.get('wfirst', 0)
    def retok(L, tok): return L[:-1] + [L[-1][:3] + (tok,)]
    if WF1:
        nextoff(1)
        ext2(retok(issue_k(0)[4:], None)); ext2(retok(issue_k(1)[4:], None)); ext2(retok(issue_k(0)[:4], 'wk0'))
    else: ext2(issue_k(0))
    p(f'v_and_b32 v{vL16}, 63, v0\nv_lshlrev_b32 v{vL16}, 4, v{vL16}\nv_mov_b32 v{vEp}, 0')
    for s, n in ((sP, 0x4000), (sWS, 0x10000000 - WS_BASE)): p(f's_mov_b32 s{s+2}, {hex(n)}\ns_mov_b32 s{s+3}, 0x20000')
    if WS_BASE: p(f's_add_u32 s{sWS}, s{sWS}, {hex(WS_BASE)}\ns_addc_u32 s{sWS+1}, s{sWS+1}, 0')
    p(f's_lshl_b32 s{s_tmp2}, s{s_hp}, 10\ns_add_u32 m0, s{s_m0b}, {WPH}')
    if not WF1: nextoff(1)
    p(f'buffer_load_dwordx4 v{vL16}, s[{sP}:{sP+3}], s{s_tmp2} offen lds', tok='wphi')
    p(f'buffer_load_dword v{vEp}, v{vEp}, s[{sWS}:{sWS+3}], 0 offen offset:{WS_EB} sc1')
    for c in range(2, 8): nextoff(c)
    k1 = retok(issue_k(1)[:4], 'wk1') if WF1 else issue_k(1)
    if not opt.get('late12', 0): ext2(k1); ext2(issue_k(2))
    yield
    for s, n in ((sO, 0x80000), (sOUT, 0x400000)): p(f's_mov_b32 s{s+2}, {hex(n)}\ns_mov_b32 s{s+3}, 0x20000')
    R_, CQ, NH, H_ = P, P+1, P+2, P+3
    p(f'v_bfe_u32 v{R_}, v0, 2, 2\nv_and_b32 v{CQ}, 3, v0\nv_bfe_u32 v{NH}, v0, 4, 1\nv_bfe_u32 v{H_}, v0, 5, 1')
    p(f'v_lshl_add_u32 v{t0}, v{H_}, 3, v{R_}\nv_lshlrev_b32 v{t0}, 6, v{t0}')
    p(f'v_lshl_add_u32 v{t1}, v{NH}, 2, v{CQ}\nv_lshl_add_u32 v{vTR}, v{t1}, 3, v{t0}')
    p(f'v_and_b32 v{t1}, 1, v{CQ}\nv_lshl_add_u32 v{t2}, v{t1}, 1, v{NH}')
    p(f'v_lshrrev_b32 v{t3}, 1, v{CQ}\nv_lshl_add_u32 v{t2}, v{t2}, 1, v{t3}')
    p(f'v_lshl_add_u32 v{vTRv}, v{t2}, 3, v{t0}')
    p(f's_add_u32 s{s_tmp}, s{s_st}, {RB}')
    p(f'v_bfe_u32 v{t0}, v0, 1, 3\nv_xor_b32 v{t0}, v{t0}, v{H_}\nv_lshlrev_b32 v{t0}, 4, v{t0}')
    p(f'v_and_b32 v{t4}, 31, v0\nv_lshl_add_u32 v{t0}, v{t4}, 7, v{t0}\nv_add_u32 v{vSR}, s{s_tmp}, v{t0}')
    for j in range(1, 4): p(f'v_xor_b32 v{vSR+j}, {32*j}, v{vSR}')
    p(f'v_lshl_add_u32 v{t2}, v{NH}, 1, v{t3}\nv_lshlrev_b32 v{t2}, 3, v{t2}\nv_lshl_add_u32 v{t2}, v{t1}, 9, v{t2}')
    p(f'v_lshl_add_u32 v{t0}, v{H_}, 2, v{R_}\nv_lshl_add_u32 v{t2}, v{t0}, 5, v{t2}')
    p(f's_add_u32 s{s_tmp}, s{s_m0b}, {WPH}\nv_add_u32 v{t5}, s{s_tmp}, v{t2}')
    p(f's_getreg_b32 s{s_xcc}, hwreg(HW_REG_XCC_ID, 0, 4)')
    p(f's_mov_b32 s{s_c}, {hex(LOG2E)}\ns_and_b32 s{s_F}, s{s_w}, 1\ns_lshr_b32 s{s_H}, s{s_w}, 1')
    u0, u1, u2, u3, u4 = P+4, P+5, P+6, P+7, P+8
    kfill = []
    kfill += L_(f'''v_bfe_u32 v{u0}, v0, 1, 2
v_lshlrev_b32 v{a0}, 4, v{u0}
v_lshl_add_u32 v{a0}, v{t4}, 6, v{a0}
v_lshl_add_u32 v{a0}, v{H_}, 11, v{a0}
s_add_u32 s{s_tmp}, s{s_st}, {ST}
v_add_u32 v{a0}, s{s_tmp}, v{a0}
v_bfe_u32 v{u0}, v0, 2, 1
v_lshlrev_b32 v{b0}, 4, v{u0}
v_lshl_add_u32 v{b0}, v{t4}, 5, v{b0}
v_lshl_add_u32 v{b0}, v{H_}, 10, v{b0}
{f's_lshl_b32 s{s_tmp}, s{s_w}, 11' if JKV else f's_add_u32 s{s_tmp}, s{s_st}, {RB}'}
v_add_u32 v{b0}, s{s_tmp}, v{b0}''')
    kfill += L_(f'''v_lshrrev_b32 v{u0}, 1, v{R_}
v_lshl_add_u32 v{u0}, v{NH}, 1, v{u0}
s_lshl_b32 s{s_tmp2}, s{s_F}, 1
v_or_b32 v{u1}, s{s_tmp2}, v{t3}
v_xor_b32 v{u1}, v{u1}, v{u0}
v_bfe_u32 v{u2}, v0, 2, 4
v_lshlrev_b32 v{u3}, 3, v{t1}
v_lshl_add_u32 v{pa}, v{u1}, 4, v{u3}
v_lshl_add_u32 v{pa}, v{u2}, 6, v{pa}
s_lshl_b32 s{s_tmp}, s{s_H}, 11
s_add_u32 s{s_tmp}, s{s_tmp}, {ST}
v_add_u32 v{pa}, s{s_tmp}, v{pa}
v_xor_b32 v{u1}, v{t3}, v{NH}
v_lshl_add_u32 v{va}, v{u1}, 4, v{u3}
v_lshl_add_u32 v{va}, v{u2}, 5, v{va}
s_lshl_b32 s{s_tmp}, s{s_H}, 10
s_add_u32 s{s_tmp}, s{s_tmp}, {RA if JKV else RB}
v_add_u32 v{va}, s{s_tmp}, v{va}''')
    kfill += L_(f'''v_lshlrev_b32 v{u0}, 5, v{CQ}
v_lshl_add_u32 v{u0}, v{NH}, 4, v{u0}
v_add_u32 v{u0}, 512, v{u0}
s_mov_b32 s{s_msk}, 0
s_mov_b32 s{s_msk+1}, -1
v_cndmask_b32 v{sa}, v{vL16}, v{u0}, s[{s_msk}:{s_msk+1}]
s_mul_i32 s{s_tmp}, s{s_hp}, {16*KVP_SZ}
s_mul_i32 s{s_tmp2}, s{s_w}, 640
s_add_u32 s{s_tmp}, s{s_tmp}, s{s_tmp2}
s_add_u32 s{s_so}, s{s_tmp}, {WS_KVP}
s_mul_i32 s{s_tmp}, s{s_rb}, {KVP_SZ}
s_add_u32 s{s_p1}, s{s_so}, s{s_tmp}
s_add_u32 s{s_so+1}, s{s_so}, {4*KVP_SZ}
s_add_u32 s{s_so+2}, s{s_so}, {8*KVP_SZ}
s_add_u32 s{s_so+3}, s{s_so}, {12*KVP_SZ}
v_mov_b32 v{vMask}, 0xfffefffe
v_bfe_u32 v{u0}, v0, 4, 2
v_mul_u32_u24 v{hA}, {KVP_SZ}, v{u0}
v_and_b32 v{u1}, 15, v0
v_lshl_add_u32 v{hA}, v{u1}, 4, v{hA}
v_bfe_u32 v{u1}, v0, 1, 2
v_lshl_add_u32 v{u1}, v{u1}, 2, v{u0}
v_mul_u32_u24 v{hZ}, {KVP_SZ}, v{u1}
v_and_b32 v{u1}, 1, v0
v_lshl_add_u32 v{hZ}, v{u1}, 4, v{hZ}
v_add_u32 v{hZ}, 512, v{hZ}
s_lshl2_add_u32 s{s_tmp}, s{s_rb}, s{s_w}
s_lshl4_add_u32 s{s_tmp}, s{s_tmp}, s{s_hp}
s_lshl_b32 s{s_pf}, s{s_tmp}, 4
s_add_u32 s{s_pf}, s{s_pf}, {WS_P2F}
s_lshl_b32 s{s_tmp}, s{s_tmp}, {12 if INP else 11}
s_add_u32 s{s_p2}, s{s_tmp}, {1024 if INP else WS_OX}
s_and_b32 s{s_tmp}, s{s_loc}, 3
s_lshl2_add_u32 s{s_rt}, s{s_xcd}, s{s_tmp}
s_lshr_b32 s{s_ct}, s{s_loc}, 2''')
    tagfill = [f'v_readfirstlane_b32 s{s_E1}, v{vEp}', 's_nop 0', f's_add_u32 s{s_E1}, s{s_E1}, 1']
    for j in range(4):
        tagfill += L_(f's_lshr_b32 s{s_tmp}, s{s_E1}, {2*j}\ns_and_b32 s{s_tmp2}, s{s_tmp}, 1\ns_and_b32 s{s_tmp}, s{s_tmp}, 2\ns_lshl_b32 s{s_tmp}, s{s_tmp}, 15\ns_or_b32 s{s_t+j}, s{s_tmp}, s{s_tmp2}')
    if opt.get('late12', 0): ext2(k1)
    p.ext(kfill)
    if opt.get('late12', 0): ext2(issue_k(2))
    def trpair(dst, addr, off, d2=256):
        return [f'ds_read_b64_tr_b16 {vr(dst,2)}, v{addr} offset:{off}', f'ds_read_b64_tr_b16 {vr(dst+2,2)}, v{addr} offset:{off+d2}']
    KP = opt.get('kpipe', 0)
    def wfk(c): return WF if (c & 1) == 0 or not KP else ACC1
    def kmf(c): return [f'v_mfma_f32_32x32x16_bf16 {vr(ACC0,16)}, {vr(wfk(c)+4*j,4)}, {vr(X+16*c+4*j,4)}, {"0" if (c==0 and j==0) else vr(ACC0,16)}' for j in range(4)]
    def wphi_fix():
        p(f's_mov_b32 s{s_msk}, 0x0f0f0f0f\ns_mov_b32 s{s_msk+1}, 0x0f0f0f0f')
        for j in range(4): p(f'v_cndmask_b32 v{vA2+j}, v{vA1+j}, 0, s[{s_msk}:{s_msk+1}]')
        for j in range(4): p(f'v_cndmask_b32 v{vA1+j}, 0, v{vA1+j}, s[{s_msk}:{s_msk+1}]')
    if JKV:
        for c in range(8):
            p.wait_tok(f'wk{c}')
            if c == 0:
                stamp(); p.wait_tok('wphi')
            stamp('k')
            for j in range(4): p(f'ds_read_b128 {vr(X+16*c+4*j,4)}, v{vSR+j} offset:{xslot(c)-RB}')
            p('s_barrier')
            if c == 0: p.ext(trpair(vA1, t5, 0))
            for j in range(4):
                p.ext(trpair(WF+4*j, vTR, RA+4096*(c&3)+1024*j)); p.ext(trpair(P+4*j, vTRv, RA+16384+4096*(c&3)+1024*j))
            m = []
            for j in range(4):
                m.append(f'v_mfma_f32_32x32x16_bf16 {vr(ACC0,16)}, {vr(WF+4*j,4)}, {vr(X+16*c+4*j,4)}, {"0" if (c==0 and j==0) else vr(ACC0,16)}')
                m.append(f'v_mfma_f32_32x32x16_bf16 {vr(ACC1,16)}, {vr(P+4*j,4)}, {vr(X+16*c+4*j,4)}, {"0" if (c==0 and j==0) else vr(ACC1,16)}')
            if c == 7: m = m[0::2] + m[1::2]
            nxt = []
            if c + 3 < 8: nxt = issue_k(c + 3)
            elif c == 5: nxt = [f'v_subrev_u32 v{vWg}, 1024, v{vWg}'] + sum([issue_v(cc) for cc in range(opt.get('q_early', 4))], [])
            elif c == opt.get('q47', 6): nxt = sum([issue_v(cc) for cc in range(4, 8)], [])
            p(m[0])
            p('s_waitcnt lgkmcnt(14)')
            if c == 7: p.ext(m[1:]); ext2(nxt)
            else: ext2(interleave(m[1:], nxt))
            if c == 0: wphi_fix()
            if c == 1: p.ext(tagfill)
    else:
        for c in range(8):
            p.wait_tok(f'wk{c}')
            if c == 0: stamp()
            stamp('k')
            for j in range(4): p(f'ds_read_b128 {vr(X+16*c+4*j,4)}, v{vSR+j} offset:{xslot(c)-RB}')
            p('s_barrier')
            for j in range(4): p.ext(trpair(wfk(c)+4*j, vTR, RA+4096*c+1024*j))
            if c == 1:
                p.ext(trpair(vA1, t5, 0))
            nxt = []
            if c + 3 < 8: nxt = issue_k(c + 3)
            elif c == 5 or (c == 6 and not opt.get('v47late', 1)):
                for cc in range(4*(c-5), 4*(c-5)+4): nxt += issue_v(cc)
            elif c == 7 and opt.get('v47late', 1):
                for cc in range(4, 8): nxt += issue_v(cc)
            if KP:
                m = kmf(c-1) if c > 0 else []
                if c == 7:
                    p.ext(kmf(7)); ext2(nxt)
                elif c == 6:
                    p.ext(m); p.ext(kmf(6)); ext2(nxt)
                else:
                    p.ext(m[:1])
                    p(f's_waitcnt lgkmcnt({10 if c == 1 else 8})')
                    ext2(interleave(m[1:], nxt) if m else nxt)
            else:
                p.ext(kmf(c))
            if c == 1:
                p(f's_mov_b32 s{s_msk}, 0x0f0f0f0f\ns_mov_b32 s{s_msk+1}, 0x0f0f0f0f')
                for j in range(4): p(f'v_cndmask_b32 v{vA2+j}, v{vA1+j}, 0, s[{s_msk}:{s_msk+1}]')
                for j in range(4): p(f'v_cndmask_b32 v{vA1+j}, 0, v{vA1+j}, s[{s_msk}:{s_msk+1}]')
                p.ext(tagfill)
            if not KP: ext2(nxt)
    stamp(); stamp('k'); stamp('v')
    cap[0] = 0
    if opt.get('prioB'): p(f's_setprio {opt["prioB"]}')
    def phi_head(acc):
        L = [f'v_cvt_pk_bf16_f32 v{E+j}, v{acc+2*j}, v{acc+2*j+1}' for j in range(8)]
        L.insert(4, f'v_mfma_f32_32x32x16_bf16 {vr(P,16)}, {vr(vA1,4)}, {vr(E,4)}, 0')
        L.insert(4, L.pop(5)); L.insert(5, L.pop(6))
        L.append(f'v_mfma_f32_32x32x16_bf16 {vr(P,16)}, {vr(vA2,4)}, {vr(E+4,4)}, {vr(P,16)}')
        return L
    def phi_body(dst, normalize, wr=None):
        mx, mn = vT0, vT1
        L = [f'v_max3_f32 v{mx}, v{P}, v{P+1}, v{P+2}', f'v_min3_f32 v{mn}, v{P}, v{P+1}, v{P+2}']
        for j in range(3, 15, 2):
            L += [f'v_max3_f32 v{mx}, v{mx}, v{P+j}, v{P+j+1}', f'v_min3_f32 v{mn}, v{mn}, v{P+j}, v{P+j+1}']
        L += [f'v_max_f32 v{mx}, v{mx}, v{P+15}', f'v_min_f32 v{mn}, v{mn}, v{P+15}']
        L += [f'v_mul_f32 v{mx}, 0xbfb8aa3b, v{mx}', f'v_mul_f32 v{mn}, {hex(LOG2E)}, v{mn}']
        fm = [f'v_fma_f32 v{E+j}, v{P+j}, s{s_c}, v{mx}' for j in range(16)] + [f'v_fma_f32 v{E+16+j}, v{P+j}, -s{s_c}, v{mn}' for j in range(16)]
        ex = [f'v_exp_f32 v{E+j}, v{E+j}' for j in range(32)]
        L += fm[:2]
        for j in range(32):
            if j + 2 < 32: L.append(fm[j+2])
            L.append(ex[j])
        if normalize:
            for b in range(2):
                for j in range(4): L.append(f'v_add_f32 v{P+4*b+j}, v{E+16*b+j}, v{E+16*b+4+j}')
            for k in (8, 12):
                for b in range(2):
                    for j in range(4): L.append(f'v_add_f32 v{P+4*b+j}, v{P+4*b+j}, v{E+16*b+k+j}')
            for b in range(2):
                for j in range(2): L.append(f'v_add_f32 v{P+4*b+j}, v{P+4*b+j}, v{P+4*b+2+j}')
            for b in range(2): L.append(f'v_add_f32 v{P+4*b}, v{P+4*b}, v{P+4*b+1}')
            L += [f'v_rcp_f32 v{mx}, v{P}', f'v_rcp_f32 v{mn}, v{P+4}']
            for j in range(1, 4): L.append(f'v_xor_b32 v{P+8+j}, {16*j}, v{a0}')
            for g in range(4):
                for j in range(8): L.append(f'v_mul_f32 v{E+8*g+j}, v{E+8*g+j}, v{mx if g < 2 else mn}')
                for j in range(4): L.append(f'v_cvt_pk_bf16_f32 v{dst+4*g+j}, v{E+8*g+2*j}, v{E+8*g+2*j+1}')
                L.append(f'ds_write_b128 v{a0 if g == 0 else P+8+g}, {vr(dst+4*g,4)}')
        else:
            for j in range(16): L.append(f'v_cvt_pk_bf16_f32 v{dst+j}, v{E+2*j}, v{E+2*j+1}')
        return L
    PRE = opt.get('pre', 4)
    def gemm_slots(acc, addr, offf, events={}):
        def rd(n):
            c, j = n >> 2, n & 3
            L = list(events.get(c, [])) if j == 0 else []
            return L + trpair(WF+4*(n % NSL), addr, offf(c, j))
        pro = []
        for n in range(PRE): pro += rd(n)
        slots = []
        for n in range(32):
            c, j = n >> 2, n & 3
            sl = [f'v_mfma_f32_32x32x16_bf16 {vr(acc,16)}, {vr(WF+4*(n%NSL),4)}, {vr(X+16*c+4*j,4)}, {"0" if n==0 else vr(acc,16)}']
            if n+PRE < 32: sl += rd(n+PRE)
            slots.append(sl)
        return pro, slots
    VB = E; ONES = P
    if JKV:
        body = phi_body(ACC0, True)
        p.ext(phi_head(ACC0))
        VB = WF
        p(f'v_xor_b32 v{WF+8}, 16, v{b0}')
        for j in range(8):
            p(f'v_cvt_pk_bf16_f32 v{VB+j}, v{ACC1+2*j}, v{ACC1+2*j+1}')
            if j == 3: p(f'ds_write_b128 v{b0}, {vr(VB,4)}')
        p(f'ds_write_b128 v{WF+8}, {vr(VB+4,4)}')
        stamp('v')
        pfw = []
        if opt.get('oxt') not in (None, 'none'):
            pfw = [f'v_bfe_u32 v{vEp}, v0, 3, 1', f'v_lshlrev_b32 v{vEp}, 4, v{vEp}', f'v_and_or_b32 v{vEp}, v0, 7, v{vEp}', f'v_lshlrev_b32 v{vEp}, 7, v{vEp}',
                   f'buffer_load_dword v{vEp}, v{vEp}, s[{sOUT}:{sOUT+3}], s{s_p2} offen']
        k0 = opt.get('oxt2', 20)
        rest_q = sum([issue_v(cc) for cc in range(opt.get('q_early', 4), 8 if opt.get('q47', 6) > 7 else 4)], [])
        qe = opt.get('q_end', 60)
        ext2(interleave(body[:qe], rest_q)); p.ext(pfw); p.ext(body[qe:])
        stamp(); stamp('v')
    else:
        p.ext(phi_head(ACC0))
        body = phi_body(ACC0, True)
        vg = opt.get('vgrp', 2)
        ev = {c: [('waittok', f'wv{c+vg-1}'), 's_barrier'] for c in range(0, 8, vg)}
        ev[0] = [('waittok', f'wv{vg-1}'), 's_barrier', f'v_subrev_u32 v{vWg}, 1024, v{vWg}']
        pro, slots = gemm_slots(ACC1, vTRv, lambda c, j: RB + 16384*(c >> 2) + 4096*j + 1024*(c & 3), ev)
        wq = [('dma', f's_add_u32 m0, s{s_m0b}, {RA+4096*c}', f'buffer_load_dwordx4 v{vWg}, s[{sW}:{sW+3}], s{s_wo+c} offen {LD} lds', f'wq{c}') for c in range(8)]
        stamp('v')
        if opt.get('abl_wq'): wq = []
        ext2(pro)
        nhead = opt.get('phik_head', 8)
        p.ext(body[:nhead]); rest = body[nhead:]
        stamp('v')
        pfw = []
        if opt.get('pfwo', 0):
            pfw = [f'v_and_b32 v{vEp}, 31, v0', f'v_lshlrev_b32 v{vEp}, 7, v{vEp}', f's_lshl2_add_u32 s3, s{s_loc}, s{s_w}', 's_lshl_b32 s3, s3, 12',
                   f'buffer_load_dword v{vEp}, v{vEp}, s[{sO}:{sO+3}], s3 offen']
        if opt.get('oxt') not in (None, 'none'):
            if INP:
                pfw = [f'v_bfe_u32 v{vEp}, v0, 3, 1', f'v_lshlrev_b32 v{vEp}, 4, v{vEp}', f'v_and_or_b32 v{vEp}, v0, 7, v{vEp}', f'v_lshlrev_b32 v{vEp}, 7, v{vEp}',
                       f'buffer_load_dword v{vEp}, v{vEp}, s[{sOUT}:{sOUT+3}], s{s_p2} offen']
            else:
                pfw = [f'v_and_b32 v{vEp}, 15, v0', f'v_lshlrev_b32 v{vEp}, 7, v{vEp}', f'buffer_load_dword v{vEp}, v{vEp}, s[{sWS}:{sWS+3}], s{s_p2} offen']
            opt['pfwo_at'] = opt['oxt']
        sl = slotted(slots, [(rest, 0, opt.get('phik_last', 31)), (wq, opt.get('wq_at', 2), opt.get('wq_end', 16)), (pfw, opt.get('pfwo_at', 18), opt.get('pfwo_at', 18)+1)])
        if opt.get('stampset') == 'v':
            mi = [k for k, x in enumerate(sl) if isinstance(x, str) and x.startswith('v_mfma')]
            prev = 0
            for k in (mi[8], mi[16], mi[24]):
                ext2(sl[prev:k]); stamp('v'); prev = k
            ext2(sl[prev:])
        else: ext2(sl)
        stamp(); stamp('v')
    for j in range(4): p(f'v_mov_b32 v{ONES+j}, 0x3f803f80')
    if not JKV:
        p(f'v_xor_b32 v{P+4}, 16, v{b0}')
        for j in range(8):
            p(f'v_cvt_pk_bf16_f32 v{VB+j}, v{ACC1+2*j}, v{ACC1+2*j+1}')
            if j == 3: p(f'ds_write_b128 v{b0}, {vr(VB,4)}')
        p(f'ds_write_b128 v{P+4}, {vr(VB+4,4)}')
    p('s_waitcnt lgkmcnt(0)\ns_barrier')
    stamp('v')
    KV, Z, R0 = P+8, P+12, E+8
    FRG = ACC0
    for ks in range(4):
        p.ext(trpair(FRG+8*ks, pa, 4096*ks, 1024)); p.ext(trpair(FRG+8*ks+4, va, (2048 if JKV else 4096)*ks, 512))
    if GRP: p(f'buffer_load_dwordx4 {vr(PA,4)}, v{hZ}, s[{sWS}:{sWS+3}], s{s_so} offen sc1')
    for ks in range(4):
        p(f'v_mfma_f32_16x16x32_bf16 {vr(Z,4)}, {vr(FRG+8*ks,4)}, {vr(ONES,4)}, {"0" if ks==0 else vr(Z,4)}')
        p(f'v_mfma_f32_16x16x32_bf16 {vr(KV,4)}, {vr(FRG+8*ks,4)}, {vr(FRG+8*ks+4,4)}, {"0" if ks==0 else vr(KV,4)}')
    p(f's_mov_b32 s{s_rdy}, 0\ns_mov_b32 s{s_sp}, 0')
    p(f'v_cvt_pk_bf16_f32 v{R0+2}, v{Z}, v{Z+1}\nv_cvt_pk_bf16_f32 v{R0+3}, v{Z+2}, v{Z+3}')
    p(f'v_cvt_pk_bf16_f32 v{R0}, v{KV}, v{KV+1}\nv_cvt_pk_bf16_f32 v{R0+1}, v{KV+2}, v{KV+3}')
    p(f'v_permlane32_swap_b32 v{R0}, v{R0+2}\nv_permlane32_swap_b32 v{R0+1}, v{R0+3}')
    for j in range(4): p(f'v_and_or_b32 v{R0+j}, v{R0+j}, v{vMask}, s{s_t+j}')
    p(f's_mov_b32 exec_hi, 0x000f000f')
    p(f'buffer_store_dwordx4 {vr(R0,4)}, v{sa}, s[{sWS}:{sWS+3}], s{s_p1} offen sc1')
    p(f's_mov_b32 exec_hi, -1')
    stamp(); stamp('v'); stamp('q')
    if opt.get('skew'):
        if opt['skew'] == 'pub1': p('s_memrealtime s[78:79]\ns_waitcnt lgkmcnt(0)')
        p(f'v_mov_b32 v{E+20}, s78\ns_lshl_b32 s98, s2, 2\nv_mov_b32 v{E+21}, s98\ns_mov_b32 s98, {WS_STAMP}')
        p(f'buffer_store_dword v{E+20}, v{E+21}, s[{sWS}:{sWS+3}], s98 offen sc1')
    if opt.get('yield_q'): p('s_setprio 0')
    p.wait_tok('wq7')
    p('s_barrier')
    if LOC2:
        p(f's_cmp_lg_u32 s{s_w}, 0\ns_cbranch_scc1 B_NOBF')
        p(f'v_mov_b32 v{E+12}, s{s_E1}\nv_mov_b32 v{E+13}, s{s_xcc}\nv_mov_b32 v{E+14}, 0\ns_lshl_b32 s{s_tmp}, s{s_xcd}, 5\ns_add_u32 s{s_tmp}, s{s_tmp}, s{s_loc}\ns_lshl_b32 s{s_tmp}, s{s_tmp}, 4\ns_add_u32 s{s_tmp}, s{s_tmp}, {WS_BF}\ns_mov_b64 exec, 1')
        p(f'buffer_store_dwordx2 {vr(E+12,2)}, v{E+14}, s[{sWS}:{sWS+3}], s{s_tmp} offen sc1', tok='nocount')
        p('s_mov_b64 exec, -1\nB_NOBF:')
    stamp('q')
    pro, slots = gemm_slots(ACC0, vTR, (lambda c, j: RB + 16384*(c >> 2) + 4096*j + 1024*(c & 3)) if JKV else (lambda c, j: RA + 4096*c + 1024*j))
    ext2(pro)
    cA, cD = E+2, E+4
    fillc = (L_(f'''s_mul_i32 s{s_tmp}, s{s_H}, 1600
s_mul_i32 s{s_tmp2}, s{s_F}, 80
s_add_u32 s{s_tmp}, s{s_tmp}, s{s_tmp2}
s_add_u32 s{s_tmp3}, s{s_tmp}, {KT+16*80}
v_bfe_u32 v{cA}, v0, 2, 4
v_mul_u32_u24 v{cA}, 160, v{cA}
v_add_u32 v{cA}, s{s_tmp3}, v{cA}
s_mov_b64 s[{s_msk}:{s_msk+1}], 0xf00
v_mov_b32 v{cD}, {ZERO}
v_cndmask_b32 v{cA}, v{cA}, v{cD}, s[{s_msk}:{s_msk+1}]
v_and_b32 v{cD}, 3, v0
v_lshl_add_u32 v{cA}, v{cD}, 4, v{cA}
s_lshl_b32 s{s_tmp2}, s{s_F}, 1
s_lshl_b32 s{s_msk}, 3, s{s_tmp2}
v_mov_b32 v{cD+1}, 0x3f803f80
v_cndmask_b32 v{cD}, 0, v{cD+1}, s[{s_msk}:{s_msk+1}]
v_mov_b32 v{cD+1}, v{cD}
v_mov_b32 v{cD+2}, v{cD}
v_mov_b32 v{cD+3}, v{cD}
''') + [f's_mov_b64 exec, 0xfff\nds_write_b128 v{cA}, {vr(cD,4)}\ns_mov_b64 exec, -1'])
    if not opt.get('cfill'): p.ext(fillc); fillc = []
    SEL = ACC1
    tK, tZ, aN, aX, zc = ACC1+8, ACC1+9, ACC1+10, ACC1+11, ACC1+12
    w0, w1, w2 = ACC1+13, ACC1+14, ACC1+15
    vOg = vWg
    s_r8 = s_xo
    fill = []
    fill0 = []
    fill0 += L_(f'''v_bfe_u32 v{w0}, v0, 4, 1
v_lshlrev_b32 v{w0}, 2, v{w0}
v_and_b32 v{w1}, 7, v0
v_xor_b32 v{w0}, v{w0}, v{w1}
v_lshlrev_b32 v{w0}, 4, v{w0}
v_lshrrev_b32 v{w1}, 3, v0
v_lshl_add_u32 v{w0}, v{w1}, 10, v{w0}
s_lshl_b32 s{s_tmp2}, s{s_ct}, 7
v_add_u32 v{vOg}, s{s_tmp2}, v{w0}''')
    for n in range(8): fill0 += L_(f's_add_u32 s{s_r8+n}, s{s_ct}, {n}\ns_and_b32 s{s_r8+n}, s{s_r8+n}, 7')
    fill = fillc + L_(f'''v_and_b32 v{w0}, 1, v0
v_lshlrev_b32 v{w0}, 4, v{w0}
v_mov_b32 v{w1}, 0x3f80
v_lshlrev_b32 v{w0}, v{w0}, v{w1}
v_bfe_u32 v{w1}, v0, 1, 3''')
    mk = [(s_msk, s_msk+1), (6, 7)]
    for j in range(0, 8, 2):
        fill += [f'v_cmp_eq_u32 s[{mk[0][0]}:{mk[0][1]}], {j}, v{w1}', f'v_cmp_eq_u32 s[{mk[1][0]}:{mk[1][1]}], {j+1}, v{w1}', f's_nop 0',
                 f'v_cndmask_b32 v{SEL+j}, 0, v{w0}, s[{mk[0][0]}:{mk[0][1]}]', f'v_cndmask_b32 v{SEL+j+1}, 0, v{w0}, s[{mk[1][0]}:{mk[1][1]}]']
    fill += L_(f'''v_bfe_u32 v{w0}, v0, 4, 1
v_bfe_u32 v{w1}, v0, 5, 1
v_lshl_add_u32 v{w2}, v{w0}, 1, v{w1}
v_and_b32 v{tK}, 15, v0
v_mul_u32_u24 v{tK}, 80, v{tK}
v_lshl_add_u32 v{tK}, v{w2}, 3, v{tK}
s_lshl_b32 s{s_tmp2}, s{s_F}, 5
s_add_u32 s{s_tmp}, s{s_tmp}, s{s_tmp2}
s_add_u32 s{s_tmp3}, s{s_tmp}, {KT+18*80}
v_and_b32 v{w2}, 1, v0
v_lshl_add_u32 v{w2}, v{w0}, 1, v{w2}
v_lshlrev_b32 v{tZ}, 3, v{w2}
v_add_u32 v{tZ}, s{s_tmp3}, v{tZ}
s_mul_i32 s{s_tmp2}, s{s_F}, 80
s_sub_u32 s{s_tmp}, s{s_tmp}, s{s_tmp2}
s_add_u32 s{s_tmp}, s{s_tmp}, {KT}
v_add_u32 v{tK}, s{s_tmp}, v{tK}
v_bfe_u32 v{w0}, v0, 3, 2
v_and_b32 v{w2}, 3, v0
v_lshl_add_u32 v{w0}, v{w0}, 2, v{w2}
v_mul_u32_u24 v{aN}, 80, v{w0}
v_mul_u32_u24 v{w1}, 1600, v{w1}
v_add_u32 v{w1}, {KT}, v{w1}
v_add_u32 v{aN}, v{aN}, v{w1}
v_mul_u32_u24 v{aX}, 80, v{w2}
v_add_u32 v{aX}, v{aX}, v{w1}
v_add_u32 v{aX}, {16*80}, v{aX}
v_mov_b32 v{w0}, {ZERO}
s_mov_b32 s{s_msk}, 0x0f0f0f0f
s_mov_b32 s{s_msk+1}, 0xf0f0f0f0
v_cndmask_b32 v{aN}, v{w0}, v{aN}, s[{s_msk}:{s_msk+1}]
s_mov_b32 s{s_msk}, 0x0000000f
s_mov_b32 s{s_msk+1}, 0x000000f0
v_cndmask_b32 v{aX}, v{w0}, v{aX}, s[{s_msk}:{s_msk+1}]''')
    def wo_dma(half):
        if opt.get('abl_wo'): return ['s_nop 0']*8
        return [('dma', f's_lshl_b32 s3, s{s_r8+n}, 15\n' + (f's_add_u32 s3, s3, 0x40000\n' if half else '') + f's_add_u32 m0, s{s_m0b}, {(RB if (half==0) != bool(JKV) else RA)+4096*n}',
                 f'buffer_load_dwordx4 v{vOg}, s[{sO}:{sO+3}], s3 offen lds', f'wo{half}_{n}') for n in range(8)]
    HZ, HK = E+12, X
    HZ = X + 32 if not GRP else PA
    def z_load(): return f'buffer_load_dwordx4 {vr(HZ,4)}, v{hZ}, s[{sWS}:{sWS+3}], s{s_so} offen sc1'
    def kv_list():
        return [f'buffer_load_dwordx4 {vr(HK+8*m+4*st,4)}, v{hA}, s[{sWS}:{sWS+3}], s{s_so+m} offen offset:{256*st} sc1' for m in range(4) for st in range(2)]
    HF = X + 36
    def bf_load(): return f'buffer_load_dwordx2 {vr(HF,2)}, v{sa}, s[{sWS}:{sWS+3}], s{s_p1} offen sc1'
    if LOC2: fill += L_(f'v_and_b32 v{sa}, 0x1f0, v{vL16}\ns_lshl_b32 s{s_p1}, s{s_xcd}, 9\ns_add_u32 s{s_p1}, s{s_p1}, {WS_BF}')
    def z_check():
        return [f'v_xor_b32 v{zc}, s{s_t}, v{HZ}'] + [f'v_bitop3_b32 v{zc}, v{zc}, v{HZ+j}, s{s_t+j} bitop3:0xf6' for j in range(1, 4)] + [f'v_and_b32 v{zc}, 0x00010001, v{zc}', f'v_cmp_ne_u32 vcc, 0, v{zc}']
    zat = opt.get('z_at', 10); h1 = opt.get('h1_at', 30)
    assert zat >= 9
    def go_block():
        L = kv_list() + ([bf_load()] if LOC2 else []) + [f's_mov_b32 s{s_rdy}, 1']
        return L
    cpn = [0]
    gcn = [0]
    def gcheck(wait, final=False):
        k = gcn[0]; gcn[0] += 1
        p(f's_cmp_eq_u32 s{s_rdy}, 15\ns_cbranch_scc1 B_GC{k}')
        if wait: p('s_waitcnt vmcnt(0)')
        p.ext(z_check())
        p(f's_or_b32 s3, vcc_lo, vcc_hi')
        kl = kv_list()
        for g in range(4):
            p(f's_bitcmp1_b32 s{s_rdy}, {g}\ns_cbranch_scc1 B_GD{k}_{g}\ns_and_b32 s17, s3, {hex(0x03030303 << (2*g))}\ns_cbranch_scc1 B_GD{k}_{g}')
            p(kl[2*g], tok='nocount'); p(kl[2*g+1], tok='nocount')
            p(f's_bitset1_b32 s{s_rdy}, {g}\nB_GD{k}_{g}:')
        p(f's_cmp_eq_u32 s{s_rdy}, 15\ns_cbranch_scc1 B_GE{k}')
        p(z_load(), tok='nocount')
        if final:
            p(f's_add_u32 s{s_sp}, s{s_sp}, 1\ns_cmp_gt_u32 s{s_sp}, {SPIN_MAX}\ns_cbranch_scc0 B_GLOOP')
        p(f'B_GE{k}:\nB_GC{k}:')
    def checkpoint(first=False):
        if opt.get('abl_h1'):
            p('s_waitcnt vmcnt(0)') if False else None
            return
        if GRP: return gcheck(True)
        k = cpn[0]; cpn[0] += 1
        if not first: p(f's_cmp_lg_u32 s{s_rdy}, 0\ns_cbranch_scc1 B_CP{k}\ns_waitcnt vmcnt(0)')
        p.ext(z_check())
        p(f's_cbranch_vccz B_CPGO{k}')
        p(z_load(), tok='nocount')
        p(f'B_CP{k}:')
    stamp('q')
    WOP = opt.get('woplan', 0)
    zl = [([z_load()], zat, zat)] if not (GRP or opt.get('abl_h1')) else []
    DIR = opt.get('h1direct', 0)
    if DIR:
        h1 = 32; zl = [([z_load()] + go_block(), DIR, 31)]
    if WOP == 1:
        sq = slotted(slots[:h1], [(fill0, 0, 1), (wo_dma(0), 2, zat-1), (fill, 2, h1-1)] + zl)
    elif WOP == 2:
        na = opt.get('wo_a', 4)
        sq = slotted(slots[:h1], [(fill0, 0, 1), (wo_dma(0)[:na], 2, 2+na), (fill, 2, h1-1)] + zl)
    else:
        sq = slotted(slots[:h1], [(fill0 + fill, 0, h1-1)] + zl)
    if GRP:
        ga = opt.get('ga_at', 9)
        mi = [k for k, x in enumerate(sq) if isinstance(x, str) and x.startswith('v_mfma')]
        ext2(sq[:mi[ga]]); gcheck(False); ext2(sq[mi[ga]:])
    else: ext2(sq)
    stamp('q')
    if not opt.get('nocp0') and not DIR: checkpoint(True)
    stamp('q')
    ext2(slotted(slots[h1:], []))
    stamp(); stamp('q')
    EQ = X + 48
    hd = phi_head(ACC0); bd = phi_body(EQ, False)
    if WOP == 1: p('s_barrier')
    ext2(hd)
    if opt.get('yield_phi'): p('s_setprio 0')
    nw1 = opt.get('wo1_early', 4) if WOP == 1 else 0
    cps = [int(x) for x in str(opt.get('cps', '60')).split('-') if x != '']
    prev = 0
    for c in ([] if DIR else cps):
        ext2(bd[prev:c]); checkpoint(); prev = c
    if GRP and LOC2: p(bf_load())
    ext2(interleave(bd[prev:], wo_dma(1)[:nw1]) if nw1 else bd[prev:])
    stamp(); stamp('q')
    chk = zc
    DZ, DK = P, P+4
    if DIR:
        p.ext(z_check()); p('s_cbranch_vccnz B_H1_POLLZ')
    elif opt.get('abl_h1'): p(bf_load()); p('s_waitcnt vmcnt(0)')
    elif GRP:
        p('B_GLOOP:'); gcheck(True, True); p('s_waitcnt vmcnt(0)')
    else: p(f's_cmp_eq_u32 s{s_rdy}, 0\ns_cbranch_scc1 B_H1_POLL')
    p('B_H1_CHK:')
    if opt.get('yield_phi') == 1: p(f's_setprio {opt["prioB"]}')
    p.assume_clean()
    if not GRP: p.pretend(kv_list() + ([bf_load()] if LOC2 else []), [None]*9)
    if WOP == 1:
        wo0 = wo_dma(1)[nw1:] + [None]*8
    elif WOP == 2: wo0 = wo_dma(0)[na:] + [None]*8
    else: wo0 = wo_dma(0)
    p(f'v_mfma_f32_16x16x32_bf16 {vr(DZ,4)}, {vr(SEL,4)}, {vr(HZ,4)}, 0')
    for n in range(8):
        p(f'v_mfma_f32_16x16x32_bf16 {vr(DK,4)}, {vr(SEL+4*(n&1),4)}, {vr(HK+4*n,4)}, {"0" if n==0 else vr(DK,4)}')
        for j in range(4):
            if n == 0 and j == 0: p(f'v_xor_b32 v{chk}, s{s_t}, v{HK}')
            else: p(f'v_bitop3_b32 v{chk}, v{chk}, v{HK+4*n+j}, s{s_t+j} bitop3:0xf6')
        if wo0[n]: ext2([wo0[n]])
        if n == 1:
            for j in range(4): p(f'v_add_f32_dpp v{DZ+j}, v{DZ+j}, v{DZ+j} row_ror:2 row_mask:0xf bank_mask:0xf')
        if n == 2:
            for j in range(4): p(f'v_add_f32_dpp v{DZ+j}, v{DZ+j}, v{DZ+j} row_ror:4 row_mask:0xf bank_mask:0xf')
        if n == 3:
            p(f'v_cvt_pk_bf16_f32 v{DZ}, v{DZ}, v{DZ+1}\nv_cvt_pk_bf16_f32 v{DZ+1}, v{DZ+2}, v{DZ+3}')
            p('s_mov_b64 exec, 0x00030003')
            p(f'ds_write_b64 v{tZ}, {vr(DZ,2)}')
            p('s_mov_b64 exec, -1')
    p(f'v_and_b32 v{chk}, 0x00010001, v{chk}')
    p(f'v_cmp_ne_u32 vcc, 0, v{chk}')
    if not opt.get('abl_h1'): p('s_cbranch_vccnz B_H1_RETRY')
    p('B_H1_OK:')
    if opt.get('yield_phi') == 2: p(f's_setprio {opt["prioB"]}')
    stamp('q')
    p(f'v_cvt_pk_bf16_f32 v{DK}, v{DK}, v{DK+1}\nv_cvt_pk_bf16_f32 v{DK+1}, v{DK+2}, v{DK+3}')
    p(f'ds_write_b64 v{tK}, {vr(DK,2)}')
    if LOC2:
        p(f'v_xor_b32 v{HF}, s{s_E1}, v{HF}\nv_xor_b32 v{HF+1}, s{s_xcc}, v{HF+1}\nv_or_b32 v{HF}, v{HF}, v{HF+1}\nv_cmp_ne_u32 vcc, 0, v{HF}')
        p(f's_or_b32 s{s_mode}, vcc_lo, vcc_hi')
        if opt.get('slowB'): p(f's_mov_b32 s{s_mode}, 1')
    p('s_waitcnt lgkmcnt(0)\ns_barrier')
    stamp(); stamp('q'); stamp('g')
    OFR = X
    for j in range(4): p(f'ds_read_b128 {vr(OFR+4*j,4)}, v{aX} offset:{16*j}')
    for j in range(4): p(f'ds_read_b128 {vr(OFR+16+4*j,4)}, v{aN} offset:{16*j}')
    AUX, NP, NM = P, ACC0, ACC1
    om = [f'v_mfma_f32_32x32x16_bf16 {vr(AUX,16)}, {vr(OFR+4*j,4)}, {vr(EQ+4*j,4)}, {"0" if j==0 else vr(AUX,16)}' for j in range(4)]
    om += [f'v_mfma_f32_32x32x16_bf16 {vr(NP,16)}, {vr(OFR+16+4*j,4)}, {vr(EQ+4*j,4)}, {"0" if j==0 else vr(NP,16)}' for j in range(2)]
    om += [f'v_mfma_f32_32x32x16_bf16 {vr(NM,16)}, {vr(OFR+16+4*j,4)}, {vr(EQ+4*j,4)}, {"0" if j==2 else vr(NM,16)}' for j in range(2, 4)]
    pl = WF; POL = WF + 2; FLG = WF + 6
    if INP:
        pre2 = L_(f"""s_lshl2_add_u32 s{s_tmp}, s{s_rt}, s{s_w}
s_lshl_b32 s{s_so+1}, s{s_tmp}, 7
s_add_u32 s{s_so+1}, s{s_so+1}, {WS_P2F}
s_lshl_b32 s{s_tmp}, s{s_tmp}, 15
s_add_u32 s{s_so}, s{s_tmp}, 1024
v_and_b32 v{pl}, 0x70, v{vL16}
v_mov_b32 v{pl+1}, 0
v_mov_b32 v{FLG}, s{s_E1}""")
    else:
        pre2 = L_(f"""s_lshl2_add_u32 s{s_tmp}, s{s_rt}, s{s_w}
s_lshl_b32 s{s_tmp}, s{s_tmp}, 14
s_add_u32 s{s_so}, s{s_tmp}, {WS_OX}
v_and_b32 v{pl}, 7, v0
v_lshlrev_b32 v{pl}, 11, v{pl}
v_add_u32 v{pl}, 2032, v{pl}""")
    if WOP == 2:
        w1 = wo_dma(1); ext2(w1[:1]); ext2(pre2)
        for k, m in enumerate(om):
            p(m)
            if k < 7: ext2([w1[k+1]])
    else:
        ext2(pre2); p.ext(om)
    def poll2():
        if INP: return f'buffer_load_dword v{POL}, v{pl}, s[{sWS}:{sWS+3}], s{s_so+1} offen sc1'
        return f'buffer_load_dwordx4 {vr(POL,4)}, v{pl}, s[{sWS}:{sWS+3}], s{s_so} offen sc1'
    tmn = [0]
    def two_mode(st, plain=''):
        k = tmn[0]; tmn[0] += 1
        p(f's_cmp_eq_u32 s{s_mode}, 0\ns_cbranch_scc1 B_TMa{k}')
        p(st + ' sc1', tok='nocount'); p(f's_branch B_TMb{k}\nB_TMa{k}:'); p(st + ' ' + plain); p(f'B_TMb{k}:')
    def flag_store(soff):
        p('s_mov_b64 exec, 1'); two_mode(f'buffer_store_dword v{FLG}, v{pl+1}, s[{sWS}:{sWS+3}], s{soff} offen'); p('s_mov_b64 exec, -1')
    PF = opt.get('pollfirst', 0)
    c0 = E
    p(f'v_rcp_f32 v{c0}, v{AUX}\nv_rcp_f32 v{c0+1}, v{AUX+1}')
    p(f'v_mul_f32 v{c0+2}, v{AUX+2}, v{c0}\nv_fma_f32 v{c0+2}, v{AUX+3}, v{c0+1}, v{c0+2}\nv_add_f32 v{c0+2}, 0x358637bd, v{c0+2}')
    p(f'v_rcp_f32 v{c0+2}, v{c0+2}')
    p(f'v_mul_f32 v{c0}, v{c0}, v{c0+2}\nv_mul_f32 v{c0+1}, v{c0+1}, v{c0+2}')
    OB = E+16
    for hh in range(2):
        for j in range(8*hh, 8*hh+8): p(f'v_mul_f32 v{NP+j}, v{NP+j}, v{c0}')
        for j in range(8*hh, 8*hh+8): p(f'v_fmac_f32 v{NP+j}, v{NM+j}, v{c0+1}')
        for j in range(4*hh, 4*hh+4): p(f'v_cvt_pk_bf16_f32 v{OB+j}, v{NP+2*j}, v{NP+2*j+1}')
        if not INP:
            for j in range(4*hh, 4*hh+4): p(f'v_and_or_b32 v{OB+j}, v{OB+j}, v{vMask}, s{s_t+(j&3)}')
        if PF == 1 + hh: p(poll2())
        st = f'buffer_store_dwordx4 {vr(OB+4*hh,4)}, v{vL16}, s[{sWS}:{sWS+3}], s{s_p2} offen offset:{1024*hh}'
        if INP: st = f'buffer_store_dwordx4 {vr(OB+4*hh,4)}, v{vL16}, s[{sOUT}:{sOUT+3}], s{s_p2} offen offset:{2048*hh}'
        if LOC2: two_mode(st, str(opt.get('oflag', '')))
        else: p(st + ' sc1')
        if opt.get('dupst'): p(f's_add_u32 s3, s{s_p2}, 0x400000'); p(st.replace(f's{s_p2} offen', 's3 offen'))
    stamp(); stamp('g')
    setup = []
    wa, wb, oa, xw, xr = E, E+1, E+3, E+6, E+7
    chk = E+8
    setup += L_(f'''v_bfe_u32 v{E+4}, v0, 2, 2
v_bfe_u32 v{E+5}, v0, 5, 1
v_lshl_add_u32 v{E+9}, v{E+5}, 4, v{E+4}
v_lshlrev_b32 v{wa}, 7, v{E+9}
v_lshrrev_b32 v{E+4}, 1, v{E+4}
v_xor_b32 v{E+4}, s{s_F}, v{E+4}
v_lshl_add_u32 v{wa}, v{E+4}, 6, v{wa}
v_and_b32 v{E+4}, 63, v{vTRv}
v_add_u32 v{wa}, v{wa}, v{E+4}
s_xor_b32 s{s_tmp3}, s{s_F}, {0 if JKV else 1}
s_lshl_b32 s{s_tmp3}, s{s_tmp3}, 15
v_add_u32 v{wa}, s{s_tmp3}, v{wa}
v_xor_b32 v{wb}, 64, v{wa}
v_and_b32 v{E+4}, 31, v0
v_lshlrev_b32 v{E+5}, 5, v{E+5}
v_lshl_add_u32 v{oa}, v{E+4}, 11, v{E+5}
s_lshl1_add_u32 s{s_tmp}, s{s_rt}, s{s_H}
s_lshl_b32 s{s_tmp}, s{s_tmp}, 16
s_lshl1_add_u32 s{s_tmp3}, s{s_ct}, s{s_F}
s_lshl_b32 s{s_tmp3}, s{s_tmp3}, 6
s_add_u32 s{s_oo}, s{s_tmp}, s{s_tmp3}
s_add_u32 s{s_oo}, s{s_oo}, 1024
s_add_u32 s{s_tmp}, s{s_st}, {ST}
s_xor_b32 s{s_tmp3}, s{s_st}, 4096
s_add_u32 s{s_tmp3}, s{s_tmp3}, {ST}
v_add_u32 v{xw}, s{s_tmp}, v{vL16}
v_add_u32 v{xr}, s{s_tmp3}, v{vL16}''')
    e2w, e2r = E+10, E+12
    E3 = opt.get('e3', 0)
    e3k, e3s, e3r = E+12, E+16, E+20
    if E3:
        assert INP
        setup = [x for x in setup if not any(f'v{r},' in x.split(',')[0] + ',' for r in (oa, xw, xr)) and f's{s_oo},' not in x.split(',')[0] + ',']
        setup += L_(f"""v_and_b32 v{E+4}, 31, v0
v_bfe_u32 v{E+5}, v0, 5, 1
v_lshlrev_b32 v{E+5}, 2, v{E+5}
v_and_b32 v{E+9}, 7, v0
v_xor_b32 v{E+5}, v{E+5}, v{E+9}
v_lshlrev_b32 v{E+5}, 4, v{E+5}
v_lshl_add_u32 v{E+5}, v{E+4}, 7, v{E+5}
v_add_u32 v{e3k}, s{s_st}, v{E+5}
v_xor_b32 v{e3k+1}, 16, v{e3k}
v_xor_b32 v{e3k+2}, 32, v{e3k}
v_xor_b32 v{e3k+3}, 48, v{e3k}
v_add_u32 v{e3s}, {ST-RA}, v{e3k}
v_add_u32 v{e3s+1}, {ST-RA}, v{e3k+1}
v_add_u32 v{e3s+2}, {ST-RA}, v{e3k+2}
v_add_u32 v{e3s+3}, {ST-RA}, v{e3k+3}
v_lshrrev_b32 v{E+4}, 3, v0
v_and_b32 v{E+5}, 3, v0
v_lshlrev_b32 v{E+5}, 1, v{E+5}
v_bfe_u32 v{E+10}, v0, 3, 3
v_xor_b32 v{E+5}, v{E+5}, v{E+10}
v_lshlrev_b32 v{E+5}, 4, v{E+5}
v_lshl_add_u32 v{E+5}, v{E+4}, 7, v{E+5}
v_bfe_u32 v{E+10}, v0, 2, 1
v_lshl_add_u32 v{e3r}, v{E+10}, 12, v{E+5}
v_xor_b32 v{e3r+1}, 16, v{e3r}
v_xor_b32 v{e3r+2}, {4096+ST}, v{e3r}
v_xor_b32 v{e3r+3}, 16, v{e3r+2}
v_lshlrev_b32 v{E+9}, 4, v{E+9}
v_lshl_add_u32 v{oa}, v{E+4}, 11, v{E+9}
s_lshl_b32 s{s_tmp}, s{s_rt}, 17
s_lshl_b32 s{s_tmp3}, s{s_ct}, 7
s_add_u32 s{s_oo}, s{s_tmp}, s{s_tmp3}
s_add_u32 s{s_oo}, s{s_oo}, 1024
s_add_u32 s{s_tmp2}, s{s_oo}, 65536
s_lshl_b32 s{s_tmp3}, s{s_ct}, 2
s_lshl_b32 s{s_msk}, 15, s{s_tmp3}""")
    elif opt.get('e2'):
        setup += L_(f"""v_and_b32 v{E+4}, 31, v0
v_bfe_u32 v{E+5}, v0, 5, 1
s_lshl_b32 s{s_tmp}, s{s_F}, 2
v_lshl_add_u32 v{E+5}, v{E+5}, 1, s{s_tmp}
v_and_b32 v{E+9}, 7, v0
v_xor_b32 v{E+5}, v{E+5}, v{E+9}
v_lshlrev_b32 v{E+5}, 4, v{E+5}
v_lshl_add_u32 v{E+5}, v{E+4}, 7, v{E+5}
s_lshl_b32 s{s_tmp}, s{s_H}, 12
v_add_u32 v{e2w}, s{s_tmp}, v{E+5}
v_xor_b32 v{e2w+1}, 16, v{e2w}
v_lshlrev_b32 v{e2r}, 4, v0
v_bfe_u32 v{E+4}, v0, 3, 3
v_xor_b32 v{E+4}, v{E+4}, v{E+9}
v_lshlrev_b32 v{E+4}, 4, v{E+4}
v_lshrrev_b32 v{E+5}, 3, v0
v_lshl_add_u32 v{oa}, v{E+5}, 11, v{E+4}
s_lshl_b32 s{s_tmp}, s{s_rt}, 17
s_lshl_b32 s{s_tmp3}, s{s_ct}, 7
s_add_u32 s{s_oo}, s{s_tmp}, s{s_tmp3}
s_add_u32 s{s_oo}, s{s_oo}, 1024
s_add_u32 s{s_tmp2}, s{s_oo}, 65536""")
    if INP:
        ext2(setup)
        p('s_waitcnt vmcnt(0)')
        flag_store(s_pf)
        if WOP == 0: ext2(wo_dma(1))
    else:
        ext2(setup if WOP >= 1 else interleave(setup, wo_dma(1)))
    if opt.get('pollwait'): p('s_waitcnt vmcnt(0)')
    for n in range(8): p(f's_lshl_b32 s{s_r8+n}, s{s_r8+n}, {12 if INP else 11}\ns_add_u32 s{s_r8+n}, s{s_r8+n}, s{s_so}')
    if INP:
        p(f's_lshl_b32 s{s_so+3}, s{s_rt}, 9\ns_add_u32 s{s_so+3}, s{s_so+3}, {WS_DNF}\ns_lshl2_add_u32 s{s_so+2}, s{s_ct}, s{s_w}\ns_lshl_b32 s{s_so+2}, s{s_so+2}, 4\ns_add_u32 s{s_so+2}, s{s_so+2}, s{s_so+3}')
        p(f'v_and_b32 v{WF+7}, 0x1f0, v{vL16}')
    OF = X
    stamp('g')
    def pcheck():
        if INP:
            p(f'v_cmp_ne_u32 vcc, s{s_E1}, v{POL}'); return
        p(f'v_xor_b32 v{chk}, s{s_t}, v{POL}')
        for j in range(1, 4): p(f'v_bitop3_b32 v{chk}, v{chk}, v{POL+j}, s{s_t+j} bitop3:0xf6')
        p(f'v_and_b32 v{chk}, 0x00010001, v{chk}')
        p(f'v_cmp_ne_u32 vcc, 0, v{chk}')
    if PF:
        pcheck()
        p('s_cbranch_vccz B_H2_FIRST')
    p('B_H2_POLL:')
    p(poll2())
    p(f's_add_u32 s{s_sp}, s{s_sp}, 1\ns_cmp_gt_u32 s{s_sp}, {SPIN_MAX}\ns_cbranch_scc1 B_H2_FIRST')
    pcheck()
    if opt.get('slpB'): p(f's_cbranch_vccz B_H2_FIRST\ns_sleep {opt["slpB"]}\ns_branch B_H2_POLL')
    else: p('s_cbranch_vccnz B_H2_POLL')
    p('B_H2_FIRST:')
    stamp(); stamp('g')
    def o_loads():
        for n in range(16):
            p(f'buffer_load_dwordx4 {vr(OF+4*n,4)}, v{vL16}, s[{sWS}:{sWS+3}], s{s_r8+(n>>1)} offen offset:{1024*(n&1)} sc1')
    G2 = opt.get('g2pipe', 0)
    def oload(n):
        if INP: return f'buffer_load_dwordx4 {vr(OF+4*n,4)}, v{vL16}, s[{sOUT}:{sOUT+3}], s{s_r8+(n>>1)} offen offset:{2048*(n&1)} sc1'
        return f'buffer_load_dwordx4 {vr(OF+4*n,4)}, v{vL16}, s[{sWS}:{sWS+3}], s{s_r8+(n>>1)} offen offset:{1024*(n&1)} sc1'
    assert G2 or not INP
    if G2:
        for n in range(G2): p(oload(n))
        p(f's_waitcnt vmcnt({G2})\ns_barrier')
    else:
        o_loads()
        p('s_waitcnt vmcnt(16)\ns_barrier')
    stamp('g')
    p('B_H2_GO:')
    AK, AS = ACC0, P
    W2 = X + 64
    def wofr(n, slot):
        off = 128*(32*(n >> 1) + 8*(n & 1))
        return trpair(W2+8*slot+4, wb, off, 512) + trpair(W2+8*slot, wa, off, 512)
    NS2 = 5
    for n in range(3): p.ext(wofr(n, n))
    if E3:
        def mS(n): return f'v_mfma_f32_32x32x16_bf16 {vr(AS,16)}, {vr(W2+8*(n%NS2)+4,4)}, {vr(OF+4*n,4)}, {"0" if n==0 else vr(AS,16)}'
        def mK(n): return f'v_mfma_f32_32x32x16_bf16 {vr(AK,16)}, {vr(W2+8*(n%NS2),4)}, {vr(OF+4*n,4)}, {"0" if n==0 else vr(AK,16)}'
        def dn_load(): return f'buffer_load_dword v{POL}, v{WF+7}, s[{sWS}:{sWS+3}], s{s_so+3} offen sc1'
        for n in range(12):
            p(mS(n))
            if n + G2 < 16: p(oload(n+G2))
            p.ext(wofr(n+3, (n+3) % NS2)[:2])
            p(mK(n))
            p.ext(wofr(n+3, (n+3) % NS2)[2:])
            if n == 10: p('s_barrier')
        p(mS(12)); p.ext(wofr(15, 0)); p(mS(13)); p(mS(14)); p(mS(15))
        flag_store(s_so+2)
        p(mK(12)); p(mK(13))
        p(f'ds_write_b128 v{e3s}, {vr(AS,4)}'); p(mK(14)); p(f'ds_write_b128 v{e3s+1}, {vr(AS+4,4)}'); p(mK(15))
        p(f'ds_write_b128 v{e3s+2}, {vr(AS+8,4)}\nds_write_b128 v{e3s+3}, {vr(AS+12,4)}')
        p('B_H2_OK:')
        stamp('g')
        if not opt.get('dnlate'): p(dn_load())
        for j in range(4): p(f'ds_write_b128 v{e3k+j}, {vr(AK+4*j,4)}')
        if opt.get('dnlate') == 1: p(dn_load())
        p('s_waitcnt lgkmcnt(0)\ns_barrier')
        if opt.get('dnlate') == 2: p(dn_load())
        stamp('g')
        STF = opt.get('outflag', '')
        for i in range(2):
            for j in range(2):
                p(f'ds_read_b128 {vr(AK+8*i+4*j,4)}, v{e3r+j} offset:{8192*i}\nds_read_b128 {vr(AS+8*i+4*j,4)}, v{e3r+2+j} offset:{8192*i}')
        for i in range(2):
            for j in range(8): p(f'v_add_f32 v{AK+8*i+j}, v{AK+8*i+j}, v{AS+8*i+j}')
            for j in range(4): p(f'v_cvt_pk_bf16_f32 v{OF+4*i+j}, v{AK+8*i+2*j}, v{AK+8*i+2*j+1}')
            if i == 0:
                p('B_DN_CHK:')
                p(f'v_cmp_ne_u32 vcc, s{s_E1}, v{POL}')
                p(f's_andn2_b32 s3, vcc_lo, s{s_msk}')
                p('s_cbranch_scc1 B_DN_AGAIN')
                p('B_DN_OK:')
            p(f'buffer_store_dwordx4 {vr(OF+4*i,4)}, v{oa}, s[{sOUT}:{sOUT+3}], s{s_oo if i == 0 else s_tmp2} offen {STF}')
    else:
        for n in range(16):
            p(f'v_mfma_f32_32x32x16_bf16 {vr(AS,16)}, {vr(W2+8*(n%NS2)+4,4)}, {vr(OF+4*n,4)}, {"0" if n==0 else vr(AS,16)}')
            if G2 and n + G2 < 16: p(oload(n+G2))
            if n+3 < 16: p.ext(wofr(n+3, (n+3) % NS2)[:2])
            if not INP:
                for j in range(2):
                    if n == 0 and j == 0: p(f'v_xor_b32 v{chk}, s{s_t}, v{OF}')
                    else: p(f'v_bitop3_b32 v{chk}, v{chk}, v{OF+4*n+j}, s{s_t+j} bitop3:0xf6')
            elif n == 15: flag_store(s_so+2)
            p(f'v_mfma_f32_32x32x16_bf16 {vr(AK,16)}, {vr(W2+8*(n%NS2),4)}, {vr(OF+4*n,4)}, {"0" if n==0 else vr(AK,16)}')
            if n+3 < 16: p.ext(wofr(n+3, (n+3) % NS2)[2:])
            if not INP:
                for j in range(2, 4): p(f'v_bitop3_b32 v{chk}, v{chk}, v{OF+4*n+j}, s{s_t+j} bitop3:0xf6')
        if not INP:
            p(f'v_and_b32 v{chk}, 0x00010001, v{chk}')
            p(f'v_cmp_ne_u32 vcc, 0, v{chk}')
            p('s_cbranch_vccnz B_H2_RETRY')
        p('B_H2_OK:')
        stamp('g')
        for j in range(4): p(f'ds_write_b128 v{xw}, {vr(AS+4*j,4)} offset:{1024*j}')
        p('s_waitcnt lgkmcnt(0)\ns_barrier')
        stamp('g')
        for j in range(4): p(f'ds_read_b128 {vr(AS+4*j,4)}, v{xr} offset:{1024*j}')
        def dn_load(): return f'buffer_load_dword v{POL}, v{WF+7}, s[{sWS}:{sWS+3}], s{s_so+3} offen sc1'
        if INP:
            assert opt.get('e2')
            p(dn_load())
        STF = opt.get('outflag', '')
        if not opt.get('e2'):
            for hh in range(2):
                for j in range(8): p(f'v_add_f32 v{AK+8*hh+j}, v{AK+8*hh+j}, v{AS+8*hh+j}')
                for j in range(4): p(f'v_cvt_pk_bf16_f32 v{OB+4*hh+j}, v{AK+8*hh+2*j}, v{AK+8*hh+2*j+1}')
                p(f'buffer_store_dwordx4 {vr(OB+4*hh,4)}, v{oa}, s[{sOUT}:{sOUT+3}], s{s_oo} offen offset:{16*hh} {STF}')
        else:
            for hh in range(2):
                for j in range(8): p(f'v_add_f32 v{AK+8*hh+j}, v{AK+8*hh+j}, v{AS+8*hh+j}')
                for j in range(4): p(f'v_cvt_pk_bf16_f32 v{OB+4*hh+j}, v{AK+8*hh+2*j}, v{AK+8*hh+2*j+1}')
                p(f'ds_write_b128 v{e2w+hh}, {vr(OB+4*hh,4)}')
            p('s_waitcnt lgkmcnt(0)\ns_barrier')
            p(f'ds_read_b128 {vr(AS,4)}, v{e2r}\nds_read_b128 {vr(AS+4,4)}, v{e2r} offset:4096')
            if INP:
                p('B_DN_CHK:')
                p(f'v_cmp_ne_u32 vcc, s{s_E1}, v{POL}')
                p('s_cbranch_vccnz B_DN_AGAIN')
                p('B_DN_OK:')
            p(f'buffer_store_dwordx4 {vr(AS,4)}, v{oa}, s[{sOUT}:{sOUT+3}], s{s_oo} offen {STF}')
            p(f'buffer_store_dwordx4 {vr(AS+4,4)}, v{oa}, s[{sOUT}:{sOUT+3}], s{s_tmp2} offen {STF}')
    stamp('g')
    p(f's_or_b32 s{s_tmp}, s2, s{s_w}\ns_cmp_lg_u32 s{s_tmp}, 0\ns_cbranch_scc1 B_END')
    p(f'v_mov_b32 v{E}, s{s_E1}\nv_mov_b32 v{E+1}, 0\ns_mov_b64 exec, 1')
    p(f'buffer_store_dword v{E}, v{E+1}, s[{sWS}:{sWS+3}], 0 offen offset:{WS_EB} sc1')
    if opt.get('probe'):
        p('s_mul_i32 s98, s98, 100\ns_memtime s[90:91]\ns_waitcnt lgkmcnt(0)\nB_PRB:\ns_memtime s[94:95]\ns_waitcnt lgkmcnt(0)\ns_sub_u32 s94, s94, s90\ns_cmp_lt_u32 s94, s98\ns_cbranch_scc1 B_PRB')
    if opt.get('skew'):
        p(f's_mov_b64 exec, -1\ns_mov_b32 s98, {WS_STAMP}\nbuffer_load_dwordx4 v[20:23], v{vL16}, s[{sWS}:{sWS+3}], s98 offen sc1\ns_waitcnt vmcnt(0)')
        for j in range(4): p(f'v_subrev_u32 v{20+j}, s78, v{20+j}')
        if opt.get('skewmode') == 'late':
            p('v_max3_i32 v24, v20, v21, v22\nv_max_i32 v24, v24, v23\ns_mov_b32 s92, 0')
            for l in range(64): p(f'v_readlane_b32 s93, v24, {l}\ns_max_i32 s92, s92, s93')
        else:
            p('v_min3_i32 v24, v20, v21, v22\nv_min_i32 v24, v24, v23\ns_mov_b32 s92, 0')
            for l in range(64): p(f'v_readlane_b32 s93, v24, {l}\ns_min_i32 s92, s92, s93')
            p('s_sub_u32 s92, 0, s92')
        p('s_mul_i32 s92, s92, 20\ns_memrealtime s[90:91]\ns_waitcnt lgkmcnt(0)\nB_SKW:\ns_memrealtime s[94:95]\ns_waitcnt lgkmcnt(0)\ns_sub_u32 s94, s94, s90\ns_cmp_lt_u32 s94, s92\ns_cbranch_scc1 B_SKW')
    if opt.get('amp'):
        p('s_waitcnt vmcnt(0)\ns_memrealtime s[90:91]\ns_waitcnt lgkmcnt(0)')
        if opt.get('amp_at', -1) < 0: p('s_mov_b32 s99, s90')
        p(f's_sub_u32 s92, s99, s78\ns_mul_i32 s92, s92, {opt["amp"]}\nB_AMP:\ns_memrealtime s[94:95]\ns_waitcnt lgkmcnt(0)\ns_sub_u32 s94, s94, s90\ns_cmp_lt_u32 s94, s92\ns_cbranch_scc1 B_AMP')
    p('B_END:')
    if opt.get('stamps'):
        p('s_mov_b64 exec, -1')
        p('s_waitcnt vmcnt(0)')
        p('s_memtime s[100:101]\ns_memrealtime s[76:77]\ns_waitcnt lgkmcnt(0)')
        for k in range(11): p(f'v_mov_b32 v{16+k}, s{80+2*k}')
        p('v_mov_b32 v27, s78\nv_mov_b32 v28, s76\n' + f'v_mov_b32 v29, s{s_sp}\nv_mov_b32 v30, s{s_rdy}')
        p(f's_lshl_b32 s{s_tmp}, s2, 8\ns_lshl_b32 s{s_tmp2}, s{s_w}, 6\ns_add_u32 s{s_tmp}, s{s_tmp}, s{s_tmp2}\ns_add_u32 s{s_tmp}, s{s_tmp}, {WS_STAMP}')
        p('v_mov_b32 v0, 0\ns_mov_b64 exec, 1')
        for k in range(4): p(f'buffer_store_dwordx4 v[{16+4*k}:{19+4*k}], v0, s[{sWS}:{sWS+3}], s{s_tmp} offen offset:{16*k}')
    p('s_endpgm')
    p.assume_clean()
    for k in range(cpn[0]):
        p(f'B_CPGO{k}:')
        ext2(go_block())
        p(f's_branch B_CP{k}')
        p.assume_clean()
    if DIR:
        p('B_H1_POLLZ:')
        p(z_load())
    p('B_H1_POLL:')
    p('s_waitcnt vmcnt(0)')
    p.ext(z_check())
    p(f's_add_u32 s{s_sp}, s{s_sp}, 1\ns_cmp_gt_u32 s{s_sp}, {SPIN_MAX}\ns_cbranch_scc1 B_H1_GO')
    p('s_cbranch_vccz B_H1_GO')
    p(z_load())
    p('s_branch B_H1_POLL')
    p('B_H1_GO:')
    ext2(go_block())
    p('s_branch B_H1_CHK')
    p.assume_clean()
    p('B_H1_RETRY:')
    p(f's_add_u32 s{s_sp}, s{s_sp}, 1\ns_cmp_gt_u32 s{s_sp}, {SPIN_MAX}\ns_cbranch_scc1 B_H1_OK')
    p('s_sleep 2')
    p.ext(kv_list())
    p('s_waitcnt vmcnt(0)\ns_branch B_H1_CHK')
    p.assume_clean()
    if not INP:
        p('B_H2_RETRY:')
        p(f's_add_u32 s{s_sp}, s{s_sp}, 1\ns_cmp_gt_u32 s{s_sp}, {SPIN_MAX}\ns_cbranch_scc1 B_H2_OK')
        p('s_sleep 2')
        for n in range(G2 or 16): p(oload(n))
        p('s_branch B_H2_GO')
        p.assume_clean()
    if INP:
        p('B_DN_AGAIN:')
        p(f's_add_u32 s{s_sp}, s{s_sp}, 1\ns_cmp_gt_u32 s{s_sp}, {SPIN_MAX}\ns_cbranch_scc1 B_DN_OK')
        p(dn_load())
        p('s_waitcnt vmcnt(0)\ns_branch B_DN_CHK')
        p.assume_clean()
```
